```python
import torch

def _softmax(x, axis=-1):
    return torch.softmax(x, dim=axis)
def _gelu(x):
    return torch.nn.functional.gelu(x, approximate="tanh")
def _silu(x):
    return torch.nn.functional.silu(x)
def _sigmoid(x):
    return torch.sigmoid(x)
def _layernorm(x, axis=-1, eps=1e-5):
    m = x.mean(dim=axis, keepdim=True)
    v = x.var(dim=axis, keepdim=True, unbiased=False)
    return (x - m) / torch.sqrt(v + eps)
def _scatter_add(tgt, idx, src, axis=0):
    return tgt.clone().index_add_(axis, idx, src)
def _segment_sum(src, seg, n):
    out = torch.zeros((n,) + src.shape[1:], dtype=src.dtype)
    return out.index_add_(0, seg, src)
def _pad(x, pw):
    flat = tuple(v for pair in reversed(pw) for v in pair)
    return torch.nn.functional.pad(x, flat)

kernel_name = 'sequential_preLN__linear_attn_block__swiglu_ffn__prompt'

def setup_inputs():

    _w = (lambda a: (lambda t: t.to(torch.bfloat16) if t.is_floating_point() else t)(torch.as_tensor(a)))
    def _A_setup():
        B, S, D = 1, 2048, 512
        return {
            "x": _w((lambda *s: torch.randn(*s, dtype=torch.bfloat16) * 0.05)(B, S, D)),
            "wqkv": _w((lambda *s: torch.randn(*s, dtype=torch.bfloat16) * 0.05)(D, 3 * D)),
            "wo": _w((lambda *s: torch.randn(*s, dtype=torch.bfloat16) * 0.05)(D, D)),
        }
    _A_in = _A_setup()

    def _B_setup():
        B, S, D, F = 1, 2048, 512, 1792
        return {
            "x": _w((lambda *s: torch.randn(*s, dtype=torch.bfloat16) * 0.05)(B, S, D)),
            "w_gate": _w((lambda *s: torch.randn(*s, dtype=torch.bfloat16) * 0.05)(D, F)),
            "w_up": _w((lambda *s: torch.randn(*s, dtype=torch.bfloat16) * 0.05)(D, F)),
            "w_down": _w((lambda *s: torch.randn(*s, dtype=torch.bfloat16) * 0.05)(F, D)),
        }
    _B_in = _B_setup()

    return {
        "A_x": _A_in["x"],
        "A_wqkv": _A_in["wqkv"],
        "A_wo": _A_in["wo"],
        "B_x": _B_in["x"],
        "B_w_gate": _B_in["w_gate"],
        "B_w_up": _B_in["w_up"],
        "B_w_down": _B_in["w_down"],
    }

def reference(A_x, A_wqkv, A_wo, B_x, B_w_gate, B_w_up, B_w_down):
    def _A_ref(x, wqkv, wo):
        B, S, D = x.shape
        H = 32; Dh = D // H
        qkv = (lambda x, *d: x.permute(*d))((x @ wqkv).reshape(B, S, 3, H, Dh), 2, 0, 3, 1, 4)
        q, k, v = qkv[0], qkv[1], qkv[2]
        phi = lambda t: torch.where(t > 0, t + 1, torch.exp(t)) + 1e-6
        pq, pk = phi(q), phi(k)
        kv = torch.einsum("bhsd,bhse->bhde", pk, v)
        z = torch.einsum("bhsd->bhd", pk)
        num = torch.einsum("bhqd,bhde->bhqe", pq, kv)
        den = torch.einsum("bhqd,bhd->bhq", pq, z)[..., None] + 1e-6
        o = num / den
        return (lambda x, *d: x.permute(*d))(o, 0, 2, 1, 3).reshape(B, S, D) @ wo

    def _B_ref(x, w_gate, w_up, w_down):
        g = _silu(x @ w_gate)
        u = x @ w_up
        return (g * u) @ w_down

    x = A_x
    h = x + _A_ref(_layernorm(x, axis=-1), A_wqkv, A_wo)
    h2 = h + _B_ref(_layernorm(h, axis=-1), B_w_gate, B_w_up, B_w_down)
    return h2
```

```python
import re

REG_RE = re.compile(r'^(-|abs\()?([vas])(\d+)\)?$')
RANGE_RE = re.compile(r'^(-)?([vas])\[(\d+):(\d+)\]$')


def parse_regs(op):
    op = op.strip()
    m = REG_RE.match(op)
    if m:
        return [(m.group(2), int(m.group(3)))]
    m = RANGE_RE.match(op)
    if m:
        return [(m.group(2), i) for i in range(int(m.group(3)), int(m.group(4)) + 1)]
    if op in ('vcc', 'vcc_lo', 'vcc_hi'):
        return [('x', 'vcc')]
    if op in ('exec', 'exec_lo', 'exec_hi'):
        return [('x', 'exec')]
    if op == 'm0':
        return [('x', 'm0')]
    return []


TRANS = ('v_exp_f32', 'v_log_f32', 'v_rcp_f32', 'v_rsq_f32', 'v_sqrt_f32', 'v_sin_f32', 'v_cos_f32')
RMW_VALU = ('v_fmac_f32', 'v_dot2c_f32_bf16', 'v_fmac_f64', 'v_pk_fmac_f16', 'v_mac_f32')


class Ins:
    __slots__ = ('text', 'op', 'reads', 'writes', 'kind', 'vm', 'lgkm', 'smem', 'label', 'nops', 'wait_vm',
                 'wait_lgkm', 'passes', 'srcC', 'srcAB', 'wide_store', 'lds_dma', 'trans', 'dpp', 'comment',
                 'is_wait', 'nop_states', 'need', 'sgpr_reads_vmem', 'manual')

    def __init__(self, text):
        self.text = text
        self.label = None
        self.nops = 0
        self.wait_vm = None
        self.wait_lgkm = None
        self.reads = []
        self.writes = []
        self.kind = 'other'
        self.vm = False
        self.lgkm = False
        self.smem = False
        self.passes = 0
        self.srcC = []
        self.srcAB = []
        self.wide_store = False
        self.lds_dma = False
        self.trans = False
        self.dpp = False
        self.is_wait = None
        self.nop_states = 1
        self.need = []
        self.manual = False


def split_ops(s):
    out, depth, cur = [], 0, ''
    for ch in s:
        if ch in '[(':
            depth += 1
        if ch in '])':
            depth -= 1
        if ch == ',' and depth == 0:
            out.append(cur.strip())
            cur = ''
        else:
            cur += ch
    if cur.strip():
        out.append(cur.strip())
    return out


def parse(text, extra_reads=(), extra_writes=()):
    ins = Ins(text)
    t = text.strip()
    parts = t.split(None, 1)
    op = parts[0]
    ins.op = op
    rest = parts[1] if len(parts) > 1 else ''
    ops = split_ops(rest)
    mods = ''
    if ops:
        last = ops[-1].split()
        if len(last) > 1 and not ops[-1].startswith('hwreg'):
            ops[-1] = last[0]
            mods = ' '.join(last[1:])
    base = re.sub(r'_(e32|e64|dpp|sdwa)$', '', op)
    R = lambda i: parse_regs(ops[i]) if i < len(ops) else []
    allregs = lambda idxs: [r for i in idxs for r in R(i)]
    n = len(ops)
    if base.startswith('v_mfma'):
        ins.kind = 'mfma'
        ins.writes = R(0)
        ins.srcAB = R(1) + R(2)
        ins.srcC = R(3)
        ins.reads = ins.srcAB + ins.srcC
        if '32x32x16' in base:
            ins.passes = 8
        elif '16x16x32' in base:
            ins.passes = 4
        else:
            raise ValueError('unknown mfma ' + base)
    elif base.startswith('v_cmp'):
        ins.kind = 'valu'
        ins.writes = R(0)
        ins.reads = allregs(range(1, n))
    elif base in ('v_readfirstlane_b32', 'v_readlane_b32'):
        ins.kind = 'valu'
        ins.writes = R(0)
        ins.reads = allregs(range(1, n))
    elif base.startswith('v_permlane'):
        ins.kind = 'valu'
        ins.writes = R(0) + R(1)
        ins.reads = R(0) + R(1)
    elif base in ('v_add_co_u32', 'v_sub_co_u32', 'v_addc_co_u32', 'v_subb_co_u32'):
        ins.kind = 'valu'
        ins.writes = R(0) + R(1)
        ins.reads = allregs(range(2, n))
    elif base.startswith('v_'):
        ins.kind = 'valu'
        ins.writes = R(0)
        ins.reads = allregs(range(1, n))
        if base in RMW_VALU:
            ins.reads += R(0)
        if base in TRANS:
            ins.trans = True
        if op.endswith('_dpp') or 'row_' in mods or 'quad_perm' in mods:
            ins.dpp = True
            ins.reads += R(0)
        if base == 'v_cndmask_b32' and n == 3:
            ins.reads += [('x', 'vcc')]
    elif base.startswith('ds_'):
        ins.kind = 'ds'
        ins.lgkm = True
        if base.startswith('ds_read') or base.startswith('ds_bpermute') or base.startswith('ds_swizzle') \
                or base.startswith('ds_permute'):
            ins.writes = R(0)
            ins.reads = allregs(range(1, n))
        else:
            ins.reads = allregs(range(0, n))
    elif base.startswith('buffer_') or base.startswith('global_'):
        ins.kind = 'vmem'
        ins.vm = True
        modl = mods.split()
        if base in ('buffer_inv', 'buffer_wbl2'):
            pass
        elif 'lds' in modl or base.startswith('global_load_lds'):
            ins.lds_dma = True
            ins.reads = allregs(range(0, n)) + [('x', 'm0')]
        elif '_load' in base:
            ins.writes = R(0)
            ins.reads = allregs(range(1, n))
        elif '_store' in base:
            ins.reads = allregs(range(0, n))
            if 'x4' in base or 'x3' in base:
                ins.wide_store = True
        elif '_atomic' in base:
            ins.reads = allregs(range(0, n))
            if 'sc0' in modl:
                ins.writes = R(0)
        else:
            raise ValueError('unknown vmem ' + text)
    elif base.startswith('s_load') or base.startswith('s_buffer_load') or base in ('s_memtime', 's_memrealtime'):
        ins.kind = 'smem'
        ins.lgkm = True
        ins.smem = True
        ins.writes = R(0)
        ins.reads = allregs(range(1, n))
    elif base == 's_waitcnt':
        ins.kind = 'wait'
        vm = re.search(r'vmcnt\((\d+)\)', rest)
        lg = re.search(r'lgkmcnt\((\d+)\)', rest)
        ins.is_wait = (int(vm.group(1)) if vm else None, int(lg.group(1)) if lg else None)
    elif base == 's_nop':
        ins.kind = 'nop'
        ins.nop_states = int(ops[0], 0) + 1
    elif base in ('s_barrier', 's_endpgm', 's_setprio', 's_sleep', 's_branch') or base.startswith('s_cbranch'):
        ins.kind = 'ctl'
        if base in ('s_cbranch_vccz', 's_cbranch_vccnz'):
            ins.reads = [('x', 'vcc')]
        if base in ('s_cbranch_execz', 's_cbranch_execnz'):
            ins.reads = [('x', 'exec')]
    elif base.startswith('s_cmp') or base.startswith('s_bitcmp'):
        ins.kind = 'salu'
        ins.reads = allregs(range(0, n))
    elif base.startswith('s_'):
        ins.kind = 'salu'
        ins.writes = R(0)
        ins.reads = allregs(range(1, n))
        if 'saveexec' in base:
            ins.writes += [('x', 'exec')]
            ins.reads += [('x', 'exec')]
        if base in ('s_addk_i32', 's_mulk_i32'):
            ins.reads += R(0)
    else:
        raise ValueError('cannot parse: ' + text)
    ins.reads = list(ins.reads) + list(extra_reads)
    ins.writes = list(ins.writes) + list(extra_writes)
    return ins


class Kernel:
    def __init__(self, name):
        self.name = name
        self.items = []
        self.uid = 0

    def I(self, text, r=(), w=()):
        for line in text.strip().split('\n'):
            line = line.split(';')[0].strip()
            if not line:
                continue
            ins = parse(line, [('p', x) for x in r], [('p', x) for x in w])
            self.items.append(ins)
        return self

    def need(self, *res):
        ins = Ins('')
        ins.op = 'pseudo_need'
        ins.kind = 'pseudo'
        ins.reads = [('p', x) for x in res]
        self.items.append(ins)

    def label(self, name):
        self.items.append(('label', name))

    def comment(self, text):
        self.items.append(('comment', text))

    def loop_begin(self, name, sim=3):
        self.items.append(('label', name))
        self.items.append(('loop_begin', name, sim))

    def loop_end(self, name):
        self.items.append(('loop_end', name))

    def fence(self):
        self.items.append(('fence',))

    def trace(self):
        out = []
        stack = []
        i = 0
        items = self.items

        def expand(lo, hi):
            res = []
            i = lo
            while i < hi:
                it = items[i]
                if isinstance(it, tuple) and it[0] == 'loop_begin':
                    depth = 1
                    j = i + 1
                    while True:
                        jt = items[j]
                        if isinstance(jt, tuple) and jt[0] == 'loop_end' and jt[1] == it[1]:
                            break
                        j += 1
                    body = expand(i + 1, j)
                    for _ in range(it[2]):
                        res += body
                    i = j + 1
                    continue
                if isinstance(it, Ins) or it[0] == 'fence':
                    res.append(i)
                i += 1
            return res

        return expand(0, len(items))

    def insert_waits(self):
        tr = self.trace()
        items = self.items
        changed = True
        rounds = 0
        while changed:
            changed = False
            rounds += 1
            assert rounds < 20
            vmq = []
            lgq = []
            for idx in tr:
                ins = items[idx]
                if not isinstance(ins, Ins):
                    vmq, lgq = [], []
                    continue
                touched = set(ins.reads) | {r for r in ins.writes if r[0] != 'p'}
                need_vm = None
                need_lg = None
                if touched and ins.kind != 'wait':
                    for pos in range(len(vmq) - 1, -1, -1):
                        if vmq[pos] & touched:
                            need_vm = len(vmq) - 1 - pos
                            break
                    for pos in range(len(lgq) - 1, -1, -1):
                        if lgq[pos][0] & touched:
                            need_lg = len(lgq) - 1 - pos
                            if any(e[1] for e in lgq):
                                need_lg = 0
                            break
                if need_vm is not None:
                    need_vm = min(need_vm, 63)
                    if ins.wait_vm is None or need_vm < ins.wait_vm:
                        ins.wait_vm = need_vm
                        changed = True
                if need_lg is not None:
                    need_lg = min(need_lg, 15)
                    if ins.wait_lgkm is None or need_lg < ins.wait_lgkm:
                        ins.wait_lgkm = need_lg
                        changed = True
                wv, wl = ins.wait_vm, ins.wait_lgkm
                if ins.kind == 'wait':
                    wv, wl = ins.is_wait
                if wv is not None:
                    while len(vmq) > wv:
                        vmq.pop(0)
                if wl is not None:
                    if any(e[1] for e in lgq):
                        if wl == 0:
                            lgq = []
                    else:
                        while len(lgq) > wl:
                            lgq.pop(0)
                if ins.vm:
                    vmq.append(set(ins.writes))
                    assert len(vmq) <= 63 or True
                if ins.lgkm:
                    lgq.append((set(ins.writes), ins.smem))
                if ins.op == 's_endpgm':
                    vmq, lgq = [], []

    def insert_nops(self):
        tr = self.trace()
        items = self.items
        changed = True
        rounds = 0
        while changed:
            changed = False
            rounds += 1
            assert rounds < 20
            hist = []
            for idx in tr:
                ins = items[idx]
                if not isinstance(ins, Ins):
                    hist = []
                    continue
                if ins.kind == 'pseudo':
                    continue
                req = 0
                dist = 0
                own_wait = 1 if (ins.wait_vm is not None or ins.wait_lgkm is not None) and ins.kind != 'wait' else 0
                dist = own_wait
                rd = set(ins.reads)
                wr = set(ins.writes)
                for p in reversed(hist):
                    if dist > 24:
                        break
                    need = hazard(p, ins, rd, wr)
                    if need > dist:
                        req = max(req, need - dist)
                    dist += p.nop_states + p.nops + (
                        1 if (p.wait_vm is not None or p.wait_lgkm is not None) and p.kind != 'wait' else 0)
                if req > ins.nops:
                    ins.nops = req
                    changed = True
                hist.append(ins)
                if len(hist) > 40:
                    hist.pop(0)

    def render(self):
        out = []
        for it in self.items:
            if isinstance(it, Ins):
                if it.kind == 'pseudo':
                    w = wait_text(it.wait_vm, it.wait_lgkm)
                    if w:
                        out.append('    ' + w)
                    continue
                w = wait_text(it.wait_vm, it.wait_lgkm) if it.kind != 'wait' else None
                if w:
                    out.append('    ' + w)
                n = it.nops
                while n > 0:
                    k = min(n, 16)
                    out.append('    s_nop %d' % (k - 1))
                    n -= k
                out.append('    ' + it.text)
            elif it[0] == 'label':
                out.append(it[1] + ':')
            elif it[0] == 'comment':
                out.append('    ; ' + it[1])
        return '\n'.join(out)

    def finish(self):
        self.insert_waits()
        self.insert_nops()
        return self.render()

    def stats(self):
        from collections import Counter
        c = Counter()
        for it in self.items:
            if isinstance(it, Ins):
                c[it.kind] += 1
        return dict(c)

    def maxreg(self):
        mx = {'v': -1, 'a': -1, 's': -1}
        for it in self.items:
            if isinstance(it, Ins):
                for (t, i) in list(it.reads) + list(it.writes):
                    if t in mx:
                        mx[t] = max(mx[t], i)
        return mx


def wait_text(vm, lg):
    p = []
    if vm is not None:
        p.append('vmcnt(%d)' % vm)
    if lg is not None:
        p.append('lgkmcnt(%d)' % lg)
    return ('s_waitcnt ' + ' '.join(p)) if p else None


def is_sg(r):
    return r[0] == 's' or r == ('x', 'vcc')


def hazard(p, c, rd, wr):
    need = 0
    pw = set(p.writes)
    if p.kind == 'valu':
        vw = {r for r in pw if r[0] in 'va'}
        sw = {r for r in pw if is_sg(r)}
        if c.kind == 'mfma' and vw & rd:
            need = max(need, 2)
        if p.trans and c.kind == 'valu' and not c.trans and vw & rd:
            need = max(need, 1)
        if p.trans and c.kind == 'valu' and c.trans and vw & rd:
            need = max(need, 1)
        if sw and c.kind in ('valu', 'mfma') and sw & rd:
            if c.op.startswith('v_readlane') or c.op.startswith('v_writelane'):
                need = max(need, 4)
            else:
                need = max(need, 2)
        if sw and c.kind == 'vmem' and sw & rd:
            need = max(need, 5)
        if sw and c.kind in ('salu', 'ctl', 'smem') and sw & rd:
            need = max(need, 5 if c.kind == 'ctl' else 1)
        if c.kind == 'valu' and vw & rd:
            if c.op.startswith('v_readfirstlane') or c.op.startswith('v_readlane'):
                need = max(need, 1)
            if c.op.startswith('v_permlane') or c.dpp:
                need = max(need, 2)
        if ('x', 'exec') in pw and c.kind in ('valu', 'mfma'):
            need = max(need, 5)
        if p.op.startswith('v_dot') and vw & (rd | wr):
            same = c.op == p.op and not (vw & (rd - wr)) and list(c.reads).count(list(vw)[0]) <= 1
            if not same:
                need = max(need, 3)
    if p.kind == 'mfma':
        P = p.passes
        full = {8: 12, 4: 8}[P]
        over = {8: 10, 4: 6}[P]
        if c.kind == 'mfma':
            if pw & set(c.srcAB):
                need = max(need, full)
            if pw & set(c.srcC):
                if list(p.writes) == list(c.srcC) and p.passes == c.passes:
                    pass
                else:
                    need = max(need, over)
            elif pw & wr:
                need = max(need, over)
        elif c.kind in ('valu', 'vmem', 'ds'):
            if pw & (rd | wr):
                need = max(need, full)
        if c.kind == 'valu' and set(p.srcC) & wr:
            need = max(need, {8: 7, 4: 3}[P])
    if p.kind == 'vmem' and p.wide_store:
        data = {r for r in p.reads if r[0] in 'va'}
        if c.kind == 'valu' and data & wr:
            need = max(need, 2)
        elif data & wr:
            need = max(need, 1)
    if p.kind == 'ds' and p.op.startswith('ds_write') and ('128' in p.op or '96' in p.op):
        data = {r for r in p.reads if r[0] in 'va'}
        if c.kind == 'valu' and data & wr:
            need = max(need, 2)
    if p.kind == 'salu' and ('x', 'm0') in pw and (c.lds_dma or 'addtid' in c.op):
        need = max(need, 1)
    if p.kind == 'salu' and ('x', 'exec') in pw and c.kind == 'valu' and c.dpp:
        need = max(need, 1)
    return need
```

```python
import sys
from asmgen import Kernel

NAME = 'sequential_preLN__linear_attn_block__swiglu_ffn__prompt'

OFF_XF = 0x0
OFF_WQKV = 0x200000
OFF_PQ = 0x380000
OFF_KVZ = 0x580000
OFF_WO = 0x590000
OFF_H = 0x610000
OFF_WGU = 0x810000
OFF_CSG = 0xB90000
OFF_CSQ = 0xBC8000
OFF_ACT = 0xBE0000
OFF_WD = 0x12E0000
WS_USED = 0x14A0000

KA = dict(x=0, wqkv=8, wo=16, bx=24, wg=32, wu=40, wd=48, out=56, dbg=64, ws=72)
SZ = dict(x=2048 * 512 * 2, wqkv=512 * 1536 * 2, wo=512 * 512 * 2, wg=512 * 1792 * 2, wu=512 * 1792 * 2,
          wd=1792 * 512 * 2, out=2048 * 512 * 2, dbg=256, ws=WS_USED)
ONES_BF16 = 0x3f803f80


def vr(lo, n=1):
    return 'v%d' % lo if n == 1 else 'v[%d:%d]' % (lo, lo + n - 1)


def ar(lo, n=1):
    return 'a%d' % lo if n == 1 else 'a[%d:%d]' % (lo, lo + n - 1)


def sr(lo, n=1):
    return 's%d' % lo if n == 1 else 's[%d:%d]' % (lo, lo + n - 1)


def load_srds(k, srds, first=True):
    for name, sb in srds:
        k.I('s_load_dwordx2 %s, s[0:1], %d' % (sr(sb, 2), KA[name]))
    for name, sb in srds:
        k.I('s_mov_b32 %s, 0x%x' % (sr(sb + 2), SZ[name]))
        k.I('s_mov_b32 %s, 0x00020000' % sr(sb + 3))


def div_const(k, dst, src, d, tmp):
    magic = -(-(1 << 32) // d)
    k.I('s_mov_b32 %s, 0x%x' % (sr(tmp), magic))
    k.I('s_mul_hi_u32 %s, %s, %s' % (sr(dst), sr(src), sr(tmp)))


def cross_half_sum(k, v, tmp):
    k.I('v_mov_b32 %s, %s' % (vr(tmp), vr(v)))
    k.I('v_permlane32_swap_b32 %s, %s' % (vr(v), vr(tmp)))
    k.I('v_add_f32 %s, %s, %s' % (vr(v), vr(v), vr(tmp)))


def gen_k0():
    k = Kernel('prep_kernel')
    S_X, S_WQ, S_WO, S_WG, S_WU, S_WD, S_WS = 4, 8, 12, 16, 20, 24, 28
    k.I('s_cmp_ge_u32 s2, 256')
    k.I('s_cbranch_scc1 L_k0_end')
    load_srds(k, [('x', S_X), ('wqkv', S_WQ), ('wo', S_WO), ('wg', S_WG), ('wu', S_WU), ('wd', S_WD), ('ws', S_WS)])
    k.I('v_and_b32 v1, 63, v0')
    k.I('v_lshrrev_b32 v2, 6, v0')
    k.I('v_readfirstlane_b32 s33, v2')
    k.I('s_lshl_b32 s34, s2, 2')
    k.I('s_add_u32 s34, s34, s33')
    k.I('s_lshl_b32 s35, s33, 13')
    k.I('v_and_b32 v2, 31, v1')
    k.I('v_lshlrev_b32 v2, 10, v2')
    k.I('v_lshrrev_b32 v3, 5, v1')
    k.I('v_lshlrev_b32 v3, 4, v3')
    k.I('v_add_u32 v2, v2, v3')
    k.I('v_lshlrev_b32 v4, 4, v1')
    k.I('s_lshl_b32 s36, s34, 1')
    k.I('s_lshr_b32 s37, s36, 5')
    k.I('s_lshl_b32 s37, s37, 15')
    k.I('s_and_b32 s38, s36, 31')
    k.I('s_lshl_b32 s38, s38, 5')
    k.I('s_add_u32 s37, s37, s38')
    k.I('s_waitcnt lgkmcnt(0)')
    k.I('buffer_load_dwordx4 v[8:11], v2, %s, s37 offen' % sr(S_X, 4))
    k.I('buffer_load_dwordx4 v[12:15], v2, %s, s37 offen offset:32' % sr(S_X, 4))
    k.I('s_lshl_b32 s39, s36, 10')
    k.I('s_add_u32 s39, s39, 0x%x' % OFF_XF)
    k.I('buffer_store_dwordx4 v[8:11], v4, %s, s39 offen' % sr(S_WS, 4))
    k.I('buffer_store_dwordx4 v[12:15], v4, %s, s39 offen offset:1024' % sr(S_WS, 4))
    k.I('s_cmp_ge_u32 s34, 64')
    k.I('s_cbranch_scc1 L_k0_nozero')
    k.I('v_mov_b32 v8, 0')
    k.I('v_mov_b32 v9, 0')
    k.I('v_mov_b32 v10, 0')
    k.I('v_mov_b32 v11, 0')
    k.I('s_lshl_b32 s39, s34, 10')
    k.I('s_add_u32 s39, s39, 0x%x' % OFF_KVZ)
    k.I('buffer_store_dwordx4 v[8:11], v4, %s, s39 offen' % sr(S_WS, 4))
    k.label('L_k0_nozero')
    k.I('s_waitcnt vmcnt(0)')
    k.fence()
    k.I('v_lshrrev_b32 v5, 3, v1')
    k.I('v_and_b32 v6, 7, v1')
    k.I('v_lshlrev_b32 v6, 4, v6')
    k.I('v_lshrrev_b32 v7, 4, v1')
    k.I('v_and_b32 v16, 15, v1')
    k.I('v_lshrrev_b32 v17, 2, v16')
    k.I('v_and_b32 v18, 3, v16')
    k.I('v_lshlrev_b32 v18, 3, v18')
    k.I('v_and_b32 v19, 1, v7')
    k.I('v_lshrrev_b32 v20, 1, v7')
    k.I('s_cmp_ge_u32 s34, 928')
    k.I('s_cbranch_scc1 L_k0_end')
    k.I('s_cmp_ge_u32 s34, 448')
    k.I('s_cbranch_scc1 L_k0_std')
    div_const(k, 40, 34, 28, 41)
    k.I('s_mul_i32 s41, s40, 28')
    k.I('s_sub_u32 s41, s34, s41')
    k.I('s_mov_b32 s42, 3584')
    k.I('v_mul_lo_u32 v21, v5, s42')
    k.I('v_add_u32 v21, v21, v6')
    k.I('s_mul_i32 s43, s40, %d' % (32 * 3584))
    k.I('s_lshl_b32 s44, s41, 7')
    k.I('s_add_u32 s43, s43, s44')
    for t in range(8):
        k.I('s_add_u32 s44, s35, %d' % (t * 1024))
        k.I('s_mov_b32 m0, s44')
        k.I('s_add_u32 s45, s43, %d' % ((t % 4) * 8 * 3584))
        k.I('buffer_load_dwordx4 v21, %s, s45 offen lds' % sr(S_WG if t < 4 else S_WU, 4), w=['img'])
    k.I('v_lshlrev_b32 v22, 5, v19')
    k.I('v_lshlrev_b32 v23, 2, v20')
    k.I('v_add3_u32 v22, v22, v23, v17')
    k.I('v_lshlrev_b32 v22, 7, v22')
    k.I('v_add3_u32 v22, v22, v18, s35')
    k.I('v_add_u32 v23, %d, v22' % (8 * 128))
    k.need('img')
    for c in range(4):
        k.I('v_mov_b32 %s, 0' % vr(60 + c))
    for ks in range(2):
        for c in range(4):
            d = 24 + (ks * 4 + c) * 4
            off = ks * 2048 + c * 32
            k.I('ds_read_b64_tr_b16 %s, v22 offset:%d' % (vr(d, 2), off))
            k.I('ds_read_b64_tr_b16 %s, v23 offset:%d' % (vr(d + 2, 2), off))
    k.I('s_lshl_b32 s44, s41, 7')
    k.I('s_lshl_b32 s45, s40, 1')
    k.I('s_add_u32 s44, s44, s45')
    k.I('s_lshl_b32 s44, s44, 10')
    k.I('s_add_u32 s44, s44, 0x%x' % OFF_WGU)
    k.I('s_mov_b32 s46, 0x%x' % ONES_BF16)
    for ks in range(2):
        for c in range(4):
            d = 24 + (ks * 4 + c) * 4
            k.I('s_add_u32 s45, s44, %d' % ((c * 32 + ks) * 1024))
            k.I('buffer_store_dwordx4 %s, v4, %s, s45 offen' % (vr(d, 4), sr(S_WS, 4)))
            for j in range(4):
                k.I('v_dot2c_f32_bf16 %s, s46, %s' % (vr(60 + c), vr(d + j)))
    k.I('v_and_b32 v2, 31, v1')
    k.I('v_lshlrev_b32 v2, 2, v2')
    k.I('s_mul_i32 s44, s40, %d' % (112 * 128))
    k.I('s_lshl_b32 s45, s41, 9')
    k.I('s_add_u32 s44, s44, s45')
    k.I('s_add_u32 s44, s44, 0x%x' % OFF_CSG)
    for c in range(4):
        cross_half_sum(k, 60 + c, 3)
        k.I('buffer_store_dword %s, v2, %s, s44 offen offset:%d' % (vr(60 + c), sr(S_WS, 4), c * 128))
    k.I('s_endpgm')
    k.fence()
    k.label('L_k0_std')
    k.I('s_cmp_ge_u32 s34, 672')
    k.I('s_cbranch_scc1 L_k0_notwd')
    k.I('s_sub_u32 s40, s34, 448')
    k.I('s_and_b32 s41, s40, 7')
    k.I('s_lshr_b32 s40, s40, 3')
    for j in range(4):
        k.I('s_mov_b32 %s, %s' % (sr(48 + j), sr(S_WD + j)))
    k.I('s_mov_b32 s52, 1024')
    k.I('s_mul_i32 s54, s41, 224')
    k.I('s_lshl_b32 s44, s40, 2')
    k.I('s_add_u32 s54, s54, s44')
    k.I('s_lshl_b32 s54, s54, 10')
    k.I('s_add_u32 s54, s54, 0x%x' % OFF_WD)
    k.I('s_mov_b32 s55, 1024')
    k.I('s_mov_b32 s56, %d' % (112 * 1024))
    k.I('s_mov_b32 s57, 4')
    k.I('s_mov_b32 s58, %d' % (8 * 128))
    k.I('s_mov_b32 s59, 0')
    k.I('s_branch L_k0_go')
    k.label('L_k0_notwd')
    k.I('s_cmp_ge_u32 s34, 864')
    k.I('s_cbranch_scc1 L_k0_wo')
    k.I('s_sub_u32 s44, s34, 672')
    div_const(k, 40, 44, 24, 41)
    k.I('s_mul_i32 s41, s40, 24')
    k.I('s_sub_u32 s41, s44, s41')
    for j in range(4):
        k.I('s_mov_b32 %s, %s' % (sr(48 + j), sr(S_WQ + j)))
    k.I('s_mov_b32 s52, 3072')
    k.I('s_lshl_b32 s54, s41, 6')
    k.I('s_lshl_b32 s44, s40, 2')
    k.I('s_add_u32 s54, s54, s44')
    k.I('s_lshl_b32 s54, s54, 10')
    k.I('s_add_u32 s54, s54, 0x%x' % OFF_WQKV)
    k.I('s_mov_b32 s55, 1024')
    k.I('s_mov_b32 s56, %d' % (32 * 1024))
    k.I('s_mov_b32 s57, 8')
    k.I('s_mov_b32 s58, %d' % (4 * 128))
    k.I('s_mul_i32 s59, s40, 48')
    k.I('s_lshl_b32 s44, s41, 1')
    k.I('s_add_u32 s59, s59, s44')
    k.I('s_lshl_b32 s59, s59, 7')
    k.I('s_add_u32 s59, s59, 0x%x' % OFF_CSQ)
    k.I('s_branch L_k0_go')
    k.label('L_k0_wo')
    k.I('s_sub_u32 s40, s34, 864')
    k.I('s_and_b32 s41, s40, 7')
    k.I('s_lshr_b32 s40, s40, 3')
    for j in range(4):
        k.I('s_mov_b32 %s, %s' % (sr(48 + j), sr(S_WO + j)))
    k.I('s_mov_b32 s52, 1024')
    k.I('s_lshl_b32 s54, s40, 6')
    k.I('s_lshl_b32 s44, s41, 1')
    k.I('s_add_u32 s54, s54, s44')
    k.I('s_lshl_b32 s54, s54, 10')
    k.I('s_add_u32 s54, s54, 0x%x' % OFF_WO)
    k.I('s_mov_b32 s55, %d' % (16 * 1024))
    k.I('s_mov_b32 s56, 1024')
    k.I('s_mov_b32 s57, 4')
    k.I('s_mov_b32 s58, %d' % (8 * 128))
    k.I('s_mov_b32 s59, 0')
    k.label('L_k0_go')
    k.fence()
    k.I('s_lshl_b32 s53, s52, 6')
    k.I('s_mul_i32 s53, s53, s40')
    k.I('s_lshl_b32 s44, s41, 7')
    k.I('s_add_u32 s53, s53, s44')
    k.I('v_mul_lo_u32 v21, v5, s52')
    k.I('v_add_u32 v21, v21, v6')
    k.I('s_lshl_b32 s47, s52, 3')
    for t in range(8):
        k.I('s_add_u32 s44, s35, %d' % (t * 1024))
        k.I('s_mov_b32 m0, s44')
        k.I('buffer_load_dwordx4 v21, s[48:51], s53 offen lds', w=['img2'])
        k.I('s_add_u32 s53, s53, s47')
    k.I('v_mul_lo_u32 v22, v20, s57')
    k.I('v_add_u32 v22, v22, v17')
    k.I('v_lshlrev_b32 v22, 7, v22')
    k.I('v_lshlrev_b32 v23, 5, v19')
    k.I('v_add3_u32 v22, v22, v23, v18')
    k.I('v_add_u32 v22, s35, v22')
    k.I('v_add_u32 v23, s58, v22')
    k.need('img2')
    for c in range(2):
        k.I('v_mov_b32 %s, 0' % vr(60 + c))
    for ks in range(4):
        for nb in range(2):
            d = 24 + (ks * 2 + nb) * 4
            off = ks * 2048 + nb * 64
            k.I('ds_read_b64_tr_b16 %s, v22 offset:%d' % (vr(d, 2), off))
            k.I('ds_read_b64_tr_b16 %s, v23 offset:%d' % (vr(d + 2, 2), off))
    k.I('s_mov_b32 s46, 0x%x' % ONES_BF16)
    for ks in range(4):
        for nb in range(2):
            d = 24 + (ks * 2 + nb) * 4
            k.I('s_mul_i32 s44, s55, %d' % ks)
            k.I('s_mul_i32 s45, s56, %d' % nb)
            k.I('s_add_u32 s44, s44, s45')
            k.I('s_add_u32 s44, s44, s54')
            k.I('buffer_store_dwordx4 %s, v4, %s, s44 offen' % (vr(d, 4), sr(S_WS, 4)))
            for j in range(4):
                k.I('v_dot2c_f32_bf16 %s, s46, %s' % (vr(60 + nb), vr(d + j)))
    k.I('s_cmp_eq_u32 s59, 0')
    k.I('s_cbranch_scc1 L_k0_end')
    k.I('v_and_b32 v2, 31, v1')
    k.I('v_lshlrev_b32 v2, 2, v2')
    for c in range(2):
        cross_half_sum(k, 60 + c, 3)
        k.I('buffer_store_dword %s, v2, %s, s59 offen offset:%d' % (vr(60 + c), sr(S_WS, 4), c * 128))
    k.label('L_k0_end')
    k.I('s_endpgm')
    return k, dict(vgpr=64, sgpr=64, lds=32768, grid=256, block=256)


LOG2E = 1.4426950408889634
import struct
def f2u(x):
    return struct.unpack('<I', struct.pack('<f', x))[0]


def wg_decode(k, nx_bits_lo, expr):
    pass


def stats_finish(k, vsum, vsq, vmean, vrstd, tmp):
    cross_half_sum(k, vsum, tmp)
    cross_half_sum(k, vsq, tmp)
    k.I('v_mul_f32 %s, 0x%x, %s' % (vr(vmean), f2u(1.0 / 512), vr(vsum)))
    k.I('v_mul_f32 %s, 0x%x, %s' % (vr(vsq), f2u(1.0 / 512), vr(vsq)))
    k.I('v_fma_f32 %s, -%s, %s, %s' % (vr(vsq), vr(vmean), vr(vmean), vr(vsq)))
    k.I('v_max_f32 %s, 0, %s' % (vr(vsq), vr(vsq)))
    k.I('v_add_f32 %s, 0x%x, %s' % (vr(vsq), f2u(1e-5), vr(vsq)))
    k.I('v_rsq_f32 %s, %s' % (vr(vrstd), vr(vsq)))


def phi(k, t, tmp):
    k.I('v_mul_f32 %s, 0x%x, %s' % (vr(tmp), f2u(LOG2E), vr(t)))
    k.I('v_min_f32 %s, 0, %s' % (vr(tmp), vr(tmp)))
    k.I('v_exp_f32 %s, %s' % (vr(tmp), vr(tmp)))
    k.I('v_max_f32 %s, 0, %s' % (vr(t), vr(t)))
    k.I('v_add_f32 %s, %s, %s' % (vr(t), vr(t), vr(tmp)))
    k.I('v_add_f32 %s, 0x%x, %s' % (vr(t), f2u(1e-6), vr(t)))


def gen_k1():
    k = Kernel('qkv_kernel')
    WS = 4
    k.I('s_cmp_ge_u32 s2, 256')
    k.I('s_cbranch_scc1 L_k1_end')
    load_srds(k, [('ws', WS)])
    ws = sr(WS, 4)
    k.I('v_and_b32 v1, 63, v0')
    k.I('v_lshrrev_b32 v2, 6, v0')
    k.I('v_readfirstlane_b32 s8, v2')
    k.I('v_lshlrev_b32 v2, 4, v1')
    k.I('s_and_b32 s9, s2, 7')
    k.I('s_lshr_b32 s10, s2, 3')
    k.I('s_and_b32 s11, s9, 3')
    k.I('s_lshl_b32 s11, s11, 3')
    k.I('s_and_b32 s12, s10, 7')
    k.I('s_add_u32 s11, s11, s12')
    k.I('s_lshr_b32 s12, s9, 2')
    k.I('s_lshl_b32 s12, s12, 2')
    k.I('s_lshr_b32 s13, s10, 3')
    k.I('s_add_u32 s12, s12, s13')
    k.I('s_and_b32 s13, s8, 1')
    k.I('s_lshr_b32 s14, s8, 1')
    k.I('s_lshl_b32 s15, s11, 1')
    k.I('s_add_u32 s15, s15, s13')
    k.I('s_lshl_b32 s16, s12, 1')
    k.I('s_add_u32 s16, s16, s14')
    k.I('s_lshl_b32 s17, s15, 15')
    k.I('s_lshl_b32 s18, s16, 15')
    k.I('s_add_u32 s18, s18, 0x%x' % OFF_WQKV)
    k.I('s_add_u32 s19, s18, 0x%x' % (16 * 32768))
    k.I('s_add_u32 s20, s18, 0x%x' % (32 * 32768))
    for t in range(1, 8):
        k.I('v_add_u32 %s, %d, v2' % (vr(8 + t), 4096 * t))
    k.I('v_mov_b32 v8, v2')
    k.I('v_and_b32 v3, 31, v1')
    k.I('v_lshlrev_b32 v4, 2, v3')
    k.I('s_lshl_b32 s21, s16, 7')
    k.I('s_add_u32 s21, s21, 0x%x' % OFF_CSQ)
    k.I('s_waitcnt lgkmcnt(0)')
    X = 128
    def ldfrag(dst, soff, ks):
        k.I('buffer_load_dwordx4 %s, %s, %s, %s offen offset:%d' % (dst, vr(8 + ks // 4), ws, sr(soff), (ks % 4) * 1024))
    for p in range(3):
        for kg in range(8):
            k.I('s_add_u32 s22, s21, %d' % (p * 16 * 128 + kg * 48 * 128))
            k.I('buffer_load_dword %s, v4, %s, s22 offen' % (vr(80 + p * 8 + kg), ws))
    for p in range(3):
        for kg in range(1, 8):
            k.I('v_add_f32 %s, %s, %s' % (vr(80 + p * 8), vr(80 + p * 8), vr(80 + p * 8 + kg)))
    CSQ_, CSK_, CSV_ = 80, 88, 96
    for ks in range(32):
        ldfrag(vr(X + 4 * ks, 4), 17, ks)
    seq = [(19, ks, ar(4 * ks, 4)) for ks in range(32)] + [(20, ks, ar(128 + 4 * ks, 4)) for ks in range(32)] + \
          [(18, ks, ar(4 * ks, 4)) for ks in range(32)]
    LOOK = 16
    for n in range(LOOK):
        ldfrag(seq[n][2], seq[n][0], seq[n][1])
    ACK, ACV, ACQ = 32, 48, 64
    k.I('s_mov_b32 s23, 0x%x' % ONES_BF16)
    for j in range(4):
        k.I('v_mov_b32 %s, 0' % vr(104 + j))
    for n in range(96):
        part, ks = n // 32, n % 32
        w = seq[n][2]
        x = vr(X + 4 * ks, 4)
        acc = vr([ACK, ACV, ACQ][part], 16)
        c = acc if ks else '0'
        if part < 2:
            k.I('v_mfma_f32_32x32x16_bf16 %s, %s, %s, %s' % (acc, x, w, c))
        else:
            k.I('v_mfma_f32_32x32x16_bf16 %s, %s, %s, %s' % (acc, w, x, c))
        if n + LOOK < 96:
            s_, ks_, d_ = seq[n + LOOK]
            ldfrag(d_, s_, ks_)
        if part == 0:
            for j in range(4):
                k.I('v_dot2c_f32_bf16 %s, s23, %s' % (vr(104 + (j & 1)), vr(X + 4 * ks + j)))
                k.I('v_dot2c_f32_bf16 %s, %s, %s' % (vr(106 + (j & 1)), vr(X + 4 * ks + j), vr(X + 4 * ks + j)))
    k.I('v_add_f32 v104, v104, v105')
    k.I('v_add_f32 v106, v106, v107')
    MEAN, RSTD = 108, 109
    stats_finish(k, 104, 106, MEAN, RSTD, 105)
    k.I('s_lshl_b32 s24, s8, 8')
    k.I('v_add_u32 v5, s24, v4')
    k.I('ds_write_b32 v5, %s' % vr(MEAN))
    k.I('ds_write_b32 v5, %s offset:128' % vr(RSTD))
    k.I('s_lshl_b32 s25, s8, 7')
    k.I('v_add_u32 v6, s25, v4')
    k.I('ds_write_b32 v6, %s offset:1024' % vr(CSQ_))
    k.I('v_lshrrev_b32 v7, 5, v1')
    k.I('v_lshlrev_b32 v7, 4, v7')
    k.I('v_add_u32 v5, s24, v7')
    k.I('v_add_u32 v6, s25, v7')
    MN, RS, CQ = 128, 144, 160
    for a in range(4):
        k.I('ds_read_b128 %s, v5 offset:%d' % (vr(MN + 4 * a, 4), a * 32))
        k.I('ds_read_b128 %s, v5 offset:%d' % (vr(RS + 4 * a, 4), 128 + a * 32))
        k.I('ds_read_b128 %s, v6 offset:%d' % (vr(CQ + 4 * a, 4), 1024 + a * 32))
    for i in range(16):
        for acc, cs in ((ACK, CSK_), (ACV, CSV_)):
            k.I('v_fma_f32 %s, -%s, %s, %s' % (vr(acc + i), vr(MN + i), vr(cs), vr(acc + i)))
            k.I('v_mul_f32 %s, %s, %s' % (vr(acc + i), vr(RS + i), vr(acc + i)))
        phi(k, ACK + i, 110)
    PKF, VF, ONE = 176, 184, 192
    for j in range(8):
        k.I('v_cvt_pk_bf16_f32 %s, %s, %s' % (vr(PKF + j), vr(ACK + 2 * j), vr(ACK + 2 * j + 1)))
        k.I('v_cvt_pk_bf16_f32 %s, %s, %s' % (vr(VF + j), vr(ACV + 2 * j), vr(ACV + 2 * j + 1)))
    for j in range(4):
        k.I('v_mov_b32 %s, s23' % vr(ONE + j))
    DKV, DZ = 196, 212
    k.I('v_mfma_f32_32x32x16_bf16 %s, %s, %s, 0' % (vr(DKV, 16), vr(PKF, 4), vr(VF, 4)))
    k.I('v_mfma_f32_32x32x16_bf16 %s, %s, %s, 0' % (vr(DZ, 16), vr(PKF, 4), vr(ONE, 4)))
    k.I('v_mfma_f32_32x32x16_bf16 %s, %s, %s, %s' % (vr(DKV, 16), vr(PKF + 4, 4), vr(VF + 4, 4), vr(DKV, 16)))
    k.I('v_mfma_f32_32x32x16_bf16 %s, %s, %s, %s' % (vr(DZ, 16), vr(PKF + 4, 4), vr(ONE, 4), vr(DZ, 16)))
    for i in range(16):
        k.I('v_fma_f32 %s, -%s, %s, %s' % (vr(ACQ + i), vr(MEAN), vr(CQ + i), vr(ACQ + i)))
        k.I('v_mul_f32 %s, %s, %s' % (vr(ACQ + i), vr(RSTD), vr(ACQ + i)))
        phi(k, ACQ + i, 110)
    for j in range(8):
        k.I('v_cvt_pk_bf16_f32 %s, %s, %s' % (vr(ACQ + j), vr(ACQ + 2 * j), vr(ACQ + 2 * j + 1)))
    k.I('s_lshl_b32 s26, s15, 5')
    k.I('s_lshl_b32 s27, s16, 1')
    k.I('s_add_u32 s26, s26, s27')
    k.I('s_lshl_b32 s26, s26, 10')
    k.I('s_add_u32 s26, s26, 0x%x' % OFF_PQ)
    k.I('buffer_store_dwordx4 %s, v2, %s, s26 offen' % (vr(ACQ, 4), ws))
    k.I('buffer_store_dwordx4 %s, v2, %s, s26 offen offset:1024' % (vr(ACQ + 4, 4), ws))
    k.I('v_and_b32 v5, 16, v1')
    k.I('v_cmp_eq_u32 vcc, 0, v5')
    for j in range(8):
        k.I('v_cndmask_b32 %s, %s, %s, vcc' % (vr(ACK + j), vr(DKV + 8 + j), vr(DKV + j)))
        k.I('v_cndmask_b32 %s, %s, %s, vcc' % (vr(ACK + 8 + j), vr(DZ + 8 + j), vr(DZ + j)))
    k.I('v_lshlrev_b32 v5, 7, v5')
    k.I('v_lshrrev_b32 v6, 5, v1')
    k.I('v_lshlrev_b32 v6, 10, v6')
    k.I('v_add_u32 v5, v5, v6')
    k.I('s_lshl_b32 s27, s14, 1')
    k.I('s_add_u32 s27, s27, s13')
    k.I('s_lshl_b32 s27, s27, 12')
    k.I('s_add_u32 s27, s27, 4096')
    k.I('v_add_u32 v5, s27, v5')
    k.I('v_and_b32 v6, 15, v1')
    k.I('v_lshlrev_b32 v7, 5, v6')
    k.I('v_add_u32 v7, v5, v7')
    k.I('ds_write_b128 v7, %s' % vr(ACK, 4))
    k.I('ds_write_b128 v7, %s offset:16' % vr(ACK + 4, 4))
    k.I('v_cmp_eq_u32 vcc, 0, v6')
    k.I('s_and_saveexec_b64 s[28:29], vcc')
    k.I('ds_write_b128 v5, %s offset:512' % vr(ACK + 8, 4))
    k.I('ds_write_b128 v5, %s offset:528' % vr(ACK + 12, 4))
    k.I('s_mov_b64 exec, s[28:29]')
    k.I('s_waitcnt lgkmcnt(0)')
    k.I('s_barrier')
    k.I('s_lshr_b32 s27, s8, 1')
    k.I('s_lshl_b32 s27, s27, 13')
    k.I('s_and_b32 s30, s8, 1')
    k.I('s_lshl_b32 s30, s30, 11')
    k.I('s_add_u32 s27, s27, s30')
    k.I('s_add_u32 s27, s27, 4096')
    k.I('v_lshlrev_b32 v5, 2, v1')
    k.I('v_add_u32 v6, s27, v5')
    k.I('s_lshl_b32 s30, s12, 2')
    k.I('s_add_u32 s30, s30, s8')
    k.I('s_lshl_b32 s30, s30, 11')
    k.I('s_add_u32 s30, s30, 0x%x' % OFF_KVZ)
    for half in range(2):
        for ch in range(3):
            off = half * 1024 + ch * 256
            d = 32 + (half * 3 + ch) * 2
            k.I('ds_read_b32 %s, v6 offset:%d' % (vr(d), off))
            k.I('ds_read_b32 %s, v6 offset:%d' % (vr(d + 1), off + 4096))
    for half in range(2):
        for ch in range(3):
            d = 32 + (half * 3 + ch) * 2
            k.I('v_add_f32 %s, %s, %s' % (vr(d), vr(d), vr(d + 1)))
    for half in range(2):
        for ch in range(2):
            d = 32 + (half * 3 + ch) * 2
            k.I('buffer_atomic_add_f32 %s, v5, %s, s30 offen offset:%d' % (vr(d), ws, half * 1024 + ch * 256))
    k.I('v_cmp_gt_u32 vcc, 8, v1')
    k.I('s_and_saveexec_b64 s[28:29], vcc')
    for half in range(2):
        d = 32 + (half * 3 + 2) * 2
        k.I('buffer_atomic_add_f32 %s, v5, %s, s30 offen offset:%d' % (vr(d), ws, half * 1024 + 512))
    k.label('L_k1_end')
    k.I('s_endpgm')
    return k, dict(lds=20480 + 4096, grid=256, block=256)


def gen_k2():
    k = Kernel('attn_kernel')
    WS, XS = 4, 8
    k.I('s_cmp_ge_u32 s2, 256')
    k.I('s_cbranch_scc1 L_k2_end')
    load_srds(k, [('ws', WS), ('x', XS)])
    ws = sr(WS, 4)
    k.I('v_and_b32 v1, 63, v0')
    k.I('v_lshrrev_b32 v2, 6, v0')
    k.I('v_readfirstlane_b32 s12, v2')
    k.I('v_lshlrev_b32 v2, 4, v1')
    k.I('s_and_b32 s13, s2, 7')
    k.I('s_lshr_b32 s14, s2, 3')
    k.I('s_lshl_b32 s15, s13, 2')
    k.I('s_and_b32 s16, s14, 3')
    k.I('s_add_u32 s15, s15, s16')
    k.I('s_lshr_b32 s16, s14, 2')
    k.I('s_lshl_b32 s17, s15, 6')
    k.I('s_lshl_b32 s18, s12, 3')
    k.I('s_add_u32 s17, s17, s18')
    k.I('s_lshl_b32 s17, s17, 10')
    k.I('s_add_u32 s17, s17, 0x%x' % OFF_PQ)
    k.I('s_add_u32 s19, s17, 32768')
    k.I('s_lshl_b32 s20, s18, 4')
    k.I('s_lshl_b32 s21, s16, 1')
    k.I('s_add_u32 s20, s20, s21')
    k.I('s_lshl_b32 s20, s20, 10')
    k.I('s_add_u32 s20, s20, 0x%x' % OFF_WO)
    k.I('s_lshl_b32 s21, s18, 11')
    k.I('s_add_u32 s21, s21, 0x%x' % OFF_KVZ)
    k.I('v_and_b32 v3, 31, v1')
    k.I('v_min_u32 v4, 16, v3')
    k.I('v_lshrrev_b32 v5, 5, v1')
    k.I('v_lshlrev_b32 v6, 5, v5')
    k.I('v_add_u32 v4, v4, v6')
    k.I('v_lshlrev_b32 v4, 5, v4')
    k.I('v_add_u32 v7, 4096, v2')
    k.I('s_lshr_b32 s22, s12, 1')
    k.I('s_and_b32 s23, s12, 1')
    k.I('s_lshl_b32 s24, s15, 1')
    k.I('s_add_u32 s24, s24, s23')
    k.I('s_lshl_b32 s25, s16, 1')
    k.I('s_add_u32 s25, s25, s22')
    k.I('s_lshl_b32 s26, s24, 15')
    k.I('s_lshl_b32 s27, s25, 6')
    k.I('s_add_u32 s26, s26, s27')
    k.I('v_lshlrev_b32 v8, 10, v3')
    k.I('v_lshlrev_b32 v9, 3, v5')
    k.I('v_add_u32 v8, v8, v9')
    k.I('s_waitcnt lgkmcnt(0)')
    KV = 128
    A_ACC, A_WO, A_PQ = 0, 64, 128
    for t in range(8):
        k.I('s_add_u32 s28, s21, %d' % (t * 2048))
        k.I('buffer_load_dwordx4 %s, v4, %s, s28 offen' % (vr(KV + 8 * t, 4), ws))
        k.I('buffer_load_dwordx4 %s, v4, %s, s28 offen offset:16' % (vr(KV + 8 * t + 4, 4), ws))
        for r in range(2):
            k.I('buffer_load_dwordx4 %s, %s, %s, %s offen offset:%d' % (
                ar(A_PQ + (t * 2 + r) * 4, 4), 'v2' if t < 4 else 'v7', ws, 's17' if r == 0 else 's19', (t % 4) * 1024))
        k.I('s_add_u32 s29, s20, %d' % (t * 16384))
        for n in range(2):
            k.I('buffer_load_dwordx4 %s, v2, %s, s29 offen offset:%d' % (ar(A_WO + (t * 2 + n) * 4, 4), ws, n * 1024))
    XR = 112
    for a in range(4):
        k.I('buffer_load_dwordx2 %s, v8, %s, s26 offen offset:%d' % (vr(XR + 2 * a, 2), sr(XS, 4), a * 16))
    D1 = [32, 48]
    KF = 64
    OF = [72, 76]
    T = 80
    for t in range(8):
        for j in range(4):
            k.I('v_cvt_pk_bf16_f32 %s, %s, %s' % (vr(KF + (t & 1) * 4 + j), vr(KV + 8 * t + 2 * j), vr(KV + 8 * t + 2 * j + 1)))
        kf = vr(KF + (t & 1) * 4, 4)
        for r in range(2):
            k.I('v_mfma_f32_32x32x16_bf16 %s, %s, %s, 0' % (vr(D1[r], 16), kf, ar(A_PQ + (t * 2 + r) * 4, 4)))
        for r in range(2):
            k.I('v_add_f32 %s, 0x%x, %s' % (vr(T + r), f2u(1e-6), vr(D1[r] + 8)))
            k.I('v_rcp_f32 %s, %s' % (vr(T + r), vr(T + r)))
            for i in range(8):
                k.I('v_mul_f32 %s, %s, %s' % (vr(D1[r] + i), vr(T + r), vr(D1[r] + i)))
            for j in range(4):
                k.I('v_cvt_pk_bf16_f32 %s, %s, %s' % (vr(OF[r] + j), vr(D1[r] + 2 * j), vr(D1[r] + 2 * j + 1)))
        for n in range(2):
            for r in range(2):
                acc = ar(A_ACC + (n * 2 + r) * 16, 16)
                k.I('v_mfma_f32_32x32x16_bf16 %s, %s, %s, %s' % (
                    acc, ar(A_WO + (t * 2 + n) * 4, 4), vr(OF[r], 4), acc if t else '0'))
    reduce_tiles(k, A_ACC, 12, 32)
    for a in range(4):
        for b in range(2):
            src = XR + 2 * a + b
            k.I('v_lshlrev_b32 v64, 16, %s' % vr(src))
            k.I('v_and_b32 v65, 0xffff0000, %s' % vr(src))
            k.I('v_add_f32 %s, %s, v64' % (vr(32 + 4 * a + 2 * b), vr(32 + 4 * a + 2 * b)))
            k.I('v_add_f32 %s, %s, v65' % (vr(32 + 4 * a + 2 * b + 1), vr(32 + 4 * a + 2 * b + 1)))
    for j in range(8):
        k.I('v_cvt_pk_bf16_f32 %s, %s, %s' % (vr(48 + j), vr(32 + 2 * j), vr(32 + 2 * j + 1)))
    k.I('s_lshl_b32 s26, s24, 5')
    k.I('s_lshl_b32 s27, s25, 1')
    k.I('s_add_u32 s26, s26, s27')
    k.I('s_lshl_b32 s26, s26, 10')
    k.I('s_add_u32 s26, s26, 0x%x' % OFF_H)
    k.I('buffer_store_dwordx4 v[48:51], v2, %s, s26 offen' % ws)
    k.I('buffer_store_dwordx4 v[52:55], v2, %s, s26 offen offset:1024' % ws)
    k.label('L_k2_end')
    k.I('s_endpgm')
    return k, dict(lds=65536, grid=256, block=256)


def reduce_tiles(k, A_ACC, s_wave, dst):
    k.I('v_lshlrev_b32 v10, 4, v1')
    k.I('s_lshl_b32 s30, %s, 14' % sr(s_wave))
    k.I('v_add_u32 v10, s30, v10')
    for t in range(4):
        for q in range(4):
            k.I('ds_write_b128 v10, %s offset:%d' % (ar(A_ACC + t * 16 + q * 4, 4), t * 4096 + q * 1024))
    k.I('s_waitcnt lgkmcnt(0)')
    k.I('s_barrier')
    k.I('v_lshlrev_b32 v11, 4, v1')
    k.I('s_lshl_b32 s30, %s, 12' % sr(s_wave))
    k.I('v_add_u32 v11, s30, v11')
    for sw in range(4):
        for q in range(4):
            k.I('ds_read_b128 %s, v11 offset:%d' % (vr(dst + sw * 16 + q * 4, 4), sw * 16384 + q * 1024))
    for sw in range(1, 4):
        for i in range(16):
            k.I('v_add_f32 %s, %s, %s' % (vr(dst + i), vr(dst + i), vr(dst + sw * 16 + i)))


def gen_k3():
    k = Kernel('gateup_kernel')
    WS = 4
    k.I('s_cmp_ge_u32 s2, 256')
    k.I('s_cbranch_scc1 L_k3_end')
    load_srds(k, [('ws', WS)])
    ws = sr(WS, 4)
    k.I('v_and_b32 v1, 63, v0')
    k.I('v_lshrrev_b32 v2, 6, v0')
    k.I('v_readfirstlane_b32 s8, v2')
    k.I('v_lshlrev_b32 v2, 4, v1')
    k.I('s_and_b32 s9, s2, 7')
    k.I('s_lshr_b32 s10, s2, 3')
    k.I('s_and_b32 s11, s9, 1')
    k.I('s_lshl_b32 s11, s11, 3')
    k.I('s_and_b32 s12, s10, 7')
    k.I('s_add_u32 s11, s11, s12')
    k.I('s_lshr_b32 s12, s9, 1')
    k.I('s_lshl_b32 s12, s12, 2')
    k.I('s_lshr_b32 s13, s10, 3')
    k.I('s_add_u32 s12, s12, s13')
    k.I('s_lshl_b32 s13, s11, 2')
    k.I('s_add_u32 s13, s13, s8')
    k.I('s_lshl_b32 s14, s13, 15')
    k.I('s_add_u32 s14, s14, 0x%x' % OFF_H)
    k.I('s_mul_i32 s15, s12, %d' % (7 * 32768))
    k.I('s_lshl_b32 s16, s8, 13')
    k.I('s_add_u32 s15, s15, s16')
    k.I('s_add_u32 s15, s15, 0x%x' % OFF_WGU)
    k.I('s_mul_i32 s17, s13, 112')
    k.I('s_mul_i32 s18, s12, 7')
    k.I('s_add_u32 s17, s17, s18')
    k.I('s_lshl_b32 s17, s17, 10')
    k.I('s_add_u32 s17, s17, 0x%x' % OFF_ACT)
    for t in range(1, 8):
        k.I('v_add_u32 %s, %d, v2' % (vr(8 + t), 4096 * t))
    k.I('v_mov_b32 v8, v2')
    k.I('v_lshlrev_b32 v3, 2, v0')
    k.I('s_mul_i32 s18, s12, %d' % (7 * 128))
    k.I('s_add_u32 s18, s18, 0x%x' % OFF_CSG)
    k.I('s_waitcnt lgkmcnt(0)')
    CS_LDS = 131072
    for kg in range(16):
        k.I('s_add_u32 s19, s18, %d' % (kg * 112 * 128))
        k.I('buffer_load_dword %s, v3, %s, s19 offen' % (vr(64 + kg), ws))

    def dma(soff, sm0, name):
        for hf in range(2):
            k.I('s_add_u32 s19, %s, %d' % (sr(sm0), hf * 4096))
            k.I('s_mov_b32 m0, s19')
            k.I('s_add_u32 s20, %s, %d' % (sr(soff), hf * 4096))
            for t in range(4):
                k.I('buffer_load_dwordx4 v2, %s, s20 offen offset:%d lds' % (ws, t * 1024), w=[name])
    X = 128
    k.I('s_mov_b32 s21, s16')
    dma(15, 21, 'W0')
    for ks in range(32):
        k.I('buffer_load_dwordx4 %s, %s, %s, s14 offen offset:%d' % (vr(X + 4 * ks, 4), vr(8 + ks // 4), ws, (ks % 4) * 1024))
    for kg in range(1, 16):
        k.I('v_add_f32 v64, v64, %s' % vr(64 + kg))
    k.I('v_add_u32 v3, %d, v3' % CS_LDS)
    k.I('ds_write_b32 v3, v64')
    k.I('s_add_u32 s22, s15, 32768')
    k.I('s_add_u32 s21, s16, 32768')
    dma(22, 21, 'dA')
    k.I('s_add_u32 s22, s15, 65536')
    k.I('s_add_u32 s21, s16, 65536')
    dma(22, 21, 'dB')
    k.I('s_add_u32 s23, s16, %d' % (3 * 32768))
    k.I('s_mov_b32 s24, s16')
    k.I('s_add_u32 s25, s15, %d' % (3 * 32768))
    k.I('s_mov_b32 s26, 0')
    k.I('v_mov_b32 v4, v2')
    k.I('v_add_u32 v5, 32768, v2')
    k.I('v_lshrrev_b32 v6, 5, v1')
    k.I('v_lshlrev_b32 v6, 4, v6')
    k.I('v_add_u32 v6, %d, v6' % CS_LDS)
    k.I('s_mov_b32 s27, 0x%x' % ONES_BF16)
    ACC = [32, 48]
    D, L = 8, 6
    WR = 0
    CSR = 64
    T = 80
    MEAN, RSTD, NMEAN, NA, A2 = 112, 113, 114, 115, 116

    def wread(n, vaddr, ks):
        k.I('ds_read_b128 %s, %s offset:%d' % (ar(WR + (n % D) * 4, 4), vaddr, ks * 1024))

    def epilogue_ops(S, last=False):
        ops = []
        for q in range(4):
            ops.append('ds_read_b128 %s, v6 offset:%d' % (vr(CSR + 4 * q, 4), q * 32))
        pre = len(ops)
        for i0 in range(0, 8, 2):
            a = []
            for u, i in enumerate((i0, i0 + 1)):
                t = T + u * 4
                a.append([
                    'v_fma_f32 %s, %s, %s, %s' % (vr(t), vr(NMEAN), vr(CSR + i), vr(S + i)),
                    'v_fma_f32 %s, %s, %s, %s' % (vr(t + 1), vr(NMEAN), vr(CSR + 8 + i), vr(S + 8 + i)),
                    'v_mul_f32 %s, %s, %s' % (vr(t + 2), vr(NA), vr(t)),
                    'v_exp_f32 %s, %s' % (vr(t + 2), vr(t + 2)),
                    'v_mul_f32 %s, %s, %s' % (vr(t), vr(t), vr(t + 1)),
                    'v_add_f32 %s, 1.0, %s' % (vr(t + 2), vr(t + 2)),
                    'v_rcp_f32 %s, %s' % (vr(t + 2), vr(t + 2)),
                    'v_mul_f32 %s, %s, %s' % (vr(t), vr(A2), vr(t)),
                    'v_mul_f32 %s, %s, %s' % (vr(T + 8 + i), vr(t), vr(t + 2)),
                ])
            for x, y in zip(a[0], a[1]):
                ops += [x, y]
            ops.append('v_cvt_pk_bf16_f32 %s, %s, %s' % (vr(T + 16 + i0 // 2), vr(T + 8 + i0), vr(T + 8 + i0 + 1)))
        ops.append('buffer_store_dwordx4 %s, v2, %s, s17 offen' % (vr(T + 16, 4), ws))
        ops.append('s_add_u32 s17, s17, 1024')
        ops.append('v_add_u32 v6, 128, v6')
        return ops, pre

    def body(par, first, nbase):
        cur, nxt = ('v4', 'v5') if par == 0 else ('v5', 'v4')
        S = ACC[par]
        if first:
            fill = []
            for ks in range(32):
                f = []
                for j in range(4):
                    f.append('v_dot2c_f32_bf16 %s, s27, %s' % (vr(100 + (j & 1)), vr(X + 4 * ks + j)))
                    f.append('v_dot2c_f32_bf16 %s, %s, %s' % (vr(102 + (j & 1)), vr(X + 4 * ks + j), vr(X + 4 * ks + j)))
                fill.append(f)
        else:
            ops, pre = epilogue_ops(ACC[1 - par])
            fill = [[] for _ in range(32)]
            fill[0] = ops[:pre]
            rest = ops[pre:]
            g0, g1 = 3, 30
            per = -(-len(rest) // (g1 - g0))
            for g in range(g0, g1):
                fill[g] = rest[(g - g0) * per:(g - g0 + 1) * per]
        for ks in range(32):
            n = nbase + ks
            k.I('v_mfma_f32_32x32x16_bf16 %s, %s, %s, %s' % (
                vr(S, 16), ar(WR + (n % D) * 4, 4), vr(X + 4 * ks, 4), vr(S, 16) if ks else '0'))
            if ks == 32 - L:
                k.need('dA' if par == 0 else 'dB')
                k.I('s_barrier')
                sm = 23 if par == 0 else 24
                k.I('s_cmp_lt_u32 s26, 4')
                k.I('s_cselect_b32 s28, s25, 0x7fff0000')
                dma(28, sm, 'dA' if par == 0 else 'dB')
                k.I('s_xor_b32 %s, %s, 0x10000' % (sr(sm), sr(sm)))
                k.I('s_add_u32 s25, s25, 32768')
                k.I('s_add_u32 s26, s26, 1')
            if ks + L < 32:
                wread(n + L, cur, ks + L)
            else:
                wread(n + L, nxt, ks + L - 32)
            for ins in fill[ks]:
                k.I(ins)
        k.I('v_xor_b32 %s, 0x10000, %s' % (cur, cur))

    for j in range(4):
        k.I('v_mov_b32 %s, 0' % vr(100 + j))
    k.need('W0')
    k.I('s_waitcnt lgkmcnt(0)')
    k.I('s_barrier')
    for n in range(L):
        wread(n, 'v4', n)
    body(0, True, 0)
    k.I('v_add_f32 v100, v100, v101')
    k.I('v_add_f32 v102, v102, v103')
    stats_finish(k, 100, 102, MEAN, RSTD, 101)
    k.I('v_sub_f32 %s, 0, %s' % (vr(NMEAN), vr(MEAN)))
    k.I('v_mul_f32 %s, 0x%x, %s' % (vr(NA), f2u(-LOG2E), vr(RSTD)))
    k.I('v_mul_f32 %s, %s, %s' % (vr(A2), vr(RSTD), vr(RSTD)))
    k.I('s_mov_b32 s29, 3')
    k.loop_begin('L_k3_loop')
    body(1, False, 0)
    body(0, False, 0)
    k.I('s_sub_u32 s29, s29, 1')
    k.I('s_cmp_lg_u32 s29, 0')
    k.I('s_cbranch_scc1 L_k3_loop')
    k.loop_end('L_k3_loop')
    ops, pre = epilogue_ops(ACC[0])
    for ins in ops:
        k.I(ins)
    k.label('L_k3_end')
    k.I('s_endpgm')
    return k, dict(lds=131072 + 1024, grid=256, block=256)


def gen_k4():
    k = Kernel('down_kernel')
    WS, OS = 4, 8
    k.I('s_cmp_ge_u32 s2, 256')
    k.I('s_cbranch_scc1 L_k4_end')
    load_srds(k, [('ws', WS), ('out', OS)])
    ws = sr(WS, 4)
    k.I('v_and_b32 v1, 63, v0')
    k.I('v_lshrrev_b32 v2, 6, v0')
    k.I('v_readfirstlane_b32 s12, v2')
    k.I('v_lshlrev_b32 v2, 4, v1')
    k.I('v_add_u32 v3, 4096, v2')
    k.I('s_and_b32 s13, s2, 7')
    k.I('s_lshr_b32 s14, s2, 3')
    k.I('s_lshl_b32 s15, s13, 2')
    k.I('s_and_b32 s16, s14, 3')
    k.I('s_add_u32 s15, s15, s16')
    k.I('s_lshr_b32 s16, s14, 2')
    k.I('s_mul_i32 s17, s12, %d' % (28 * 1024))
    k.I('s_mul_i32 s18, s15, %d' % (2 * 112 * 1024))
    k.I('s_add_u32 s18, s18, s17')
    k.I('s_add_u32 s18, s18, 0x%x' % OFF_ACT)
    k.I('s_add_u32 s19, s18, %d' % (112 * 1024))
    k.I('s_mul_i32 s20, s16, %d' % (2 * 112 * 1024))
    k.I('s_add_u32 s20, s20, s17')
    k.I('s_add_u32 s20, s20, 0x%x' % OFF_WD)
    k.I('s_add_u32 s21, s20, %d' % (112 * 1024))
    k.I('s_lshr_b32 s22, s12, 1')
    k.I('s_and_b32 s23, s12, 1')
    k.I('s_lshl_b32 s24, s15, 1')
    k.I('s_add_u32 s24, s24, s23')
    k.I('s_lshl_b32 s25, s16, 1')
    k.I('s_add_u32 s25, s25, s22')
    k.I('s_lshl_b32 s26, s24, 5')
    k.I('s_lshl_b32 s27, s25, 1')
    k.I('s_add_u32 s26, s26, s27')
    k.I('s_lshl_b32 s26, s26, 10')
    k.I('s_add_u32 s26, s26, 0x%x' % OFF_H)
    k.I('s_waitcnt lgkmcnt(0)')
    HR = 112
    k.I('buffer_load_dwordx4 %s, v2, %s, s26 offen' % (vr(HR, 4), ws))
    k.I('buffer_load_dwordx4 %s, v2, %s, s26 offen offset:1024' % (vr(HR + 4, 4), ws))
    R = 7
    RING = 128
    A_ACC = 0

    def loads(u):
        voff = 'v2' if u < 4 else 'v3'
        for s, so in enumerate((20, 21, 18, 19)):
            k.I('buffer_load_dwordx4 %s, %s, %s, %s offen offset:%d' % (
                vr(RING + u * 16 + s * 4, 4), voff, ws, sr(so), (u % 4) * 1024))

    def adv():
        for so in (18, 19, 20, 21):
            k.I('s_add_u32 %s, %s, %d' % (sr(so), sr(so), R * 1024))

    def mfmas(u, first):
        for n in range(2):
            for r in range(2):
                acc = ar(A_ACC + (n * 2 + r) * 16, 16)
                k.I('v_mfma_f32_32x32x16_bf16 %s, %s, %s, %s' % (
                    acc, vr(RING + u * 16 + n * 4, 4), vr(RING + u * 16 + 8 + r * 4, 4), '0' if first else acc))
    for u in range(R):
        loads(u)
    adv()
    for u in range(R):
        mfmas(u, u == 0)
        loads(u)
    adv()
    k.I('s_mov_b32 s28, 2')
    k.loop_begin('L_k4_loop')
    for u in range(R):
        mfmas(u, False)
        loads(u)
    adv()
    k.I('s_sub_u32 s28, s28, 1')
    k.I('s_cmp_lg_u32 s28, 0')
    k.I('s_cbranch_scc1 L_k4_loop')
    k.loop_end('L_k4_loop')
    for u in range(R):
        mfmas(u, False)
    reduce_tiles(k, A_ACC, 12, 32)
    for j in range(8):
        src = HR + j
        k.I('v_lshlrev_b32 v96, 16, %s' % vr(src))
        k.I('v_and_b32 v97, 0xffff0000, %s' % vr(src))
        k.I('v_add_f32 %s, %s, v96' % (vr(32 + 2 * j), vr(32 + 2 * j)))
        k.I('v_add_f32 %s, %s, v97' % (vr(32 + 2 * j + 1), vr(32 + 2 * j + 1)))
    for j in range(8):
        k.I('v_cvt_pk_bf16_f32 %s, %s, %s' % (vr(48 + j), vr(32 + 2 * j), vr(32 + 2 * j + 1)))
    for a in (0, 2):
        b = 48 + 2 * a
        k.I('v_permlane32_swap_b32 %s, %s' % (vr(b), vr(b + 2)))
        k.I('v_permlane32_swap_b32 %s, %s' % (vr(b + 1), vr(b + 3)))
    k.I('v_and_b32 v4, 31, v1')
    k.I('v_lshlrev_b32 v4, 10, v4')
    k.I('v_lshrrev_b32 v5, 5, v1')
    k.I('v_lshlrev_b32 v5, 4, v5')
    k.I('v_add_u32 v4, v4, v5')
    k.I('s_lshl_b32 s26, s24, 15')
    k.I('s_lshl_b32 s27, s25, 6')
    k.I('s_add_u32 s26, s26, s27')
    k.I('buffer_store_dwordx4 v[48:51], v4, %s, s26 offen' % sr(OS, 4))
    k.I('buffer_store_dwordx4 v[52:55], v4, %s, s26 offen offset:32' % sr(OS, 4))
    k.label('L_k4_end')
    k.I('s_endpgm')
    return k, dict(lds=65536, grid=256, block=256)


def wrap(kernels):
    head = open('cdna_kernels/%s.s.ref' % NAME).read().split('; Override launch geometry')[0]
    out = [head.rstrip()]
    for label, k, cfg in kernels:
        out.append('; @launch kernel=%s grid=(%d,1,1) block=(%d,1,1) lds=%d' % (label, cfg['grid'], cfg['block'], cfg['lds']))
    out.append('.amdgcn_target "amdgcn-amd-amdhsa--gfx950"')
    out.append('.text')
    seen = set()
    for label, k, cfg in kernels:
        if label in seen:
            continue
        seen.add(label)
        out.append('.globl %s' % label)
        out.append('.p2align 8')
        out.append('.type %s,@function' % label)
        out.append('%s:' % label)
        out.append(k.finish())
    out.append('.section .rodata,"a"')
    seen = set()
    for label, k, cfg in kernels:
        if label in seen:
            continue
        seen.add(label)
        mx = k.maxreg()
        acc = cfg.get('accum', None)
        nv = mx['v'] + 1
        na = mx['a'] + 1
        accum = max(4, (nv + 3) // 4 * 4)
        nfv = accum + na if na else nv
        out.append('.p2align 6')
        out.append('.amdhsa_kernel %s' % label)
        out.append('  .amdhsa_next_free_vgpr %d' % nfv)
        out.append('  .amdhsa_next_free_sgpr %d' % max(mx['s'] + 1, 16))
        out.append('  .amdhsa_accum_offset %d' % accum)
        out.append('  .amdhsa_group_segment_fixed_size 0')
        out.append('  .amdhsa_kernarg_size 80')
        out.append('  .amdhsa_user_sgpr_count 2')
        out.append('  .amdhsa_user_sgpr_kernarg_segment_ptr 1')
        out.append('  .amdhsa_system_sgpr_workgroup_id_x 1')
        out.append('  .amdhsa_float_denorm_mode_32 3')
        out.append('.end_amdhsa_kernel')
    return '\n'.join(out) + '\n'


if __name__ == '__main__':
    n = int(sys.argv[2]) if len(sys.argv) > 2 else 5
    gens = [('prep_kernel', gen_k0), ('qkv_kernel', gen_k1), ('attn_kernel', gen_k2), ('gateup_kernel', gen_k3), ('down_kernel', gen_k4)]
    ks = []
    for label, g in gens[:n]:
        kk, cc = g()
        ks.append((label, kk, cc))
        print(label, kk.stats(), kk.maxreg())
    open(sys.argv[1], 'w').write(wrap(ks))
```

```python
import sys
from asmgen import Kernel

NAME = 'sequential_preLN__linear_attn_block__swiglu_ffn__prompt'

OFF_XF = 0x0
OFF_WQKV = 0x200000
OFF_PQ = 0x380000
OFF_KVZ = 0x580000
OFF_WO = 0x590000
OFF_H = 0x610000
OFF_WGU = 0x810000
OFF_CSG = 0xB90000
OFF_CSQ = 0xBC8000
OFF_ACT = 0xBE0000
OFF_WD = 0x12E0000
OFF_TS = 0x14A0000
WS_USED = 0x14A0000 + 8*256*128
STAMPS = False

KA = dict(x=0, wqkv=8, wo=16, bx=24, wg=32, wu=40, wd=48, out=56, dbg=64, ws=72)
SZ = dict(x=2048 * 512 * 2, wqkv=512 * 1536 * 2, wo=512 * 512 * 2, wg=512 * 1792 * 2, wu=512 * 1792 * 2,
          wd=1792 * 512 * 2, out=2048 * 512 * 2, dbg=256, ws=WS_USED)
ONES_BF16 = 0x3f803f80


def vr(lo, n=1):
    return 'v%d' % lo if n == 1 else 'v[%d:%d]' % (lo, lo + n - 1)


def ar(lo, n=1):
    return 'a%d' % lo if n == 1 else 'a[%d:%d]' % (lo, lo + n - 1)


def sr(lo, n=1):
    return 's%d' % lo if n == 1 else 's[%d:%d]' % (lo, lo + n - 1)


def load_srds(k, srds, first=True):
    for name, sb in srds:
        k.I('s_load_dwordx2 %s, s[0:1], %d' % (sr(sb, 2), KA[name]))
    for name, sb in srds:
        k.I('s_mov_b32 %s, 0x%x' % (sr(sb + 2), SZ[name]))
        k.I('s_mov_b32 %s, 0x00020000' % sr(sb + 3))


class Stamper:
    def __init__(self, k, kidx, ws):
        self.k, self.kidx, self.ws, self.n = k, kidx, ws, 0
    def stamp(self, real=False):
        if not STAMPS: return
        self.k.I('%s s[%d:%d]' % ('s_memrealtime' if real else 's_memtime', 64 + 2 * self.n, 65 + 2 * self.n))
        self.n += 1
    def flush(self):
        if not STAMPS: return
        k = self.k
        k.I('s_waitcnt lgkmcnt(0)')
        k.I('v_cmp_eq_u32 vcc, 0, v0')
        k.I('s_and_saveexec_b64 s[96:97], vcc')
        k.I('s_lshl_b32 s98, s2, 7')
        k.I('s_add_u32 s98, s98, 0x%x' % (OFF_TS + self.kidx * 256 * 128))
        k.I('v_mov_b32 v0, 0')
        for i in range(self.n):
            k.I('v_mov_b32 v2, s%d' % (64 + 2 * i))
            k.I('v_mov_b32 v3, s%d' % (65 + 2 * i))
            k.I('buffer_store_dwordx2 v[2:3], v0, %s, s98 offen offset:%d' % (self.ws, 8 * i))
        k.I('s_mov_b64 exec, s[96:97]')


def div_const(k, dst, src, d, tmp):
    magic = -(-(1 << 32) // d)
    k.I('s_mov_b32 %s, 0x%x' % (sr(tmp), magic))
    k.I('s_mul_hi_u32 %s, %s, %s' % (sr(dst), sr(src), sr(tmp)))


def cross_half_sum(k, v, tmp):
    k.I('v_mov_b32 %s, %s' % (vr(tmp), vr(v)))
    k.I('v_permlane32_swap_b32 %s, %s' % (vr(v), vr(tmp)))
    k.I('v_add_f32 %s, %s, %s' % (vr(v), vr(v), vr(tmp)))


def gen_k0():
    k = Kernel('prep_kernel')
    S_X, S_WQ, S_WO, S_WG, S_WU, S_WD, S_WS = 4, 8, 12, 16, 20, 24, 28
    k.I('s_cmp_ge_u32 s2, 256')
    k.I('s_cbranch_scc1 L_k0_end')
    load_srds(k, [('x', S_X), ('wqkv', S_WQ), ('wo', S_WO), ('wg', S_WG), ('wu', S_WU), ('wd', S_WD), ('ws', S_WS)])
    k.I('v_and_b32 v1, 63, v0')
    k.I('v_lshrrev_b32 v2, 6, v0')
    k.I('v_readfirstlane_b32 s33, v2')
    k.I('s_lshl_b32 s34, s2, 2')
    k.I('s_add_u32 s34, s34, s33')
    k.I('s_lshl_b32 s35, s33, 13')
    k.I('v_and_b32 v2, 31, v1')
    k.I('v_lshlrev_b32 v2, 10, v2')
    k.I('v_lshrrev_b32 v3, 5, v1')
    k.I('v_lshlrev_b32 v3, 4, v3')
    k.I('v_add_u32 v2, v2, v3')
    k.I('v_lshlrev_b32 v4, 4, v1')
    k.I('s_lshl_b32 s36, s34, 1')
    k.I('s_lshr_b32 s37, s36, 5')
    k.I('s_lshl_b32 s37, s37, 15')
    k.I('s_and_b32 s38, s36, 31')
    k.I('s_lshl_b32 s38, s38, 5')
    k.I('s_add_u32 s37, s37, s38')
    k.I('s_waitcnt lgkmcnt(0)')
    k.I('buffer_load_dwordx4 v[8:11], v2, %s, s37 offen' % sr(S_X, 4))
    k.I('buffer_load_dwordx4 v[12:15], v2, %s, s37 offen offset:32' % sr(S_X, 4))
    k.I('s_lshl_b32 s39, s36, 10')
    k.I('s_add_u32 s39, s39, 0x%x' % OFF_XF)
    k.I('buffer_store_dwordx4 v[8:11], v4, %s, s39 offen' % sr(S_WS, 4))
    k.I('buffer_store_dwordx4 v[12:15], v4, %s, s39 offen offset:1024' % sr(S_WS, 4))
    k.I('s_cmp_ge_u32 s34, 64')
    k.I('s_cbranch_scc1 L_k0_nozero')
    k.I('v_mov_b32 v8, 0')
    k.I('v_mov_b32 v9, 0')
    k.I('v_mov_b32 v10, 0')
    k.I('v_mov_b32 v11, 0')
    k.I('s_lshl_b32 s39, s34, 10')
    k.I('s_add_u32 s39, s39, 0x%x' % OFF_KVZ)
    k.I('buffer_store_dwordx4 v[8:11], v4, %s, s39 offen' % sr(S_WS, 4))
    k.label('L_k0_nozero')
    k.I('s_waitcnt vmcnt(0)')
    k.fence()
    k.I('v_lshrrev_b32 v5, 3, v1')
    k.I('v_and_b32 v6, 7, v1')
    k.I('v_lshlrev_b32 v6, 4, v6')
    k.I('v_lshrrev_b32 v7, 4, v1')
    k.I('v_and_b32 v16, 15, v1')
    k.I('v_lshrrev_b32 v17, 2, v16')
    k.I('v_and_b32 v18, 3, v16')
    k.I('v_lshlrev_b32 v18, 3, v18')
    k.I('v_and_b32 v19, 1, v7')
    k.I('v_lshrrev_b32 v20, 1, v7')
    k.I('s_cmp_ge_u32 s34, 928')
    k.I('s_cbranch_scc1 L_k0_end')
    k.I('s_cmp_ge_u32 s34, 448')
    k.I('s_cbranch_scc1 L_k0_std')
    div_const(k, 40, 34, 28, 41)
    k.I('s_mul_i32 s41, s40, 28')
    k.I('s_sub_u32 s41, s34, s41')
    k.I('s_mov_b32 s42, 3584')
    k.I('v_mul_lo_u32 v21, v5, s42')
    k.I('v_add_u32 v21, v21, v6')
    k.I('s_mul_i32 s43, s40, %d' % (32 * 3584))
    k.I('s_lshl_b32 s44, s41, 7')
    k.I('s_add_u32 s43, s43, s44')
    for t in range(8):
        k.I('s_add_u32 s44, s35, %d' % (t * 1024))
        k.I('s_mov_b32 m0, s44')
        k.I('s_add_u32 s45, s43, %d' % ((t % 4) * 8 * 3584))
        k.I('buffer_load_dwordx4 v21, %s, s45 offen lds' % sr(S_WG if t < 4 else S_WU, 4), w=['img'])
    k.I('v_lshlrev_b32 v22, 5, v19')
    k.I('v_lshlrev_b32 v23, 2, v20')
    k.I('v_add3_u32 v22, v22, v23, v17')
    k.I('v_lshlrev_b32 v22, 7, v22')
    k.I('v_add3_u32 v22, v22, v18, s35')
    k.I('v_add_u32 v23, %d, v22' % (8 * 128))
    k.need('img')
    for c in range(4):
        k.I('v_mov_b32 %s, 0' % vr(60 + c))
    for ks in range(2):
        for c in range(4):
            d = 24 + (ks * 4 + c) * 4
            off = ks * 2048 + c * 32
            k.I('ds_read_b64_tr_b16 %s, v22 offset:%d' % (vr(d, 2), off))
            k.I('ds_read_b64_tr_b16 %s, v23 offset:%d' % (vr(d + 2, 2), off))
    k.I('s_lshl_b32 s44, s41, 7')
    k.I('s_lshl_b32 s45, s40, 1')
    k.I('s_add_u32 s44, s44, s45')
    k.I('s_lshl_b32 s44, s44, 10')
    k.I('s_add_u32 s44, s44, 0x%x' % OFF_WGU)
    k.I('s_mov_b32 s46, 0x%x' % ONES_BF16)
    for ks in range(2):
        for c in range(4):
            d = 24 + (ks * 4 + c) * 4
            k.I('s_add_u32 s45, s44, %d' % ((c * 32 + ks) * 1024))
            k.I('buffer_store_dwordx4 %s, v4, %s, s45 offen' % (vr(d, 4), sr(S_WS, 4)))
            for j in range(4):
                k.I('v_dot2c_f32_bf16 %s, s46, %s' % (vr(60 + c), vr(d + j)))
    k.I('v_and_b32 v2, 31, v1')
    k.I('v_lshlrev_b32 v2, 2, v2')
    k.I('s_mul_i32 s44, s40, %d' % (112 * 128))
    k.I('s_lshl_b32 s45, s41, 9')
    k.I('s_add_u32 s44, s44, s45')
    k.I('s_add_u32 s44, s44, 0x%x' % OFF_CSG)
    for c in range(4):
        cross_half_sum(k, 60 + c, 3)
        k.I('buffer_store_dword %s, v2, %s, s44 offen offset:%d' % (vr(60 + c), sr(S_WS, 4), c * 128))
    k.I('s_endpgm')
    k.fence()
    k.label('L_k0_std')
    k.I('s_cmp_ge_u32 s34, 672')
    k.I('s_cbranch_scc1 L_k0_notwd')
    k.I('s_sub_u32 s40, s34, 448')
    k.I('s_and_b32 s41, s40, 7')
    k.I('s_lshr_b32 s40, s40, 3')
    for j in range(4):
        k.I('s_mov_b32 %s, %s' % (sr(48 + j), sr(S_WD + j)))
    k.I('s_mov_b32 s52, 1024')
    k.I('s_mul_i32 s54, s41, 224')
    k.I('s_lshl_b32 s44, s40, 2')
    k.I('s_add_u32 s54, s54, s44')
    k.I('s_lshl_b32 s54, s54, 10')
    k.I('s_add_u32 s54, s54, 0x%x' % OFF_WD)
    k.I('s_mov_b32 s55, 1024')
    k.I('s_mov_b32 s56, %d' % (112 * 1024))
    k.I('s_mov_b32 s57, 4')
    k.I('s_mov_b32 s58, %d' % (8 * 128))
    k.I('s_mov_b32 s59, 0')
    k.I('s_branch L_k0_go')
    k.label('L_k0_notwd')
    k.I('s_cmp_ge_u32 s34, 864')
    k.I('s_cbranch_scc1 L_k0_wo')
    k.I('s_sub_u32 s44, s34, 672')
    div_const(k, 40, 44, 24, 41)
    k.I('s_mul_i32 s41, s40, 24')
    k.I('s_sub_u32 s41, s44, s41')
    for j in range(4):
        k.I('s_mov_b32 %s, %s' % (sr(48 + j), sr(S_WQ + j)))
    k.I('s_mov_b32 s52, 3072')
    k.I('s_lshl_b32 s54, s41, 6')
    k.I('s_lshl_b32 s44, s40, 2')
    k.I('s_add_u32 s54, s54, s44')
    k.I('s_lshl_b32 s54, s54, 10')
    k.I('s_add_u32 s54, s54, 0x%x' % OFF_WQKV)
    k.I('s_mov_b32 s55, 1024')
    k.I('s_mov_b32 s56, %d' % (32 * 1024))
    k.I('s_mov_b32 s57, 8')
    k.I('s_mov_b32 s58, %d' % (4 * 128))
    k.I('s_mul_i32 s59, s40, 48')
    k.I('s_lshl_b32 s44, s41, 1')
    k.I('s_add_u32 s59, s59, s44')
    k.I('s_lshl_b32 s59, s59, 7')
    k.I('s_add_u32 s59, s59, 0x%x' % OFF_CSQ)
    k.I('s_branch L_k0_go')
    k.label('L_k0_wo')
    k.I('s_sub_u32 s40, s34, 864')
    k.I('s_and_b32 s41, s40, 7')
    k.I('s_lshr_b32 s40, s40, 3')
    for j in range(4):
        k.I('s_mov_b32 %s, %s' % (sr(48 + j), sr(S_WO + j)))
    k.I('s_mov_b32 s52, 1024')
    k.I('s_lshl_b32 s54, s40, 6')
    k.I('s_lshl_b32 s44, s41, 1')
    k.I('s_add_u32 s54, s54, s44')
    k.I('s_lshl_b32 s54, s54, 10')
    k.I('s_add_u32 s54, s54, 0x%x' % OFF_WO)
    k.I('s_mov_b32 s55, %d' % (16 * 1024))
    k.I('s_mov_b32 s56, 1024')
    k.I('s_mov_b32 s57, 4')
    k.I('s_mov_b32 s58, %d' % (8 * 128))
    k.I('s_mov_b32 s59, 0')
    k.label('L_k0_go')
    k.fence()
    k.I('s_lshl_b32 s53, s52, 6')
    k.I('s_mul_i32 s53, s53, s40')
    k.I('s_lshl_b32 s44, s41, 7')
    k.I('s_add_u32 s53, s53, s44')
    k.I('v_mul_lo_u32 v21, v5, s52')
    k.I('v_add_u32 v21, v21, v6')
    k.I('s_lshl_b32 s47, s52, 3')
    for t in range(8):
        k.I('s_add_u32 s44, s35, %d' % (t * 1024))
        k.I('s_mov_b32 m0, s44')
        k.I('buffer_load_dwordx4 v21, s[48:51], s53 offen lds', w=['img2'])
        k.I('s_add_u32 s53, s53, s47')
    k.I('v_mul_lo_u32 v22, v20, s57')
    k.I('v_add_u32 v22, v22, v17')
    k.I('v_lshlrev_b32 v22, 7, v22')
    k.I('v_lshlrev_b32 v23, 5, v19')
    k.I('v_add3_u32 v22, v22, v23, v18')
    k.I('v_add_u32 v22, s35, v22')
    k.I('v_add_u32 v23, s58, v22')
    k.need('img2')
    for c in range(2):
        k.I('v_mov_b32 %s, 0' % vr(60 + c))
    for ks in range(4):
        for nb in range(2):
            d = 24 + (ks * 2 + nb) * 4
            off = ks * 2048 + nb * 64
            k.I('ds_read_b64_tr_b16 %s, v22 offset:%d' % (vr(d, 2), off))
            k.I('ds_read_b64_tr_b16 %s, v23 offset:%d' % (vr(d + 2, 2), off))
    k.I('s_mov_b32 s46, 0x%x' % ONES_BF16)
    for ks in range(4):
        for nb in range(2):
            d = 24 + (ks * 2 + nb) * 4
            k.I('s_mul_i32 s44, s55, %d' % ks)
            k.I('s_mul_i32 s45, s56, %d' % nb)
            k.I('s_add_u32 s44, s44, s45')
            k.I('s_add_u32 s44, s44, s54')
            k.I('buffer_store_dwordx4 %s, v4, %s, s44 offen' % (vr(d, 4), sr(S_WS, 4)))
            for j in range(4):
                k.I('v_dot2c_f32_bf16 %s, s46, %s' % (vr(60 + nb), vr(d + j)))
    k.I('s_cmp_eq_u32 s59, 0')
    k.I('s_cbranch_scc1 L_k0_end')
    k.I('v_and_b32 v2, 31, v1')
    k.I('v_lshlrev_b32 v2, 2, v2')
    for c in range(2):
        cross_half_sum(k, 60 + c, 3)
        k.I('buffer_store_dword %s, v2, %s, s59 offen offset:%d' % (vr(60 + c), sr(S_WS, 4), c * 128))
    k.label('L_k0_end')
    k.I('s_endpgm')
    return k, dict(vgpr=64, sgpr=64, lds=32768, grid=256, block=256)


LOG2E = 1.4426950408889634
import struct
def f2u(x):
    return struct.unpack('<I', struct.pack('<f', x))[0]


def wg_decode(k, nx_bits_lo, expr):
    pass


def stats_finish(k, vsum, vsq, vmean, vrstd, tmp):
    cross_half_sum(k, vsum, tmp)
    cross_half_sum(k, vsq, tmp)
    k.I('v_mul_f32 %s, 0x%x, %s' % (vr(vmean), f2u(1.0 / 512), vr(vsum)))
    k.I('v_mul_f32 %s, 0x%x, %s' % (vr(vsq), f2u(1.0 / 512), vr(vsq)))
    k.I('v_fma_f32 %s, -%s, %s, %s' % (vr(vsq), vr(vmean), vr(vmean), vr(vsq)))
    k.I('v_max_f32 %s, 0, %s' % (vr(vsq), vr(vsq)))
    k.I('v_add_f32 %s, 0x%x, %s' % (vr(vsq), f2u(1e-5), vr(vsq)))
    k.I('v_rsq_f32 %s, %s' % (vr(vrstd), vr(vsq)))


def phi(k, t, tmp):
    k.I('v_mul_f32 %s, 0x%x, %s' % (vr(tmp), f2u(LOG2E), vr(t)))
    k.I('v_min_f32 %s, 0, %s' % (vr(tmp), vr(tmp)))
    k.I('v_exp_f32 %s, %s' % (vr(tmp), vr(tmp)))
    k.I('v_max_f32 %s, 0, %s' % (vr(t), vr(t)))
    k.I('v_add_f32 %s, %s, %s' % (vr(t), vr(t), vr(tmp)))
    k.I('v_add_f32 %s, 0x%x, %s' % (vr(t), f2u(1e-6), vr(t)))


def gen_k1():
    k = Kernel('qkv_kernel')
    WS = 4
    k.I('s_cmp_ge_u32 s2, 256')
    k.I('s_cbranch_scc1 L_k1_end')
    load_srds(k, [('ws', WS)])
    ws = sr(WS, 4)
    st = Stamper(k, 1, ws); st.stamp(True); st.stamp()
    k.I('v_and_b32 v1, 63, v0')
    k.I('v_lshrrev_b32 v2, 6, v0')
    k.I('v_readfirstlane_b32 s8, v2')
    k.I('v_lshlrev_b32 v2, 4, v1')
    k.I('s_and_b32 s9, s2, 7')
    k.I('s_lshr_b32 s10, s2, 3')
    k.I('s_and_b32 s11, s9, 3')
    k.I('s_lshl_b32 s11, s11, 3')
    k.I('s_and_b32 s12, s10, 7')
    k.I('s_add_u32 s11, s11, s12')
    k.I('s_lshr_b32 s12, s9, 2')
    k.I('s_lshl_b32 s12, s12, 2')
    k.I('s_lshr_b32 s13, s10, 3')
    k.I('s_add_u32 s12, s12, s13')
    k.I('s_and_b32 s13, s8, 1')
    k.I('s_lshr_b32 s14, s8, 1')
    k.I('s_lshl_b32 s15, s11, 1')
    k.I('s_add_u32 s15, s15, s13')
    k.I('s_lshl_b32 s16, s12, 1')
    k.I('s_add_u32 s16, s16, s14')
    k.I('s_lshl_b32 s17, s15, 15')
    k.I('s_lshl_b32 s18, s16, 15')
    k.I('s_add_u32 s18, s18, 0x%x' % OFF_WQKV)
    k.I('s_add_u32 s19, s18, 0x%x' % (16 * 32768))
    k.I('s_add_u32 s20, s18, 0x%x' % (32 * 32768))
    for t in range(1, 8):
        k.I('v_add_u32 %s, %d, v2' % (vr(8 + t), 4096 * t))
    k.I('v_mov_b32 v8, v2')
    k.I('v_and_b32 v3, 31, v1')
    k.I('v_lshlrev_b32 v4, 2, v3')
    k.I('s_lshl_b32 s21, s16, 7')
    k.I('s_add_u32 s21, s21, 0x%x' % OFF_CSQ)
    k.I('s_waitcnt lgkmcnt(0)')
    X = 128
    def ldfrag(dst, soff, ks):
        k.I('buffer_load_dwordx4 %s, %s, %s, %s offen offset:%d' % (dst, vr(8 + ks // 4), ws, sr(soff), (ks % 4) * 1024))
    for p in range(3):
        for kg in range(8):
            k.I('s_add_u32 s22, s21, %d' % (p * 16 * 128 + kg * 48 * 128))
            k.I('buffer_load_dword %s, v4, %s, s22 offen' % (vr(80 + p * 8 + kg), ws))
    for p in range(3):
        for kg in range(1, 8):
            k.I('v_add_f32 %s, %s, %s' % (vr(80 + p * 8), vr(80 + p * 8), vr(80 + p * 8 + kg)))
    CSQ_, CSK_, CSV_ = 80, 88, 96
    for ks in range(32):
        ldfrag(vr(X + 4 * ks, 4), 17, ks)
    seq = [(19, ks, ar(4 * ks, 4)) for ks in range(32)] + [(20, ks, ar(128 + 4 * ks, 4)) for ks in range(32)] + \
          [(18, ks, ar(4 * ks, 4)) for ks in range(32)]
    LOOK = 16
    for n in range(LOOK):
        ldfrag(seq[n][2], seq[n][0], seq[n][1])
    st.stamp()
    ACK, ACV, ACQ = 32, 48, 64
    k.I('s_mov_b32 s23, 0x%x' % ONES_BF16)
    for j in range(4):
        k.I('v_mov_b32 %s, 0' % vr(104 + j))
    for n in range(96):
        part, ks = n // 32, n % 32
        w = seq[n][2]
        x = vr(X + 4 * ks, 4)
        acc = vr([ACK, ACV, ACQ][part], 16)
        c = acc if ks else '0'
        if part < 2:
            k.I('v_mfma_f32_32x32x16_bf16 %s, %s, %s, %s' % (acc, x, w, c))
        else:
            k.I('v_mfma_f32_32x32x16_bf16 %s, %s, %s, %s' % (acc, w, x, c))
        if n + LOOK < 96:
            s_, ks_, d_ = seq[n + LOOK]
            ldfrag(d_, s_, ks_)
        if part == 0:
            for j in range(4):
                k.I('v_dot2c_f32_bf16 %s, s23, %s' % (vr(104 + (j & 1)), vr(X + 4 * ks + j)))
                k.I('v_dot2c_f32_bf16 %s, %s, %s' % (vr(106 + (j & 1)), vr(X + 4 * ks + j), vr(X + 4 * ks + j)))
    k.I('v_add_f32 v104, v104, v105')
    k.I('v_add_f32 v106, v106, v107')
    MEAN, RSTD = 108, 109
    st.stamp()
    stats_finish(k, 104, 106, MEAN, RSTD, 105)
    k.I('s_lshl_b32 s24, s8, 8')
    k.I('v_add_u32 v5, s24, v4')
    k.I('ds_write_b32 v5, %s' % vr(MEAN))
    k.I('ds_write_b32 v5, %s offset:128' % vr(RSTD))
    k.I('s_lshl_b32 s25, s8, 7')
    k.I('v_add_u32 v6, s25, v4')
    k.I('ds_write_b32 v6, %s offset:1024' % vr(CSQ_))
    k.I('v_lshrrev_b32 v7, 5, v1')
    k.I('v_lshlrev_b32 v7, 4, v7')
    k.I('v_add_u32 v5, s24, v7')
    k.I('v_add_u32 v6, s25, v7')
    MN, RS, CQ = 128, 144, 160
    for a in range(4):
        k.I('ds_read_b128 %s, v5 offset:%d' % (vr(MN + 4 * a, 4), a * 32))
        k.I('ds_read_b128 %s, v5 offset:%d' % (vr(RS + 4 * a, 4), 128 + a * 32))
        k.I('ds_read_b128 %s, v6 offset:%d' % (vr(CQ + 4 * a, 4), 1024 + a * 32))
    for i in range(16):
        for acc, cs in ((ACK, CSK_), (ACV, CSV_)):
            k.I('v_fma_f32 %s, -%s, %s, %s' % (vr(acc + i), vr(MN + i), vr(cs), vr(acc + i)))
            k.I('v_mul_f32 %s, %s, %s' % (vr(acc + i), vr(RS + i), vr(acc + i)))
        phi(k, ACK + i, 110)
    PKF, VF, ONE = 176, 184, 192
    for j in range(8):
        k.I('v_cvt_pk_bf16_f32 %s, %s, %s' % (vr(PKF + j), vr(ACK + 2 * j), vr(ACK + 2 * j + 1)))
        k.I('v_cvt_pk_bf16_f32 %s, %s, %s' % (vr(VF + j), vr(ACV + 2 * j), vr(ACV + 2 * j + 1)))
    for j in range(4):
        k.I('v_mov_b32 %s, s23' % vr(ONE + j))
    DKV, DZ = 196, 212
    k.I('v_mfma_f32_32x32x16_bf16 %s, %s, %s, 0' % (vr(DKV, 16), vr(PKF, 4), vr(VF, 4)))
    k.I('v_mfma_f32_32x32x16_bf16 %s, %s, %s, 0' % (vr(DZ, 16), vr(PKF, 4), vr(ONE, 4)))
    k.I('v_mfma_f32_32x32x16_bf16 %s, %s, %s, %s' % (vr(DKV, 16), vr(PKF + 4, 4), vr(VF + 4, 4), vr(DKV, 16)))
    k.I('v_mfma_f32_32x32x16_bf16 %s, %s, %s, %s' % (vr(DZ, 16), vr(PKF + 4, 4), vr(ONE, 4), vr(DZ, 16)))
    for i in range(16):
        k.I('v_fma_f32 %s, -%s, %s, %s' % (vr(ACQ + i), vr(MEAN), vr(CQ + i), vr(ACQ + i)))
        k.I('v_mul_f32 %s, %s, %s' % (vr(ACQ + i), vr(RSTD), vr(ACQ + i)))
        phi(k, ACQ + i, 110)
    for j in range(8):
        k.I('v_cvt_pk_bf16_f32 %s, %s, %s' % (vr(ACQ + j), vr(ACQ + 2 * j), vr(ACQ + 2 * j + 1)))
    k.I('s_lshl_b32 s26, s15, 5')
    k.I('s_lshl_b32 s27, s16, 1')
    k.I('s_add_u32 s26, s26, s27')
    k.I('s_lshl_b32 s26, s26, 10')
    k.I('s_add_u32 s26, s26, 0x%x' % OFF_PQ)
    k.I('buffer_store_dwordx4 %s, v2, %s, s26 offen' % (vr(ACQ, 4), ws))
    k.I('buffer_store_dwordx4 %s, v2, %s, s26 offen offset:1024' % (vr(ACQ + 4, 4), ws))
    k.I('v_and_b32 v5, 16, v1')
    k.I('v_cmp_eq_u32 vcc, 0, v5')
    for j in range(8):
        k.I('v_cndmask_b32 %s, %s, %s, vcc' % (vr(ACK + j), vr(DKV + 8 + j), vr(DKV + j)))
        k.I('v_cndmask_b32 %s, %s, %s, vcc' % (vr(ACK + 8 + j), vr(DZ + 8 + j), vr(DZ + j)))
    k.I('v_lshlrev_b32 v5, 7, v5')
    k.I('v_lshrrev_b32 v6, 5, v1')
    k.I('v_lshlrev_b32 v6, 10, v6')
    k.I('v_add_u32 v5, v5, v6')
    k.I('s_lshl_b32 s27, s14, 1')
    k.I('s_add_u32 s27, s27, s13')
    k.I('s_lshl_b32 s27, s27, 12')
    k.I('s_add_u32 s27, s27, 4096')
    k.I('v_add_u32 v5, s27, v5')
    k.I('v_and_b32 v6, 15, v1')
    k.I('v_lshlrev_b32 v7, 5, v6')
    k.I('v_add_u32 v7, v5, v7')
    k.I('ds_write_b128 v7, %s' % vr(ACK, 4))
    k.I('ds_write_b128 v7, %s offset:16' % vr(ACK + 4, 4))
    k.I('v_cmp_eq_u32 vcc, 0, v6')
    k.I('s_and_saveexec_b64 s[28:29], vcc')
    k.I('ds_write_b128 v5, %s offset:512' % vr(ACK + 8, 4))
    k.I('ds_write_b128 v5, %s offset:528' % vr(ACK + 12, 4))
    k.I('s_mov_b64 exec, s[28:29]')
    k.I('s_waitcnt lgkmcnt(0)')
    k.I('s_barrier')
    k.I('s_lshr_b32 s27, s8, 1')
    k.I('s_lshl_b32 s27, s27, 13')
    k.I('s_and_b32 s30, s8, 1')
    k.I('s_lshl_b32 s30, s30, 11')
    k.I('s_add_u32 s27, s27, s30')
    k.I('s_add_u32 s27, s27, 4096')
    k.I('v_lshlrev_b32 v5, 2, v1')
    k.I('v_add_u32 v6, s27, v5')
    k.I('s_lshl_b32 s30, s12, 2')
    k.I('s_add_u32 s30, s30, s8')
    k.I('s_lshl_b32 s30, s30, 11')
    k.I('s_add_u32 s30, s30, 0x%x' % OFF_KVZ)
    for half in range(2):
        for ch in range(3):
            off = half * 1024 + ch * 256
            d = 32 + (half * 3 + ch) * 2
            k.I('ds_read_b32 %s, v6 offset:%d' % (vr(d), off))
            k.I('ds_read_b32 %s, v6 offset:%d' % (vr(d + 1), off + 4096))
    for half in range(2):
        for ch in range(3):
            d = 32 + (half * 3 + ch) * 2
            k.I('v_add_f32 %s, %s, %s' % (vr(d), vr(d), vr(d + 1)))
    for half in range(2):
        for ch in range(2):
            d = 32 + (half * 3 + ch) * 2
            k.I('buffer_atomic_add_f32 %s, v5, %s, s30 offen offset:%d' % (vr(d), ws, half * 1024 + ch * 256))
    k.I('v_cmp_gt_u32 vcc, 8, v1')
    k.I('s_and_saveexec_b64 s[28:29], vcc')
    for half in range(2):
        d = 32 + (half * 3 + 2) * 2
        k.I('buffer_atomic_add_f32 %s, v5, %s, s30 offen offset:%d' % (vr(d), ws, half * 1024 + 512))
    k.I('s_mov_b64 exec, -1')
    st.stamp(); st.stamp(True); st.flush()
    k.label('L_k1_end')
    k.I('s_endpgm')
    return k, dict(lds=20480 + 4096, grid=256, block=256)


def gen_k2():
    k = Kernel('attn_kernel')
    WS, XS = 4, 8
    k.I('s_cmp_ge_u32 s2, 256')
    k.I('s_cbranch_scc1 L_k2_end')
    load_srds(k, [('ws', WS), ('x', XS)])
    ws = sr(WS, 4)
    st = Stamper(k, 2, ws); st.stamp(True); st.stamp()
    k.I('v_and_b32 v1, 63, v0')
    k.I('v_lshrrev_b32 v2, 6, v0')
    k.I('v_readfirstlane_b32 s12, v2')
    k.I('v_lshlrev_b32 v2, 4, v1')
    k.I('s_and_b32 s13, s2, 7')
    k.I('s_lshr_b32 s14, s2, 3')
    k.I('s_lshl_b32 s15, s13, 2')
    k.I('s_and_b32 s16, s14, 3')
    k.I('s_add_u32 s15, s15, s16')
    k.I('s_lshr_b32 s16, s14, 2')
    k.I('s_lshl_b32 s17, s15, 6')
    k.I('s_lshl_b32 s18, s12, 3')
    k.I('s_add_u32 s17, s17, s18')
    k.I('s_lshl_b32 s17, s17, 10')
    k.I('s_add_u32 s17, s17, 0x%x' % OFF_PQ)
    k.I('s_add_u32 s19, s17, 32768')
    k.I('s_lshl_b32 s20, s18, 4')
    k.I('s_lshl_b32 s21, s16, 1')
    k.I('s_add_u32 s20, s20, s21')
    k.I('s_lshl_b32 s20, s20, 10')
    k.I('s_add_u32 s20, s20, 0x%x' % OFF_WO)
    k.I('s_lshl_b32 s21, s18, 11')
    k.I('s_add_u32 s21, s21, 0x%x' % OFF_KVZ)
    k.I('v_and_b32 v3, 31, v1')
    k.I('v_min_u32 v4, 16, v3')
    k.I('v_lshrrev_b32 v5, 5, v1')
    k.I('v_lshlrev_b32 v6, 5, v5')
    k.I('v_add_u32 v4, v4, v6')
    k.I('v_lshlrev_b32 v4, 5, v4')
    k.I('v_add_u32 v7, 4096, v2')
    k.I('s_lshr_b32 s22, s12, 1')
    k.I('s_and_b32 s23, s12, 1')
    k.I('s_lshl_b32 s24, s15, 1')
    k.I('s_add_u32 s24, s24, s23')
    k.I('s_lshl_b32 s25, s16, 1')
    k.I('s_add_u32 s25, s25, s22')
    k.I('s_lshl_b32 s26, s24, 15')
    k.I('s_lshl_b32 s27, s25, 6')
    k.I('s_add_u32 s26, s26, s27')
    k.I('v_lshlrev_b32 v8, 10, v3')
    k.I('v_lshlrev_b32 v9, 3, v5')
    k.I('v_add_u32 v8, v8, v9')
    k.I('s_waitcnt lgkmcnt(0)')
    KV = 128
    A_ACC, A_WO, A_PQ = 0, 64, 128
    for t in range(8):
        k.I('s_add_u32 s28, s21, %d' % (t * 2048))
        k.I('buffer_load_dwordx4 %s, v4, %s, s28 offen' % (vr(KV + 8 * t, 4), ws))
        k.I('buffer_load_dwordx4 %s, v4, %s, s28 offen offset:16' % (vr(KV + 8 * t + 4, 4), ws))
        for r in range(2):
            k.I('buffer_load_dwordx4 %s, %s, %s, %s offen offset:%d' % (
                ar(A_PQ + (t * 2 + r) * 4, 4), 'v2' if t < 4 else 'v7', ws, 's17' if r == 0 else 's19', (t % 4) * 1024))
        k.I('s_add_u32 s29, s20, %d' % (t * 16384))
        for n in range(2):
            k.I('buffer_load_dwordx4 %s, v2, %s, s29 offen offset:%d' % (ar(A_WO + (t * 2 + n) * 4, 4), ws, n * 1024))
    XR = 112
    for a in range(4):
        k.I('buffer_load_dwordx2 %s, v8, %s, s26 offen offset:%d' % (vr(XR + 2 * a, 2), sr(XS, 4), a * 16))
    st.stamp()
    D1 = [32, 48]
    KF = 64
    OF = [72, 76]
    T = 80
    for t in range(8):
        for j in range(4):
            k.I('v_cvt_pk_bf16_f32 %s, %s, %s' % (vr(KF + (t & 1) * 4 + j), vr(KV + 8 * t + 2 * j), vr(KV + 8 * t + 2 * j + 1)))
        kf = vr(KF + (t & 1) * 4, 4)
        for r in range(2):
            k.I('v_mfma_f32_32x32x16_bf16 %s, %s, %s, 0' % (vr(D1[r], 16), kf, ar(A_PQ + (t * 2 + r) * 4, 4)))
        for r in range(2):
            k.I('v_add_f32 %s, 0x%x, %s' % (vr(T + r), f2u(1e-6), vr(D1[r] + 8)))
            k.I('v_rcp_f32 %s, %s' % (vr(T + r), vr(T + r)))
            for i in range(8):
                k.I('v_mul_f32 %s, %s, %s' % (vr(D1[r] + i), vr(T + r), vr(D1[r] + i)))
            for j in range(4):
                k.I('v_cvt_pk_bf16_f32 %s, %s, %s' % (vr(OF[r] + j), vr(D1[r] + 2 * j), vr(D1[r] + 2 * j + 1)))
        for n in range(2):
            for r in range(2):
                acc = ar(A_ACC + (n * 2 + r) * 16, 16)
                k.I('v_mfma_f32_32x32x16_bf16 %s, %s, %s, %s' % (
                    acc, ar(A_WO + (t * 2 + n) * 4, 4), vr(OF[r], 4), acc if t else '0'))
    st.stamp()
    reduce_tiles(k, A_ACC, 12, 32)
    st.stamp()
    for a in range(4):
        for b in range(2):
            src = XR + 2 * a + b
            k.I('v_lshlrev_b32 v64, 16, %s' % vr(src))
            k.I('v_and_b32 v65, 0xffff0000, %s' % vr(src))
            k.I('v_add_f32 %s, %s, v64' % (vr(32 + 4 * a + 2 * b), vr(32 + 4 * a + 2 * b)))
            k.I('v_add_f32 %s, %s, v65' % (vr(32 + 4 * a + 2 * b + 1), vr(32 + 4 * a + 2 * b + 1)))
    for j in range(8):
        k.I('v_cvt_pk_bf16_f32 %s, %s, %s' % (vr(48 + j), vr(32 + 2 * j), vr(32 + 2 * j + 1)))
    k.I('s_lshl_b32 s26, s24, 5')
    k.I('s_lshl_b32 s27, s25, 1')
    k.I('s_add_u32 s26, s26, s27')
    k.I('s_lshl_b32 s26, s26, 10')
    k.I('s_add_u32 s26, s26, 0x%x' % OFF_H)
    k.I('buffer_store_dwordx4 v[48:51], v2, %s, s26 offen' % ws)
    k.I('buffer_store_dwordx4 v[52:55], v2, %s, s26 offen offset:1024' % ws)
    st.stamp(); st.stamp(True); st.flush()
    k.label('L_k2_end')
    k.I('s_endpgm')
    return k, dict(lds=65536, grid=256, block=256)


def reduce_tiles(k, A_ACC, s_wave, dst):
    k.I('v_lshlrev_b32 v10, 4, v1')
    k.I('s_lshl_b32 s30, %s, 14' % sr(s_wave))
    k.I('v_add_u32 v10, s30, v10')
    for t in range(4):
        for q in range(4):
            k.I('ds_write_b128 v10, %s offset:%d' % (ar(A_ACC + t * 16 + q * 4, 4), t * 4096 + q * 1024))
    k.I('s_waitcnt lgkmcnt(0)')
    k.I('s_barrier')
    k.I('v_lshlrev_b32 v11, 4, v1')
    k.I('s_lshl_b32 s30, %s, 12' % sr(s_wave))
    k.I('v_add_u32 v11, s30, v11')
    for sw in range(4):
        for q in range(4):
            k.I('ds_read_b128 %s, v11 offset:%d' % (vr(dst + sw * 16 + q * 4, 4), sw * 16384 + q * 1024))
    for sw in range(1, 4):
        for i in range(16):
            k.I('v_add_f32 %s, %s, %s' % (vr(dst + i), vr(dst + i), vr(dst + sw * 16 + i)))


OPT = {}

def gen_k3():
    k = Kernel('gateup_kernel')
    WS = 4
    k.I('s_cmp_ge_u32 s2, 256')
    k.I('s_cbranch_scc1 L_k3_end')
    load_srds(k, [('ws', WS)])
    ws = sr(WS, 4)
    st = Stamper(k, 3, ws); st.stamp(True); st.stamp()
    k.I('v_and_b32 v1, 63, v0')
    k.I('v_lshrrev_b32 v2, 6, v0')
    k.I('v_readfirstlane_b32 s8, v2')
    k.I('v_lshlrev_b32 v2, 4, v1')
    k.I('s_and_b32 s9, s2, 7')
    k.I('s_lshr_b32 s10, s2, 3')
    k.I('s_and_b32 s11, s9, 1')
    k.I('s_lshl_b32 s11, s11, 3')
    k.I('s_and_b32 s12, s10, 7')
    k.I('s_add_u32 s11, s11, s12')
    k.I('s_lshr_b32 s12, s9, 1')
    k.I('s_lshl_b32 s12, s12, 2')
    k.I('s_lshr_b32 s13, s10, 3')
    k.I('s_add_u32 s12, s12, s13')
    k.I('s_lshl_b32 s13, s11, 2')
    k.I('s_add_u32 s13, s13, s8')
    k.I('s_lshl_b32 s14, s13, 15')
    k.I('s_add_u32 s14, s14, 0x%x' % OFF_H)
    k.I('s_mul_i32 s15, s12, %d' % (7 * 32768))
    k.I('s_lshl_b32 s16, s8, 13')
    k.I('s_add_u32 s15, s15, s16')
    k.I('s_add_u32 s15, s15, 0x%x' % OFF_WGU)
    k.I('s_mul_i32 s17, s13, 112')
    k.I('s_mul_i32 s18, s12, 7')
    k.I('s_add_u32 s17, s17, s18')
    k.I('s_lshl_b32 s17, s17, 10')
    k.I('s_add_u32 s17, s17, 0x%x' % OFF_ACT)
    for t in range(1, 8):
        k.I('v_add_u32 %s, %d, v2' % (vr(8 + t), 4096 * t))
    k.I('v_mov_b32 v8, v2')
    k.I('v_lshlrev_b32 v3, 2, v0')
    k.I('s_mul_i32 s18, s12, %d' % (7 * 128))
    k.I('s_add_u32 s18, s18, 0x%x' % OFF_CSG)
    k.I('s_waitcnt lgkmcnt(0)')
    CS_LDS = 131072
    for kg in range(16):
        k.I('s_add_u32 s19, s18, %d' % (kg * 112 * 128))
        k.I('buffer_load_dword %s, v3, %s, s19 offen' % (vr(64 + kg), ws))

    def dma(soff, sm0, name):
        for hf in range(2):
            k.I('s_add_u32 s19, %s, %d' % (sr(sm0), hf * 4096))
            k.I('s_mov_b32 m0, s19')
            k.I('s_add_u32 s20, %s, %d' % (sr(soff), hf * 4096))
            for t in range(4):
                k.I('buffer_load_dwordx4 v2, %s, s20 offen offset:%d lds' % (ws, t * 1024), w=[name])
    X = 128
    k.I('s_mov_b32 s21, s16')
    dma(15, 21, 'W0')
    for ks in range(32):
        k.I('buffer_load_dwordx4 %s, %s, %s, s14 offen offset:%d' % (vr(X + 4 * ks, 4), vr(8 + ks // 4), ws, (ks % 4) * 1024))
    for kg in range(1, 16):
        k.I('v_add_f32 v64, v64, %s' % vr(64 + kg))
    k.I('v_add_u32 v3, %d, v3' % CS_LDS)
    k.I('ds_write_b32 v3, v64')
    k.I('s_add_u32 s22, s15, 32768')
    k.I('s_add_u32 s21, s16, 32768')
    dma(22, 21, 'dA')
    k.I('s_add_u32 s22, s15, 65536')
    k.I('s_add_u32 s21, s16, 65536')
    dma(22, 21, 'dB')
    k.I('s_add_u32 s23, s16, %d' % (3 * 32768))
    k.I('s_mov_b32 s24, s16')
    k.I('s_add_u32 s25, s15, %d' % (3 * 32768))
    k.I('s_mov_b32 s26, 0')
    k.I('v_mov_b32 v4, v2')
    k.I('v_add_u32 v5, 32768, v2')
    k.I('v_lshrrev_b32 v6, 5, v1')
    k.I('v_lshlrev_b32 v6, 4, v6')
    k.I('v_add_u32 v6, %d, v6' % CS_LDS)
    k.I('s_mov_b32 s27, 0x%x' % ONES_BF16)
    ACC = [32, 48]
    D, L = 8, 6
    WR = 0
    CSR = 64
    T = 80
    MEAN, RSTD, NMEAN, NA, A2 = 112, 113, 114, 115, 116

    def wread(n, vaddr, ks):
        k.I('ds_read_b128 %s, %s offset:%d' % (ar(WR + (n % D) * 4, 4), vaddr, ks * 1024))

    def epilogue_ops(S, last=False):
        ops = []
        for q in range(4):
            ops.append('ds_read_b128 %s, v6 offset:%d' % (vr(CSR + 4 * q, 4), q * 32))
        pre = len(ops)
        for i0 in range(0, 8, 2):
            a = []
            for u, i in enumerate((i0, i0 + 1)):
                t = T + u * 4
                a.append([
                    'v_fma_f32 %s, %s, %s, %s' % (vr(t), vr(NMEAN), vr(CSR + i), vr(S + i)),
                    'v_fma_f32 %s, %s, %s, %s' % (vr(t + 1), vr(NMEAN), vr(CSR + 8 + i), vr(S + 8 + i)),
                    'v_mul_f32 %s, %s, %s' % (vr(t + 2), vr(NA), vr(t)),
                    'v_exp_f32 %s, %s' % (vr(t + 2), vr(t + 2)),
                    'v_mul_f32 %s, %s, %s' % (vr(t), vr(t), vr(t + 1)),
                    'v_add_f32 %s, 1.0, %s' % (vr(t + 2), vr(t + 2)),
                    'v_rcp_f32 %s, %s' % (vr(t + 2), vr(t + 2)),
                    'v_mul_f32 %s, %s, %s' % (vr(t), vr(A2), vr(t)),
                    'v_mul_f32 %s, %s, %s' % (vr(T + 8 + i), vr(t), vr(t + 2)),
                ])
            for x, y in zip(a[0], a[1]):
                ops += [x, y]
            ops.append('v_cvt_pk_bf16_f32 %s, %s, %s' % (vr(T + 16 + i0 // 2), vr(T + 8 + i0), vr(T + 8 + i0 + 1)))
        ops.append('buffer_store_dwordx4 %s, v2, %s, s17 offen' % (vr(T + 16, 4), ws))
        ops.append('s_add_u32 s17, s17, 1024')
        ops.append('v_add_u32 v6, 128, v6')
        return ops, pre

    def body(par, first, nbase):
        cur, nxt = ('v4', 'v5') if par == 0 else ('v5', 'v4')
        S = ACC[par]
        if first:
            fill = []
            for ks in range(32):
                f = []
                for j in range(4):
                    f.append('v_dot2c_f32_bf16 %s, s27, %s' % (vr(100 + (j & 1)), vr(X + 4 * ks + j)))
                    f.append('v_dot2c_f32_bf16 %s, %s, %s' % (vr(102 + (j & 1)), vr(X + 4 * ks + j), vr(X + 4 * ks + j)))
                fill.append(f)
        else:
            ops, pre = epilogue_ops(ACC[1 - par])
            fill = [[] for _ in range(32)]
            fill[0] = ops[:pre]
            rest = ops[pre:]
            g0, g1 = 3, 30
            per = -(-len(rest) // (g1 - g0))
            for g in range(g0, g1):
                fill[g] = rest[(g - g0) * per:(g - g0 + 1) * per]
        for ks in range(32):
            n = nbase + ks
            k.I('v_mfma_f32_32x32x16_bf16 %s, %s, %s, %s' % (
                vr(S, 16), ar(WR + (n % D) * 4, 4), vr(X + 4 * ks, 4), vr(S, 16) if ks else '0'))
            if ks == 32 - L:
                k.need('dA' if par == 0 else 'dB')
                k.I('s_barrier')
                sm = 23 if par == 0 else 24
                k.I('s_cmp_lt_u32 s26, 4')
                k.I('s_cselect_b32 s28, s25, 0x7fff0000')
                if not OPT.get('nodma') or first:
                    dma(28, sm, 'dA' if par == 0 else 'dB')
                k.I('s_xor_b32 %s, %s, 0x10000' % (sr(sm), sr(sm)))
                k.I('s_add_u32 s25, s25, 32768')
                k.I('s_add_u32 s26, s26, 1')
            if ks + L < 32:
                wread(n + L, cur, ks + L)
            else:
                wread(n + L, nxt, ks + L - 32)
            for ins in fill[ks]:
                if OPT.get('noepi') and not first and ins.startswith('v_'): continue
                if OPT.get('nostats') and first: continue
                k.I(ins)
        k.I('v_xor_b32 %s, 0x10000, %s' % (cur, cur))

    for j in range(4):
        k.I('v_mov_b32 %s, 0' % vr(100 + j))
    st.stamp()
    k.need('W0')
    k.I('s_waitcnt lgkmcnt(0)')
    k.I('s_barrier')
    st.stamp()
    for n in range(L):
        wread(n, 'v4', n)
    body(0, True, 0)
    st.stamp()
    k.I('v_add_f32 v100, v100, v101')
    k.I('v_add_f32 v102, v102, v103')
    stats_finish(k, 100, 102, MEAN, RSTD, 101)
    k.I('v_sub_f32 %s, 0, %s' % (vr(NMEAN), vr(MEAN)))
    k.I('v_mul_f32 %s, 0x%x, %s' % (vr(NA), f2u(-LOG2E), vr(RSTD)))
    k.I('v_mul_f32 %s, %s, %s' % (vr(A2), vr(RSTD), vr(RSTD)))
    k.I('s_mov_b32 s29, 3')
    k.loop_begin('L_k3_loop')
    body(1, False, 0)
    body(0, False, 0)
    k.I('s_sub_u32 s29, s29, 1')
    k.I('s_cmp_lg_u32 s29, 0')
    k.I('s_cbranch_scc1 L_k3_loop')
    k.loop_end('L_k3_loop')
    st.stamp()
    ops, pre = epilogue_ops(ACC[0])
    for ins in ops:
        k.I(ins)
    st.stamp(); st.stamp(True); st.flush()
    k.label('L_k3_end')
    k.I('s_endpgm')
    return k, dict(lds=131072 + 1024, grid=256, block=256)


def gen_k4():
    k = Kernel('down_kernel')
    WS, OS = 4, 8
    k.I('s_cmp_ge_u32 s2, 256')
    k.I('s_cbranch_scc1 L_k4_end')
    load_srds(k, [('ws', WS), ('out', OS)])
    ws = sr(WS, 4)
    st = Stamper(k, 4, ws); st.stamp(True); st.stamp()
    k.I('v_and_b32 v1, 63, v0')
    k.I('v_lshrrev_b32 v2, 6, v0')
    k.I('v_readfirstlane_b32 s12, v2')
    k.I('v_lshlrev_b32 v2, 4, v1')
    k.I('v_add_u32 v3, 4096, v2')
    k.I('s_and_b32 s13, s2, 7')
    k.I('s_lshr_b32 s14, s2, 3')
    k.I('s_lshl_b32 s15, s13, 2')
    k.I('s_and_b32 s16, s14, 3')
    k.I('s_add_u32 s15, s15, s16')
    k.I('s_lshr_b32 s16, s14, 2')
    k.I('s_mul_i32 s17, s12, %d' % (28 * 1024))
    k.I('s_mul_i32 s18, s15, %d' % (2 * 112 * 1024))
    k.I('s_add_u32 s18, s18, s17')
    k.I('s_add_u32 s18, s18, 0x%x' % OFF_ACT)
    k.I('s_add_u32 s19, s18, %d' % (112 * 1024))
    k.I('s_mul_i32 s20, s16, %d' % (2 * 112 * 1024))
    k.I('s_add_u32 s20, s20, s17')
    k.I('s_add_u32 s20, s20, 0x%x' % OFF_WD)
    k.I('s_add_u32 s21, s20, %d' % (112 * 1024))
    k.I('s_lshr_b32 s22, s12, 1')
    k.I('s_and_b32 s23, s12, 1')
    k.I('s_lshl_b32 s24, s15, 1')
    k.I('s_add_u32 s24, s24, s23')
    k.I('s_lshl_b32 s25, s16, 1')
    k.I('s_add_u32 s25, s25, s22')
    k.I('s_lshl_b32 s26, s24, 5')
    k.I('s_lshl_b32 s27, s25, 1')
    k.I('s_add_u32 s26, s26, s27')
    k.I('s_lshl_b32 s26, s26, 10')
    k.I('s_add_u32 s26, s26, 0x%x' % OFF_H)
    k.I('s_waitcnt lgkmcnt(0)')
    HR = 112
    k.I('buffer_load_dwordx4 %s, v2, %s, s26 offen' % (vr(HR, 4), ws))
    k.I('buffer_load_dwordx4 %s, v2, %s, s26 offen offset:1024' % (vr(HR + 4, 4), ws))
    R = 7
    RING = 128
    A_ACC = 0

    def loads(u):
        voff = 'v2' if u < 4 else 'v3'
        for s, so in enumerate((20, 21, 18, 19)):
            k.I('buffer_load_dwordx4 %s, %s, %s, %s offen offset:%d' % (
                vr(RING + u * 16 + s * 4, 4), voff, ws, sr(so), (u % 4) * 1024))

    def adv():
        for so in (18, 19, 20, 21):
            k.I('s_add_u32 %s, %s, %d' % (sr(so), sr(so), R * 1024))

    def mfmas(u, first):
        for n in range(2):
            for r in range(2):
                acc = ar(A_ACC + (n * 2 + r) * 16, 16)
                k.I('v_mfma_f32_32x32x16_bf16 %s, %s, %s, %s' % (
                    acc, vr(RING + u * 16 + n * 4, 4), vr(RING + u * 16 + 8 + r * 4, 4), '0' if first else acc))
    for u in range(R):
        loads(u)
    adv()
    st.stamp()
    for u in range(R):
        mfmas(u, u == 0)
        loads(u)
    adv()
    st.stamp()
    k.I('s_mov_b32 s28, 2')
    k.loop_begin('L_k4_loop')
    for u in range(R):
        mfmas(u, False)
        loads(u)
    adv()
    k.I('s_sub_u32 s28, s28, 1')
    k.I('s_cmp_lg_u32 s28, 0')
    k.I('s_cbranch_scc1 L_k4_loop')
    k.loop_end('L_k4_loop')
    for u in range(R):
        mfmas(u, False)
    st.stamp()
    reduce_tiles(k, A_ACC, 12, 32)
    st.stamp()
    for j in range(8):
        src = HR + j
        k.I('v_lshlrev_b32 v96, 16, %s' % vr(src))
        k.I('v_and_b32 v97, 0xffff0000, %s' % vr(src))
        k.I('v_add_f32 %s, %s, v96' % (vr(32 + 2 * j), vr(32 + 2 * j)))
        k.I('v_add_f32 %s, %s, v97' % (vr(32 + 2 * j + 1), vr(32 + 2 * j + 1)))
    for j in range(8):
        k.I('v_cvt_pk_bf16_f32 %s, %s, %s' % (vr(48 + j), vr(32 + 2 * j), vr(32 + 2 * j + 1)))
    for a in (0, 2):
        b = 48 + 2 * a
        k.I('v_permlane32_swap_b32 %s, %s' % (vr(b), vr(b + 2)))
        k.I('v_permlane32_swap_b32 %s, %s' % (vr(b + 1), vr(b + 3)))
    k.I('v_and_b32 v4, 31, v1')
    k.I('v_lshlrev_b32 v4, 10, v4')
    k.I('v_lshrrev_b32 v5, 5, v1')
    k.I('v_lshlrev_b32 v5, 4, v5')
    k.I('v_add_u32 v4, v4, v5')
    k.I('s_lshl_b32 s26, s24, 15')
    k.I('s_lshl_b32 s27, s25, 6')
    k.I('s_add_u32 s26, s26, s27')
    k.I('buffer_store_dwordx4 v[48:51], v4, %s, s26 offen' % sr(OS, 4))
    k.I('buffer_store_dwordx4 v[52:55], v4, %s, s26 offen offset:32' % sr(OS, 4))
    st.stamp(); st.stamp(True); st.flush()
    k.label('L_k4_end')
    k.I('s_endpgm')
    return k, dict(lds=65536, grid=256, block=256)


def wrap(kernels):
    head = open('cdna_kernels/%s.s.ref' % NAME).read().split('; Override launch geometry')[0]
    out = [head.rstrip()]
    for label, k, cfg in kernels:
        out.append('; @launch kernel=%s grid=(%d,1,1) block=(%d,1,1) lds=%d' % (label, cfg['grid'], cfg['block'], cfg['lds']))
    out.append('.amdgcn_target "amdgcn-amd-amdhsa--gfx950"')
    out.append('.text')
    seen = set()
    for label, k, cfg in kernels:
        if label in seen:
            continue
        seen.add(label)
        out.append('.globl %s' % label)
        out.append('.p2align 8')
        out.append('.type %s,@function' % label)
        out.append('%s:' % label)
        out.append(k.finish())
    out.append('.section .rodata,"a"')
    seen = set()
    for label, k, cfg in kernels:
        if label in seen:
            continue
        seen.add(label)
        mx = k.maxreg()
        acc = cfg.get('accum', None)
        nv = mx['v'] + 1
        na = mx['a'] + 1
        accum = max(4, (nv + 3) // 4 * 4)
        nfv = accum + na if na else nv
        out.append('.p2align 6')
        out.append('.amdhsa_kernel %s' % label)
        out.append('  .amdhsa_next_free_vgpr %d' % nfv)
        out.append('  .amdhsa_next_free_sgpr %d' % max(mx['s'] + 1, 16))
        out.append('  .amdhsa_accum_offset %d' % accum)
        out.append('  .amdhsa_group_segment_fixed_size 0')
        out.append('  .amdhsa_kernarg_size 80')
        out.append('  .amdhsa_user_sgpr_count 2')
        out.append('  .amdhsa_user_sgpr_kernarg_segment_ptr 1')
        out.append('  .amdhsa_system_sgpr_workgroup_id_x 1')
        out.append('  .amdhsa_float_denorm_mode_32 3')
        out.append('.end_amdhsa_kernel')
    return '\n'.join(out) + '\n'


if __name__ == '__main__':
    n = int(sys.argv[2]) if len(sys.argv) > 2 else 5
    STAMPS = len(sys.argv) > 3
    for o in sys.argv[4:]:
        OPT[o] = True
    gens = [('prep_kernel', gen_k0), ('qkv_kernel', gen_k1), ('attn_kernel', gen_k2), ('gateup_kernel', gen_k3), ('down_kernel', gen_k4)]
    ks = []
    for label, g in gens[:n]:
        kk, cc = g()
        ks.append((label, kk, cc))
        print(label, kk.stats(), kk.maxreg())
    open(sys.argv[1], 'w').write(wrap(ks))
```

```python
import re

REG_RE = re.compile(r'^(-|abs\()?([vas])(\d+)\)?$')
RANGE_RE = re.compile(r'^(-)?([vas])\[(\d+):(\d+)\]$')


def parse_regs(op):
    op = op.strip()
    m = REG_RE.match(op)
    if m:
        return [(m.group(2), int(m.group(3)))]
    m = RANGE_RE.match(op)
    if m:
        return [(m.group(2), i) for i in range(int(m.group(3)), int(m.group(4)) + 1)]
    if op in ('vcc', 'vcc_lo', 'vcc_hi'):
        return [('x', 'vcc')]
    if op in ('exec', 'exec_lo', 'exec_hi'):
        return [('x', 'exec')]
    if op == 'm0':
        return [('x', 'm0')]
    return []


TRANS = ('v_exp_f32', 'v_log_f32', 'v_rcp_f32', 'v_rsq_f32', 'v_sqrt_f32', 'v_sin_f32', 'v_cos_f32')
RMW_VALU = ('v_fmac_f32', 'v_dot2c_f32_bf16', 'v_fmac_f64', 'v_pk_fmac_f16', 'v_mac_f32')


class Ins:
    __slots__ = ('text', 'op', 'reads', 'writes', 'kind', 'vm', 'lgkm', 'smem', 'label', 'nops', 'wait_vm',
                 'wait_lgkm', 'passes', 'srcC', 'srcAB', 'wide_store', 'lds_dma', 'trans', 'dpp', 'comment',
                 'is_wait', 'nop_states', 'need', 'sgpr_reads_vmem', 'manual')

    def __init__(self, text):
        self.text = text
        self.label = None
        self.nops = 0
        self.wait_vm = None
        self.wait_lgkm = None
        self.reads = []
        self.writes = []
        self.kind = 'other'
        self.vm = False
        self.lgkm = False
        self.smem = False
        self.passes = 0
        self.srcC = []
        self.srcAB = []
        self.wide_store = False
        self.lds_dma = False
        self.trans = False
        self.dpp = False
        self.is_wait = None
        self.nop_states = 1
        self.need = []
        self.manual = False


def split_ops(s):
    out, depth, cur = [], 0, ''
    for ch in s:
        if ch in '[(':
            depth += 1
        if ch in '])':
            depth -= 1
        if ch == ',' and depth == 0:
            out.append(cur.strip())
            cur = ''
        else:
            cur += ch
    if cur.strip():
        out.append(cur.strip())
    return out


def parse(text, extra_reads=(), extra_writes=()):
    ins = Ins(text)
    t = text.strip()
    parts = t.split(None, 1)
    op = parts[0]
    ins.op = op
    rest = parts[1] if len(parts) > 1 else ''
    ops = split_ops(rest)
    mods = ''
    if ops:
        last = ops[-1].split()
        if len(last) > 1 and not ops[-1].startswith('hwreg'):
            ops[-1] = last[0]
            mods = ' '.join(last[1:])
    base = re.sub(r'_(e32|e64|dpp|sdwa)$', '', op)
    R = lambda i: parse_regs(ops[i]) if i < len(ops) else []
    allregs = lambda idxs: [r for i in idxs for r in R(i)]
    n = len(ops)
    if base.startswith('v_mfma'):
        ins.kind = 'mfma'
        ins.writes = R(0)
        ins.srcAB = R(1) + R(2)
        ins.srcC = R(3)
        ins.reads = ins.srcAB + ins.srcC
        if '32x32x16' in base:
            ins.passes = 8
        elif '16x16x32' in base:
            ins.passes = 4
        else:
            raise ValueError('unknown mfma ' + base)
    elif base.startswith('v_cmp'):
        ins.kind = 'valu'
        ins.writes = R(0)
        ins.reads = allregs(range(1, n))
    elif base in ('v_readfirstlane_b32', 'v_readlane_b32'):
        ins.kind = 'valu'
        ins.writes = R(0)
        ins.reads = allregs(range(1, n))
    elif base.startswith('v_permlane'):
        ins.kind = 'valu'
        ins.writes = R(0) + R(1)
        ins.reads = R(0) + R(1)
    elif base in ('v_add_co_u32', 'v_sub_co_u32', 'v_addc_co_u32', 'v_subb_co_u32'):
        ins.kind = 'valu'
        ins.writes = R(0) + R(1)
        ins.reads = allregs(range(2, n))
    elif base.startswith('v_'):
        ins.kind = 'valu'
        ins.writes = R(0)
        ins.reads = allregs(range(1, n))
        if base in RMW_VALU:
            ins.reads += R(0)
        if base in TRANS:
            ins.trans = True
        if op.endswith('_dpp') or 'row_' in mods or 'quad_perm' in mods:
            ins.dpp = True
            ins.reads += R(0)
        if base == 'v_cndmask_b32' and n == 3:
            ins.reads += [('x', 'vcc')]
    elif base.startswith('ds_'):
        ins.kind = 'ds'
        ins.lgkm = True
        if base.startswith('ds_read') or base.startswith('ds_bpermute') or base.startswith('ds_swizzle') \
                or base.startswith('ds_permute'):
            ins.writes = R(0)
            ins.reads = allregs(range(1, n))
        else:
            ins.reads = allregs(range(0, n))
    elif base.startswith('buffer_') or base.startswith('global_'):
        ins.kind = 'vmem'
        ins.vm = True
        modl = mods.split()
        if base in ('buffer_inv', 'buffer_wbl2'):
            pass
        elif 'lds' in modl or base.startswith('global_load_lds'):
            ins.lds_dma = True
            ins.reads = allregs(range(0, n)) + [('x', 'm0')]
        elif '_load' in base:
            ins.writes = R(0)
            ins.reads = allregs(range(1, n))
        elif '_store' in base:
            ins.reads = allregs(range(0, n))
            if 'x4' in base or 'x3' in base:
                ins.wide_store = True
        elif '_atomic' in base:
            ins.reads = allregs(range(0, n))
            if 'sc0' in modl:
                ins.writes = R(0)
        else:
            raise ValueError('unknown vmem ' + text)
    elif base.startswith('s_load') or base.startswith('s_buffer_load') or base in ('s_memtime', 's_memrealtime'):
        ins.kind = 'smem'
        ins.lgkm = True
        ins.smem = True
        ins.writes = R(0)
        ins.reads = allregs(range(1, n))
    elif base == 's_waitcnt':
        ins.kind = 'wait'
        vm = re.search(r'vmcnt\((\d+)\)', rest)
        lg = re.search(r'lgkmcnt\((\d+)\)', rest)
        ins.is_wait = (int(vm.group(1)) if vm else None, int(lg.group(1)) if lg else None)
    elif base == 's_nop':
        ins.kind = 'nop'
        ins.nop_states = int(ops[0], 0) + 1
    elif base in ('s_barrier', 's_endpgm', 's_setprio', 's_sleep', 's_branch') or base.startswith('s_cbranch'):
        ins.kind = 'ctl'
        if base in ('s_cbranch_vccz', 's_cbranch_vccnz'):
            ins.reads = [('x', 'vcc')]
        if base in ('s_cbranch_execz', 's_cbranch_execnz'):
            ins.reads = [('x', 'exec')]
    elif base.startswith('s_cmp') or base.startswith('s_bitcmp'):
        ins.kind = 'salu'
        ins.reads = allregs(range(0, n))
    elif base.startswith('s_'):
        ins.kind = 'salu'
        ins.writes = R(0)
        ins.reads = allregs(range(1, n))
        if 'saveexec' in base:
            ins.writes += [('x', 'exec')]
            ins.reads += [('x', 'exec')]
        if base in ('s_addk_i32', 's_mulk_i32'):
            ins.reads += R(0)
    else:
        raise ValueError('cannot parse: ' + text)
    ins.reads = list(ins.reads) + list(extra_reads)
    ins.writes = list(ins.writes) + list(extra_writes)
    return ins


class Kernel:
    def __init__(self, name):
        self.name = name
        self.items = []
        self.uid = 0

    def I(self, text, r=(), w=()):
        for line in text.strip().split('\n'):
            line = line.split(';')[0].strip()
            if not line:
                continue
            ins = parse(line, [('p', x) for x in r], [('p', x) for x in w])
            self.items.append(ins)
        return self

    def need(self, *res):
        ins = Ins('')
        ins.op = 'pseudo_need'
        ins.kind = 'pseudo'
        ins.reads = [('p', x) for x in res]
        self.items.append(ins)

    def touch(self, text_regs):
        ins = Ins('')
        ins.op = 'pseudo_need'
        ins.kind = 'pseudo'
        ins.reads = parse_regs(text_regs)
        self.items.append(ins)

    def label(self, name):
        self.items.append(('label', name))

    def raw(self, text):
        self.items.append(('raw', text))

    def comment(self, text):
        self.items.append(('comment', text))

    def loop_begin(self, name, sim=3):
        self.items.append(('label', name))
        self.items.append(('loop_begin', name, sim))

    def loop_end(self, name):
        self.items.append(('loop_end', name))

    def fence(self):
        self.items.append(('fence',))

    def trace(self):
        out = []
        stack = []
        i = 0
        items = self.items

        def expand(lo, hi):
            res = []
            i = lo
            while i < hi:
                it = items[i]
                if isinstance(it, tuple) and it[0] == 'loop_begin':
                    depth = 1
                    j = i + 1
                    while True:
                        jt = items[j]
                        if isinstance(jt, tuple) and jt[0] == 'loop_end' and jt[1] == it[1]:
                            break
                        j += 1
                    body = expand(i + 1, j)
                    for _ in range(it[2]):
                        res += body
                    i = j + 1
                    continue
                if isinstance(it, Ins) or it[0] == 'fence':
                    res.append(i)
                i += 1
            return res

        return expand(0, len(items))

    def insert_waits(self):
        tr = self.trace()
        items = self.items
        changed = True
        rounds = 0
        while changed:
            changed = False
            rounds += 1
            assert rounds < 20
            vmq = []
            lgq = []
            for idx in tr:
                ins = items[idx]
                if not isinstance(ins, Ins):
                    vmq, lgq = [], []
                    continue
                touched = set(ins.reads) | {r for r in ins.writes if r[0] != 'p'}
                need_vm = None
                need_lg = None
                if touched and ins.kind != 'wait':
                    for pos in range(len(vmq) - 1, -1, -1):
                        if vmq[pos] & touched:
                            need_vm = len(vmq) - 1 - pos
                            break
                    for pos in range(len(lgq) - 1, -1, -1):
                        if lgq[pos][0] & touched:
                            need_lg = len(lgq) - 1 - pos
                            if any(e[1] for e in lgq):
                                need_lg = 0
                            break
                if need_vm is not None:
                    need_vm = min(need_vm, 63)
                    if ins.wait_vm is None or need_vm < ins.wait_vm:
                        ins.wait_vm = need_vm
                        changed = True
                if need_lg is not None:
                    need_lg = min(need_lg, 15)
                    if ins.wait_lgkm is None or need_lg < ins.wait_lgkm:
                        ins.wait_lgkm = need_lg
                        changed = True
                wv, wl = ins.wait_vm, ins.wait_lgkm
                if ins.kind == 'wait':
                    wv, wl = ins.is_wait
                if wv is not None:
                    while len(vmq) > wv:
                        vmq.pop(0)
                if wl is not None:
                    if any(e[1] for e in lgq):
                        if wl == 0:
                            lgq = []
                    else:
                        while len(lgq) > wl:
                            lgq.pop(0)
                if ins.vm:
                    vmq.append(set(ins.writes))
                    assert len(vmq) <= 63 or True
                if ins.lgkm:
                    lgq.append((set(ins.writes), ins.smem))
                if ins.op == 's_endpgm':
                    vmq, lgq = [], []

    def insert_nops(self):
        tr = self.trace()
        items = self.items
        changed = True
        rounds = 0
        while changed:
            changed = False
            rounds += 1
            assert rounds < 20
            hist = []
            for idx in tr:
                ins = items[idx]
                if not isinstance(ins, Ins):
                    hist = []
                    continue
                if ins.kind == 'pseudo':
                    continue
                req = 0
                dist = 0
                own_wait = 1 if (ins.wait_vm is not None or ins.wait_lgkm is not None) and ins.kind != 'wait' else 0
                dist = own_wait
                rd = set(ins.reads)
                wr = set(ins.writes)
                for p in reversed(hist):
                    if dist > 24:
                        break
                    need = hazard(p, ins, rd, wr)
                    if need > dist:
                        req = max(req, need - dist)
                    dist += p.nop_states + p.nops + (
                        1 if (p.wait_vm is not None or p.wait_lgkm is not None) and p.kind != 'wait' else 0)
                if req > ins.nops:
                    ins.nops = req
                    changed = True
                hist.append(ins)
                if len(hist) > 40:
                    hist.pop(0)

    def render(self):
        out = []
        for it in self.items:
            if isinstance(it, Ins):
                if it.kind == 'pseudo':
                    w = wait_text(it.wait_vm, it.wait_lgkm)
                    if w:
                        out.append('    ' + w)
                    continue
                w = wait_text(it.wait_vm, it.wait_lgkm) if it.kind != 'wait' else None
                if w:
                    out.append('    ' + w)
                n = it.nops
                while n > 0:
                    k = min(n, 16)
                    out.append('    s_nop %d' % (k - 1))
                    n -= k
                out.append('    ' + it.text)
            elif it[0] == 'label':
                out.append(it[1] + ':')
            elif it[0] == 'comment':
                out.append('    ; ' + it[1])
            elif it[0] == 'raw':
                out.append(it[1])
        return '\n'.join(out)

    def finish(self):
        self.insert_waits()
        self.insert_nops()
        return self.render()

    def stats(self):
        from collections import Counter
        c = Counter()
        for it in self.items:
            if isinstance(it, Ins):
                c[it.kind] += 1
        return dict(c)

    def maxreg(self):
        mx = {'v': -1, 'a': -1, 's': -1}
        for it in self.items:
            if isinstance(it, Ins):
                for (t, i) in list(it.reads) + list(it.writes):
                    if t in mx:
                        mx[t] = max(mx[t], i)
        return mx


def wait_text(vm, lg):
    p = []
    if vm is not None:
        p.append('vmcnt(%d)' % vm)
    if lg is not None:
        p.append('lgkmcnt(%d)' % lg)
    return ('s_waitcnt ' + ' '.join(p)) if p else None


def is_sg(r):
    return r[0] == 's' or r == ('x', 'vcc')


def hazard(p, c, rd, wr):
    need = 0
    pw = set(p.writes)
    if p.kind == 'valu':
        vw = {r for r in pw if r[0] in 'va'}
        sw = {r for r in pw if is_sg(r)}
        if c.kind == 'mfma' and vw & rd:
            need = max(need, 2)
        if p.trans and c.kind == 'valu' and not c.trans and vw & rd:
            need = max(need, 1)
        if p.trans and c.kind == 'valu' and c.trans and vw & rd:
            need = max(need, 1)
        if sw and c.kind in ('valu', 'mfma') and sw & rd:
            if c.op.startswith('v_readlane') or c.op.startswith('v_writelane'):
                need = max(need, 4)
            else:
                need = max(need, 2)
        if sw and c.kind == 'vmem' and sw & rd:
            need = max(need, 5)
        if sw and c.kind in ('salu', 'ctl', 'smem') and sw & rd:
            need = max(need, 5 if c.kind == 'ctl' else 1)
        if c.kind == 'valu' and vw & rd:
            if c.op.startswith('v_readfirstlane') or c.op.startswith('v_readlane'):
                need = max(need, 1)
            if c.op.startswith('v_permlane') or c.dpp:
                need = max(need, 2)
        if ('x', 'exec') in pw and c.kind in ('valu', 'mfma'):
            need = max(need, 5)
        if p.op.startswith('v_dot') and vw & (rd | wr):
            same = c.op == p.op and not (vw & (rd - wr)) and list(c.reads).count(list(vw)[0]) <= 1
            if not same:
                need = max(need, 3)
    if p.kind == 'mfma':
        P = p.passes
        full = {8: 12, 4: 8}[P]
        over = {8: 10, 4: 6}[P]
        if c.kind == 'mfma':
            if pw & set(c.srcAB):
                need = max(need, full)
            if pw & set(c.srcC):
                if list(p.writes) == list(c.srcC) and p.passes == c.passes:
                    pass
                else:
                    need = max(need, over)
            elif pw & wr:
                need = max(need, over)
        elif c.kind in ('valu', 'vmem', 'ds'):
            if pw & (rd | wr):
                need = max(need, full)
        if c.kind == 'valu' and set(p.srcC) & wr:
            need = max(need, {8: 7, 4: 3}[P])
    if p.kind == 'vmem' and p.wide_store:
        data = {r for r in p.reads if r[0] in 'va'}
        if c.kind == 'valu' and data & wr:
            need = max(need, 2)
        elif data & wr:
            need = max(need, 1)
    if p.kind == 'ds' and p.op.startswith('ds_write') and ('128' in p.op or '96' in p.op):
        data = {r for r in p.reads if r[0] in 'va'}
        if c.kind == 'valu' and data & wr:
            need = max(need, 2)
    if p.kind == 'salu' and ('x', 'm0') in pw and (c.lds_dma or 'addtid' in c.op):
        need = max(need, 1)
    if p.kind == 'salu' and ('x', 'exec') in pw and c.kind == 'valu' and c.dpp:
        need = max(need, 1)
    return need
```

```python
import sys
from asmgen import Kernel

NAME = 'sequential_preLN__linear_attn_block__swiglu_ffn__prompt'

OFF_XF = 0x0
OFF_WQKV = 0x200000
OFF_PQ = 0x380000
OFF_KVZ = 0x580000
OFF_WO = 0x590000
OFF_H = 0x610000
OFF_WGU = 0x810000
OFF_CSG = 0xB90000
OFF_CSQ = 0xBC8000
OFF_ACT = 0xBE0000
OFF_WD = 0x12E0000
OFF_TS = 0x14A0000
WS_USED = 0x14A0000 + 8*256*128
STAMPS = False

KA = dict(x=0, wqkv=8, wo=16, bx=24, wg=32, wu=40, wd=48, out=56, dbg=64, ws=72)
SZ = dict(x=2048 * 512 * 2, wqkv=512 * 1536 * 2, wo=512 * 512 * 2, wg=512 * 1792 * 2, wu=512 * 1792 * 2,
          wd=1792 * 512 * 2, out=2048 * 512 * 2, dbg=256, ws=WS_USED)
ONES_BF16 = 0x3f803f80


def vr(lo, n=1):
    return 'v%d' % lo if n == 1 else 'v[%d:%d]' % (lo, lo + n - 1)


def ar(lo, n=1):
    return 'a%d' % lo if n == 1 else 'a[%d:%d]' % (lo, lo + n - 1)


def sr(lo, n=1):
    return 's%d' % lo if n == 1 else 's[%d:%d]' % (lo, lo + n - 1)


def load_srds(k, srds, first=True):
    for name, sb in srds:
        k.I('s_load_dwordx2 %s, s[0:1], %d' % (sr(sb, 2), KA[name]))
    for name, sb in srds:
        k.I('s_mov_b32 %s, 0x%x' % (sr(sb + 2), SZ[name]))
        k.I('s_mov_b32 %s, 0x00020000' % sr(sb + 3))


class Stamper:
    def __init__(self, k, kidx, ws, base=64, tmp=96):
        self.k, self.kidx, self.ws, self.n, self.base, self.tmp = k, kidx, ws, 0, base, tmp
        self.tid = 'v0'
    def stamp(self, real=False):
        if not STAMPS: return
        b = self.base + 2 * self.n
        assert b + 1 <= 101
        self.k.I('%s s[%d:%d]' % ('s_memrealtime' if real else 's_memtime', b, b + 1))
        self.n += 1
    def flush(self):
        if not STAMPS: return
        k = self.k
        k.I('s_waitcnt lgkmcnt(0)')
        k.I('v_cmp_eq_u32 vcc, 0, %s' % self.tid)
        t = self.tmp
        k.I('s_and_saveexec_b64 s[%d:%d], vcc' % (t, t + 1))
        k.I('s_lshl_b32 s%d, s2, 7' % (t + 2))
        k.I('s_add_u32 s%d, s%d, 0x%x' % (t + 2, t + 2, OFF_TS + self.kidx * 256 * 128))
        k.I('v_mov_b32 v0, 0')
        for i in range(self.n):
            k.I('v_mov_b32 v2, s%d' % (self.base + 2 * i))
            k.I('v_mov_b32 v3, s%d' % (self.base + 2 * i + 1))
            k.I('buffer_store_dwordx2 v[2:3], v0, %s, s%d offen offset:%d' % (self.ws, t + 2, 8 * i))
        k.I('s_mov_b64 exec, s[%d:%d]' % (t, t + 1))


def div_const(k, dst, src, d, tmp):
    magic = -(-(1 << 32) // d)
    k.I('s_mov_b32 %s, 0x%x' % (sr(tmp), magic))
    k.I('s_mul_hi_u32 %s, %s, %s' % (sr(dst), sr(src), sr(tmp)))


def cross_half_sum(k, v, tmp):
    k.I('v_mov_b32 %s, %s' % (vr(tmp), vr(v)))
    k.I('v_permlane32_swap_b32 %s, %s' % (vr(v), vr(tmp)))
    k.I('v_add_f32 %s, %s, %s' % (vr(v), vr(v), vr(tmp)))


def gen_k0():
    k = Kernel('prep_kernel')
    S_X, S_WQ, S_WO, S_WG, S_WU, S_WD, S_WS = 4, 8, 12, 16, 20, 24, 28
    k.I('s_cmp_ge_u32 s2, 256')
    k.I('s_cbranch_scc1 L_k0_end')
    load_srds(k, [('x', S_X), ('wqkv', S_WQ), ('wo', S_WO), ('wg', S_WG), ('wu', S_WU), ('wd', S_WD), ('ws', S_WS)])
    k.I('v_and_b32 v1, 63, v0')
    k.I('v_lshrrev_b32 v2, 6, v0')
    k.I('v_readfirstlane_b32 s33, v2')
    k.I('s_lshl_b32 s34, s2, 2')
    k.I('s_add_u32 s34, s34, s33')
    k.I('s_lshl_b32 s35, s33, 13')
    k.I('v_and_b32 v2, 31, v1')
    k.I('v_lshlrev_b32 v2, 10, v2')
    k.I('v_lshrrev_b32 v3, 5, v1')
    k.I('v_lshlrev_b32 v3, 4, v3')
    k.I('v_add_u32 v2, v2, v3')
    k.I('v_lshlrev_b32 v4, 4, v1')
    k.I('s_lshl_b32 s36, s34, 1')
    k.I('s_lshr_b32 s37, s36, 5')
    k.I('s_lshl_b32 s37, s37, 15')
    k.I('s_and_b32 s38, s36, 31')
    k.I('s_lshl_b32 s38, s38, 5')
    k.I('s_add_u32 s37, s37, s38')
    k.I('s_waitcnt lgkmcnt(0)')
    k.I('buffer_load_dwordx4 v[8:11], v2, %s, s37 offen' % sr(S_X, 4))
    k.I('buffer_load_dwordx4 v[12:15], v2, %s, s37 offen offset:32' % sr(S_X, 4))
    k.I('s_lshl_b32 s39, s36, 10')
    k.I('s_add_u32 s39, s39, 0x%x' % OFF_XF)
    k.I('buffer_store_dwordx4 v[8:11], v4, %s, s39 offen' % sr(S_WS, 4))
    k.I('buffer_store_dwordx4 v[12:15], v4, %s, s39 offen offset:1024' % sr(S_WS, 4))
    k.I('s_cmp_ge_u32 s34, 64')
    k.I('s_cbranch_scc1 L_k0_nozero')
    k.I('v_mov_b32 v8, 0')
    k.I('v_mov_b32 v9, 0')
    k.I('v_mov_b32 v10, 0')
    k.I('v_mov_b32 v11, 0')
    k.I('s_lshl_b32 s39, s34, 10')
    k.I('s_add_u32 s39, s39, 0x%x' % OFF_KVZ)
    k.I('buffer_store_dwordx4 v[8:11], v4, %s, s39 offen' % sr(S_WS, 4))
    k.label('L_k0_nozero')
    k.I('s_waitcnt vmcnt(0)')
    k.fence()
    k.I('v_lshrrev_b32 v5, 3, v1')
    k.I('v_and_b32 v6, 7, v1')
    k.I('v_lshlrev_b32 v6, 4, v6')
    k.I('v_lshrrev_b32 v7, 4, v1')
    k.I('v_and_b32 v16, 15, v1')
    k.I('v_lshrrev_b32 v17, 2, v16')
    k.I('v_and_b32 v18, 3, v16')
    k.I('v_lshlrev_b32 v18, 3, v18')
    k.I('v_and_b32 v19, 1, v7')
    k.I('v_lshrrev_b32 v20, 1, v7')
    k.I('s_cmp_ge_u32 s34, 928')
    k.I('s_cbranch_scc1 L_k0_end')
    k.I('s_cmp_ge_u32 s34, 448')
    k.I('s_cbranch_scc1 L_k0_std')
    div_const(k, 40, 34, 28, 41)
    k.I('s_mul_i32 s41, s40, 28')
    k.I('s_sub_u32 s41, s34, s41')
    k.I('s_mov_b32 s42, 3584')
    k.I('v_mul_lo_u32 v21, v5, s42')
    k.I('v_add_u32 v21, v21, v6')
    k.I('s_mul_i32 s43, s40, %d' % (32 * 3584))
    k.I('s_lshl_b32 s44, s41, 7')
    k.I('s_add_u32 s43, s43, s44')
    for t in range(8):
        k.I('s_add_u32 s44, s35, %d' % (t * 1024))
        k.I('s_mov_b32 m0, s44')
        k.I('s_add_u32 s45, s43, %d' % ((t % 4) * 8 * 3584))
        k.I('buffer_load_dwordx4 v21, %s, s45 offen lds' % sr(S_WG if t < 4 else S_WU, 4), w=['img'])
    k.I('v_lshlrev_b32 v22, 5, v19')
    k.I('v_lshlrev_b32 v23, 2, v20')
    k.I('v_add3_u32 v22, v22, v23, v17')
    k.I('v_lshlrev_b32 v22, 7, v22')
    k.I('v_add3_u32 v22, v22, v18, s35')
    k.I('v_add_u32 v23, %d, v22' % (8 * 128))
    k.need('img')
    for c in range(4):
        k.I('v_mov_b32 %s, 0' % vr(60 + c))
    for ks in range(2):
        for c in range(4):
            d = 24 + (ks * 4 + c) * 4
            off = ks * 2048 + c * 32
            k.I('ds_read_b64_tr_b16 %s, v22 offset:%d' % (vr(d, 2), off))
            k.I('ds_read_b64_tr_b16 %s, v23 offset:%d' % (vr(d + 2, 2), off))
    k.I('s_lshl_b32 s44, s41, 7')
    k.I('s_lshl_b32 s45, s40, 1')
    k.I('s_add_u32 s44, s44, s45')
    k.I('s_lshl_b32 s44, s44, 10')
    k.I('s_add_u32 s44, s44, 0x%x' % OFF_WGU)
    k.I('s_mov_b32 s46, 0x%x' % ONES_BF16)
    for ks in range(2):
        for c in range(4):
            d = 24 + (ks * 4 + c) * 4
            k.I('s_add_u32 s45, s44, %d' % ((c * 32 + ks) * 1024))
            k.I('buffer_store_dwordx4 %s, v4, %s, s45 offen' % (vr(d, 4), sr(S_WS, 4)))
            for j in range(4):
                k.I('v_dot2c_f32_bf16 %s, s46, %s' % (vr(60 + c), vr(d + j)))
    k.I('v_and_b32 v2, 31, v1')
    k.I('v_lshlrev_b32 v2, 2, v2')
    k.I('s_mul_i32 s44, s40, %d' % (112 * 128))
    k.I('s_lshl_b32 s45, s41, 9')
    k.I('s_add_u32 s44, s44, s45')
    k.I('s_add_u32 s44, s44, 0x%x' % OFF_CSG)
    for c in range(4):
        cross_half_sum(k, 60 + c, 3)
        k.I('buffer_store_dword %s, v2, %s, s44 offen offset:%d' % (vr(60 + c), sr(S_WS, 4), c * 128))
    k.I('s_endpgm')
    k.fence()
    k.label('L_k0_std')
    k.I('s_cmp_ge_u32 s34, 672')
    k.I('s_cbranch_scc1 L_k0_notwd')
    k.I('s_sub_u32 s40, s34, 448')
    k.I('s_and_b32 s41, s40, 7')
    k.I('s_lshr_b32 s40, s40, 3')
    for j in range(4):
        k.I('s_mov_b32 %s, %s' % (sr(48 + j), sr(S_WD + j)))
    k.I('s_mov_b32 s52, 1024')
    k.I('s_mul_i32 s54, s41, 224')
    k.I('s_lshl_b32 s44, s40, 2')
    k.I('s_add_u32 s54, s54, s44')
    k.I('s_lshl_b32 s54, s54, 10')
    k.I('s_add_u32 s54, s54, 0x%x' % OFF_WD)
    k.I('s_mov_b32 s55, 1024')
    k.I('s_mov_b32 s56, %d' % (112 * 1024))
    k.I('s_mov_b32 s57, 4')
    k.I('s_mov_b32 s58, %d' % (8 * 128))
    k.I('s_mov_b32 s59, 0')
    k.I('s_branch L_k0_go')
    k.label('L_k0_notwd')
    k.I('s_cmp_ge_u32 s34, 864')
    k.I('s_cbranch_scc1 L_k0_wo')
    k.I('s_sub_u32 s44, s34, 672')
    div_const(k, 40, 44, 24, 41)
    k.I('s_mul_i32 s41, s40, 24')
    k.I('s_sub_u32 s41, s44, s41')
    for j in range(4):
        k.I('s_mov_b32 %s, %s' % (sr(48 + j), sr(S_WQ + j)))
    k.I('s_mov_b32 s52, 3072')
    k.I('s_lshl_b32 s54, s41, 6')
    k.I('s_lshl_b32 s44, s40, 2')
    k.I('s_add_u32 s54, s54, s44')
    k.I('s_lshl_b32 s54, s54, 10')
    k.I('s_add_u32 s54, s54, 0x%x' % OFF_WQKV)
    k.I('s_mov_b32 s55, 1024')
    k.I('s_mov_b32 s56, %d' % (32 * 1024))
    k.I('s_mov_b32 s57, 8')
    k.I('s_mov_b32 s58, %d' % (4 * 128))
    k.I('s_mul_i32 s59, s40, 48')
    k.I('s_lshl_b32 s44, s41, 1')
    k.I('s_add_u32 s59, s59, s44')
    k.I('s_lshl_b32 s59, s59, 7')
    k.I('s_add_u32 s59, s59, 0x%x' % OFF_CSQ)
    k.I('s_branch L_k0_go')
    k.label('L_k0_wo')
    k.I('s_sub_u32 s40, s34, 864')
    k.I('s_and_b32 s41, s40, 7')
    k.I('s_lshr_b32 s40, s40, 3')
    for j in range(4):
        k.I('s_mov_b32 %s, %s' % (sr(48 + j), sr(S_WO + j)))
    k.I('s_mov_b32 s52, 1024')
    k.I('s_lshl_b32 s54, s40, 6')
    k.I('s_lshl_b32 s44, s41, 1')
    k.I('s_add_u32 s54, s54, s44')
    k.I('s_lshl_b32 s54, s54, 10')
    k.I('s_add_u32 s54, s54, 0x%x' % OFF_WO)
    k.I('s_mov_b32 s55, %d' % (16 * 1024))
    k.I('s_mov_b32 s56, 1024')
    k.I('s_mov_b32 s57, 4')
    k.I('s_mov_b32 s58, %d' % (8 * 128))
    k.I('s_mov_b32 s59, 0')
    k.label('L_k0_go')
    k.fence()
    k.I('s_lshl_b32 s53, s52, 6')
    k.I('s_mul_i32 s53, s53, s40')
    k.I('s_lshl_b32 s44, s41, 7')
    k.I('s_add_u32 s53, s53, s44')
    k.I('v_mul_lo_u32 v21, v5, s52')
    k.I('v_add_u32 v21, v21, v6')
    k.I('s_lshl_b32 s47, s52, 3')
    for t in range(8):
        k.I('s_add_u32 s44, s35, %d' % (t * 1024))
        k.I('s_mov_b32 m0, s44')
        k.I('buffer_load_dwordx4 v21, s[48:51], s53 offen lds', w=['img2'])
        k.I('s_add_u32 s53, s53, s47')
    k.I('v_mul_lo_u32 v22, v20, s57')
    k.I('v_add_u32 v22, v22, v17')
    k.I('v_lshlrev_b32 v22, 7, v22')
    k.I('v_lshlrev_b32 v23, 5, v19')
    k.I('v_add3_u32 v22, v22, v23, v18')
    k.I('v_add_u32 v22, s35, v22')
    k.I('v_add_u32 v23, s58, v22')
    k.need('img2')
    for c in range(2):
        k.I('v_mov_b32 %s, 0' % vr(60 + c))
    for ks in range(4):
        for nb in range(2):
            d = 24 + (ks * 2 + nb) * 4
            off = ks * 2048 + nb * 64
            k.I('ds_read_b64_tr_b16 %s, v22 offset:%d' % (vr(d, 2), off))
            k.I('ds_read_b64_tr_b16 %s, v23 offset:%d' % (vr(d + 2, 2), off))
    k.I('s_mov_b32 s46, 0x%x' % ONES_BF16)
    for ks in range(4):
        for nb in range(2):
            d = 24 + (ks * 2 + nb) * 4
            k.I('s_mul_i32 s44, s55, %d' % ks)
            k.I('s_mul_i32 s45, s56, %d' % nb)
            k.I('s_add_u32 s44, s44, s45')
            k.I('s_add_u32 s44, s44, s54')
            k.I('buffer_store_dwordx4 %s, v4, %s, s44 offen' % (vr(d, 4), sr(S_WS, 4)))
            for j in range(4):
                k.I('v_dot2c_f32_bf16 %s, s46, %s' % (vr(60 + nb), vr(d + j)))
    k.I('s_cmp_eq_u32 s59, 0')
    k.I('s_cbranch_scc1 L_k0_end')
    k.I('v_and_b32 v2, 31, v1')
    k.I('v_lshlrev_b32 v2, 2, v2')
    for c in range(2):
        cross_half_sum(k, 60 + c, 3)
        k.I('buffer_store_dword %s, v2, %s, s59 offen offset:%d' % (vr(60 + c), sr(S_WS, 4), c * 128))
    k.label('L_k0_end')
    k.I('s_endpgm')
    return k, dict(vgpr=64, sgpr=64, lds=32768, grid=256, block=256)


LOG2E = 1.4426950408889634
import struct
def f2u(x):
    return struct.unpack('<I', struct.pack('<f', x))[0]


def wg_decode(k, nx_bits_lo, expr):
    pass


def stats_finish(k, vsum, vsq, vmean, vrstd, tmp):
    cross_half_sum(k, vsum, tmp)
    cross_half_sum(k, vsq, tmp)
    k.I('v_mul_f32 %s, 0x%x, %s' % (vr(vmean), f2u(1.0 / 512), vr(vsum)))
    k.I('v_mul_f32 %s, 0x%x, %s' % (vr(vsq), f2u(1.0 / 512), vr(vsq)))
    k.I('v_fma_f32 %s, -%s, %s, %s' % (vr(vsq), vr(vmean), vr(vmean), vr(vsq)))
    k.I('v_max_f32 %s, 0, %s' % (vr(vsq), vr(vsq)))
    k.I('v_add_f32 %s, 0x%x, %s' % (vr(vsq), f2u(1e-5), vr(vsq)))
    k.I('v_rsq_f32 %s, %s' % (vr(vrstd), vr(vsq)))


def phi(k, t, tmp):
    k.I('v_mul_f32 %s, 0x%x, %s' % (vr(tmp), f2u(LOG2E), vr(t)))
    k.I('v_min_f32 %s, 0, %s' % (vr(tmp), vr(tmp)))
    k.I('v_exp_f32 %s, %s' % (vr(tmp), vr(tmp)))
    k.I('v_max_f32 %s, 0, %s' % (vr(t), vr(t)))
    k.I('v_add_f32 %s, %s, %s' % (vr(t), vr(t), vr(tmp)))
    k.I('v_add_f32 %s, 0x%x, %s' % (vr(t), f2u(1e-6), vr(t)))


def gen_k1():
    k = Kernel('qkv_kernel')
    WS = 4
    k.I('s_cmp_ge_u32 s2, 256')
    k.I('s_cbranch_scc1 L_k1_end')
    load_srds(k, [('ws', WS)])
    ws = sr(WS, 4)
    st = Stamper(k, 1, ws); st.stamp(True); st.stamp()
    k.I('v_and_b32 v1, 63, v0')
    k.I('v_lshrrev_b32 v2, 6, v0')
    k.I('v_readfirstlane_b32 s8, v2')
    k.I('v_lshlrev_b32 v2, 4, v1')
    k.I('s_and_b32 s9, s2, 7')
    k.I('s_lshr_b32 s10, s2, 3')
    k.I('s_and_b32 s11, s9, 3')
    k.I('s_lshl_b32 s11, s11, 3')
    k.I('s_and_b32 s12, s10, 7')
    k.I('s_add_u32 s11, s11, s12')
    k.I('s_lshr_b32 s12, s9, 2')
    k.I('s_lshl_b32 s12, s12, 2')
    k.I('s_lshr_b32 s13, s10, 3')
    k.I('s_add_u32 s12, s12, s13')
    k.I('s_and_b32 s13, s8, 1')
    k.I('s_lshr_b32 s14, s8, 1')
    k.I('s_lshl_b32 s15, s11, 1')
    k.I('s_add_u32 s15, s15, s13')
    k.I('s_lshl_b32 s16, s12, 1')
    k.I('s_add_u32 s16, s16, s14')
    k.I('s_lshl_b32 s17, s15, 15')
    k.I('s_lshl_b32 s18, s16, 15')
    k.I('s_add_u32 s18, s18, 0x%x' % OFF_WQKV)
    k.I('s_add_u32 s19, s18, 0x%x' % (16 * 32768))
    k.I('s_add_u32 s20, s18, 0x%x' % (32 * 32768))
    for t in range(1, 8):
        k.I('v_add_u32 %s, %d, v2' % (vr(8 + t), 4096 * t))
    k.I('v_mov_b32 v8, v2')
    k.I('v_and_b32 v3, 31, v1')
    k.I('v_lshlrev_b32 v4, 2, v3')
    k.I('s_lshl_b32 s21, s16, 7')
    k.I('s_add_u32 s21, s21, 0x%x' % OFF_CSQ)
    k.I('s_waitcnt lgkmcnt(0)')
    X = 128
    def ldfrag(dst, soff, ks):
        k.I('buffer_load_dwordx4 %s, %s, %s, %s offen offset:%d' % (dst, vr(8 + ks // 4), ws, sr(soff), (ks % 4) * 1024))
    for p in range(3):
        for kg in range(8):
            k.I('s_add_u32 s22, s21, %d' % (p * 16 * 128 + kg * 48 * 128))
            k.I('buffer_load_dword %s, v4, %s, s22 offen' % (vr(80 + p * 8 + kg), ws))
    for p in range(3):
        for kg in range(1, 8):
            k.I('v_add_f32 %s, %s, %s' % (vr(80 + p * 8), vr(80 + p * 8), vr(80 + p * 8 + kg)))
    CSQ_, CSK_, CSV_ = 80, 88, 96
    for ks in range(32):
        ldfrag(vr(X + 4 * ks, 4), 17, ks)
    seq = [(19, ks, ar(4 * ks, 4)) for ks in range(32)] + [(20, ks, ar(128 + 4 * ks, 4)) for ks in range(32)] + \
          [(18, ks, ar(4 * ks, 4)) for ks in range(32)]
    LOOK = 16
    for n in range(LOOK):
        ldfrag(seq[n][2], seq[n][0], seq[n][1])
    st.stamp()
    ACK, ACV, ACQ = 32, 48, 64
    k.I('s_mov_b32 s23, 0x%x' % ONES_BF16)
    for j in range(4):
        k.I('v_mov_b32 %s, 0' % vr(104 + j))
    for n in range(96):
        part, ks = n // 32, n % 32
        w = seq[n][2]
        x = vr(X + 4 * ks, 4)
        acc = vr([ACK, ACV, ACQ][part], 16)
        c = acc if ks else '0'
        if part < 2:
            k.I('v_mfma_f32_32x32x16_bf16 %s, %s, %s, %s' % (acc, x, w, c))
        else:
            k.I('v_mfma_f32_32x32x16_bf16 %s, %s, %s, %s' % (acc, w, x, c))
        if n + LOOK < 96:
            s_, ks_, d_ = seq[n + LOOK]
            ldfrag(d_, s_, ks_)
        if part == 0:
            for j in range(4):
                k.I('v_dot2c_f32_bf16 %s, s23, %s' % (vr(104 + (j & 1)), vr(X + 4 * ks + j)))
                k.I('v_dot2c_f32_bf16 %s, %s, %s' % (vr(106 + (j & 1)), vr(X + 4 * ks + j), vr(X + 4 * ks + j)))
    k.I('v_add_f32 v104, v104, v105')
    k.I('v_add_f32 v106, v106, v107')
    MEAN, RSTD = 108, 109
    st.stamp()
    stats_finish(k, 104, 106, MEAN, RSTD, 105)
    k.I('s_lshl_b32 s24, s8, 8')
    k.I('v_add_u32 v5, s24, v4')
    k.I('ds_write_b32 v5, %s' % vr(MEAN))
    k.I('ds_write_b32 v5, %s offset:128' % vr(RSTD))
    k.I('s_lshl_b32 s25, s8, 7')
    k.I('v_add_u32 v6, s25, v4')
    k.I('ds_write_b32 v6, %s offset:1024' % vr(CSQ_))
    k.I('v_lshrrev_b32 v7, 5, v1')
    k.I('v_lshlrev_b32 v7, 4, v7')
    k.I('v_add_u32 v5, s24, v7')
    k.I('v_add_u32 v6, s25, v7')
    MN, RS, CQ = 128, 144, 160
    for a in range(4):
        k.I('ds_read_b128 %s, v5 offset:%d' % (vr(MN + 4 * a, 4), a * 32))
        k.I('ds_read_b128 %s, v5 offset:%d' % (vr(RS + 4 * a, 4), 128 + a * 32))
        k.I('ds_read_b128 %s, v6 offset:%d' % (vr(CQ + 4 * a, 4), 1024 + a * 32))
    for i in range(16):
        for acc, cs in ((ACK, CSK_), (ACV, CSV_)):
            k.I('v_fma_f32 %s, -%s, %s, %s' % (vr(acc + i), vr(MN + i), vr(cs), vr(acc + i)))
            k.I('v_mul_f32 %s, %s, %s' % (vr(acc + i), vr(RS + i), vr(acc + i)))
        phi(k, ACK + i, 110)
    PKF, VF, ONE = 176, 184, 192
    for j in range(8):
        k.I('v_cvt_pk_bf16_f32 %s, %s, %s' % (vr(PKF + j), vr(ACK + 2 * j), vr(ACK + 2 * j + 1)))
        k.I('v_cvt_pk_bf16_f32 %s, %s, %s' % (vr(VF + j), vr(ACV + 2 * j), vr(ACV + 2 * j + 1)))
    for j in range(4):
        k.I('v_mov_b32 %s, s23' % vr(ONE + j))
    DKV, DZ = 196, 212
    k.I('v_mfma_f32_32x32x16_bf16 %s, %s, %s, 0' % (vr(DKV, 16), vr(PKF, 4), vr(VF, 4)))
    k.I('v_mfma_f32_32x32x16_bf16 %s, %s, %s, 0' % (vr(DZ, 16), vr(PKF, 4), vr(ONE, 4)))
    k.I('v_mfma_f32_32x32x16_bf16 %s, %s, %s, %s' % (vr(DKV, 16), vr(PKF + 4, 4), vr(VF + 4, 4), vr(DKV, 16)))
    k.I('v_mfma_f32_32x32x16_bf16 %s, %s, %s, %s' % (vr(DZ, 16), vr(PKF + 4, 4), vr(ONE, 4), vr(DZ, 16)))
    for i in range(16):
        k.I('v_fma_f32 %s, -%s, %s, %s' % (vr(ACQ + i), vr(MEAN), vr(CQ + i), vr(ACQ + i)))
        k.I('v_mul_f32 %s, %s, %s' % (vr(ACQ + i), vr(RSTD), vr(ACQ + i)))
        phi(k, ACQ + i, 110)
    for j in range(8):
        k.I('v_cvt_pk_bf16_f32 %s, %s, %s' % (vr(ACQ + j), vr(ACQ + 2 * j), vr(ACQ + 2 * j + 1)))
    k.I('s_lshl_b32 s26, s15, 5')
    k.I('s_lshl_b32 s27, s16, 1')
    k.I('s_add_u32 s26, s26, s27')
    k.I('s_lshl_b32 s26, s26, 10')
    k.I('s_add_u32 s26, s26, 0x%x' % OFF_PQ)
    k.I('buffer_store_dwordx4 %s, v2, %s, s26 offen' % (vr(ACQ, 4), ws))
    k.I('buffer_store_dwordx4 %s, v2, %s, s26 offen offset:1024' % (vr(ACQ + 4, 4), ws))
    k.I('v_and_b32 v5, 16, v1')
    k.I('v_cmp_eq_u32 vcc, 0, v5')
    for j in range(8):
        k.I('v_cndmask_b32 %s, %s, %s, vcc' % (vr(ACK + j), vr(DKV + 8 + j), vr(DKV + j)))
        k.I('v_cndmask_b32 %s, %s, %s, vcc' % (vr(ACK + 8 + j), vr(DZ + 8 + j), vr(DZ + j)))
    k.I('v_lshlrev_b32 v5, 7, v5')
    k.I('v_lshrrev_b32 v6, 5, v1')
    k.I('v_lshlrev_b32 v6, 10, v6')
    k.I('v_add_u32 v5, v5, v6')
    k.I('s_lshl_b32 s27, s14, 1')
    k.I('s_add_u32 s27, s27, s13')
    k.I('s_lshl_b32 s27, s27, 12')
    k.I('s_add_u32 s27, s27, 4096')
    k.I('v_add_u32 v5, s27, v5')
    k.I('v_and_b32 v6, 15, v1')
    k.I('v_lshlrev_b32 v7, 5, v6')
    k.I('v_add_u32 v7, v5, v7')
    k.I('ds_write_b128 v7, %s' % vr(ACK, 4))
    k.I('ds_write_b128 v7, %s offset:16' % vr(ACK + 4, 4))
    k.I('v_cmp_eq_u32 vcc, 0, v6')
    k.I('s_and_saveexec_b64 s[28:29], vcc')
    k.I('ds_write_b128 v5, %s offset:512' % vr(ACK + 8, 4))
    k.I('ds_write_b128 v5, %s offset:528' % vr(ACK + 12, 4))
    k.I('s_mov_b64 exec, s[28:29]')
    k.I('s_waitcnt lgkmcnt(0)')
    k.I('s_barrier')
    k.I('s_lshr_b32 s27, s8, 1')
    k.I('s_lshl_b32 s27, s27, 13')
    k.I('s_and_b32 s30, s8, 1')
    k.I('s_lshl_b32 s30, s30, 11')
    k.I('s_add_u32 s27, s27, s30')
    k.I('s_add_u32 s27, s27, 4096')
    k.I('v_lshlrev_b32 v5, 2, v1')
    k.I('v_add_u32 v6, s27, v5')
    k.I('s_lshl_b32 s30, s12, 2')
    k.I('s_add_u32 s30, s30, s8')
    k.I('s_lshl_b32 s30, s30, 11')
    k.I('s_add_u32 s30, s30, 0x%x' % OFF_KVZ)
    for half in range(2):
        for ch in range(3):
            off = half * 1024 + ch * 256
            d = 32 + (half * 3 + ch) * 2
            k.I('ds_read_b32 %s, v6 offset:%d' % (vr(d), off))
            k.I('ds_read_b32 %s, v6 offset:%d' % (vr(d + 1), off + 4096))
    for half in range(2):
        for ch in range(3):
            d = 32 + (half * 3 + ch) * 2
            k.I('v_add_f32 %s, %s, %s' % (vr(d), vr(d), vr(d + 1)))
    for half in range(2):
        for ch in range(2):
            d = 32 + (half * 3 + ch) * 2
            k.I('buffer_atomic_add_f32 %s, v5, %s, s30 offen offset:%d' % (vr(d), ws, half * 1024 + ch * 256))
    k.I('v_cmp_gt_u32 vcc, 8, v1')
    k.I('s_and_saveexec_b64 s[28:29], vcc')
    for half in range(2):
        d = 32 + (half * 3 + 2) * 2
        k.I('buffer_atomic_add_f32 %s, v5, %s, s30 offen offset:%d' % (vr(d), ws, half * 1024 + 512))
    k.I('s_mov_b64 exec, -1')
    st.stamp(); st.stamp(True); st.flush()
    k.label('L_k1_end')
    k.I('s_endpgm')
    return k, dict(lds=20480 + 4096, grid=256, block=256)


def gen_k2():
    k = Kernel('attn_kernel')
    WS, XS = 4, 8
    k.I('s_cmp_ge_u32 s2, 256')
    k.I('s_cbranch_scc1 L_k2_end')
    load_srds(k, [('ws', WS), ('x', XS)])
    ws = sr(WS, 4)
    st = Stamper(k, 2, ws); st.stamp(True); st.stamp()
    k.I('v_and_b32 v1, 63, v0')
    k.I('v_lshrrev_b32 v2, 6, v0')
    k.I('v_readfirstlane_b32 s12, v2')
    k.I('v_lshlrev_b32 v2, 4, v1')
    k.I('s_and_b32 s13, s2, 7')
    k.I('s_lshr_b32 s14, s2, 3')
    k.I('s_lshl_b32 s15, s13, 2')
    k.I('s_and_b32 s16, s14, 3')
    k.I('s_add_u32 s15, s15, s16')
    k.I('s_lshr_b32 s16, s14, 2')
    k.I('s_lshl_b32 s17, s15, 6')
    k.I('s_lshl_b32 s18, s12, 3')
    k.I('s_add_u32 s17, s17, s18')
    k.I('s_lshl_b32 s17, s17, 10')
    k.I('s_add_u32 s17, s17, 0x%x' % OFF_PQ)
    k.I('s_add_u32 s19, s17, 32768')
    k.I('s_lshl_b32 s20, s18, 4')
    k.I('s_lshl_b32 s21, s16, 1')
    k.I('s_add_u32 s20, s20, s21')
    k.I('s_lshl_b32 s20, s20, 10')
    k.I('s_add_u32 s20, s20, 0x%x' % OFF_WO)
    k.I('s_lshl_b32 s21, s18, 11')
    k.I('s_add_u32 s21, s21, 0x%x' % OFF_KVZ)
    k.I('v_and_b32 v3, 31, v1')
    k.I('v_min_u32 v4, 16, v3')
    k.I('v_lshrrev_b32 v5, 5, v1')
    k.I('v_lshlrev_b32 v6, 5, v5')
    k.I('v_add_u32 v4, v4, v6')
    k.I('v_lshlrev_b32 v4, 5, v4')
    k.I('v_add_u32 v7, 4096, v2')
    k.I('s_lshr_b32 s22, s12, 1')
    k.I('s_and_b32 s23, s12, 1')
    k.I('s_lshl_b32 s24, s15, 1')
    k.I('s_add_u32 s24, s24, s23')
    k.I('s_lshl_b32 s25, s16, 1')
    k.I('s_add_u32 s25, s25, s22')
    k.I('s_lshl_b32 s26, s24, 15')
    k.I('s_lshl_b32 s27, s25, 6')
    k.I('s_add_u32 s26, s26, s27')
    k.I('v_lshlrev_b32 v8, 10, v3')
    k.I('v_lshlrev_b32 v9, 3, v5')
    k.I('v_add_u32 v8, v8, v9')
    k.I('s_waitcnt lgkmcnt(0)')
    KV = 128
    A_ACC, A_WO, A_PQ = 0, 64, 128
    for t in range(8):
        k.I('s_add_u32 s28, s21, %d' % (t * 2048))
        k.I('buffer_load_dwordx4 %s, v4, %s, s28 offen' % (vr(KV + 8 * t, 4), ws))
        k.I('buffer_load_dwordx4 %s, v4, %s, s28 offen offset:16' % (vr(KV + 8 * t + 4, 4), ws))
        for r in range(2):
            k.I('buffer_load_dwordx4 %s, %s, %s, %s offen offset:%d' % (
                ar(A_PQ + (t * 2 + r) * 4, 4), 'v2' if t < 4 else 'v7', ws, 's17' if r == 0 else 's19', (t % 4) * 1024))
        k.I('s_add_u32 s29, s20, %d' % (t * 16384))
        for n in range(2):
            k.I('buffer_load_dwordx4 %s, v2, %s, s29 offen offset:%d' % (ar(A_WO + (t * 2 + n) * 4, 4), ws, n * 1024))
    XR = 112
    for a in range(4):
        k.I('buffer_load_dwordx2 %s, v8, %s, s26 offen offset:%d' % (vr(XR + 2 * a, 2), sr(XS, 4), a * 16))
    st.stamp()
    D1 = [32, 48]
    KF = 64
    OF = [72, 76]
    T = 80
    for t in range(8):
        for j in range(4):
            k.I('v_cvt_pk_bf16_f32 %s, %s, %s' % (vr(KF + (t & 1) * 4 + j), vr(KV + 8 * t + 2 * j), vr(KV + 8 * t + 2 * j + 1)))
        kf = vr(KF + (t & 1) * 4, 4)
        for r in range(2):
            k.I('v_mfma_f32_32x32x16_bf16 %s, %s, %s, 0' % (vr(D1[r], 16), kf, ar(A_PQ + (t * 2 + r) * 4, 4)))
        for r in range(2):
            k.I('v_add_f32 %s, 0x%x, %s' % (vr(T + r), f2u(1e-6), vr(D1[r] + 8)))
            k.I('v_rcp_f32 %s, %s' % (vr(T + r), vr(T + r)))
            for i in range(8):
                k.I('v_mul_f32 %s, %s, %s' % (vr(D1[r] + i), vr(T + r), vr(D1[r] + i)))
            for j in range(4):
                k.I('v_cvt_pk_bf16_f32 %s, %s, %s' % (vr(OF[r] + j), vr(D1[r] + 2 * j), vr(D1[r] + 2 * j + 1)))
        for n in range(2):
            for r in range(2):
                acc = ar(A_ACC + (n * 2 + r) * 16, 16)
                k.I('v_mfma_f32_32x32x16_bf16 %s, %s, %s, %s' % (
                    acc, ar(A_WO + (t * 2 + n) * 4, 4), vr(OF[r], 4), acc if t else '0'))
    st.stamp()
    reduce_tiles(k, A_ACC, 12, 32)
    st.stamp()
    for a in range(4):
        for b in range(2):
            src = XR + 2 * a + b
            k.I('v_lshlrev_b32 v64, 16, %s' % vr(src))
            k.I('v_and_b32 v65, 0xffff0000, %s' % vr(src))
            k.I('v_add_f32 %s, %s, v64' % (vr(32 + 4 * a + 2 * b), vr(32 + 4 * a + 2 * b)))
            k.I('v_add_f32 %s, %s, v65' % (vr(32 + 4 * a + 2 * b + 1), vr(32 + 4 * a + 2 * b + 1)))
    for j in range(8):
        k.I('v_cvt_pk_bf16_f32 %s, %s, %s' % (vr(48 + j), vr(32 + 2 * j), vr(32 + 2 * j + 1)))
    k.I('s_lshl_b32 s26, s24, 5')
    k.I('s_lshl_b32 s27, s25, 1')
    k.I('s_add_u32 s26, s26, s27')
    k.I('s_lshl_b32 s26, s26, 10')
    k.I('s_add_u32 s26, s26, 0x%x' % OFF_H)
    k.I('buffer_store_dwordx4 v[48:51], v2, %s, s26 offen' % ws)
    k.I('buffer_store_dwordx4 v[52:55], v2, %s, s26 offen offset:1024' % ws)
    st.stamp(); st.stamp(True); st.flush()
    k.label('L_k2_end')
    k.I('s_endpgm')
    return k, dict(lds=65536, grid=256, block=256)


def reduce_tiles(k, A_ACC, s_wave, dst):
    k.I('v_lshlrev_b32 v10, 4, v1')
    k.I('s_lshl_b32 s30, %s, 14' % sr(s_wave))
    k.I('v_add_u32 v10, s30, v10')
    for t in range(4):
        for q in range(4):
            k.I('ds_write_b128 v10, %s offset:%d' % (ar(A_ACC + t * 16 + q * 4, 4), t * 4096 + q * 1024))
    k.I('s_waitcnt lgkmcnt(0)')
    k.I('s_barrier')
    k.I('v_lshlrev_b32 v11, 4, v1')
    k.I('s_lshl_b32 s30, %s, 12' % sr(s_wave))
    k.I('v_add_u32 v11, s30, v11')
    for sw in range(4):
        for q in range(4):
            k.I('ds_read_b128 %s, v11 offset:%d' % (vr(dst + sw * 16 + q * 4, 4), sw * 16384 + q * 1024))
    for sw in range(1, 4):
        for i in range(16):
            k.I('v_add_f32 %s, %s, %s' % (vr(dst + i), vr(dst + i), vr(dst + sw * 16 + i)))


OPT = {}

def gen_k3():
    k = Kernel('gateup_kernel')
    WS = 4
    k.I('s_cmp_ge_u32 s2, 256')
    k.I('s_cbranch_scc1 L_k3_end')
    load_srds(k, [('ws', WS)])
    ws = sr(WS, 4)
    st = Stamper(k, 3, ws); st.stamp(True); st.stamp()
    k.I('v_and_b32 v1, 63, v0')
    k.I('v_lshrrev_b32 v2, 6, v0')
    k.I('v_readfirstlane_b32 s8, v2')
    k.I('v_lshlrev_b32 v2, 4, v1')
    k.I('s_and_b32 s9, s2, 7')
    k.I('s_lshr_b32 s10, s2, 3')
    k.I('s_and_b32 s11, s9, 1')
    k.I('s_lshl_b32 s11, s11, 3')
    k.I('s_and_b32 s12, s10, 7')
    k.I('s_add_u32 s11, s11, s12')
    k.I('s_lshr_b32 s12, s9, 1')
    k.I('s_lshl_b32 s12, s12, 2')
    k.I('s_lshr_b32 s13, s10, 3')
    k.I('s_add_u32 s12, s12, s13')
    k.I('s_lshl_b32 s13, s11, 2')
    k.I('s_add_u32 s13, s13, s8')
    k.I('s_lshl_b32 s14, s13, 15')
    k.I('s_add_u32 s14, s14, 0x%x' % OFF_H)
    k.I('s_mul_i32 s15, s12, %d' % (7 * 32768))
    k.I('s_lshl_b32 s16, s8, 13')
    k.I('s_add_u32 s15, s15, s16')
    k.I('s_add_u32 s15, s15, 0x%x' % OFF_WGU)
    k.I('s_mul_i32 s17, s13, 112')
    k.I('s_mul_i32 s18, s12, 7')
    k.I('s_add_u32 s17, s17, s18')
    k.I('s_lshl_b32 s17, s17, 10')
    k.I('s_add_u32 s17, s17, 0x%x' % OFF_ACT)
    for t in range(1, 8):
        k.I('v_add_u32 %s, %d, v2' % (vr(8 + t), 4096 * t))
    k.I('v_mov_b32 v8, v2')
    k.I('v_lshlrev_b32 v3, 2, v0')
    k.I('s_mul_i32 s18, s12, %d' % (7 * 128))
    k.I('s_add_u32 s18, s18, 0x%x' % OFF_CSG)
    k.I('s_waitcnt lgkmcnt(0)')
    CS_LDS = 131072
    for kg in range(16):
        k.I('s_add_u32 s19, s18, %d' % (kg * 112 * 128))
        k.I('buffer_load_dword %s, v3, %s, s19 offen' % (vr(64 + kg), ws))

    def dma(soff, sm0, name):
        for hf in range(2):
            k.I('s_add_u32 s19, %s, %d' % (sr(sm0), hf * 4096))
            k.I('s_mov_b32 m0, s19')
            k.I('s_add_u32 s20, %s, %d' % (sr(soff), hf * 4096))
            for t in range(4):
                k.I('buffer_load_dwordx4 v2, %s, s20 offen offset:%d lds' % (ws, t * 1024), w=[name])
    X = 128
    k.I('s_mov_b32 s21, s16')
    dma(15, 21, 'W0')
    for ks in range(32):
        k.I('buffer_load_dwordx4 %s, %s, %s, s14 offen offset:%d' % (vr(X + 4 * ks, 4), vr(8 + ks // 4), ws, (ks % 4) * 1024))
    for kg in range(1, 16):
        k.I('v_add_f32 v64, v64, %s' % vr(64 + kg))
    k.I('v_add_u32 v3, %d, v3' % CS_LDS)
    k.I('ds_write_b32 v3, v64')
    k.I('s_add_u32 s22, s15, 32768')
    k.I('s_add_u32 s21, s16, 32768')
    dma(22, 21, 'dA')
    k.I('s_add_u32 s22, s15, 65536')
    k.I('s_add_u32 s21, s16, 65536')
    dma(22, 21, 'dB')
    k.I('s_add_u32 s23, s16, %d' % (3 * 32768))
    k.I('s_mov_b32 s24, s16')
    k.I('s_add_u32 s25, s15, %d' % (3 * 32768))
    k.I('s_mov_b32 s26, 0')
    k.I('v_mov_b32 v4, v2')
    k.I('v_add_u32 v5, 32768, v2')
    k.I('v_lshrrev_b32 v6, 5, v1')
    k.I('v_lshlrev_b32 v6, 4, v6')
    k.I('v_add_u32 v6, %d, v6' % CS_LDS)
    k.I('s_mov_b32 s27, 0x%x' % ONES_BF16)
    ACC = [32, 48]
    D, L = 8, 6
    WR = 0
    CSR = 64
    T = 80
    MEAN, RSTD, NMEAN, NA, A2 = 112, 113, 114, 115, 116

    def wread(n, vaddr, ks):
        k.I('ds_read_b128 %s, %s offset:%d' % (ar(WR + (n % D) * 4, 4), vaddr, ks * 1024))

    def epilogue_ops(S, last=False):
        ops = []
        for q in range(4):
            ops.append('ds_read_b128 %s, v6 offset:%d' % (vr(CSR + 4 * q, 4), q * 32))
        pre = len(ops)
        for i0 in range(0, 8, 2):
            a = []
            for u, i in enumerate((i0, i0 + 1)):
                t = T + u * 4
                a.append([
                    'v_fma_f32 %s, %s, %s, %s' % (vr(t), vr(NMEAN), vr(CSR + i), vr(S + i)),
                    'v_fma_f32 %s, %s, %s, %s' % (vr(t + 1), vr(NMEAN), vr(CSR + 8 + i), vr(S + 8 + i)),
                    'v_mul_f32 %s, %s, %s' % (vr(t + 2), vr(NA), vr(t)),
                    'v_exp_f32 %s, %s' % (vr(t + 2), vr(t + 2)),
                    'v_mul_f32 %s, %s, %s' % (vr(t), vr(t), vr(t + 1)),
                    'v_add_f32 %s, 1.0, %s' % (vr(t + 2), vr(t + 2)),
                    'v_rcp_f32 %s, %s' % (vr(t + 2), vr(t + 2)),
                    'v_mul_f32 %s, %s, %s' % (vr(t), vr(A2), vr(t)),
                    'v_mul_f32 %s, %s, %s' % (vr(T + 8 + i), vr(t), vr(t + 2)),
                ])
            for x, y in zip(a[0], a[1]):
                ops += [x, y]
            ops.append('v_cvt_pk_bf16_f32 %s, %s, %s' % (vr(T + 16 + i0 // 2), vr(T + 8 + i0), vr(T + 8 + i0 + 1)))
        ops.append('buffer_store_dwordx4 %s, v2, %s, s17 offen' % (vr(T + 16, 4), ws))
        ops.append('s_add_u32 s17, s17, 1024')
        ops.append('v_add_u32 v6, 128, v6')
        return ops, pre

    def body(par, first, nbase):
        cur, nxt = ('v4', 'v5') if par == 0 else ('v5', 'v4')
        S = ACC[par]
        if first:
            fill = []
            for ks in range(32):
                f = []
                for j in range(4):
                    f.append('v_dot2c_f32_bf16 %s, s27, %s' % (vr(100 + (j & 1)), vr(X + 4 * ks + j)))
                    f.append('v_dot2c_f32_bf16 %s, %s, %s' % (vr(102 + (j & 1)), vr(X + 4 * ks + j), vr(X + 4 * ks + j)))
                fill.append(f)
        else:
            ops, pre = epilogue_ops(ACC[1 - par])
            fill = [[] for _ in range(32)]
            fill[0] = ops[:pre]
            rest = ops[pre:]
            g0, g1 = 3, 30
            per = -(-len(rest) // (g1 - g0))
            for g in range(g0, g1):
                fill[g] = rest[(g - g0) * per:(g - g0 + 1) * per]
        for ks in range(32):
            n = nbase + ks
            k.I('v_mfma_f32_32x32x16_bf16 %s, %s, %s, %s' % (
                vr(S, 16), ar(WR + (n % D) * 4, 4), vr(X + 4 * ks, 4), vr(S, 16) if ks else '0'))
            if ks == 32 - L:
                k.need('dA' if par == 0 else 'dB')
                k.I('s_barrier')
                sm = 23 if par == 0 else 24
                k.I('s_cmp_lt_u32 s26, 4')
                k.I('s_cselect_b32 s28, s25, 0x7fff0000')
                if not OPT.get('nodma') or first:
                    dma(28, sm, 'dA' if par == 0 else 'dB')
                k.I('s_xor_b32 %s, %s, 0x10000' % (sr(sm), sr(sm)))
                k.I('s_add_u32 s25, s25, 32768')
                k.I('s_add_u32 s26, s26, 1')
            if ks + L < 32:
                wread(n + L, cur, ks + L)
            else:
                wread(n + L, nxt, ks + L - 32)
            for ins in fill[ks]:
                if OPT.get('noepi') and not first and ins.startswith('v_'): continue
                if OPT.get('nostats') and first: continue
                k.I(ins)
        k.I('v_xor_b32 %s, 0x10000, %s' % (cur, cur))

    for j in range(4):
        k.I('v_mov_b32 %s, 0' % vr(100 + j))
    st.stamp()
    k.need('W0')
    k.I('s_waitcnt lgkmcnt(0)')
    k.I('s_barrier')
    st.stamp()
    for n in range(L):
        wread(n, 'v4', n)
    body(0, True, 0)
    st.stamp()
    k.I('v_add_f32 v100, v100, v101')
    k.I('v_add_f32 v102, v102, v103')
    stats_finish(k, 100, 102, MEAN, RSTD, 101)
    k.I('v_sub_f32 %s, 0, %s' % (vr(NMEAN), vr(MEAN)))
    k.I('v_mul_f32 %s, 0x%x, %s' % (vr(NA), f2u(-LOG2E), vr(RSTD)))
    k.I('v_mul_f32 %s, %s, %s' % (vr(A2), vr(RSTD), vr(RSTD)))
    k.I('s_mov_b32 s29, 3')
    k.loop_begin('L_k3_loop')
    body(1, False, 0)
    body(0, False, 0)
    k.I('s_sub_u32 s29, s29, 1')
    k.I('s_cmp_lg_u32 s29, 0')
    k.I('s_cbranch_scc1 L_k3_loop')
    k.loop_end('L_k3_loop')
    st.stamp()
    ops, pre = epilogue_ops(ACC[0])
    for ins in ops:
        k.I(ins)
    st.stamp(); st.stamp(True); st.flush()
    k.label('L_k3_end')
    k.I('s_endpgm')
    return k, dict(lds=131072 + 1024, grid=256, block=256)


def gen_k4():
    k = Kernel('down_kernel')
    WS, OS = 4, 8
    k.I('s_cmp_ge_u32 s2, 256')
    k.I('s_cbranch_scc1 L_k4_end')
    load_srds(k, [('ws', WS), ('out', OS)])
    ws = sr(WS, 4)
    st = Stamper(k, 4, ws); st.stamp(True); st.stamp()
    k.I('v_and_b32 v1, 63, v0')
    k.I('v_lshrrev_b32 v2, 6, v0')
    k.I('v_readfirstlane_b32 s12, v2')
    k.I('v_lshlrev_b32 v2, 4, v1')
    k.I('v_add_u32 v3, 4096, v2')
    k.I('s_and_b32 s13, s2, 7')
    k.I('s_lshr_b32 s14, s2, 3')
    k.I('s_lshl_b32 s15, s13, 2')
    k.I('s_and_b32 s16, s14, 3')
    k.I('s_add_u32 s15, s15, s16')
    k.I('s_lshr_b32 s16, s14, 2')
    k.I('s_mul_i32 s17, s12, %d' % (28 * 1024))
    k.I('s_mul_i32 s18, s15, %d' % (2 * 112 * 1024))
    k.I('s_add_u32 s18, s18, s17')
    k.I('s_add_u32 s18, s18, 0x%x' % OFF_ACT)
    k.I('s_add_u32 s19, s18, %d' % (112 * 1024))
    k.I('s_mul_i32 s20, s16, %d' % (2 * 112 * 1024))
    k.I('s_add_u32 s20, s20, s17')
    k.I('s_add_u32 s20, s20, 0x%x' % OFF_WD)
    k.I('s_add_u32 s21, s20, %d' % (112 * 1024))
    k.I('s_lshr_b32 s22, s12, 1')
    k.I('s_and_b32 s23, s12, 1')
    k.I('s_lshl_b32 s24, s15, 1')
    k.I('s_add_u32 s24, s24, s23')
    k.I('s_lshl_b32 s25, s16, 1')
    k.I('s_add_u32 s25, s25, s22')
    k.I('s_lshl_b32 s26, s24, 5')
    k.I('s_lshl_b32 s27, s25, 1')
    k.I('s_add_u32 s26, s26, s27')
    k.I('s_lshl_b32 s26, s26, 10')
    k.I('s_add_u32 s26, s26, 0x%x' % OFF_H)
    k.I('s_waitcnt lgkmcnt(0)')
    HR = 112
    k.I('buffer_load_dwordx4 %s, v2, %s, s26 offen' % (vr(HR, 4), ws))
    k.I('buffer_load_dwordx4 %s, v2, %s, s26 offen offset:1024' % (vr(HR + 4, 4), ws))
    R = 7
    RING = 128
    A_ACC = 0

    def loads(u):
        voff = 'v2' if u < 4 else 'v3'
        for s, so in enumerate((20, 21, 18, 19)):
            k.I('buffer_load_dwordx4 %s, %s, %s, %s offen offset:%d' % (
                vr(RING + u * 16 + s * 4, 4), voff, ws, sr(so), (u % 4) * 1024))

    def adv():
        for so in (18, 19, 20, 21):
            k.I('s_add_u32 %s, %s, %d' % (sr(so), sr(so), R * 1024))

    def mfmas(u, first):
        for n in range(2):
            for r in range(2):
                acc = ar(A_ACC + (n * 2 + r) * 16, 16)
                k.I('v_mfma_f32_32x32x16_bf16 %s, %s, %s, %s' % (
                    acc, vr(RING + u * 16 + n * 4, 4), vr(RING + u * 16 + 8 + r * 4, 4), '0' if first else acc))
    for u in range(R):
        loads(u)
    adv()
    st.stamp()
    for u in range(R):
        mfmas(u, u == 0)
        loads(u)
    adv()
    st.stamp()
    k.I('s_mov_b32 s28, 2')
    k.loop_begin('L_k4_loop')
    for u in range(R):
        mfmas(u, False)
        loads(u)
    adv()
    k.I('s_sub_u32 s28, s28, 1')
    k.I('s_cmp_lg_u32 s28, 0')
    k.I('s_cbranch_scc1 L_k4_loop')
    k.loop_end('L_k4_loop')
    for u in range(R):
        mfmas(u, False)
    st.stamp()
    reduce_tiles(k, A_ACC, 12, 32)
    st.stamp()
    for j in range(8):
        src = HR + j
        k.I('v_lshlrev_b32 v96, 16, %s' % vr(src))
        k.I('v_and_b32 v97, 0xffff0000, %s' % vr(src))
        k.I('v_add_f32 %s, %s, v96' % (vr(32 + 2 * j), vr(32 + 2 * j)))
        k.I('v_add_f32 %s, %s, v97' % (vr(32 + 2 * j + 1), vr(32 + 2 * j + 1)))
    for j in range(8):
        k.I('v_cvt_pk_bf16_f32 %s, %s, %s' % (vr(48 + j), vr(32 + 2 * j), vr(32 + 2 * j + 1)))
    for a in (0, 2):
        b = 48 + 2 * a
        k.I('v_permlane32_swap_b32 %s, %s' % (vr(b), vr(b + 2)))
        k.I('v_permlane32_swap_b32 %s, %s' % (vr(b + 1), vr(b + 3)))
    k.I('v_and_b32 v4, 31, v1')
    k.I('v_lshlrev_b32 v4, 10, v4')
    k.I('v_lshrrev_b32 v5, 5, v1')
    k.I('v_lshlrev_b32 v5, 4, v5')
    k.I('v_add_u32 v4, v4, v5')
    k.I('s_lshl_b32 s26, s24, 15')
    k.I('s_lshl_b32 s27, s25, 6')
    k.I('s_add_u32 s26, s26, s27')
    k.I('buffer_store_dwordx4 v[48:51], v4, %s, s26 offen' % sr(OS, 4))
    k.I('buffer_store_dwordx4 v[52:55], v4, %s, s26 offen offset:32' % sr(OS, 4))
    st.stamp(); st.stamp(True); st.flush()
    k.label('L_k4_end')
    k.I('s_endpgm')
    return k, dict(lds=65536, grid=256, block=256)


def wrap(kernels):
    head = open('cdna_kernels/%s.s.ref' % NAME).read().split('; Override launch geometry')[0]
    out = [head.rstrip()]
    for label, k, cfg in kernels:
        out.append('; @launch kernel=%s grid=(%d,1,1) block=(%d,1,1) lds=%d' % (label, cfg['grid'], cfg['block'], cfg['lds']))
    out.append('.amdgcn_target "amdgcn-amd-amdhsa--gfx950"')
    out.append('.text')
    seen = set()
    for label, k, cfg in kernels:
        if label in seen:
            continue
        seen.add(label)
        out.append('.globl %s' % label)
        out.append('.p2align 8')
        out.append('.type %s,@function' % label)
        out.append('%s:' % label)
        out.append(k.finish())
    out.append('.section .rodata,"a"')
    seen = set()
    for label, k, cfg in kernels:
        if label in seen:
            continue
        seen.add(label)
        mx = k.maxreg()
        acc = cfg.get('accum', None)
        nv = mx['v'] + 1
        na = mx['a'] + 1
        accum = max(4, (nv + 3) // 4 * 4)
        nfv = accum + na if na else nv
        out.append('.p2align 6')
        out.append('.amdhsa_kernel %s' % label)
        out.append('  .amdhsa_next_free_vgpr %d' % nfv)
        out.append('  .amdhsa_next_free_sgpr %d' % max(mx['s'] + 1, 16))
        out.append('  .amdhsa_accum_offset %d' % accum)
        out.append('  .amdhsa_group_segment_fixed_size 0')
        out.append('  .amdhsa_kernarg_size 80')
        out.append('  .amdhsa_user_sgpr_count 2')
        out.append('  .amdhsa_user_sgpr_kernarg_segment_ptr 1')
        out.append('  .amdhsa_system_sgpr_workgroup_id_x 1')
        out.append('  .amdhsa_float_denorm_mode_32 3')
        out.append('.end_amdhsa_kernel')
    return '\n'.join(out) + '\n'


if __name__ == '__main__':
    n = int(sys.argv[2]) if len(sys.argv) > 2 else 5
    STAMPS = len(sys.argv) > 3
    for o in sys.argv[4:]:
        OPT[o] = True
    gens = [('prep_kernel', gen_k0), ('qkv_kernel', gen_k1), ('attn_kernel', gen_k2), ('gateup_kernel', gen_k3), ('down_kernel', gen_k4)]
    ks = []
    for label, g in gens[:n]:
        kk, cc = g()
        ks.append((label, kk, cc))
        print(label, kk.stats(), kk.maxreg())
    open(sys.argv[1], 'w').write(wrap(ks))
```

```python
import sys
from asmgen import Kernel
import gen1
from gen1 import *


class Sched:
    def __init__(self, n):
        self.n = n
        self.slots = [[] for _ in range(n)]
    def at(self, pos, ops):
        self.slots[pos] += list(ops)
    def spread(self, first, last, ops):
        ops = list(ops)
        m = last - first + 1
        for i, o in enumerate(ops):
            self.slots[first + min(m - 1, i * m // max(1, len(ops)))].append(o)


def emit(k, op):
    if isinstance(op, tuple):
        if op[0] == 'need':
            k.need(*op[1])
        elif op[0] == 'label':
            k.label(op[1])
        elif op[1] is None:
            k.I(op[0])
        else:
            k.I(op[0], w=[op[1]])
    else:
        k.I(op)


def xhalf_ops(v, tmp):
    return ['v_mov_b32 %s, %s' % (vr(tmp), vr(v)),
            'v_permlane32_swap_b32 %s, %s' % (vr(v), vr(tmp)),
            'v_add_f32 %s, %s, %s' % (vr(v), vr(v), vr(tmp))]


def phi_ops(ts, tmps):
    seqs = []
    for t, tm in zip(ts, tmps):
        seqs.append(['v_mul_f32 %s, 0x%x, %s' % (vr(tm), f2u(LOG2E), vr(t)),
                     'v_min_f32 %s, 0, %s' % (vr(tm), vr(tm)),
                     'v_exp_f32 %s, %s' % (vr(tm), vr(tm)),
                     'v_max_f32 %s, 0, %s' % (vr(t), vr(t)),
                     'v_add_f32 %s, 0x%x, %s' % (vr(t), f2u(1e-6), vr(t)),
                     'v_add_f32 %s, %s, %s' % (vr(t), vr(t), vr(tm))])
    out = []
    for grp in zip(*seqs):
        out += list(grp)
    return out


def gen_a():
    k = Kernel('qkv_kernel')
    XS, WQ, WS, PA, PB, DB = 4, 8, 12, 16, 20, 24
    ws = sr(WS, 4)
    k.I('s_cmp_ge_u32 s2, 256')
    k.I('s_cbranch_scc1 L_a_end')
    load_srds(k, [('x', XS), ('wqkv', WQ), ('ws', WS), ('dbg', DB)])
    k.I('s_load_dwordx2 s[40:41], s[0:1], %d' % KA['wo'])
    k.I('s_load_dwordx4 s[44:47], s[0:1], %d' % KA['wg'])
    k.I('s_load_dwordx2 s[42:43], s[0:1], %d' % KA['wd'])
    st = Stamper(k, 1, ws, base=84, tmp=40); st.stamp(True); st.stamp()
    k.I('v_and_b32 v1, 63, v0')
    k.I('v_lshrrev_b32 v2, 6, v0')
    k.I('v_readfirstlane_b32 s28, v2')
    k.I('s_and_b32 s34, s2, 7')
    k.I('s_lshr_b32 s35, s2, 3')
    k.I('s_and_b32 s32, s34, 3')
    k.I('s_lshl_b32 s32, s32, 3')
    k.I('s_and_b32 s36, s35, 7')
    k.I('s_add_u32 s32, s32, s36')
    k.I('s_lshr_b32 s33, s34, 2')
    k.I('s_lshl_b32 s33, s33, 2')
    k.I('s_lshr_b32 s36, s35, 3')
    k.I('s_add_u32 s33, s33, s36')
    k.I('s_and_b32 s29, s28, 1')
    k.I('s_lshr_b32 s30, s28, 1')
    k.I('s_xor_b32 s31, s29, s30')
    k.I('s_lshl_b32 s34, s28, 12')
    k.I('s_lshl_b32 s35, s32, 16')
    k.I('s_mul_i32 s36, s28, %d' % (32 * 3072))
    k.I('s_lshl_b32 s37, s33, 7')
    k.I('s_add_u32 s36, s36, s37')
    k.I('v_lshrrev_b32 v2, 4, v1')
    k.I('v_and_b32 v3, 15, v1')
    k.I('s_lshl_b32 s37, s28, 4')
    for j in range(4):
        k.I('v_add_u32 v4, %d, v2' % (4 * j))
        k.I('v_xor_b32 v5, v3, v4')
        k.I('v_lshlrev_b32 v5, 4, v5')
        k.I('v_add_u32 v4, s37, v4')
        k.I('v_lshlrev_b32 v4, 10, v4')
        k.I('v_add_u32 %s, v4, v5' % vr(12 + j))
    k.I('v_lshrrev_b32 v4, 3, v1')
    k.I('s_movk_i32 s37, 3072')
    k.I('v_mul_lo_u32 v4, v4, s37')
    k.I('v_and_b32 v5, 1, v2')
    k.I('v_lshlrev_b32 v5, 2, v5')
    k.I('v_and_b32 v6, 7, v1')
    k.I('v_xor_b32 v5, v5, v6')
    k.I('v_lshlrev_b32 v5, 4, v5')
    k.I('v_add_u32 v11, v4, v5')
    k.I('v_lshlrev_b32 v10, 4, v1')
    for j in range(4):
        k.I('v_mov_b32 %s, 0' % vr(16 + j))
    k.I('s_lshl_b32 s37, s33, 2')
    k.I('s_add_u32 s37, s37, s28')
    k.I('s_lshl_b32 s37, s37, 11')
    k.I('s_add_u32 s71, s37, 0x%x' % OFF_KVZ)
    k.I('s_cmp_eq_u32 s32, 0')
    k.I('s_cselect_b32 s37, s71, 0x7fff0000')
    k.I('s_waitcnt lgkmcnt(0)')
    k.I('buffer_store_dwordx4 v[16:19], v10, %s, s37 offen sc1' % ws, w=['zero'])
    k.I('buffer_store_dwordx4 v[16:19], v10, %s, s37 offen offset:1024 sc1' % ws, w=['zero'])

    def dma_x(c, slot):
        for j in range(4):
            k.I('s_add_u32 m0, s34, %d' % (slot * 16384 + j * 1024))
            k.I('s_add_u32 s37, s35, %d' % (c * 256))
            k.I('buffer_load_dwordx4 %s, %s, s37 offen lds' % (vr(12 + j), sr(XS, 4)), w=['X%d' % c])

    PARTCOL = {'q': 0, 'k': 1024, 'v': 2048}

    def dma_w_ops(part, c, slot):
        ops = []
        for j in range(4):
            ops.append('s_add_u32 m0, s34, %d' % (slot * 16384 + j * 1024))
            ops.append('s_add_u32 s37, s36, %d' % ((128 * c + 8 * j) * 3072 + PARTCOL[part]))
            ops.append(('buffer_load_dwordx4 v11, %s, s37 offen lds' % sr(WQ, 4), 'W%s%d' % (part, c)))
        return ops

    for c in range(4):
        dma_x(c, 2 * c)
        for o in dma_w_ops('k', c, 2 * c + 1):
            emit(k, o)
    st.stamp()
    k.I('s_lshl_b32 s38, s2, 2')
    k.I('s_add_u32 s38, s38, s28')
    k.I('s_mov_b32 s19, 0x00020000')
    k.I('s_mov_b32 s23, 0x00020000')
    k.I('s_cmp_ge_u32 s38, 448')
    k.I('s_cbranch_scc1 L_a_pstd')
    div_const(k, 39, 38, 28, 48)
    k.I('s_mul_i32 s48, s39, 28')
    k.I('s_sub_u32 s69, s38, s48')
    k.I('s_mov_b32 s16, s44')
    k.I('s_mov_b32 s17, s45')
    k.I('s_mov_b32 s18, 0x%x' % SZ['wg'])
    k.I('s_mov_b32 s20, s46')
    k.I('s_mov_b32 s21, s47')
    k.I('s_mov_b32 s22, 0x%x' % SZ['wu'])
    k.I('s_movk_i32 s50, 3584')
    k.I('s_mul_i32 s48, s39, %d' % (32 * 3584))
    k.I('s_lshl_b32 s49, s69, 7')
    k.I('s_add_u32 s48, s48, s49')
    k.I('s_mov_b32 s49, s48')
    k.I('s_lshl_b32 s59, s69, 7')
    k.I('s_lshl_b32 s51, s39, 1')
    k.I('s_add_u32 s59, s59, s51')
    k.I('s_lshl_b32 s59, s59, 10')
    k.I('s_add_u32 s59, s59, 0x%x' % OFF_WGU)
    for f in range(8):
        k.I('s_add_u32 %s, s59, %d' % (sr(51 + f), ((f & 3) * 32 + (f >> 2)) * 1024))
        k.I('s_movk_i32 %s, %d' % (sr(60 + f), (f >> 2) * 2048 + (f & 3) * 32))
    k.I('s_mul_i32 s59, s39, %d' % (112 * 128))
    k.I('s_lshl_b32 s69, s69, 9')
    k.I('s_add_u32 s59, s59, s69')
    k.I('s_add_u32 s59, s59, 0x%x' % OFF_CSG)
    k.I('s_mov_b32 s68, 1')
    k.I('s_branch L_a_pgo')
    k.label('L_a_pstd')
    k.I('s_movk_i32 s50, 1024')
    k.I('s_mov_b32 s68, 0')
    k.I('s_mov_b32 s59, 0x7fff0000')
    k.I('s_cmp_ge_u32 s38, 672')
    k.I('s_cbranch_scc1 L_a_pwo')
    k.I('s_sub_u32 s39, s38, 448')
    k.I('s_and_b32 s69, s39, 7')
    k.I('s_lshr_b32 s39, s39, 3')
    k.I('s_mov_b32 s16, s42')
    k.I('s_mov_b32 s17, s43')
    k.I('s_mov_b32 s18, 0x%x' % SZ['wd'])
    k.I('s_mul_i32 s48, s69, 224')
    k.I('s_lshl_b32 s49, s39, 2')
    k.I('s_add_u32 s48, s48, s49')
    k.I('s_lshl_b32 s48, s48, 10')
    k.I('s_add_u32 s48, s48, 0x%x' % OFF_WD)
    for f in range(8):
        k.I('s_add_u32 %s, s48, %d' % (sr(51 + f), (f >> 1) * 1024 + (f & 1) * 112 * 1024))
    k.I('s_branch L_a_pstd2')
    k.label('L_a_pwo')
    k.I('s_sub_u32 s39, s38, 672')
    k.I('s_and_b32 s69, s39, 7')
    k.I('s_lshr_b32 s39, s39, 3')
    k.I('s_mov_b32 s16, s40')
    k.I('s_mov_b32 s17, s41')
    k.I('s_mov_b32 s18, 0x%x' % SZ['wo'])
    k.I('s_lshl_b32 s48, s39, 6')
    k.I('s_lshl_b32 s49, s69, 1')
    k.I('s_add_u32 s48, s48, s49')
    k.I('s_lshl_b32 s48, s48, 10')
    k.I('s_add_u32 s48, s48, 0x%x' % OFF_WO)
    k.I('s_cmp_ge_u32 s38, 736')
    k.I('s_cselect_b32 s48, 0x7fff0000, s48')
    k.I('s_cselect_b32 s18, 0, s18')
    for f in range(8):
        k.I('s_add_u32 %s, s48, %d' % (sr(51 + f), (f >> 1) * 16 * 1024 + (f & 1) * 1024))
    k.label('L_a_pstd2')
    k.I('s_mov_b32 s20, s16')
    k.I('s_mov_b32 s21, s17')
    k.I('s_mov_b32 s22, s18')
    k.I('s_lshl_b32 s48, s39, 16')
    k.I('s_lshl_b32 s49, s69, 7')
    k.I('s_add_u32 s48, s48, s49')
    k.I('s_add_u32 s49, s48, %d' % (32 * 1024))
    for f in range(8):
        k.I('s_movk_i32 %s, %d' % (sr(60 + f), (f >> 1) * 2048 + (f & 1) * 64))
    k.label('L_a_pgo')
    k.I('v_and_b32 v16, 31, v1')
    k.I('s_lshl_b32 s37, s29, 5')
    k.I('v_add_u32 v16, s37, v16')
    k.I('v_lshlrev_b32 v16, 8, v16')
    k.I('v_lshrrev_b32 v17, 5, v1')
    k.I('v_and_b32 v18, 15, v1')
    k.I('v_xor_b32 v18, v17, v18')
    k.I('v_lshlrev_b32 v18, 4, v18')
    k.I('s_lshl_b32 s37, s31, 5')
    k.I('v_xor_b32 v18, s37, v18')
    for s in range(8):
        k.I('v_xor_b32 v19, %d, v18' % (32 * s))
        k.I('v_add_u32 %s, v16, v19' % vr(2 + s))
    k.I('v_and_b32 v16, 15, v1')
    k.I('v_lshrrev_b32 v18, 2, v16')
    k.I('v_lshl_add_u32 v18, v17, 3, v18')
    k.I('v_lshlrev_b32 v18, 7, v18')
    k.I('v_bfe_u32 v19, v1, 4, 1')
    k.I('v_lshlrev_b32 v19, 1, v19')
    k.I('v_bfe_u32 v20, v1, 1, 1')
    k.I('v_add_u32 v19, v19, v20')
    k.I('s_lshl_b32 s37, s30, 2')
    k.I('v_add_u32 v19, s37, v19')
    k.I('v_bfe_u32 v20, v1, 3, 1')
    k.I('v_lshlrev_b32 v20, 2, v20')
    k.I('v_xor_b32 v19, v19, v20')
    k.I('v_lshlrev_b32 v19, 4, v19')
    k.I('v_and_b32 v20, 1, v1')
    k.I('v_lshlrev_b32 v20, 3, v20')
    k.I('v_add3_u32 v18, v18, v19, v20')
    WE, WO_, WE2, WO2 = 12, 13, 14, 15
    k.I('s_lshl_b32 s37, s31, 11')
    k.I('v_add_u32 %s, s37, v18' % vr(WE))
    k.I('s_xor_b32 s37, s37, 2048')
    k.I('v_add_u32 %s, s37, v18' % vr(WO_))
    k.I('v_add_u32 %s, 0x10000, %s' % (vr(WE2), vr(WE)))
    k.I('v_add_u32 %s, 0x10000, %s' % (vr(WO2), vr(WO_)))
    k.I('s_mov_b32 s70, 0x%x' % ONES_BF16)
    X, WR = 128, 96
    ACK, ACV, ACQ = 48, 64, 80
    SUM, SQ, CSK = 16, 18, 20
    CSV = ACQ
    CSQ = ACK + 8
    for r in (16, 17, 18, 19, 20, 21, CSV, CSV + 1):
        k.I('v_mov_b32 %s, 0' % vr(r))
    for j in range(4):
        k.I('v_accvgpr_write_b32 a%d, s70' % j)
    MEAN, RSTD, CK, CV, T0 = 2, 3, 4, 5, 6
    MN, RS = 16, 32
    LA = 4
    GSTART = [0, 8, 16, 24, 32, 48, 64, 80]
    WSLOT = {('k', 0): 1, ('k', 1): 3, ('k', 2): 5, ('k', 3): 7, ('v', 0): 0, ('v', 1): 1, ('v', 2): 2, ('v', 3): 3,
             ('q', 0): 4, ('q', 1): 5, ('q', 2): 6, ('q', 3): 7}
    PARTS = 'kvq'
    GNEED = [['X0', 'Wk0', 'zero'], ['X1', 'Wk1'], ['X2', 'Wk2'], ['X3', 'Wk3'], ['Wv0', 'Wv1'], ['Wv2', 'Wv3'],
             ['Wq0', 'Wq1'], ['Wq2', 'Wq3']]

    def reads_for(n):
        part = PARTS[n // 32]
        c, s = (n % 32) // 8, n % 8
        ops = []
        if part == 'k':
            ops.append('ds_read_b128 %s, %s offset:%d' % (vr(X + 4 * (n % 32), 4), vr(2 + s), (c % 2) * 32768))
        slot = WSLOT[(part, c)]
        a = ((WE, WO_) if slot < 4 else (WE2, WO2))[s & 1]
        off = (slot % 4) * 16384 + (s & ~1) * 2048
        ops.append('ds_read_b64_tr_b16 %s, %s offset:%d' % (vr(WR + 4 * s, 2), vr(a), off))
        ops.append('ds_read_b64_tr_b16 %s, %s offset:%d' % (vr(WR + 4 * s + 2, 2), vr(a), off + 512))
        return ops

    E = 131072
    E_ST = E
    E_CS = E + 1024
    E_TB = E + 4096
    E_KV = E + 8192
    k.I('s_lshl_b32 s72, s29, 1')
    k.I('s_add_u32 s73, s72, s30')
    k.I('s_lshl_b32 s73, s73, 8')
    k.I('s_add_u32 s73, s73, %d' % E_ST)
    k.I('s_xor_b32 s74, s73, 256')
    k.I('s_lshl_b32 s75, s30, 1')
    k.I('s_add_u32 s75, s75, s29')
    k.I('s_lshl_b32 s75, s75, 7')
    k.I('s_add_u32 s75, s75, %d' % E_CS)
    k.I('s_xor_b32 s76, s75, 128')
    k.I('s_lshl_b32 s77, s28, 8')
    k.I('s_add_u32 s77, s77, %d' % E_TB)

    S = Sched(96)
    pre = []
    for g in range(8):
        pos = GSTART[g] - LA
        ops = [('need', GNEED[g]), 's_barrier']
        if g == 0:
            pre += ops
            pre += ['s_or_b32 s37, s32, s28', 's_cmp_eq_u32 s37, 0', 's_cselect_b32 s37, 0, 0x1000',
                    'v_lshlrev_b32 v16, 12, v1' if False else 'v_lshlrev_b32 v22, 12, v1',
                    's_lshl_b32 s78, s33, 2', 'v_add_u32 v22, s78, v22', 'v_mov_b32 v23, 1',
                    'buffer_store_dword v23, v22, %s, s37 offen sc1' % sr(DB, 4)]
            for n in range(LA):
                pre += reads_for(n)
        else:
            S.at(pos - 1, ops)
    for n in range(96):
        if n + LA < 96:
            if n + LA == 16:
                S.at(n, ['v_add_u32 %s, 0x10000, %s' % (vr(2 + s), vr(2 + s)) for s in range(8)])
            S.at(n, reads_for(n + LA))
        s = n % 8
        part = n // 32
        if s % 2 == 0:
            ops = []
            cs = [CSK, CSV, CSQ][part]
            for j in range(4):
                if part == 0:
                    xr = X + 4 * n + j
                    ops.append('v_dot2c_f32_bf16 %s, s70, %s' % (vr(SUM + (j & 1)), vr(xr)))
                    ops.append('v_dot2c_f32_bf16 %s, %s, %s' % (vr(SQ + (j & 1)), vr(xr), vr(xr)))
                ops.append('v_dot2c_f32_bf16 %s, s70, %s' % (vr(cs + (j & 1)), vr(WR + 4 * s + j)))
            S.at(n, ops)
    S.spread(GSTART[2] - LA, GSTART[2] + 3, dma_w_ops('v', 0, 0) + dma_w_ops('v', 1, 1))
    S.spread(GSTART[3] - LA, GSTART[3] + 3, dma_w_ops('v', 2, 2) + dma_w_ops('v', 3, 3))
    S.spread(GSTART[4] - LA, GSTART[4] + 3, dma_w_ops('q', 0, 4) + dma_w_ops('q', 1, 5))
    S.spread(GSTART[5] - LA, GSTART[5] + 3, dma_w_ops('q', 2, 6) + dma_w_ops('q', 3, 7))
    pd = ['v_lshrrev_b32 v11, 3, v1', 'v_mul_lo_u32 v11, v11, s50', 'v_and_b32 v0, 7, v1', 'v_lshlrev_b32 v0, 4, v0',
          'v_add_u32 v11, v11, v0', 's_lshl_b32 s79, s28, 13', 's_lshl_b32 s80, s50, 3']
    for t in range(8):
        pd.append('s_add_u32 m0, s79, %d' % (t * 1024))
        base = 's48' if t < 4 else 's49'
        pd.append(('buffer_load_dwordx4 v11, %s, %s offen lds' % (sr(PA if t < 4 else PB, 4), base), 'prep'))
        pd.append('s_add_u32 %s, %s, s80' % (base, base))
    S.spread(GSTART[6] - LA, GSTART[6] + 5, pd)
    ex = ['v_add_f32 v16, v16, v17', 'v_add_f32 v18, v18, v19', 'v_add_f32 v20, v20, v21']
    ex += xhalf_ops(16, 17) + xhalf_ops(18, 19) + xhalf_ops(20, 21)
    ex += ['v_mov_b32 v17, v18',
           'v_and_b32 v22, 31, v1', 'v_lshlrev_b32 v23, 3, v22', 'v_add_u32 v23, s73, v23',
           'ds_write_b64 v23, v[16:17]',
           'v_lshlrev_b32 v22, 2, v22', 'v_add_u32 v24, s75, v22', 'ds_write_b32 v24, v20',
           's_waitcnt lgkmcnt(0)']
    S.spread(31, 33, ex)
    S.at(34, ['s_barrier',
              'v_and_b32 v22, 31, v1', 'v_lshlrev_b32 v23, 3, v22', 'v_add_u32 v23, s74, v23',
              'ds_read_b64 v[18:19], v23',
              'v_lshlrev_b32 v22, 2, v22', 'v_add_u32 v24, s76, v22', 'ds_read_b32 v21, v24'])
    S.at(35, ['v_add_f32 v16, v16, v18', 'v_add_f32 v17, v17, v19', 'v_add_f32 %s, v20, v21' % vr(CK),
              'v_mul_f32 %s, 0x%x, v16' % (vr(MEAN), f2u(1.0 / 512)),
              'v_mul_f32 v17, 0x%x, v17' % f2u(1.0 / 512),
              'v_fma_f32 v17, -%s, %s, v17' % (vr(MEAN), vr(MEAN)),
              'v_max_f32 v17, 0, v17', 'v_add_f32 v17, 0x%x, v17' % f2u(1e-5), 'v_rsq_f32 %s, v17' % vr(RSTD),
              'v_add_u32 v23, s77, v22', 'ds_write_b32 v23, %s' % vr(MEAN), 'ds_write_b32 v23, %s offset:128' % vr(RSTD),
              'v_lshrrev_b32 v23, 5, v1', 'v_lshlrev_b32 v23, 4, v23', 'v_add_u32 %s, s77, v23' % vr(T0)])
    rd = []
    for a in range(4):
        rd.append('ds_read_b128 %s, %s offset:%d' % (vr(MN + 4 * a, 4), vr(T0), a * 32))
        rd.append('ds_read_b128 %s, %s offset:%d' % (vr(RS + 4 * a, 4), vr(T0), 128 + a * 32))
    S.at(36, rd)
    ke = []
    for i in range(0, 16, 2):
        for j in (i, i + 1):
            ke.append('v_fma_f32 %s, -%s, %s, %s' % (vr(ACK + j), vr(MN + j), vr(CK), vr(ACK + j)))
        for j in (i, i + 1):
            ke.append('v_mul_f32 %s, %s, %s' % (vr(ACK + j), vr(RS + j), vr(ACK + j)))
        ke += phi_ops([ACK + i, ACK + i + 1], [T0 + 1, T0 + 2])
        ke.append('v_cvt_pk_bf16_f32 %s, %s, %s' % (vr(ACK + i // 2), vr(ACK + i), vr(ACK + i + 1)))
    S.spread(38, 61, ke)
    S.at(62, ['v_mov_b32 %s, 0' % vr(CSQ), 'v_mov_b32 %s, 0' % vr(CSQ + 1)])
    ex = ['v_add_f32 %s, %s, %s' % (vr(CV), vr(CSV), vr(CSV + 1))] + xhalf_ops(CV, T0 + 1)
    ex += ['v_and_b32 v0, 31, v1', 'v_lshlrev_b32 v0, 2, v0', 'v_add_u32 %s, s75, v0' % vr(T0 + 1),
           'ds_write_b32 %s, %s offset:512' % (vr(T0 + 1), vr(CV)), 's_waitcnt lgkmcnt(0)']
    S.at(63, ex)
    S.at(66, ['s_barrier', 'v_add_u32 %s, s76, v0' % vr(T0 + 1), 'ds_read_b32 %s, %s offset:512' % (vr(T0 + 2), vr(T0 + 1)),
              'v_add_f32 %s, %s, %s' % (vr(CV), vr(CV), vr(T0 + 2))])
    ve = []
    for i in range(16):
        ve.append('v_fma_f32 %s, -%s, %s, %s' % (vr(ACV + i), vr(MN + i), vr(CV), vr(ACV + i)))
    for i in range(16):
        ve.append('v_mul_f32 %s, %s, %s' % (vr(ACV + i), vr(RS + i), vr(ACV + i)))
    for j in range(8):
        ve.append('v_cvt_pk_bf16_f32 %s, %s, %s' % (vr(ACV + j), vr(ACV + 2 * j), vr(ACV + 2 * j + 1)))
    S.spread(67, 74, ve)
    DKV, DZ = 16, 32
    S.at(76, ['v_mfma_f32_32x32x16_bf16 %s, %s, %s, 0' % (vr(DKV, 16), vr(ACK, 4), vr(ACV, 4)),
              'v_mfma_f32_32x32x16_bf16 %s, %s, a[0:3], 0' % (vr(DZ, 16), vr(ACK, 4))])
    S.at(77, ['v_mfma_f32_32x32x16_bf16 %s, %s, %s, %s' % (vr(DKV, 16), vr(ACK + 4, 4), vr(ACV + 4, 4), vr(DKV, 16)),
              'v_mfma_f32_32x32x16_bf16 %s, %s, a[0:3], %s' % (vr(DZ, 16), vr(ACK + 4, 4), vr(DZ, 16))])
    S.at(78, ['s_lshl_b32 s78, s33, 2', 'v_mov_b32 v0, s78', 'buffer_load_dword %s, v0, %s, 0 offen sc1' % (vr(ACV + 8), sr(DB, 4))])
    kv = ['v_and_b32 %s, 16, v1' % vr(T0), 'v_cmp_eq_u32 vcc, 0, %s' % vr(T0)]
    for j in range(8):
        kv.append('v_cndmask_b32 %s, %s, %s, vcc' % (vr(DKV + j), vr(DKV + 8 + j), vr(DKV + j)))
        kv.append('v_cndmask_b32 %s, %s, %s, vcc' % (vr(DZ + j), vr(DZ + 8 + j), vr(DZ + j)))
    kv += ['v_lshlrev_b32 %s, 7, %s' % (vr(T0), vr(T0)),
           'v_lshrrev_b32 %s, 5, v1' % vr(T0 + 1), 'v_lshlrev_b32 %s, 10, %s' % (vr(T0 + 1), vr(T0 + 1)),
           'v_add_u32 %s, %s, %s' % (vr(T0), vr(T0), vr(T0 + 1)),
           's_lshl_b32 s79, s30, 1', 's_add_u32 s79, s79, s29', 's_lshl_b32 s79, s79, 12', 's_add_u32 s79, s79, %d' % E_KV,
           'v_add_u32 %s, s79, %s' % (vr(T0), vr(T0)),
           'v_and_b32 %s, 15, v1' % vr(T0 + 1), 'v_lshlrev_b32 %s, 5, %s' % (vr(T0 + 2), vr(T0 + 1)),
           'v_add_u32 %s, %s, %s' % (vr(T0 + 2), vr(T0), vr(T0 + 2)),
           'ds_write_b128 %s, %s' % (vr(T0 + 2), vr(DKV, 4)), 'ds_write_b128 %s, %s offset:16' % (vr(T0 + 2), vr(DKV + 4, 4)),
           'v_cmp_eq_u32 vcc, 0, %s' % vr(T0 + 1), 's_and_saveexec_b64 s[82:83], vcc',
           'ds_write_b128 %s, %s offset:512' % (vr(T0), vr(DZ, 4)), 'ds_write_b128 %s, %s offset:528' % (vr(T0), vr(DZ + 4, 4)),
           's_mov_b64 exec, s[82:83]', 's_waitcnt lgkmcnt(0)']
    S.spread(81, 85, kv)
    fin = ['s_barrier',
           's_lshl_b32 s79, s30, 13', 's_lshl_b32 s80, s29, 11', 's_add_u32 s79, s79, s80', 's_add_u32 s79, s79, %d' % E_KV,
           'v_lshlrev_b32 %s, 2, v1' % vr(T0), 'v_add_u32 %s, s79, %s' % (vr(T0 + 1), vr(T0))]
    for half in range(2):
        for ch in range(3):
            d = 16 + (half * 3 + ch) * 2
            off = half * 1024 + ch * 256
            fin.append('ds_read_b32 %s, %s offset:%d' % (vr(d), vr(T0 + 1), off))
            fin.append('ds_read_b32 %s, %s offset:%d' % (vr(d + 1), vr(T0 + 1), off + 4096))
    S.at(87, fin)
    fin = []
    for half in range(2):
        for ch in range(3):
            d = 16 + (half * 3 + ch) * 2
            fin.append('v_add_f32 %s, %s, %s' % (vr(d), vr(d), vr(d + 1)))
    fin += ['v_readfirstlane_b32 s79, %s' % vr(ACV + 8), 's_cmp_eq_u32 s79, 0', 's_cbranch_scc1 L_a_spin', ('label', 'L_a_go')]
    for half in range(2):
        for ch in range(2):
            d = 16 + (half * 3 + ch) * 2
            fin.append('buffer_atomic_add_f32 %s, %s, %s, s71 offen offset:%d' % (vr(d), vr(T0), ws, half * 1024 + ch * 256))
    fin += ['v_cmp_gt_u32 vcc, 8, v1', 's_and_saveexec_b64 s[82:83], vcc']
    for half in range(2):
        d = 16 + (half * 3 + 2) * 2
        fin.append('buffer_atomic_add_f32 %s, %s, %s, s71 offen offset:%d' % (vr(d), vr(T0), ws, half * 1024 + 512))
    fin.append('s_mov_b64 exec, s[82:83]')
    S.spread(89, 92, fin)

    for o in pre:
        emit(k, o)
    st.stamp()
    for n in range(96):
        part, ks = n // 32, n % 32
        acc = vr([ACK, ACV, ACQ][part], 16)
        x = vr(X + 4 * ks, 4)
        w = vr(WR + 4 * (n % 8), 4)
        c = acc if ks else '0'
        if part < 2:
            k.I('v_mfma_f32_32x32x16_bf16 %s, %s, %s, %s' % (acc, x, w, c))
        else:
            k.I('v_mfma_f32_32x32x16_bf16 %s, %s, %s, %s' % (acc, w, x, c))
        for o in S.slots[n]:
            emit(k, o)
        if n in (31, 63):
            st.stamp()
    st.stamp()
    k.I('v_add_f32 %s, %s, %s' % (vr(CSQ), vr(CSQ), vr(CSQ + 1)))
    for o in xhalf_ops(CSQ, CSQ + 1):
        k.I(o)
    k.I('v_and_b32 v0, 31, v1')
    k.I('v_lshlrev_b32 v0, 2, v0')
    k.I('v_add_u32 %s, s75, v0' % vr(T0))
    k.I('ds_write_b32 %s, %s offset:1024' % (vr(T0), vr(CSQ)))
    k.I('v_bfe_u32 v16, v1, 2, 2')
    k.I('v_lshrrev_b32 v17, 5, v1')
    k.I('v_lshl_add_u32 v16, v17, 2, v16')
    k.I('v_lshlrev_b32 v16, 7, v16')
    k.I('v_and_b32 v17, 3, v1')
    k.I('v_lshl_add_u32 v16, v17, 3, v16')
    k.I('v_bfe_u32 v17, v1, 4, 1')
    k.I('s_cmp_eq_u32 s68, 1')
    k.I('s_cselect_b32 s79, 12, 5')
    k.I('v_lshlrev_b32 v17, s79, v17')
    k.I('s_lshl_b32 s80, s28, 13')
    k.I('v_add3_u32 v16, v16, v17, s80')
    k.I('s_waitcnt lgkmcnt(0)')
    k.I('s_barrier')
    k.I('v_lshrrev_b32 v17, 5, v1')
    k.I('v_lshlrev_b32 v17, 4, v17')
    k.I('v_add_u32 v18, s75, v17')
    k.I('v_add_u32 v19, s76, v17')
    CQ, CQ2 = 20, 36
    for a in range(4):
        k.I('ds_read_b128 %s, v18 offset:%d' % (vr(CQ + 4 * a, 4), 1024 + a * 32))
        k.I('ds_read_b128 %s, v19 offset:%d' % (vr(CQ2 + 4 * a, 4), 1024 + a * 32))
    k.need('prep')
    PF = X
    pr = []
    for f in range(8):
        pr.append('v_add_u32 v17, %s, v16' % sr(60 + f))
        pr.append('ds_read_b64_tr_b16 %s, v17' % vr(PF + 4 * f, 2))
        pr.append('ds_read_b64_tr_b16 %s, v17 offset:1024' % vr(PF + 4 * f + 2, 2))
    for o in pr:
        k.I(o)
    for i in range(16):
        k.I('v_add_f32 %s, %s, %s' % (vr(CQ + i), vr(CQ + i), vr(CQ2 + i)))
    PC = PF + 32
    for c in range(4):
        k.I('v_mov_b32 %s, 0' % vr(PC + c))
    qe = []
    for i in range(0, 16, 2):
        for j in (i, i + 1):
            qe.append('v_fma_f32 %s, -%s, %s, %s' % (vr(ACQ + j), vr(MEAN), vr(CQ + j), vr(ACQ + j)))
        for j in (i, i + 1):
            qe.append('v_mul_f32 %s, %s, %s' % (vr(ACQ + j), vr(RSTD), vr(ACQ + j)))
        qe += phi_ops([ACQ + i, ACQ + i + 1], [T0 + 1, T0 + 2])
        qe.append('v_cvt_pk_bf16_f32 %s, %s, %s' % (vr(ACQ + i // 2), vr(ACQ + i), vr(ACQ + i + 1)))
    ps = []
    for f in range(8):
        ps.append('buffer_store_dwordx4 %s, v10, %s, %s offen' % (vr(PF + 4 * f, 4), ws, sr(51 + f)))
        for j in range(4):
            ps.append('v_dot2c_f32_bf16 %s, s70, %s' % (vr(PC + (f & 3)), vr(PF + 4 * f + j)))
    n1, n2 = len(ps), len(qe)
    i1 = i2 = 0
    while i1 < n1 or i2 < n2:
        if i1 < n1:
            k.I(ps[i1]); i1 += 1
        for _ in range(3):
            if i2 < n2:
                k.I(qe[i2]); i2 += 1
    k.I('s_lshl_b32 s79, s32, 1')
    k.I('s_add_u32 s79, s79, s29')
    k.I('s_lshl_b32 s79, s79, 5')
    k.I('s_lshl_b32 s80, s33, 2')
    k.I('s_add_u32 s79, s79, s80')
    k.I('s_lshl_b32 s80, s30, 1')
    k.I('s_add_u32 s79, s79, s80')
    k.I('s_lshl_b32 s79, s79, 10')
    k.I('s_add_u32 s79, s79, 0x%x' % OFF_PQ)
    k.I('buffer_store_dwordx4 %s, v10, %s, s79 offen' % (vr(ACQ, 4), ws))
    k.I('buffer_store_dwordx4 %s, v10, %s, s79 offen offset:1024' % (vr(ACQ + 4, 4), ws))
    for c in range(4):
        for o in xhalf_ops(PC + c, PC + 4):
            k.I(o)
        k.I('buffer_store_dword %s, v0, %s, s59 offen offset:%d' % (vr(PC + c), ws, c * 128))
    if gen1.STAMPS:
        k.I('v_lshl_add_u32 v4, s28, 6, v1')
        st.tid = 'v4'
    st.stamp(); st.stamp(True); st.flush()
    k.label('L_a_end')
    k.I('s_endpgm')
    k.raw('''L_a_spin:
    s_sleep 2
    v_mov_b32 v0, s78
    buffer_load_dword v%d, v0, s[%d:%d], 0 offen sc1
    s_waitcnt vmcnt(0)
    v_readfirstlane_b32 s79, v%d
    s_nop 3
    s_cmp_eq_u32 s79, 0
    s_cbranch_scc1 L_a_spin
    v_and_b32 v0, 31, v1
    v_lshlrev_b32 v0, 2, v0
    s_branch L_a_go
''' % (ACV + 8, DB, DB + 3, ACV + 8))
    return k, dict(lds=131072 + 8192 + 16384, grid=256, block=256)


if __name__ == '__main__':
    n = int(sys.argv[2]) if len(sys.argv) > 2 else 4
    gen1.STAMPS = len(sys.argv) > 3 and sys.argv[3] == 'stamps'
    for o in sys.argv[4:]:
        gen1.OPT[o] = True
    gens = [('qkv_kernel', gen_a), ('attn_kernel', gen_k2), ('gateup_kernel', gen_k3), ('down_kernel', gen_k4)]
    ks = []
    for label, g in gens[:n]:
        kk, cc = g()
        ks.append((label, kk, cc))
        print(label, kk.stats(), kk.maxreg())
    open(sys.argv[1], 'w').write(wrap(ks))
```

```python
import sys
from asmgen import Kernel
import gen1
from gen1 import *
from gen2 import Sched, xhalf_ops


def emit(k, op):
    if isinstance(op, tuple):
        if op[0] == 'need':
            k.need(*op[1])
        elif op[0] == 'touch':
            k.touch(op[1])
        elif op[0] == 'label':
            k.label(op[1])
        elif op[1] is None:
            k.I(op[0])
        else:
            k.I(op[0], w=[op[1]])
    else:
        k.I(op)


def ln_phi_ops(accs, mns, css, rss, tmps):
    seqs = []
    for a, mn, cs, rs, tm in zip(accs, mns, css, rss, tmps):
        seqs.append(['v_fma_f32 %s, -%s, %s, %s' % (vr(a), vr(mn), vr(cs), vr(a)),
                     'v_fma_f32 %s, %s, %s, s81' % (vr(a), vr(rs), vr(a)),
                     'v_mul_f32 %s, 0x%x, %s' % (vr(tm), f2u(LOG2E), vr(a)),
                     'v_exp_f32_e64 %s, %s clamp' % (vr(tm), vr(tm)),
                     'v_max_f32 %s, s81, %s' % (vr(a), vr(a)),
                     'v_add_f32 %s, %s, %s' % (vr(a), vr(a), vr(tm))])
    out = []
    for grp in zip(*seqs):
        out += list(grp)
    return out


def gen_a():
    k = Kernel('qkv_kernel')
    XS, WQ, WS, PA, PB, DB = 4, 8, 12, 16, 20, 24
    ws = sr(WS, 4)
    k.I('s_cmp_ge_u32 s2, 256')
    k.I('s_cbranch_scc1 L_a_end')
    load_srds(k, [('x', XS), ('wqkv', WQ), ('ws', WS), ('dbg', DB)])
    k.I('s_load_dwordx2 s[40:41], s[0:1], %d' % KA['wo'])
    k.I('s_load_dwordx4 s[44:47], s[0:1], %d' % KA['wg'])
    k.I('s_load_dwordx2 s[42:43], s[0:1], %d' % KA['wd'])
    st = Stamper(k, 1, ws, base=84, tmp=40); st.stamp(True); st.stamp()
    k.I('v_and_b32 v1, 63, v0')
    k.I('v_lshrrev_b32 v2, 6, v0')
    k.I('v_readfirstlane_b32 s28, v2')
    k.I('s_and_b32 s34, s2, 7')
    k.I('s_lshr_b32 s35, s2, 3')
    k.I('s_and_b32 s32, s34, 3')
    k.I('s_lshl_b32 s32, s32, 3')
    k.I('s_and_b32 s36, s35, 7')
    k.I('s_add_u32 s32, s32, s36')
    k.I('s_lshr_b32 s33, s34, 2')
    k.I('s_lshl_b32 s33, s33, 2')
    k.I('s_lshr_b32 s36, s35, 3')
    k.I('s_add_u32 s33, s33, s36')
    k.I('s_add_u32 s38, s32, s33')
    k.I('s_and_b32 s29, s28, 1')
    k.I('s_lshr_b32 s30, s28, 1')
    k.I('s_xor_b32 s31, s29, s30')
    k.I('s_lshl_b32 s34, s28, 12')
    k.I('s_lshl_b32 s35, s32, 16')
    k.I('s_mul_i32 s36, s28, %d' % (32 * 3072))
    k.I('s_lshl_b32 s37, s33, 7')
    k.I('s_add_u32 s36, s36, s37')
    for c in range(4):
        k.I('s_add_u32 s37, s38, %d' % c)
        k.I('s_and_b32 s37, s37, %d' % (0 if OPT.get('norot') else 3))
        if OPT.get('norot'):
            k.I('s_mov_b32 s37, %d' % c)
        k.I('s_lshl_b32 %s, s37, 8' % sr(60 + c))
        k.I('s_add_u32 %s, %s, s35' % (sr(60 + c), sr(60 + c)))
        k.I('s_mul_i32 %s, s37, %d' % (sr(64 + c), 128 * 3072))
        k.I('s_add_u32 %s, %s, s36' % (sr(64 + c), sr(64 + c)))
    k.I('v_lshrrev_b32 v2, 4, v1')
    k.I('v_and_b32 v3, 15, v1')
    k.I('s_lshl_b32 s37, s28, 4')
    for j in range(4):
        k.I('v_add_u32 v4, %d, v2' % (4 * j))
        k.I('v_xor_b32 v5, v3, v4')
        k.I('v_lshlrev_b32 v5, 4, v5')
        k.I('v_add_u32 v4, s37, v4')
        k.I('v_lshlrev_b32 v4, 10, v4')
        k.I('v_add_u32 v4, v4, v5')
        k.I('v_subrev_u32 %s, %d, v4' % (vr(12 + j), j * 1024))
    k.I('v_lshrrev_b32 v4, 3, v1')
    k.I('s_movk_i32 s37, 3072')
    k.I('v_mul_lo_u32 v4, v4, s37')
    k.I('v_and_b32 v5, 1, v2')
    k.I('v_lshlrev_b32 v5, 2, v5')
    k.I('v_and_b32 v6, 7, v1')
    k.I('v_xor_b32 v5, v5, v6')
    k.I('v_lshlrev_b32 v5, 4, v5')
    k.I('v_add_u32 v8, v4, v5')
    WV = [8, 9, 10, 11]
    for j in range(1, 4):
        k.I('v_add_u32 %s, %d, v8' % (vr(WV[j]), j * (8 * 3072 - 1024)))
    LN16 = 7
    k.I('v_lshlrev_b32 %s, 4, v1' % vr(LN16))
    for j in range(4):
        k.I('v_mov_b32 %s, 0' % vr(16 + j))
    k.I('s_lshl_b32 s37, s33, 2')
    k.I('s_add_u32 s37, s37, s28')
    k.I('s_lshl_b32 s37, s37, 11')
    k.I('s_add_u32 s71, s37, 0x%x' % OFF_KVZ)
    k.I('s_cmp_eq_u32 s32, 0')
    k.I('s_cselect_b32 s37, s71, 0x7fff0000')
    k.I('s_waitcnt lgkmcnt(0)')
    k.I('buffer_store_dwordx4 v[16:19], %s, %s, s37 offen sc1' % (vr(LN16), ws), w=['zero'])
    k.I('buffer_store_dwordx4 v[16:19], %s, %s, s37 offen offset:1024 sc1' % (vr(LN16), ws), w=['zero'])

    def dma_x_ops(c, slot):
        ops = ['s_add_u32 m0, s34, %d' % (slot * 16384)]
        for j in range(4):
            ops.append(('buffer_load_dwordx4 %s, %s, %s offen offset:%d lds' % (vr(12 + j), sr(XS, 4), sr(60 + c), j * 1024), 'X%d' % c))
        return ops

    PARTCOL = {'q': 0, 'k': 1024, 'v': 2048}

    def dma_w_ops(part, c, slot):
        ops = ['s_add_u32 m0, s34, %d' % (slot * 16384), 's_add_u32 s37, %s, %d' % (sr(64 + c), PARTCOL[part])]
        for j in range(4):
            ops.append(('buffer_load_dwordx4 %s, %s, s37 offen offset:%d lds' % (vr(WV[j]), sr(WQ, 4), j * 1024), 'W%s%d' % (part, c)))
        return ops

    NPRE = OPT.get('npre', 4)
    for c in range(4):
        for o in dma_x_ops(c, 2 * c) + dma_w_ops('k', c, 2 * c + 1):
            emit(k, o)
    st.stamp()
    k.I('s_lshl_b32 s38, s2, 2')
    k.I('s_add_u32 s38, s38, s28')
    k.I('s_mov_b32 s19, 0x00020000')
    k.I('s_mov_b32 s23, 0x00020000')
    k.I('s_cmp_ge_u32 s38, 448')
    k.I('s_cbranch_scc1 L_a_pstd')
    div_const(k, 39, 38, 28, 48)
    k.I('s_mul_i32 s48, s39, 28')
    k.I('s_sub_u32 s69, s38, s48')
    k.I('s_mov_b32 s16, s44')
    k.I('s_mov_b32 s17, s45')
    k.I('s_mov_b32 s18, 0x%x' % SZ['wg'])
    k.I('s_mov_b32 s20, s46')
    k.I('s_mov_b32 s21, s47')
    k.I('s_mov_b32 s22, 0x%x' % SZ['wu'])
    k.I('s_movk_i32 s50, 3584')
    k.I('s_mul_i32 s48, s39, %d' % (32 * 3584))
    k.I('s_lshl_b32 s49, s69, 7')
    k.I('s_add_u32 s48, s48, s49')
    k.I('s_mov_b32 s49, s48')
    k.I('s_lshl_b32 s59, s69, 7')
    k.I('s_lshl_b32 s51, s39, 1')
    k.I('s_add_u32 s59, s59, s51')
    k.I('s_lshl_b32 s59, s59, 10')
    k.I('s_add_u32 s72, s59, 0x%x' % OFF_WGU)
    k.I('s_mov_b32 s73, %d' % (32 * 1024))
    k.I('s_mov_b32 s74, %d' % (64 * 1024))
    k.I('s_mov_b32 s75, 1024')
    k.I('s_mul_i32 s59, s39, %d' % (112 * 128))
    k.I('s_lshl_b32 s69, s69, 9')
    k.I('s_add_u32 s59, s59, s69')
    k.I('s_add_u32 s59, s59, 0x%x' % OFF_CSG)
    k.I('s_mov_b32 s68, 1')
    k.I('s_branch L_a_pgo')
    k.label('L_a_pstd')
    k.I('s_movk_i32 s50, 1024')
    k.I('s_mov_b32 s68, 0')
    k.I('s_mov_b32 s59, 0x7fff0000')
    k.I('s_cmp_ge_u32 s38, 672')
    k.I('s_cbranch_scc1 L_a_pwo')
    k.I('s_sub_u32 s39, s38, 448')
    k.I('s_and_b32 s69, s39, 7')
    k.I('s_lshr_b32 s39, s39, 3')
    k.I('s_mov_b32 s16, s42')
    k.I('s_mov_b32 s17, s43')
    k.I('s_mov_b32 s18, 0x%x' % SZ['wd'])
    k.I('s_mul_i32 s48, s69, 224')
    k.I('s_lshl_b32 s49, s39, 2')
    k.I('s_add_u32 s48, s48, s49')
    k.I('s_lshl_b32 s48, s48, 10')
    k.I('s_add_u32 s72, s48, 0x%x' % OFF_WD)
    k.I('s_mov_b32 s73, %d' % (112 * 1024))
    k.I('s_mov_b32 s74, 1024')
    k.I('s_mov_b32 s75, 2048')
    k.I('s_branch L_a_pstd2')
    k.label('L_a_pwo')
    k.I('s_sub_u32 s39, s38, 672')
    k.I('s_and_b32 s69, s39, 7')
    k.I('s_lshr_b32 s39, s39, 3')
    k.I('s_mov_b32 s16, s40')
    k.I('s_mov_b32 s17, s41')
    k.I('s_mov_b32 s18, 0x%x' % SZ['wo'])
    k.I('s_lshl_b32 s48, s39, 6')
    k.I('s_lshl_b32 s49, s69, 1')
    k.I('s_add_u32 s48, s48, s49')
    k.I('s_lshl_b32 s48, s48, 10')
    k.I('s_add_u32 s72, s48, 0x%x' % OFF_WO)
    k.I('s_cmp_ge_u32 s38, 736')
    k.I('s_cselect_b32 s72, 0x7fff0000, s72')
    k.I('s_cselect_b32 s18, 0, s18')
    k.I('s_mov_b32 s73, 1024')
    k.I('s_mov_b32 s74, %d' % (16 * 1024))
    k.I('s_mov_b32 s75, %d' % (32 * 1024))
    k.label('L_a_pstd2')
    k.I('s_mov_b32 s20, s16')
    k.I('s_mov_b32 s21, s17')
    k.I('s_mov_b32 s22, s18')
    k.I('s_lshl_b32 s48, s39, 16')
    k.I('s_lshl_b32 s49, s69, 7')
    k.I('s_add_u32 s48, s48, s49')
    k.I('s_add_u32 s49, s48, %d' % (32 * 1024))
    k.label('L_a_pgo')
    k.I('s_mov_b32 s51, s72')
    k.I('s_add_u32 s52, s72, s73')
    k.I('s_add_u32 s53, s72, s74')
    k.I('s_add_u32 s54, s52, s74')
    for f in range(4):
        k.I('s_add_u32 %s, %s, s75' % (sr(55 + f), sr(51 + f)))
    XA = 16
    k.I('v_and_b32 v2, 31, v1')
    k.I('s_lshl_b32 s37, s29, 5')
    k.I('v_add_u32 v2, s37, v2')
    k.I('v_lshlrev_b32 v2, 8, v2')
    k.I('v_lshrrev_b32 v3, 5, v1')
    k.I('v_and_b32 v4, 15, v1')
    k.I('v_xor_b32 v4, v3, v4')
    k.I('v_lshlrev_b32 v4, 4, v4')
    k.I('s_lshl_b32 s37, s31, 5')
    k.I('v_xor_b32 v4, s37, v4')
    for s in range(8):
        k.I('v_xor_b32 v5, %d, v4' % (32 * s))
        k.I('v_add_u32 %s, v2, v5' % vr(XA + s))
    k.I('v_bfe_u32 v4, v1, 2, 2')
    k.I('v_lshl_add_u32 v4, v3, 3, v4')
    k.I('v_lshlrev_b32 v4, 7, v4')
    k.I('v_bfe_u32 v5, v1, 4, 1')
    k.I('v_lshlrev_b32 v5, 1, v5')
    k.I('v_bfe_u32 v6, v1, 1, 1')
    k.I('v_add_u32 v5, v5, v6')
    k.I('s_lshl_b32 s37, s30, 2')
    k.I('v_add_u32 v5, s37, v5')
    k.I('v_bfe_u32 v6, v1, 3, 1')
    k.I('v_lshlrev_b32 v6, 2, v6')
    k.I('v_xor_b32 v5, v5, v6')
    k.I('v_lshlrev_b32 v5, 4, v5')
    k.I('v_and_b32 v6, 1, v1')
    k.I('v_lshlrev_b32 v6, 3, v6')
    k.I('v_add3_u32 v4, v4, v5, v6')
    WE, WO_, WE2, WO2 = 12, 13, 14, 15
    k.I('s_lshl_b32 s37, s31, 11')
    k.I('v_add_u32 %s, s37, v4' % vr(WE))
    k.I('s_xor_b32 s37, s37, 2048')
    k.I('v_add_u32 %s, s37, v4' % vr(WO_))
    k.I('v_add_u32 %s, 0x10000, %s' % (vr(WE2), vr(WE)))
    k.I('v_add_u32 %s, 0x10000, %s' % (vr(WO2), vr(WO_)))
    k.I('s_mov_b32 s70, 0x%x' % ONES_BF16)
    k.I('s_mov_b32 s81, 0x%x' % f2u(1e-6))
    k.I('v_bfe_u32 v5, v1, 4, 1')
    k.I('v_and_b32 v6, 1, v1')
    k.I('v_cmp_eq_u32 vcc, v5, v6')
    k.I('v_mov_b32 v5, s70')
    k.I('v_cndmask_b32 v5, 0, v5, vcc')
    for j in range(4):
        k.I('v_accvgpr_write_b32 a%d, v5' % (4 + j))
        k.I('v_accvgpr_write_b32 a%d, s70' % j)
    X, WR = 128, 96
    ACK, ACV, ACQ = 48, 64, 80
    SQ = 24
    k.I('v_mov_b32 v24, 0')
    k.I('v_mov_b32 v25, 0')
    MEAN, RSTD, CK, CV, T0 = 2, 3, 4, 5, 6
    TA, TB = 44, 45
    MN, RS = 16, 32
    LA = 4
    GSTART = [0, 8, 16, 24, 32, 48, 64, 80]
    WSLOT = {('k', 0): 1, ('k', 1): 3, ('k', 2): 5, ('k', 3): 7, ('v', 0): 0, ('v', 1): 1, ('v', 2): 2, ('v', 3): 3,
             ('q', 0): 4, ('q', 1): 5, ('q', 2): 6, ('q', 3): 7}
    PARTS = 'kvq'
    GNEED = [['X0', 'Wk0', 'zero'], ['X1', 'Wk1'], ['X2', 'Wk2'], ['X3', 'Wk3'], ['Wv0', 'Wv1'], ['Wv2', 'Wv3'],
             ['Wq0', 'Wq1'], ['Wq2', 'Wq3']]

    def reads_for(n):
        part = PARTS[n // 32]
        c, s = (n % 32) // 8, n % 8
        ops = []
        if part == 'k':
            ops.append('ds_read_b128 %s, %s offset:%d' % (vr(X + 4 * (n % 32), 4), vr(XA + s), (c % 2) * 32768))
        slot = WSLOT[(part, c)]
        a = ((WE, WO_) if slot < 4 else (WE2, WO2))[s & 1]
        off = (slot % 4) * 16384 + (s & ~1) * 2048
        ops.append('ds_read_b64_tr_b16 %s, %s offset:%d' % (vr(WR + 4 * s, 2), vr(a), off))
        ops.append('ds_read_b64_tr_b16 %s, %s offset:%d' % (vr(WR + 4 * s + 2, 2), vr(a), off + 512))
        return ops

    E = 131072
    E_ST = E
    E_CS = E + 1024
    E_TB = E + 4096
    E_KV = E + 8192
    k.I('s_lshl_b32 s72, s29, 1')
    k.I('s_add_u32 s73, s72, s30')
    k.I('s_lshl_b32 s73, s73, 8')
    k.I('s_add_u32 s73, s73, %d' % E_ST)
    k.I('s_xor_b32 s74, s73, 256')
    k.I('s_lshl_b32 s75, s30, 1')
    k.I('s_add_u32 s75, s75, s29')
    k.I('s_lshl_b32 s75, s75, 7')
    k.I('s_add_u32 s75, s75, %d' % E_CS)
    k.I('s_xor_b32 s76, s75, 128')
    k.I('s_lshl_b32 s77, s28, 8')
    k.I('s_add_u32 s77, s77, %d' % E_TB)
    k.I('v_and_b32 v0, 31, v1')
    k.I('v_lshlrev_b32 v0, 2, v0')
    k.I('v_and_b32 v26, 16, v1')
    k.I('v_cmp_ne_u32 s[82:83], 0, v26')

    S = Sched(96)
    pre = []
    for g in range(8):
        pos = GSTART[g] - LA
        ops = [('need', GNEED[g]), 's_barrier']
        if g == 0:
            pre += ops
            pre += ['s_or_b32 s37, s32, s28', 's_cmp_eq_u32 s37, 0', 's_cselect_b32 s37, 0, 0x1000',
                    'v_lshlrev_b32 v26, 12, v1', 's_lshl_b32 s78, s33, 2', 'v_add_u32 v26, s78, v26', 'v_mov_b32 v27, 1',
                    'buffer_store_dword v27, v26, %s, s37 offen sc1' % sr(DB, 4)]
            for n in range(LA):
                pre += reads_for(n)
        else:
            S.at(pos - 1, ops)
    CSA = [12, 16, 20]
    for n in range(96):
        s = n % 8
        part = n // 32
        if n + LA < 96:
            if n + LA == 16:
                S.at(n, ['v_add_u32 %s, 0x10000, %s' % (vr(XA + t), vr(XA + t)) for t in range(8)])
            S.at(n, reads_for(n + LA))
        if s % 2 == 0:
            first = (n % 32) == 0
            ca = ar(CSA[part], 4)
            ops = ['v_mfma_f32_16x16x32_bf16 %s, a[4:7], %s, %s' % (ca, vr(WR + 4 * s, 4), '0' if first else ca)]
            if part == 0:
                ops.append('v_mfma_f32_16x16x32_bf16 a[8:11], a[4:7], %s, %s' % (vr(X + 4 * n, 4), '0' if n == 0 else 'a[8:11]'))
                for j in range(4):
                    xr = X + 4 * n + j
                    ops.append('v_dot2c_f32_bf16 %s, %s, %s' % (vr(SQ + (j & 1)), vr(xr), vr(xr)))
            S.at(n, ops)
        elif n + 1 < 96 and not any(n + 1 == g - LA for g in []):
            pass
    S.spread(GSTART[2] - LA, GSTART[2] + 3, dma_w_ops('v', 0, 0) + dma_w_ops('v', 1, 1))
    S.spread(GSTART[3] - LA, GSTART[3] + 3, dma_w_ops('v', 2, 2) + dma_w_ops('v', 3, 3))
    S.spread(GSTART[4] - LA, GSTART[4] + 7, dma_w_ops('q', 0, 4) + dma_w_ops('q', 1, 5))
    S.spread(GSTART[5] - LA, GSTART[5] + 7, dma_w_ops('q', 2, 6) + dma_w_ops('q', 3, 7))
    pd = ['v_lshrrev_b32 v8, 3, v1', 'v_mul_lo_u32 v8, v8, s50', 'v_and_b32 v9, 7, v1', 'v_lshlrev_b32 v9, 4, v9',
          'v_add_u32 v8, v8, v9', 's_lshl_b32 s79, s50, 3', 's_sub_u32 s79, s79, 1024',
          'v_add_u32 v9, s79, v8', 'v_add_u32 v10, s79, v9', 'v_add_u32 v11, s79, v10', 's_lshl_b32 s79, s28, 13']
    for hf in range(2):
        pd.append('s_add_u32 m0, s79, %d' % (hf * 4096))
        for j in range(4):
            pd.append(('buffer_load_dwordx4 %s, %s, %s offen offset:%d lds' % (vr(8 + j), sr(PA if hf == 0 else PB, 4), 's48' if hf == 0 else 's49', j * 1024), 'prep'))
    S.spread(GSTART[6] - LA, GSTART[6] + 9, pd)

    def lane_form(dst, a0):
        return ['v_accvgpr_read_b32 %s, a%d' % (vr(dst), a0), 'v_accvgpr_read_b32 v27, a%d' % (a0 + 1),
                'v_cndmask_b32 %s, %s, v27, s[82:83]' % (vr(dst), vr(dst))]
    ex = ['v_add_f32 v25, v24, v25'] + xhalf_ops(25, 26) + lane_form(24, 8) + lane_form(CK, 12)
    ex += ['v_lshlrev_b32 v26, 1, v0', 'v_add_u32 v26, s73, v26', 'ds_write_b64 v26, v[24:25]',
           'v_add_u32 v26, s75, v0', 'ds_write_b32 v26, %s' % vr(CK), 's_waitcnt lgkmcnt(0)']
    S.spread(32, 33, ex)
    S.at(34, ['s_barrier', 'v_lshlrev_b32 v26, 1, v0', 'v_add_u32 v26, s74, v26', 'ds_read_b64 v[28:29], v26',
              'v_add_u32 v26, s76, v0', 'ds_read_b32 v30, v26'])
    S.at(35, ['v_add_f32 v24, v24, v28', 'v_add_f32 v25, v25, v29', 'v_add_f32 %s, %s, v30' % (vr(CK), vr(CK)),
              'v_mul_f32 %s, 0x%x, v24' % (vr(MEAN), f2u(1.0 / 512)),
              'v_mul_f32 v25, 0x%x, v25' % f2u(1.0 / 512),
              'v_fma_f32 v25, -%s, %s, v25' % (vr(MEAN), vr(MEAN)),
              'v_max_f32 v25, 0, v25', 'v_add_f32 v25, 0x%x, v25' % f2u(1e-5), 'v_rsq_f32 %s, v25' % vr(RSTD),
              'v_add_u32 v26, s77, v0', 'ds_write_b32 v26, %s' % vr(MEAN), 'ds_write_b32 v26, %s offset:128' % vr(RSTD),
              'v_lshrrev_b32 v26, 5, v1', 'v_lshlrev_b32 v26, 4, v26', 'v_add_u32 %s, s77, v26' % vr(T0)])
    rd = []
    for a in range(4):
        rd.append('ds_read_b128 %s, %s offset:%d' % (vr(MN + 4 * a, 4), vr(T0), a * 32))
        rd.append('ds_read_b128 %s, %s offset:%d' % (vr(RS + 4 * a, 4), vr(T0), 128 + a * 32))
    S.at(36, rd)
    ke = []
    for i in range(0, 16, 2):
        ke += ln_phi_ops([ACK + i, ACK + i + 1], [MN + i, MN + i + 1], [CK, CK], [RS + i, RS + i + 1], [ACQ, ACQ + 1])
        ke.append('v_cvt_pk_bf16_f32 %s, %s, %s' % (vr(ACK + i // 2), vr(ACK + i), vr(ACK + i + 1)))
    S.spread(38, 61, ke)
    TT = ACK + 8
    S.at(63, lane_form(CV, 16)[0:1] + ['v_accvgpr_read_b32 %s, a17' % vr(TT), 'v_cndmask_b32 %s, %s, %s, s[82:83]' % (vr(CV), vr(CV), vr(TT)),
              'v_add_u32 %s, s75, v0' % vr(TT), 'ds_write_b32 %s, %s offset:512' % (vr(TT), vr(CV)), 's_waitcnt lgkmcnt(0)'])
    S.at(66, ['s_barrier', 'v_add_u32 %s, s76, v0' % vr(TT), 'ds_read_b32 %s, %s offset:512' % (vr(TT + 1), vr(TT)),
              'v_add_f32 %s, %s, %s' % (vr(CV), vr(CV), vr(TT + 1))])
    ve = []
    for i in range(16):
        ve.append('v_fma_f32 %s, -%s, %s, %s' % (vr(ACV + i), vr(MN + i), vr(CV), vr(ACV + i)))
    for i in range(16):
        ve.append('v_mul_f32 %s, %s, %s' % (vr(ACV + i), vr(RS + i), vr(ACV + i)))
    for j in range(8):
        ve.append('v_cvt_pk_bf16_f32 %s, %s, %s' % (vr(ACV + j), vr(ACV + 2 * j), vr(ACV + 2 * j + 1)))
    S.spread(67, 74, ve)
    DKV, DZ = 16, 32
    S.at(76, ['v_mfma_f32_32x32x16_bf16 %s, %s, %s, 0' % (vr(DKV, 16), vr(ACK, 4), vr(ACV, 4)),
              'v_mfma_f32_32x32x16_bf16 %s, %s, a[0:3], 0' % (vr(DZ, 16), vr(ACK, 4))])
    S.at(77, ['v_mfma_f32_32x32x16_bf16 %s, %s, %s, %s' % (vr(DKV, 16), vr(ACK + 4, 4), vr(ACV + 4, 4), vr(DKV, 16)),
              'v_mfma_f32_32x32x16_bf16 %s, %s, a[0:3], %s' % (vr(DZ, 16), vr(ACK + 4, 4), vr(DZ, 16))])
    S.at(78, ['s_lshl_b32 s78, s33, 2', 'v_mov_b32 %s, s78' % vr(TT + 2), 'buffer_load_dword %s, %s, %s, 0 offen sc1' % (vr(ACV + 8), vr(TT + 2), sr(DB, 4))])
    kv = []
    for j in range(8):
        kv.append('v_cndmask_b32 %s, %s, %s, s[82:83]' % (vr(DKV + j), vr(DKV + j), vr(DKV + 8 + j)))
        kv.append('v_cndmask_b32 %s, %s, %s, s[82:83]' % (vr(DZ + j), vr(DZ + j), vr(DZ + 8 + j)))
    kv += ['v_and_b32 %s, 16, v1' % vr(TT), 'v_lshlrev_b32 %s, 7, %s' % (vr(TT), vr(TT)),
           'v_lshrrev_b32 %s, 5, v1' % vr(TT + 1), 'v_lshlrev_b32 %s, 10, %s' % (vr(TT + 1), vr(TT + 1)),
           's_lshl_b32 s79, s30, 1', 's_add_u32 s79, s79, s29', 's_lshl_b32 s79, s79, 12', 's_add_u32 s79, s79, %d' % E_KV,
           'v_add3_u32 %s, %s, %s, s79' % (vr(TT), vr(TT), vr(TT + 1)),
           'v_and_b32 %s, 15, v1' % vr(TT + 1), 'v_lshl_add_u32 %s, %s, 5, %s' % (vr(TT + 3), vr(TT + 1), vr(TT)),
           'ds_write_b128 %s, %s' % (vr(TT + 3), vr(DKV, 4)), 'ds_write_b128 %s, %s offset:16' % (vr(TT + 3), vr(DKV + 4, 4)),
           'v_cmp_eq_u32 vcc, 0, %s' % vr(TT + 1), 's_and_saveexec_b64 s[60:61], vcc',
           'ds_write_b128 %s, %s offset:512' % (vr(TT), vr(DZ, 4)), 'ds_write_b128 %s, %s offset:528' % (vr(TT), vr(DZ + 4, 4)),
           's_mov_b64 exec, s[60:61]', 's_waitcnt lgkmcnt(0)']
    S.spread(81, 85, kv)
    fin = ['s_barrier',
           's_lshl_b32 s79, s30, 13', 's_lshl_b32 s80, s29, 11', 's_add_u32 s79, s79, s80', 's_add_u32 s79, s79, %d' % E_KV,
           'v_lshlrev_b32 %s, 2, v1' % vr(TT), 'v_add_u32 %s, s79, %s' % (vr(TT + 1), vr(TT))]
    for half in range(2):
        for ch in range(3):
            d = 16 + (half * 3 + ch) * 2
            off = half * 1024 + ch * 256
            fin.append('ds_read_b32 %s, %s offset:%d' % (vr(d), vr(TT + 1), off))
            fin.append('ds_read_b32 %s, %s offset:%d' % (vr(d + 1), vr(TT + 1), off + 4096))
    S.at(87, fin)
    fin = []
    for half in range(2):
        for ch in range(3):
            d = 16 + (half * 3 + ch) * 2
            fin.append('v_add_f32 %s, %s, %s' % (vr(d), vr(d), vr(d + 1)))
    fin += ['v_readfirstlane_b32 s79, %s' % vr(ACV + 8), 's_cmp_eq_u32 s79, 0', 's_cbranch_scc1 L_a_spin', ('label', 'L_a_go')]
    for half in range(2):
        for ch in range(2):
            d = 16 + (half * 3 + ch) * 2
            fin.append('buffer_atomic_add_f32 %s, %s, %s, s71 offen offset:%d' % (vr(d), vr(TT), ws, half * 1024 + ch * 256))
    fin += ['v_cmp_gt_u32 vcc, 8, v1', 's_and_saveexec_b64 s[60:61], vcc']
    for half in range(2):
        d = 16 + (half * 3 + 2) * 2
        fin.append('buffer_atomic_add_f32 %s, %s, %s, s71 offen offset:%d' % (vr(d), vr(TT), ws, half * 1024 + 512))
    fin.append('s_mov_b64 exec, s[60:61]')
    S.spread(89, 92, fin)

    for o in pre:
        emit(k, o)
    st.stamp()
    for n in range(96):
        part, ks = n // 32, n % 32
        acc = vr([ACK, ACV, ACQ][part], 16)
        x = vr(X + 4 * ks, 4)
        w = vr(WR + 4 * (n % 8), 4)
        c = acc if ks else '0'
        if n % 2 == 0 and n + 1 < 96:
            k.touch(vr(WR + 4 * ((n + 1) % 8), 4))
            if part == 0:
                k.touch(vr(X + 4 * (ks + 1), 4))
        if part < 2:
            k.I('v_mfma_f32_32x32x16_bf16 %s, %s, %s, %s' % (acc, x, w, c))
        else:
            k.I('v_mfma_f32_32x32x16_bf16 %s, %s, %s, %s' % (acc, w, x, c))
        for o in S.slots[n]:
            emit(k, o)
        if n in OPT.get('stampat', (31, 63)):
            st.stamp()
    st.stamp()
    CSQ = TT
    k.I('v_accvgpr_read_b32 %s, a20' % vr(CSQ))
    k.I('v_accvgpr_read_b32 %s, a21' % vr(CSQ + 1))
    k.I('v_cndmask_b32 %s, %s, %s, s[82:83]' % (vr(CSQ), vr(CSQ), vr(CSQ + 1)))
    k.I('v_add_u32 %s, s75, v0' % vr(CSQ + 1))
    k.I('ds_write_b32 %s, %s offset:1024' % (vr(CSQ + 1), vr(CSQ)))
    k.I('v_bfe_u32 v16, v1, 2, 2')
    k.I('v_lshrrev_b32 v17, 5, v1')
    k.I('v_lshl_add_u32 v16, v17, 2, v16')
    k.I('v_lshlrev_b32 v16, 7, v16')
    k.I('v_and_b32 v17, 3, v1')
    k.I('v_lshl_add_u32 v16, v17, 3, v16')
    k.I('v_bfe_u32 v17, v1, 4, 1')
    k.I('s_cmp_eq_u32 s68, 1')
    k.I('s_cselect_b32 s79, 12, 5')
    k.I('v_lshlrev_b32 v17, s79, v17')
    k.I('s_lshl_b32 s80, s28, 13')
    k.I('v_add3_u32 v16, v16, v17, s80')
    k.I('s_cmp_eq_u32 s68, 1')
    k.I('s_cselect_b32 s60, 32, 64')
    k.I('s_cselect_b32 s61, 64, 2048')
    k.I('s_cselect_b32 s62, 11, 12')
    k.I('s_lshl_b32 s62, 1, s62')
    k.I('v_add_u32 v17, s60, v16')
    k.I('v_add_u32 v18, s61, v16')
    k.I('v_add_u32 v19, s61, v17')
    PAD = [16, 17, 18, 19]
    for f in range(4):
        k.I('v_add_u32 %s, s62, %s' % (vr(8 + f), vr(PAD[f])))
    PAD += [8, 9, 10, 11]
    k.I('s_waitcnt lgkmcnt(0)')
    k.I('s_barrier')
    k.I('v_lshrrev_b32 v20, 5, v1')
    k.I('v_lshlrev_b32 v20, 4, v20')
    k.I('v_add_u32 v21, s76, v20')
    k.I('v_add_u32 v20, s75, v20')
    CQ, CQ2 = 24, 40
    for a in range(4):
        k.I('ds_read_b128 %s, v20 offset:%d' % (vr(CQ + 4 * a, 4), 1024 + a * 32))
        k.I('ds_read_b128 %s, v21 offset:%d' % (vr(CQ2 + 4 * a, 4), 1024 + a * 32))
    k.need('prep')
    PF = X
    for f in range(8):
        k.I('ds_read_b64_tr_b16 %s, %s' % (vr(PF + 4 * f, 2), vr(PAD[f])))
        k.I('ds_read_b64_tr_b16 %s, %s offset:1024' % (vr(PF + 4 * f + 2, 2), vr(PAD[f])))
    for i in range(16):
        k.I('v_add_f32 %s, %s, %s' % (vr(CQ + i), vr(CQ + i), vr(CQ2 + i)))
    qe = []
    for i in range(0, 16, 2):
        qe += ln_phi_ops([ACQ + i, ACQ + i + 1], [MEAN, MEAN], [CQ + i, CQ + i + 1], [RSTD, RSTD], [TT + 2, TT + 3])
        qe.append('v_cvt_pk_bf16_f32 %s, %s, %s' % (vr(ACQ + i // 2), vr(ACQ + i), vr(ACQ + i + 1)))
    ps = []
    for f in range(8):
        ps.append('buffer_store_dwordx4 %s, %s, %s, %s offen' % (vr(PF + 4 * f, 4), vr(LN16), ws, sr(51 + f)))
        ca = ar(24 + 4 * (f & 3), 4)
        ps.append('v_mfma_f32_16x16x32_bf16 %s, a[4:7], %s, %s' % (ca, vr(PF + 4 * f, 4), '0' if f < 4 else ca))
    n1, n2 = len(ps), len(qe)
    i1 = i2 = 0
    while i1 < n1 or i2 < n2:
        if i1 < n1:
            k.I(ps[i1]); i1 += 1
        for _ in range(6):
            if i2 < n2:
                k.I(qe[i2]); i2 += 1
    k.I('s_lshl_b32 s79, s32, 1')
    k.I('s_add_u32 s79, s79, s29')
    k.I('s_lshl_b32 s79, s79, 5')
    k.I('s_lshl_b32 s80, s33, 2')
    k.I('s_add_u32 s79, s79, s80')
    k.I('s_lshl_b32 s80, s30, 1')
    k.I('s_add_u32 s79, s79, s80')
    k.I('s_lshl_b32 s79, s79, 10')
    k.I('s_add_u32 s79, s79, 0x%x' % OFF_PQ)
    k.I('buffer_store_dwordx4 %s, %s, %s, s79 offen' % (vr(ACQ, 4), vr(LN16), ws))
    k.I('buffer_store_dwordx4 %s, %s, %s, s79 offen offset:1024' % (vr(ACQ + 4, 4), vr(LN16), ws))
    for c in range(4):
        k.I('v_accvgpr_read_b32 v16, a%d' % (24 + 4 * c))
        k.I('v_accvgpr_read_b32 v17, a%d' % (25 + 4 * c))
        k.I('v_cndmask_b32 %s, v16, v17, s[82:83]' % vr(20 + c))
        k.I('buffer_store_dword %s, v0, %s, s59 offen offset:%d' % (vr(20 + c), ws, c * 128))
    if gen1.STAMPS:
        k.I('v_lshl_add_u32 v4, s28, 6, v1')
        st.tid = 'v4'
    st.stamp(); st.stamp(True); st.flush()
    k.label('L_a_end')
    k.I('s_endpgm')
    k.raw('''L_a_spin:
    s_sleep 2
    v_mov_b32 v%d, s78
    buffer_load_dword v%d, v%d, s[%d:%d], 0 offen sc1
    s_waitcnt vmcnt(0)
    v_readfirstlane_b32 s79, v%d
    s_nop 3
    s_cmp_eq_u32 s79, 0
    s_cbranch_scc1 L_a_spin
    s_branch L_a_go
''' % (TT + 2, ACV + 8, TT + 2, DB, DB + 3, ACV + 8))
    return k, dict(lds=131072 + 8192 + 16384, grid=256, block=256)


if __name__ == '__main__':
    n = int(sys.argv[2]) if len(sys.argv) > 2 else 4
    gen1.STAMPS = len(sys.argv) > 3 and sys.argv[3] == 'stamps'
    for o in sys.argv[4:]:
        if '=' in o:
            kk_, vv_ = o.split('=')
            gen1.OPT[kk_] = tuple(int(x) for x in vv_.split(','))
        else:
            gen1.OPT[o] = True
    gens = [('qkv_kernel', gen_a), ('attn_kernel', gen_k2), ('gateup_kernel', gen_k3), ('down_kernel', gen_k4)]
    ks = []
    for label, g in gens[:n]:
        kk, cc = g()
        ks.append((label, kk, cc))
        print(label, kk.stats(), kk.maxreg())
    open(sys.argv[1], 'w').write(wrap(ks))
```

```python
import sys
from asmgen import Kernel
import gen1
from gen1 import *
from gen2 import Sched, xhalf_ops
from gen3 import emit, ln_phi_ops


class Multi:
    def __init__(self, parts):
        self.parts = parts
    def finish(self):
        return '\n'.join(p.finish() for p in self.parts)
    def maxreg(self):
        mx = {'v': -1, 'a': -1, 's': -1}
        for p in self.parts:
            m = p.maxreg()
            for t in mx:
                mx[t] = max(mx[t], m[t])
        return mx
    def stats(self):
        return [p.stats() for p in self.parts]


def pair_signal(flag_lds_sgpr, vtmp, vone):
    return ['v_mov_b32 %s, %s' % (vr(vtmp), sr(flag_lds_sgpr)), 'v_mov_b32 %s, 1' % vr(vone),
            'ds_write_b32 %s, %s' % (vr(vtmp), vr(vone))]


def pair_wait(k, name, flag_lds_sgpr, vtmp, vval, stmp):
    k.I('v_mov_b32 %s, %s' % (vr(vtmp), sr(flag_lds_sgpr)))
    k.label(name)
    k.I('ds_read_b32 %s, %s' % (vr(vval), vr(vtmp)))
    k.I('v_readfirstlane_b32 %s, %s' % (sr(stmp), vr(vval)))
    k.I('s_cmp_eq_u32 %s, 0' % sr(stmp))
    k.I('s_cbranch_scc1 %s' % name)


def gen_a8():
    kp = Kernel('a_pro')
    k = kp
    XS, WQ, WS, PA, PB, DB = 4, 8, 12, 16, 20, 24
    ws = sr(WS, 4)
    k.I('s_cmp_ge_u32 s2, 256')
    k.I('s_cbranch_scc1 L_a_end')
    load_srds(k, [('x', XS), ('wqkv', WQ), ('ws', WS), ('dbg', DB)])
    k.I('s_load_dwordx2 s[40:41], s[0:1], %d' % KA['wo'])
    k.I('s_load_dwordx4 s[44:47], s[0:1], %d' % KA['wg'])
    k.I('s_load_dwordx2 s[42:43], s[0:1], %d' % KA['wd'])
    if gen1.STAMPS:
        k.I('s_memrealtime s[84:85]')
        k.I('s_memtime s[86:87]')
    k.I('v_and_b32 v1, 63, v0')
    k.I('v_lshrrev_b32 v2, 6, v0')
    k.I('v_readfirstlane_b32 s27, v2')
    k.I('s_mov_b32 s39, s27')
    k.I('s_mov_b32 s27, 0x00020000')
    k.I('s_and_b32 s28, s39, 3')
    k.I('s_and_b32 s34, s2, 7')
    k.I('s_lshr_b32 s35, s2, 3')
    k.I('s_and_b32 s32, s34, 3')
    k.I('s_lshl_b32 s32, s32, 3')
    k.I('s_and_b32 s36, s35, 7')
    k.I('s_add_u32 s32, s32, s36')
    k.I('s_lshr_b32 s33, s34, 2')
    k.I('s_lshl_b32 s33, s33, 2')
    k.I('s_lshr_b32 s36, s35, 3')
    k.I('s_add_u32 s33, s33, s36')
    k.I('s_and_b32 s29, s28, 1')
    k.I('s_lshr_b32 s30, s28, 1')
    k.I('s_xor_b32 s31, s29, s30')
    k.I('s_mov_b32 s70, 0x%x' % ONES_BF16)
    k.I('s_mov_b32 s81, 0x%x' % f2u(1e-6))
    k.I('s_cmp_ge_u32 s39, 4')
    k.I('s_cbranch_scc1 L_a_q')

    X, WR = 112, 80
    LA = 4
    E = 131072
    E_ST = E
    E_CS = E + 1024
    E_TB = E + 4096
    E_FL = E + 3072
    E_KV = E + 8192
    WSLOT = {('k', 0): 1, ('k', 1): 3, ('k', 2): 5, ('k', 3): 7, ('v', 0): 0, ('v', 1): 1, ('v', 2): 2, ('v', 3): 3,
             ('q', 0): 4, ('q', 1): 5, ('q', 2): 6, ('q', 3): 7}
    XA = 16
    WE, WO_, WE2, WO2 = 12, 13, 14, 15
    MEAN, RSTD, CK, CV, T0 = 2, 3, 4, 5, 6
    LN16 = 7

    def common_setup(k, need_w_addr=True):
        k.I('v_and_b32 v2, 31, v1')
        k.I('s_lshl_b32 s37, s29, 5')
        k.I('v_add_u32 v2, s37, v2')
        k.I('v_lshlrev_b32 v2, 8, v2')
        k.I('v_lshrrev_b32 v3, 5, v1')
        k.I('v_and_b32 v4, 15, v1')
        k.I('v_xor_b32 v4, v3, v4')
        k.I('v_lshlrev_b32 v4, 4, v4')
        k.I('s_lshl_b32 s37, s31, 5')
        k.I('v_xor_b32 v4, s37, v4')
        for s in range(8):
            k.I('v_xor_b32 v5, %d, v4' % (32 * s))
            k.I('v_add_u32 %s, v2, v5' % vr(XA + s))
        k.I('v_bfe_u32 v4, v1, 2, 2')
        k.I('v_lshl_add_u32 v4, v3, 3, v4')
        k.I('v_lshlrev_b32 v4, 7, v4')
        k.I('v_bfe_u32 v5, v1, 4, 1')
        k.I('v_lshlrev_b32 v5, 1, v5')
        k.I('v_bfe_u32 v6, v1, 1, 1')
        k.I('v_add_u32 v5, v5, v6')
        k.I('s_lshl_b32 s37, s30, 2')
        k.I('v_add_u32 v5, s37, v5')
        k.I('v_bfe_u32 v6, v1, 3, 1')
        k.I('v_lshlrev_b32 v6, 2, v6')
        k.I('v_xor_b32 v5, v5, v6')
        k.I('v_lshlrev_b32 v5, 4, v5')
        k.I('v_and_b32 v6, 1, v1')
        k.I('v_lshlrev_b32 v6, 3, v6')
        k.I('v_add3_u32 v4, v4, v5, v6')
        k.I('s_lshl_b32 s37, s31, 11')
        k.I('v_add_u32 %s, s37, v4' % vr(WE))
        k.I('s_xor_b32 s37, s37, 2048')
        k.I('v_add_u32 %s, s37, v4' % vr(WO_))
        k.I('v_add_u32 %s, 0x10000, %s' % (vr(WE2), vr(WE)))
        k.I('v_add_u32 %s, 0x10000, %s' % (vr(WO2), vr(WO_)))
        k.I('v_bfe_u32 v5, v1, 4, 1')
        k.I('v_and_b32 v6, 1, v1')
        k.I('v_cmp_eq_u32 vcc, v5, v6')
        k.I('v_mov_b32 v5, s70')
        k.I('v_cndmask_b32 v5, 0, v5, vcc')
        for j in range(4):
            k.I('v_accvgpr_write_b32 a%d, v5' % (4 + j))
        k.I('s_lshl_b32 s72, s29, 1')
        k.I('s_add_u32 s73, s72, s30')
        k.I('s_lshl_b32 s73, s73, 8')
        k.I('s_add_u32 s73, s73, %d' % E_ST)
        k.I('s_xor_b32 s74, s73, 256')
        k.I('s_lshl_b32 s75, s30, 1')
        k.I('s_add_u32 s75, s75, s29')
        k.I('s_lshl_b32 s75, s75, 7')
        k.I('s_add_u32 s75, s75, %d' % E_CS)
        k.I('s_xor_b32 s76, s75, 128')
        k.I('s_lshl_b32 s77, s39, 8')
        k.I('s_add_u32 s77, s77, %d' % E_TB)
        k.I('s_lshl_b32 s40, s28, 2')
        k.I('s_add_u32 s40, s40, %d' % E_FL)
        k.I('s_xor_b32 s41, s40, 4')
        k.I('v_and_b32 v0, 31, v1')
        k.I('v_lshlrev_b32 v0, 2, v0')
        k.I('v_and_b32 v26, 16, v1')
        k.I('v_cmp_ne_u32 s[82:83], 0, v26')
        k.I('v_lshlrev_b32 %s, 4, v1' % vr(LN16))

    def xread(n):
        c, s = n // 8, n % 8
        return 'ds_read_b128 %s, %s offset:%d' % (vr(X + 4 * n, 4), vr(XA + s), (c % 2) * 32768)

    def wreads(part, ks):
        c, s = ks // 8, ks % 8
        slot = WSLOT[(part, c)]
        a = ((WE, WO_) if slot < 4 else (WE2, WO2))[s & 1]
        off = (slot % 4) * 16384 + (s & ~1) * 2048
        return ['ds_read_b64_tr_b16 %s, %s offset:%d' % (vr(WR + 4 * s, 2), vr(a), off),
                'ds_read_b64_tr_b16 %s, %s offset:%d' % (vr(WR + 4 * s + 2, 2), vr(a), off + 512)]

    def stats_finish_ops():
        return ['v_lshlrev_b32 v26, 1, v0', 'v_add_u32 v27, s74, v26', 'v_add_u32 v26, s73, v26',
                'ds_read_b64 v[24:25], v26', 'ds_read_b64 v[28:29], v27',
                'v_add_f32 v24, v24, v28', 'v_add_f32 v25, v25, v29',
                'v_mul_f32 %s, 0x%x, v24' % (vr(MEAN), f2u(1.0 / 512)),
                'v_mul_f32 v25, 0x%x, v25' % f2u(1.0 / 512),
                'v_fma_f32 v25, -%s, %s, v25' % (vr(MEAN), vr(MEAN)),
                'v_max_f32 v25, 0, v25', 'v_add_f32 v25, 0x%x, v25' % f2u(1e-5), 'v_rsq_f32 %s, v25' % vr(RSTD)]

    kk = Kernel('a_kv')
    k = kk
    st = Stamper(k, 1, ws, base=88, tmp=40)
    ACK, ACV = 48, 64
    MN, RS = 16, 32
    k.I('s_lshl_b32 s38, s2, 2')
    k.I('s_add_u32 s38, s38, s28')
    k.I('s_mov_b32 s19, 0x00020000')
    k.I('s_mov_b32 s23, 0x00020000')
    k.I('s_and_b32 s34, s2, 7')
    k.I('s_lshr_b32 s35, s2, 3')
    k.I('s_and_b32 s36, s34, 3')
    k.I('s_lshl_b32 s36, s36, 19')
    k.I('s_lshl_b32 s37, s35, 14')
    k.I('s_add_u32 s36, s36, s37')
    k.I('s_lshl_b32 s37, s28, 12')
    k.I('s_add_u32 s36, s36, s37')
    k.I('v_and_b32 v8, 31, v1')
    k.I('v_lshlrev_b32 v8, 7, v8')
    k.I('v_lshrrev_b32 v9, 2, v1')
    k.I('s_movk_i32 s37, 3072')
    k.I('v_mul_lo_u32 v9, v9, s37')
    k.I('v_and_b32 v10, 3, v1')
    k.I('v_lshl_add_u32 v9, v10, 7, v9')
    k.I('s_mul_i32 s35, s35, %d' % (16 * 3072))
    k.I('s_lshr_b32 s34, s34, 2')
    k.I('s_lshl_b32 s34, s34, 9')
    k.I('s_add_u32 s35, s35, s34')
    k.I('s_lshl_b32 s34, s28, 10')
    k.I('s_add_u32 s35, s35, s34')
    k.I('s_waitcnt lgkmcnt(0)')
    if not OPT.get('nowarm'):
        k.I('buffer_load_dword v10, v8, %s, s36 offen' % sr(XS, 4))
        k.I('buffer_load_dword v11, v9, %s, s35 offen' % sr(WQ, 4))
    prep_decode(k)
    common_setup(k)
    for j in range(4):
        k.I('v_accvgpr_write_b32 a%d, s70' % j)
    k.I('s_lshl_b32 s37, s33, 2')
    k.I('s_add_u32 s37, s37, s28')
    k.I('s_lshl_b32 s37, s37, 11')
    k.I('s_add_u32 s71, s37, 0x%x' % OFF_KVZ)
    k.I('s_lshl_b32 s78, s33, 2')
    k.I('v_lshlrev_b32 v8, 2, v1')
    k.I('v_add_u32 v8, %d, v8' % E_FL)
    k.I('v_mov_b32 v9, 0')
    k.I('v_cmp_gt_u32 vcc, 16, v1')
    k.I('s_and_saveexec_b64 s[60:61], vcc')
    k.I('ds_write_b32 v8, v9')
    k.I('s_mov_b64 exec, s[60:61]')
    k.I('s_waitcnt lgkmcnt(0)')
    S = Sched(64)
    GS = [0, 8, 16, 24, 32, 48]
    pre = ['s_barrier']
    for n in range(LA):
        pre += [xread(n)] + wreads('k', n)
    for g in range(1, 6):
        S.at(GS[g] - LA - 1, ['s_barrier'])
    S.at(47, ['s_barrier'])
    S.at(62, ['s_barrier'])
    for n in range(64):
        part = 'kv'[n // 32]
        s = n % 8
        m = n + LA
        if m < 64:
            if m == 16:
                S.at(n, ['v_add_u32 %s, 0x10000, %s' % (vr(XA + t), vr(XA + t)) for t in range(8)])
            S.at(n, ([xread(m)] if m < 32 else []) + wreads('kv'[m // 32], m % 32))
        if s % 2 == 0:
            ca = ar(8 + 4 * (n // 32), 4)
            S.at(n, ['v_mfma_f32_16x16x32_bf16 %s, a[4:7], %s, %s' % (ca, vr(WR + 4 * s, 4), '0' if n % 32 == 0 else ca)])

    def lane_form(dst, a0, tmp):
        return ['v_accvgpr_read_b32 %s, a%d' % (vr(dst), a0), 'v_accvgpr_read_b32 %s, a%d' % (vr(tmp), a0 + 1),
                'v_cndmask_b32 %s, %s, %s, s[82:83]' % (vr(dst), vr(dst), vr(tmp))]
    S.at(31, lane_form(CK, 8, 27) + ['v_add_u32 v26, s75, v0', 'ds_write_b32 v26, %s' % vr(CK), 's_waitcnt lgkmcnt(0)'])
    S.at(33, ['s_barrier', 'v_add_u32 v26, s76, v0', 'ds_read_b32 v30, v26'] + stats_finish_ops() +
         ['v_add_f32 %s, %s, v30' % (vr(CK), vr(CK)),
          'v_add_u32 v26, s77, v0', 'ds_write_b32 v26, %s' % vr(MEAN), 'ds_write_b32 v26, %s offset:128' % vr(RSTD),
          'v_lshrrev_b32 v26, 5, v1', 'v_lshlrev_b32 v26, 4, v26', 'v_add_u32 %s, s77, v26' % vr(T0)])
    rd = []
    for a in range(4):
        rd.append('ds_read_b128 %s, %s offset:%d' % (vr(MN + 4 * a, 4), vr(T0), a * 32))
        rd.append('ds_read_b128 %s, %s offset:%d' % (vr(RS + 4 * a, 4), vr(T0), 128 + a * 32))
    S.at(34, rd)
    ke = []
    for i in range(0, 16, 2):
        ke += ln_phi_ops([ACK + i, ACK + i + 1], [MN + i, MN + i + 1], [CK, CK], [RS + i, RS + i + 1], [8, 9])
        ke.append('v_cvt_pk_bf16_f32 %s, %s, %s' % (vr(ACK + i // 2), vr(ACK + i), vr(ACK + i + 1)))
    S.spread(36, 61, ke)
    S.at(46, ['v_mov_b32 v6, 0', 'buffer_load_dword v11, v6, %s, s78 offen sc1' % sr(DB, 4)])
    pd = ['v_lshrrev_b32 v10, 3, v1', 'v_mul_lo_u32 v10, v10, s50', 'v_and_b32 v6, 7, v1', 'v_lshlrev_b32 v6, 4, v6',
          'v_add_u32 v10, v10, v6', 's_lshl_b32 s80, s50, 3', 's_lshl_b32 s79, s28, 13']
    for t in range(8):
        base = 's48' if t < 4 else 's49'
        pd.append('s_add_u32 m0, s79, %d' % (t * 1024))
        pd.append(('buffer_load_dwordx4 v10, %s, %s offen lds' % (sr(PA if t < 4 else PB, 4), base), 'prep'))
        pd.append('s_add_u32 %s, %s, s80' % (base, base))
    S.spread(48, 61, pd)
    for o in pre:
        emit(k, o)
    st.stamp()
    for n in range(64):
        part, ks = n // 32, n % 32
        acc = vr([ACK, ACV][part], 16)
        if n % 2 == 0:
            k.touch(vr(WR + 4 * ((n + 1) % 8), 4))
            if part == 0:
                k.touch(vr(X + 4 * (ks + 1), 4))
        k.I('v_mfma_f32_32x32x16_bf16 %s, %s, %s, %s' % (acc, vr(X + 4 * ks, 4), vr(WR + 4 * (n % 8), 4), acc if ks else '0'))
        for o in S.slots[n]:
            emit(k, o)
        if n in (31,):
            st.stamp()
    st.stamp()
    TT = ACK + 8
    for o in lane_form(CV, 12, TT) + ['v_add_u32 %s, s75, v0' % vr(TT), 'ds_write_b32 %s, %s offset:512' % (vr(TT), vr(CV))] + \
            pair_signal(40, TT + 1, TT + 2):
        emit(k, o)
    pair_wait(k, 'L_a_pw0', 41, TT + 1, TT + 2, 79)
    for o in ['v_add_u32 %s, s76, v0' % vr(TT), 'ds_read_b32 %s, %s offset:512' % (vr(TT + 1), vr(TT)),
              'v_add_f32 %s, %s, %s' % (vr(CV), vr(CV), vr(TT + 1))]:
        emit(k, o)
    for i in range(16):
        k.I('v_fma_f32 %s, -%s, %s, %s' % (vr(ACV + i), vr(MN + i), vr(CV), vr(ACV + i)))
    for i in range(16):
        k.I('v_mul_f32 %s, %s, %s' % (vr(ACV + i), vr(RS + i), vr(ACV + i)))
    for j in range(8):
        k.I('v_cvt_pk_bf16_f32 %s, %s, %s' % (vr(ACV + j), vr(ACV + 2 * j), vr(ACV + 2 * j + 1)))
    DKV, DZ = 16, 32
    k.I('v_mfma_f32_32x32x16_bf16 %s, %s, %s, 0' % (vr(DKV, 16), vr(ACK, 4), vr(ACV, 4)))
    k.I('v_mfma_f32_32x32x16_bf16 %s, %s, a[0:3], 0' % (vr(DZ, 16), vr(ACK, 4)))
    k.I('v_mfma_f32_32x32x16_bf16 %s, %s, %s, %s' % (vr(DKV, 16), vr(ACK + 4, 4), vr(ACV + 4, 4), vr(DKV, 16)))
    k.I('v_mfma_f32_32x32x16_bf16 %s, %s, a[0:3], %s' % (vr(DZ, 16), vr(ACK + 4, 4), vr(DZ, 16)))
    for o in ['v_and_b32 %s, 16, v1' % vr(TT), 'v_lshlrev_b32 %s, 7, %s' % (vr(TT), vr(TT)),
              'v_lshrrev_b32 %s, 5, v1' % vr(TT + 1), 'v_lshlrev_b32 %s, 10, %s' % (vr(TT + 1), vr(TT + 1)),
              's_lshl_b32 s79, s30, 1', 's_add_u32 s79, s79, s29', 's_lshl_b32 s79, s79, 12', 's_add_u32 s79, s79, %d' % E_KV,
              'v_add3_u32 %s, %s, %s, s79' % (vr(TT), vr(TT), vr(TT + 1)),
              'v_and_b32 %s, 15, v1' % vr(TT + 1), 'v_lshl_add_u32 %s, %s, 5, %s' % (vr(TT + 2), vr(TT + 1), vr(TT)),
              's_add_u32 s40, s40, 16', 's_add_u32 s41, s41, 16']:
        emit(k, o)
    for j in range(8):
        k.I('v_cndmask_b32 %s, %s, %s, s[82:83]' % (vr(DKV + j), vr(DKV + j), vr(DKV + 8 + j)))
    for j in range(8):
        k.I('v_cndmask_b32 %s, %s, %s, s[82:83]' % (vr(DZ + j), vr(DZ + j), vr(DZ + 8 + j)))
    for o in ['ds_write_b128 %s, %s' % (vr(TT + 2), vr(DKV, 4)), 'ds_write_b128 %s, %s offset:16' % (vr(TT + 2), vr(DKV + 4, 4)),
              'v_cmp_eq_u32 vcc, 0, %s' % vr(TT + 1), 's_and_saveexec_b64 s[60:61], vcc',
              'ds_write_b128 %s, %s offset:512' % (vr(TT), vr(DZ, 4)), 'ds_write_b128 %s, %s offset:528' % (vr(TT), vr(DZ + 4, 4)),
              's_mov_b64 exec, s[60:61]'] + pair_signal(40, TT + 1, TT + 2) + \
            ['s_lshl_b32 s79, s30, 13', 's_lshl_b32 s80, s29, 11', 's_add_u32 s79, s79, s80', 's_add_u32 s79, s79, %d' % E_KV]:
        emit(k, o)
    pair_wait(k, 'L_a_pw1', 41, TT + 1, TT + 2, 80)
    k.I('v_lshlrev_b32 %s, 2, v1' % vr(TT))
    k.I('v_add_u32 %s, s79, %s' % (vr(TT + 1), vr(TT)))
    for half in range(2):
        for ch in range(3):
            d = 16 + (half * 3 + ch) * 2
            off = half * 1024 + ch * 256
            k.I('ds_read_b32 %s, %s offset:%d' % (vr(d), vr(TT + 1), off))
            k.I('ds_read_b32 %s, %s offset:%d' % (vr(d + 1), vr(TT + 1), off + 4096))
    for half in range(2):
        for ch in range(3):
            d = 16 + (half * 3 + ch) * 2
            k.I('v_add_f32 %s, %s, %s' % (vr(d), vr(d), vr(d + 1)))
    k.I('v_readfirstlane_b32 s79, v11')
    k.I('s_cmp_eq_u32 s79, 0')
    k.I('s_cbranch_scc1 L_a_spin')
    k.label('L_a_go')
    for half in range(2):
        for ch in range(2):
            d = 16 + (half * 3 + ch) * 2
            k.I('buffer_atomic_add_f32 %s, %s, %s, s71 offen offset:%d' % (vr(d), vr(TT), ws, half * 1024 + ch * 256))
    k.I('v_cmp_gt_u32 vcc, 8, v1')
    k.I('s_and_saveexec_b64 s[60:61], vcc')
    for half in range(2):
        d = 16 + (half * 3 + 2) * 2
        k.I('buffer_atomic_add_f32 %s, %s, %s, s71 offen offset:%d' % (vr(d), vr(TT), ws, half * 1024 + 512))
    k.I('s_mov_b64 exec, s[60:61]')
    st.stamp()
    for o in ['v_bfe_u32 v16, v1, 2, 2', 'v_lshrrev_b32 v17, 5, v1', 'v_lshl_add_u32 v16, v17, 2, v16', 'v_lshlrev_b32 v16, 7, v16',
              'v_and_b32 v17, 3, v1', 'v_lshl_add_u32 v16, v17, 3, v16', 'v_bfe_u32 v17, v1, 4, 1',
              's_cmp_eq_u32 s68, 1', 's_cselect_b32 s79, 12, 5', 's_cselect_b32 s60, 32, 64', 's_cselect_b32 s61, 64, 2048',
              's_cselect_b32 s62, 11, 12', 's_lshl_b32 s62, 1, s62',
              'v_lshlrev_b32 v17, s79, v17', 's_lshl_b32 s80, s28, 13', 'v_add3_u32 v16, v16, v17, s80',
              'v_add_u32 v17, s60, v16', 'v_add_u32 v18, s61, v16', 'v_add_u32 v19, s61, v17']:
        k.I(o)
    PAD = [16, 17, 18, 19]
    for f in range(4):
        k.I('v_add_u32 %s, s62, %s' % (vr(20 + f), vr(PAD[f])))
    PAD += [20, 21, 22, 23]
    PF = X
    k.need('prep')
    for f in range(8):
        k.I('ds_read_b64_tr_b16 %s, %s' % (vr(PF + 4 * f, 2), vr(PAD[f])))
        k.I('ds_read_b64_tr_b16 %s, %s offset:1024' % (vr(PF + 4 * f + 2, 2), vr(PAD[f])))
    for f in range(8):
        k.I('buffer_store_dwordx4 %s, %s, %s, %s offen' % (vr(PF + 4 * f, 4), vr(LN16), ws, sr(51 + f)))
        ca = ar(8 + 4 * (f & 1), 4) if False else None
    for f in range(8):
        ca = vr(32 + 4 * (f & 3), 4)
        k.I('v_mfma_f32_16x16x32_bf16 %s, a[4:7], %s, %s' % (ca, vr(PF + 4 * f, 4), '0' if f < 4 else ca))
    for c in range(4):
        k.I('v_cndmask_b32 %s, %s, %s, s[82:83]' % (vr(48 + c), vr(32 + 4 * c), vr(33 + 4 * c)))
        k.I('buffer_store_dword %s, v0, %s, s59 offen offset:%d' % (vr(48 + c), ws, c * 128))
    if gen1.STAMPS:
        k.I('s_mov_b32 s88, s88') if False else None
        k.I('v_lshl_add_u32 v4, s39, 6, v1')
        st.tid = 'v4'
        st.stamp(); st.stamp(True)
        flush_stamps(k, st, ws, 1)
    k.label('L_a_end')
    k.I('s_endpgm')
    k.raw('''L_a_spin:
    s_sleep 2
    v_mov_b32 v6, 0
    buffer_load_dword v11, v6, s[%d:%d], s78 offen sc1
    s_waitcnt vmcnt(0)
    v_readfirstlane_b32 s79, v11
    s_nop 3
    s_cmp_eq_u32 s79, 0
    s_cbranch_scc1 L_a_spin
    s_branch L_a_go
''' % (DB, DB + 3))

    kq = Kernel('a_q')
    k = kq
    k.label('L_a_q')
    stq = Stamper(k, 5, ws, base=88, tmp=40)
    ACQ = 48
    k.I('s_lshl_b32 s34, s28, 12')
    k.I('s_lshl_b32 s35, s32, 16')
    k.I('s_mul_i32 s36, s28, %d' % (32 * 3072))
    k.I('s_lshl_b32 s37, s33, 7')
    k.I('s_add_u32 s36, s36, s37')
    k.I('s_add_u32 s38, s32, s33')
    if OPT.get('norot'):
        k.I('s_mov_b32 s38, 0')
    for c in range(4):
        k.I('s_add_u32 s37, s38, %d' % c)
        k.I('s_and_b32 s37, s37, 3')
        k.I('s_lshl_b32 %s, s37, 8' % sr(60 + c))
        k.I('s_add_u32 %s, %s, s35' % (sr(60 + c), sr(60 + c)))
        k.I('s_mul_i32 %s, s37, %d' % (sr(64 + c), 128 * 3072))
        k.I('s_add_u32 %s, %s, s36' % (sr(64 + c), sr(64 + c)))
    XV = [32, 33, 34, 35]
    WV = [8, 9, 10, 11]
    k.I('v_lshrrev_b32 v2, 4, v1')
    k.I('v_and_b32 v3, 15, v1')
    k.I('s_lshl_b32 s37, s28, 4')
    for j in range(4):
        k.I('v_add_u32 v4, %d, v2' % (4 * j))
        k.I('v_xor_b32 v5, v3, v4')
        k.I('v_lshlrev_b32 v5, 4, v5')
        k.I('v_add_u32 v4, s37, v4')
        k.I('v_lshlrev_b32 v4, 10, v4')
        k.I('v_add_u32 v4, v4, v5')
        k.I('v_subrev_u32 %s, %d, v4' % (vr(XV[j]), j * 1024))
    k.I('v_lshrrev_b32 v4, 3, v1')
    k.I('s_movk_i32 s37, 3072')
    k.I('v_mul_lo_u32 v4, v4, s37')
    k.I('v_and_b32 v5, 1, v2')
    k.I('v_lshlrev_b32 v5, 2, v5')
    k.I('v_and_b32 v6, 7, v1')
    k.I('v_xor_b32 v5, v5, v6')
    k.I('v_lshlrev_b32 v5, 4, v5')
    k.I('v_add_u32 v8, v4, v5')
    for j in range(1, 4):
        k.I('v_add_u32 %s, %d, v8' % (vr(WV[j]), j * (8 * 3072 - 1024)))
    k.I('v_lshlrev_b32 %s, 4, v1' % vr(LN16))
    for j in range(4):
        k.I('v_mov_b32 %s, 0' % vr(40 + j))
    k.I('s_lshl_b32 s37, s33, 2')
    k.I('s_add_u32 s37, s37, s28')
    k.I('s_lshl_b32 s37, s37, 11')
    k.I('s_add_u32 s71, s37, 0x%x' % OFF_KVZ)
    k.I('s_cmp_eq_u32 s32, 0')
    k.I('s_cselect_b32 s37, s71, 0x7fff0000')
    k.I('s_waitcnt lgkmcnt(0)')
    if OPT.get('qpro'): stq.stamp()
    k.I('buffer_store_dwordx4 v[40:43], %s, %s, s37 offen sc1' % (vr(LN16), ws), w=['zero'])
    k.I('buffer_store_dwordx4 v[40:43], %s, %s, s37 offen offset:1024 sc1' % (vr(LN16), ws), w=['zero'])

    def dma_x_ops(c, slot):
        ops = ['s_add_u32 m0, s34, %d' % (slot * 16384)]
        for j in range(4):
            ops.append(('buffer_load_dwordx4 %s, %s, %s offen offset:%d lds' % (vr(XV[j]), sr(XS, 4), sr(60 + c), j * 1024), 'X%d' % c))
        return ops
    PARTCOL = {'q': 0, 'k': 1024, 'v': 2048}

    def dma_w_ops(part, c, slot):
        ops = ['s_add_u32 m0, s34, %d' % (slot * 16384), 's_add_u32 s69, %s, %d' % (sr(64 + c), PARTCOL[part])]
        for j in range(4):
            ops.append(('buffer_load_dwordx4 %s, %s, s69 offen offset:%d lds' % (vr(WV[j]), sr(WQ, 4), j * 1024), 'W%s%d' % (part, c)))
        return ops
    def interleave(a, b, ratio=None):
        nv = sum(1 for o in a if isinstance(o, tuple))
        out, ib, seen = [], 0, 0
        for o in a:
            out.append(o)
            if isinstance(o, tuple):
                seen += 1
                upto = len(b) * seen // nv
                out += b[ib:upto]
                ib = upto
        return out + b[ib:]
    grp = lambda c: dma_x_ops(c, 2 * c) + dma_w_ops('k', c, 2 * c + 1)
    for o in grp(0):
        emit(k, o)
    ktmp = Kernel('tmp')
    common_setup(ktmp)
    setup_ops = [it.text for it in ktmp.items]
    for o in interleave(grp(1), setup_ops):
        emit(k, o)
    stq.stamp()
    SQ = 24
    k.I('v_mov_b32 v24, 0')
    k.I('v_mov_b32 v25, 0')
    nextdma = {0: grp(2), 1: grp(3), 2: dma_w_ops('v', 0, 0) + dma_w_ops('v', 1, 1), 3: dma_w_ops('v', 2, 2) + dma_w_ops('v', 3, 3)}
    for g in range(4):
        if OPT.get('qg') == (g,): stq.stamp()
        k.need(*(['X%d' % g, 'Wk%d' % g] + (['zero'] if g == 0 else [])))
        if OPT.get('qg') == (g,): stq.stamp()
        k.I('s_barrier')
        if OPT.get('qg') == (g,): stq.stamp()
        work = []
        if g == 0:
            work += ['s_or_b32 s38, s32, s28', 's_cmp_eq_u32 s38, 0', 's_cselect_b32 s38, 0, 0x1000',
                     'v_lshlrev_b32 v26, 12, v1', 's_lshl_b32 s78, s33, 2', 'v_add_u32 v26, s78, v26', 'v_mov_b32 v27, 1']
        if g == 2:
            work += ['v_add_u32 %s, 0x10000, %s' % (vr(XA + t), vr(XA + t)) for t in range(8)]
        work += [xread(8 * g + s) for s in range(8)]
        for s in range(0, 8, 2):
            n = 8 * g + s
            work.append('v_mfma_f32_16x16x32_bf16 a[8:11], a[4:7], %s, %s' % (vr(X + 4 * n, 4), '0' if n == 0 else 'a[8:11]'))
            for j in range(4):
                xr = X + 4 * n + j
                work.append('v_dot2c_f32_bf16 %s, %s, %s' % (vr(SQ + (j & 1)), vr(xr), vr(xr)))
        if OPT.get('noqwork'):
            work = [w for w in work if not (w.startswith('v_mfma') or w.startswith('v_dot2c'))]
        if OPT.get('qafter'):
            for o in nextdma[g] + work:
                emit(k, o)
        else:
            for o in interleave(nextdma[g], work):
                emit(k, o)
        if OPT.get('qg') == (g,): stq.stamp()
        if g == 0:
            k.I('buffer_store_dword v27, v26, %s, s38 offen sc1' % sr(DB, 4))
    if not (OPT.get('qpro') or OPT.get('qg')): stq.stamp()
    k.need('Wv0', 'Wv1')
    k.I('s_waitcnt lgkmcnt(0)')
    k.I('s_barrier')
    for o in dma_w_ops('q', 0, 4) + dma_w_ops('q', 1, 5):
        emit(k, o)
    for o in ['v_add_f32 v25, v24, v25'] + xhalf_ops(25, 26) + \
            ['v_accvgpr_read_b32 v24, a8', 'v_accvgpr_read_b32 v27, a9', 'v_cndmask_b32 v24, v24, v27, s[82:83]',
             'v_lshlrev_b32 v26, 1, v0', 'v_add_u32 v26, s73, v26', 'ds_write_b64 v26, v[24:25]', 's_waitcnt lgkmcnt(0)',
             's_barrier'] + stats_finish_ops():
        emit(k, o)
    k.need('Wv2', 'Wv3')
    k.I('s_barrier')
    for o in dma_w_ops('q', 2, 6) + dma_w_ops('q', 3, 7):
        emit(k, o)
    k.need('Wq0', 'Wq1')
    k.I('s_barrier')
    if not (OPT.get('qpro') or OPT.get('qg')): stq.stamp()
    for n in range(LA):
        for o in wreads('q', n):
            k.I(o)
    for n in range(32):
        if n % 2 == 0:
            k.touch(vr(WR + 4 * ((n + 1) % 8), 4))
        acc = vr(ACQ, 16)
        k.I('v_mfma_f32_32x32x16_bf16 %s, %s, %s, %s' % (acc, vr(WR + 4 * (n % 8), 4), vr(X + 4 * n, 4), acc if n else '0'))
        if n == 16 - LA - 1:
            k.need('Wq2', 'Wq3')
            k.I('s_barrier')
        if n + LA < 32:
            for o in wreads('q', n + LA):
                k.I(o)
        if n % 2 == 0:
            k.I('v_mfma_f32_16x16x32_bf16 a[12:15], a[4:7], %s, %s' % (vr(WR + 4 * (n % 8), 4), '0' if n == 0 else 'a[12:15]'))
    if not (OPT.get('qpro') or OPT.get('qg')): stq.stamp()
    CSQ = 64
    for o in ['v_accvgpr_read_b32 %s, a12' % vr(CSQ), 'v_accvgpr_read_b32 %s, a13' % vr(CSQ + 1),
              'v_cndmask_b32 %s, %s, %s, s[82:83]' % (vr(CSQ), vr(CSQ), vr(CSQ + 1)),
              'v_add_u32 %s, s75, v0' % vr(CSQ + 1), 'ds_write_b32 %s, %s offset:1024' % (vr(CSQ + 1), vr(CSQ)),
              's_add_u32 s40, s40, 32', 's_add_u32 s41, s41, 32'] + pair_signal(40, CSQ + 1, CSQ + 2) + \
             ['v_lshrrev_b32 v20, 5, v1', 'v_lshlrev_b32 v20, 4, v20', 'v_add_u32 v21, s76, v20', 'v_add_u32 v20, s75, v20']:
        k.I(o)
    pair_wait(k, 'L_a_pw2', 41, CSQ + 1, CSQ + 2, 79)
    CQ, CQ2 = 24, 64
    for a in range(4):
        k.I('ds_read_b128 %s, v20 offset:%d' % (vr(CQ + 4 * a, 4), 1024 + a * 32))
        k.I('ds_read_b128 %s, v21 offset:%d' % (vr(CQ2 + 4 * a, 4), 1024 + a * 32))
    for i in range(16):
        k.I('v_add_f32 %s, %s, %s' % (vr(CQ + i), vr(CQ + i), vr(CQ2 + i)))
    for i in range(0, 16, 2):
        for o in ln_phi_ops([ACQ + i, ACQ + i + 1], [MEAN, MEAN], [CQ + i, CQ + i + 1], [RSTD, RSTD], [22, 23]):
            k.I(o)
        k.I('v_cvt_pk_bf16_f32 %s, %s, %s' % (vr(ACQ + i // 2), vr(ACQ + i), vr(ACQ + i + 1)))
    for o in ['s_lshl_b32 s79, s32, 1', 's_add_u32 s79, s79, s29', 's_lshl_b32 s79, s79, 5', 's_lshl_b32 s80, s33, 2',
              's_add_u32 s79, s79, s80', 's_lshl_b32 s80, s30, 1', 's_add_u32 s79, s79, s80', 's_lshl_b32 s79, s79, 10',
              's_add_u32 s79, s79, 0x%x' % OFF_PQ]:
        k.I(o)
    k.I('buffer_store_dwordx4 %s, %s, %s, s79 offen' % (vr(ACQ, 4), vr(LN16), ws))
    k.I('buffer_store_dwordx4 %s, %s, %s, s79 offen offset:1024' % (vr(ACQ + 4, 4), vr(LN16), ws))
    if gen1.STAMPS:
        k.I('v_lshl_add_u32 v4, s39, 6, v1')
        k.I('v_subrev_u32 v4, 256, v4')
        stq.tid = 'v4'
        stq.stamp(); stq.stamp(True)
        flush_stamps(k, stq, ws, 5)
    k.I('s_endpgm')
    return Multi([kp, kq_first(kk, kq)[0], kq_first(kk, kq)[1]]), dict(lds=131072 + 8192 + 16384, grid=256, block=512)


def kq_first(kk, kq):
    return kk, kq


def flush_stamps(k, st, ws, kidx):
    k.I('s_waitcnt lgkmcnt(0)')
    k.I('v_cmp_eq_u32 vcc, 0, %s' % st.tid)
    k.I('s_and_saveexec_b64 s[40:41], vcc')
    k.I('s_lshl_b32 s42, s2, 7')
    k.I('s_add_u32 s42, s42, 0x%x' % (OFF_TS + kidx * 256 * 128))
    k.I('v_mov_b32 v0, 0')
    regs = [84, 86] + [st.base + 2 * i for i in range(st.n)]
    for i, r in enumerate(regs):
        k.I('v_mov_b32 v2, s%d' % r)
        k.I('v_mov_b32 v3, s%d' % (r + 1))
        k.I('buffer_store_dwordx2 v[2:3], v0, %s, s42 offen offset:%d' % (ws, 8 * i))
    k.I('s_mov_b64 exec, s[40:41]')


def prep_decode(k):
    k.I('s_cmp_ge_u32 s38, 448')
    k.I('s_cbranch_scc1 L_a_pstd')
    div_const(k, 37, 38, 28, 48)
    k.I('s_mul_i32 s48, s37, 28')
    k.I('s_sub_u32 s69, s38, s48')
    k.I('s_mov_b32 s16, s44')
    k.I('s_mov_b32 s17, s45')
    k.I('s_mov_b32 s18, 0x%x' % SZ['wg'])
    k.I('s_mov_b32 s20, s46')
    k.I('s_mov_b32 s21, s47')
    k.I('s_mov_b32 s22, 0x%x' % SZ['wu'])
    k.I('s_movk_i32 s50, 3584')
    k.I('s_mul_i32 s48, s37, %d' % (32 * 3584))
    k.I('s_lshl_b32 s49, s69, 7')
    k.I('s_add_u32 s48, s48, s49')
    k.I('s_mov_b32 s49, s48')
    k.I('s_lshl_b32 s59, s69, 7')
    k.I('s_lshl_b32 s51, s37, 1')
    k.I('s_add_u32 s59, s59, s51')
    k.I('s_lshl_b32 s59, s59, 10')
    k.I('s_add_u32 s72, s59, 0x%x' % OFF_WGU)
    k.I('s_mov_b32 s73, %d' % (32 * 1024))
    k.I('s_mov_b32 s74, %d' % (64 * 1024))
    k.I('s_mov_b32 s75, 1024')
    k.I('s_mul_i32 s59, s37, %d' % (112 * 128))
    k.I('s_lshl_b32 s69, s69, 9')
    k.I('s_add_u32 s59, s59, s69')
    k.I('s_add_u32 s59, s59, 0x%x' % OFF_CSG)
    k.I('s_mov_b32 s68, 1')
    k.I('s_branch L_a_pgo')
    k.label('L_a_pstd')
    k.I('s_movk_i32 s50, 1024')
    k.I('s_mov_b32 s68, 0')
    k.I('s_mov_b32 s59, 0x7fff0000')
    k.I('s_cmp_ge_u32 s38, 672')
    k.I('s_cbranch_scc1 L_a_pwo')
    k.I('s_sub_u32 s37, s38, 448')
    k.I('s_and_b32 s69, s37, 7')
    k.I('s_lshr_b32 s37, s37, 3')
    k.I('s_mov_b32 s16, s42')
    k.I('s_mov_b32 s17, s43')
    k.I('s_mov_b32 s18, 0x%x' % SZ['wd'])
    k.I('s_mul_i32 s48, s69, 224')
    k.I('s_lshl_b32 s49, s37, 2')
    k.I('s_add_u32 s48, s48, s49')
    k.I('s_lshl_b32 s48, s48, 10')
    k.I('s_add_u32 s72, s48, 0x%x' % OFF_WD)
    k.I('s_mov_b32 s73, %d' % (112 * 1024))
    k.I('s_mov_b32 s74, 1024')
    k.I('s_mov_b32 s75, 2048')
    k.I('s_branch L_a_pstd2')
    k.label('L_a_pwo')
    k.I('s_sub_u32 s37, s38, 672')
    k.I('s_and_b32 s69, s37, 7')
    k.I('s_lshr_b32 s37, s37, 3')
    k.I('s_mov_b32 s16, s40')
    k.I('s_mov_b32 s17, s41')
    k.I('s_mov_b32 s18, 0x%x' % SZ['wo'])
    k.I('s_lshl_b32 s48, s37, 6')
    k.I('s_lshl_b32 s49, s69, 1')
    k.I('s_add_u32 s48, s48, s49')
    k.I('s_lshl_b32 s48, s48, 10')
    k.I('s_add_u32 s72, s48, 0x%x' % OFF_WO)
    k.I('s_cmp_ge_u32 s38, 736')
    k.I('s_cselect_b32 s72, 0x7fff0000, s72')
    k.I('s_cselect_b32 s18, 0, s18')
    k.I('s_mov_b32 s73, 1024')
    k.I('s_mov_b32 s74, %d' % (16 * 1024))
    k.I('s_mov_b32 s75, %d' % (32 * 1024))
    k.label('L_a_pstd2')
    k.I('s_mov_b32 s20, s16')
    k.I('s_mov_b32 s21, s17')
    k.I('s_mov_b32 s22, s18')
    k.I('s_lshl_b32 s48, s37, 16')
    k.I('s_lshl_b32 s49, s69, 7')
    k.I('s_add_u32 s48, s48, s49')
    k.I('s_add_u32 s49, s48, %d' % (32 * 1024))
    k.label('L_a_pgo')
    k.I('s_mov_b32 s51, s72')
    k.I('s_add_u32 s52, s72, s73')
    k.I('s_add_u32 s53, s72, s74')
    k.I('s_add_u32 s54, s52, s74')
    for f in range(4):
        k.I('s_add_u32 %s, %s, s75' % (sr(55 + f), sr(51 + f)))


if __name__ == '__main__':
    n = int(sys.argv[2]) if len(sys.argv) > 2 else 4
    gen1.STAMPS = len(sys.argv) > 3 and sys.argv[3] == 'stamps'
    for o in sys.argv[4:]:
        if '=' in o:
            kk_, vv_ = o.split('=')
            gen1.OPT[kk_] = tuple(int(x) for x in vv_.split(','))
        else:
            gen1.OPT[o] = True
    gens = [('qkv_kernel', gen_a8), ('attn_kernel', gen_k2), ('gateup_kernel', gen_k3), ('down_kernel', gen_k4)]
    ks = []
    for label, g in gens[:n]:
        kk, cc = g()
        ks.append((label, kk, cc))
        print(label, kk.stats(), kk.maxreg())
    open(sys.argv[1], 'w').write(wrap(ks))
```

```python
import sys
from asmgen import Kernel

NAME = 'sequential_preLN__linear_attn_block__swiglu_ffn__prompt'

OFF_XF = 0x0
OFF_WQKV = 0x200000
OFF_PQ = 0x380000
OFF_KVZ = 0x580000
OFF_WO = 0x590000
OFF_H = 0x610000
OFF_WGU = 0x810000
OFF_CSG = 0xB90000
OFF_CSQ = 0xBC8000
OFF_ACT = 0xBE0000
OFF_WD = 0x12E0000
OFF_STAT = 0x14A0000
OFF_CNT = 0x14E0000
OFF_TS = 0x14F0000
WS_USED = 0x14F0000 + 8*256*128
STAMPS = False

KA = dict(x=0, wqkv=8, wo=16, bx=24, wg=32, wu=40, wd=48, out=56, dbg=64, ws=72)
SZ = dict(x=2048 * 512 * 2, wqkv=512 * 1536 * 2, wo=512 * 512 * 2, wg=512 * 1792 * 2, wu=512 * 1792 * 2,
          wd=1792 * 512 * 2, out=2048 * 512 * 2, dbg=256, ws=WS_USED)
ONES_BF16 = 0x3f803f80


def vr(lo, n=1):
    return 'v%d' % lo if n == 1 else 'v[%d:%d]' % (lo, lo + n - 1)


def ar(lo, n=1):
    return 'a%d' % lo if n == 1 else 'a[%d:%d]' % (lo, lo + n - 1)


def sr(lo, n=1):
    return 's%d' % lo if n == 1 else 's[%d:%d]' % (lo, lo + n - 1)


def load_srds(k, srds, first=True):
    for name, sb in srds:
        k.I('s_load_dwordx2 %s, s[0:1], %d' % (sr(sb, 2), KA[name]))
    for name, sb in srds:
        k.I('s_mov_b32 %s, 0x%x' % (sr(sb + 2), SZ[name]))
        k.I('s_mov_b32 %s, 0x00020000' % sr(sb + 3))


class Stamper:
    def __init__(self, k, kidx, ws, base=64, tmp=96):
        self.k, self.kidx, self.ws, self.n, self.base, self.tmp = k, kidx, ws, 0, base, tmp
        self.tid = 'v0'
    def stamp(self, real=False):
        if not STAMPS: return
        b = self.base + 2 * self.n
        assert b + 1 <= 101
        self.k.I('%s s[%d:%d]' % ('s_memrealtime' if real else 's_memtime', b, b + 1))
        self.n += 1
    def flush(self):
        if not STAMPS: return
        k = self.k
        k.I('s_waitcnt lgkmcnt(0)')
        k.I('v_cmp_eq_u32 vcc, 0, %s' % self.tid)
        t = self.tmp
        k.I('s_and_saveexec_b64 s[%d:%d], vcc' % (t, t + 1))
        k.I('s_lshl_b32 s%d, s2, 7' % (t + 2))
        k.I('s_add_u32 s%d, s%d, 0x%x' % (t + 2, t + 2, OFF_TS + self.kidx * 256 * 128))
        k.I('v_mov_b32 v0, 0')
        for i in range(self.n):
            k.I('v_mov_b32 v2, s%d' % (self.base + 2 * i))
            k.I('v_mov_b32 v3, s%d' % (self.base + 2 * i + 1))
            k.I('buffer_store_dwordx2 v[2:3], v0, %s, s%d offen offset:%d' % (self.ws, t + 2, 8 * i))
        k.I('s_mov_b64 exec, s[%d:%d]' % (t, t + 1))


def div_const(k, dst, src, d, tmp):
    magic = -(-(1 << 32) // d)
    k.I('s_mov_b32 %s, 0x%x' % (sr(tmp), magic))
    k.I('s_mul_hi_u32 %s, %s, %s' % (sr(dst), sr(src), sr(tmp)))


def cross_half_sum(k, v, tmp):
    k.I('v_mov_b32 %s, %s' % (vr(tmp), vr(v)))
    k.I('v_permlane32_swap_b32 %s, %s' % (vr(v), vr(tmp)))
    k.I('v_add_f32 %s, %s, %s' % (vr(v), vr(v), vr(tmp)))


def gen_k0():
    k = Kernel('prep_kernel')
    S_X, S_WQ, S_WO, S_WG, S_WU, S_WD, S_WS = 4, 8, 12, 16, 20, 24, 28
    k.I('s_cmp_ge_u32 s2, 256')
    k.I('s_cbranch_scc1 L_k0_end')
    load_srds(k, [('x', S_X), ('wqkv', S_WQ), ('wo', S_WO), ('wg', S_WG), ('wu', S_WU), ('wd', S_WD), ('ws', S_WS)])
    k.I('v_and_b32 v1, 63, v0')
    k.I('v_lshrrev_b32 v2, 6, v0')
    k.I('v_readfirstlane_b32 s33, v2')
    k.I('s_lshl_b32 s34, s2, 2')
    k.I('s_add_u32 s34, s34, s33')
    k.I('s_lshl_b32 s35, s33, 13')
    k.I('v_and_b32 v2, 31, v1')
    k.I('v_lshlrev_b32 v2, 10, v2')
    k.I('v_lshrrev_b32 v3, 5, v1')
    k.I('v_lshlrev_b32 v3, 4, v3')
    k.I('v_add_u32 v2, v2, v3')
    k.I('v_lshlrev_b32 v4, 4, v1')
    k.I('s_lshl_b32 s36, s34, 1')
    k.I('s_lshr_b32 s37, s36, 5')
    k.I('s_lshl_b32 s37, s37, 15')
    k.I('s_and_b32 s38, s36, 31')
    k.I('s_lshl_b32 s38, s38, 5')
    k.I('s_add_u32 s37, s37, s38')
    k.I('s_waitcnt lgkmcnt(0)')
    k.I('buffer_load_dwordx4 v[8:11], v2, %s, s37 offen' % sr(S_X, 4))
    k.I('buffer_load_dwordx4 v[12:15], v2, %s, s37 offen offset:32' % sr(S_X, 4))
    k.I('s_lshl_b32 s39, s36, 10')
    k.I('s_add_u32 s39, s39, 0x%x' % OFF_XF)
    k.I('buffer_store_dwordx4 v[8:11], v4, %s, s39 offen' % sr(S_WS, 4))
    k.I('buffer_store_dwordx4 v[12:15], v4, %s, s39 offen offset:1024' % sr(S_WS, 4))
    k.I('s_cmp_ge_u32 s34, 64')
    k.I('s_cbranch_scc1 L_k0_nozero')
    k.I('v_mov_b32 v8, 0')
    k.I('v_mov_b32 v9, 0')
    k.I('v_mov_b32 v10, 0')
    k.I('v_mov_b32 v11, 0')
    k.I('s_lshl_b32 s39, s34, 10')
    k.I('s_add_u32 s39, s39, 0x%x' % OFF_KVZ)
    k.I('buffer_store_dwordx4 v[8:11], v4, %s, s39 offen' % sr(S_WS, 4))
    k.label('L_k0_nozero')
    k.I('s_waitcnt vmcnt(0)')
    k.fence()
    k.I('v_lshrrev_b32 v5, 3, v1')
    k.I('v_and_b32 v6, 7, v1')
    k.I('v_lshlrev_b32 v6, 4, v6')
    k.I('v_lshrrev_b32 v7, 4, v1')
    k.I('v_and_b32 v16, 15, v1')
    k.I('v_lshrrev_b32 v17, 2, v16')
    k.I('v_and_b32 v18, 3, v16')
    k.I('v_lshlrev_b32 v18, 3, v18')
    k.I('v_and_b32 v19, 1, v7')
    k.I('v_lshrrev_b32 v20, 1, v7')
    k.I('s_cmp_ge_u32 s34, 928')
    k.I('s_cbranch_scc1 L_k0_end')
    k.I('s_cmp_ge_u32 s34, 448')
    k.I('s_cbranch_scc1 L_k0_std')
    div_const(k, 40, 34, 28, 41)
    k.I('s_mul_i32 s41, s40, 28')
    k.I('s_sub_u32 s41, s34, s41')
    k.I('s_mov_b32 s42, 3584')
    k.I('v_mul_lo_u32 v21, v5, s42')
    k.I('v_add_u32 v21, v21, v6')
    k.I('s_mul_i32 s43, s40, %d' % (32 * 3584))
    k.I('s_lshl_b32 s44, s41, 7')
    k.I('s_add_u32 s43, s43, s44')
    for t in range(8):
        k.I('s_add_u32 s44, s35, %d' % (t * 1024))
        k.I('s_mov_b32 m0, s44')
        k.I('s_add_u32 s45, s43, %d' % ((t % 4) * 8 * 3584))
        k.I('buffer_load_dwordx4 v21, %s, s45 offen lds' % sr(S_WG if t < 4 else S_WU, 4), w=['img'])
    k.I('v_lshlrev_b32 v22, 5, v19')
    k.I('v_lshlrev_b32 v23, 2, v20')
    k.I('v_add3_u32 v22, v22, v23, v17')
    k.I('v_lshlrev_b32 v22, 7, v22')
    k.I('v_add3_u32 v22, v22, v18, s35')
    k.I('v_add_u32 v23, %d, v22' % (8 * 128))
    k.need('img')
    for c in range(4):
        k.I('v_mov_b32 %s, 0' % vr(60 + c))
    for ks in range(2):
        for c in range(4):
            d = 24 + (ks * 4 + c) * 4
            off = ks * 2048 + c * 32
            k.I('ds_read_b64_tr_b16 %s, v22 offset:%d' % (vr(d, 2), off))
            k.I('ds_read_b64_tr_b16 %s, v23 offset:%d' % (vr(d + 2, 2), off))
    k.I('s_lshl_b32 s44, s41, 7')
    k.I('s_lshl_b32 s45, s40, 1')
    k.I('s_add_u32 s44, s44, s45')
    k.I('s_lshl_b32 s44, s44, 10')
    k.I('s_add_u32 s44, s44, 0x%x' % OFF_WGU)
    k.I('s_mov_b32 s46, 0x%x' % ONES_BF16)
    for ks in range(2):
        for c in range(4):
            d = 24 + (ks * 4 + c) * 4
            k.I('s_add_u32 s45, s44, %d' % ((c * 32 + ks) * 1024))
            k.I('buffer_store_dwordx4 %s, v4, %s, s45 offen' % (vr(d, 4), sr(S_WS, 4)))
            for j in range(4):
                k.I('v_dot2c_f32_bf16 %s, s46, %s' % (vr(60 + c), vr(d + j)))
    k.I('v_and_b32 v2, 31, v1')
    k.I('v_lshlrev_b32 v2, 2, v2')
    k.I('s_mul_i32 s44, s40, %d' % (112 * 128))
    k.I('s_lshl_b32 s45, s41, 9')
    k.I('s_add_u32 s44, s44, s45')
    k.I('s_add_u32 s44, s44, 0x%x' % OFF_CSG)
    for c in range(4):
        cross_half_sum(k, 60 + c, 3)
        k.I('buffer_store_dword %s, v2, %s, s44 offen offset:%d' % (vr(60 + c), sr(S_WS, 4), c * 128))
    k.I('s_endpgm')
    k.fence()
    k.label('L_k0_std')
    k.I('s_cmp_ge_u32 s34, 672')
    k.I('s_cbranch_scc1 L_k0_notwd')
    k.I('s_sub_u32 s40, s34, 448')
    k.I('s_and_b32 s41, s40, 7')
    k.I('s_lshr_b32 s40, s40, 3')
    for j in range(4):
        k.I('s_mov_b32 %s, %s' % (sr(48 + j), sr(S_WD + j)))
    k.I('s_mov_b32 s52, 1024')
    k.I('s_mul_i32 s54, s41, 224')
    k.I('s_lshl_b32 s44, s40, 2')
    k.I('s_add_u32 s54, s54, s44')
    k.I('s_lshl_b32 s54, s54, 10')
    k.I('s_add_u32 s54, s54, 0x%x' % OFF_WD)
    k.I('s_mov_b32 s55, 1024')
    k.I('s_mov_b32 s56, %d' % (112 * 1024))
    k.I('s_mov_b32 s57, 4')
    k.I('s_mov_b32 s58, %d' % (8 * 128))
    k.I('s_mov_b32 s59, 0')
    k.I('s_branch L_k0_go')
    k.label('L_k0_notwd')
    k.I('s_cmp_ge_u32 s34, 864')
    k.I('s_cbranch_scc1 L_k0_wo')
    k.I('s_sub_u32 s44, s34, 672')
    div_const(k, 40, 44, 24, 41)
    k.I('s_mul_i32 s41, s40, 24')
    k.I('s_sub_u32 s41, s44, s41')
    for j in range(4):
        k.I('s_mov_b32 %s, %s' % (sr(48 + j), sr(S_WQ + j)))
    k.I('s_mov_b32 s52, 3072')
    k.I('s_lshl_b32 s54, s41, 6')
    k.I('s_lshl_b32 s44, s40, 2')
    k.I('s_add_u32 s54, s54, s44')
    k.I('s_lshl_b32 s54, s54, 10')
    k.I('s_add_u32 s54, s54, 0x%x' % OFF_WQKV)
    k.I('s_mov_b32 s55, 1024')
    k.I('s_mov_b32 s56, %d' % (32 * 1024))
    k.I('s_mov_b32 s57, 8')
    k.I('s_mov_b32 s58, %d' % (4 * 128))
    k.I('s_mul_i32 s59, s40, 48')
    k.I('s_lshl_b32 s44, s41, 1')
    k.I('s_add_u32 s59, s59, s44')
    k.I('s_lshl_b32 s59, s59, 7')
    k.I('s_add_u32 s59, s59, 0x%x' % OFF_CSQ)
    k.I('s_branch L_k0_go')
    k.label('L_k0_wo')
    k.I('s_sub_u32 s40, s34, 864')
    k.I('s_and_b32 s41, s40, 7')
    k.I('s_lshr_b32 s40, s40, 3')
    for j in range(4):
        k.I('s_mov_b32 %s, %s' % (sr(48 + j), sr(S_WO + j)))
    k.I('s_mov_b32 s52, 1024')
    k.I('s_lshl_b32 s54, s40, 6')
    k.I('s_lshl_b32 s44, s41, 1')
    k.I('s_add_u32 s54, s54, s44')
    k.I('s_lshl_b32 s54, s54, 10')
    k.I('s_add_u32 s54, s54, 0x%x' % OFF_WO)
    k.I('s_mov_b32 s55, %d' % (16 * 1024))
    k.I('s_mov_b32 s56, 1024')
    k.I('s_mov_b32 s57, 4')
    k.I('s_mov_b32 s58, %d' % (8 * 128))
    k.I('s_mov_b32 s59, 0')
    k.label('L_k0_go')
    k.fence()
    k.I('s_lshl_b32 s53, s52, 6')
    k.I('s_mul_i32 s53, s53, s40')
    k.I('s_lshl_b32 s44, s41, 7')
    k.I('s_add_u32 s53, s53, s44')
    k.I('v_mul_lo_u32 v21, v5, s52')
    k.I('v_add_u32 v21, v21, v6')
    k.I('s_lshl_b32 s47, s52, 3')
    for t in range(8):
        k.I('s_add_u32 s44, s35, %d' % (t * 1024))
        k.I('s_mov_b32 m0, s44')
        k.I('buffer_load_dwordx4 v21, s[48:51], s53 offen lds', w=['img2'])
        k.I('s_add_u32 s53, s53, s47')
    k.I('v_mul_lo_u32 v22, v20, s57')
    k.I('v_add_u32 v22, v22, v17')
    k.I('v_lshlrev_b32 v22, 7, v22')
    k.I('v_lshlrev_b32 v23, 5, v19')
    k.I('v_add3_u32 v22, v22, v23, v18')
    k.I('v_add_u32 v22, s35, v22')
    k.I('v_add_u32 v23, s58, v22')
    k.need('img2')
    for c in range(2):
        k.I('v_mov_b32 %s, 0' % vr(60 + c))
    for ks in range(4):
        for nb in range(2):
            d = 24 + (ks * 2 + nb) * 4
            off = ks * 2048 + nb * 64
            k.I('ds_read_b64_tr_b16 %s, v22 offset:%d' % (vr(d, 2), off))
            k.I('ds_read_b64_tr_b16 %s, v23 offset:%d' % (vr(d + 2, 2), off))
    k.I('s_mov_b32 s46, 0x%x' % ONES_BF16)
    for ks in range(4):
        for nb in range(2):
            d = 24 + (ks * 2 + nb) * 4
            k.I('s_mul_i32 s44, s55, %d' % ks)
            k.I('s_mul_i32 s45, s56, %d' % nb)
            k.I('s_add_u32 s44, s44, s45')
            k.I('s_add_u32 s44, s44, s54')
            k.I('buffer_store_dwordx4 %s, v4, %s, s44 offen' % (vr(d, 4), sr(S_WS, 4)))
            for j in range(4):
                k.I('v_dot2c_f32_bf16 %s, s46, %s' % (vr(60 + nb), vr(d + j)))
    k.I('s_cmp_eq_u32 s59, 0')
    k.I('s_cbranch_scc1 L_k0_end')
    k.I('v_and_b32 v2, 31, v1')
    k.I('v_lshlrev_b32 v2, 2, v2')
    for c in range(2):
        cross_half_sum(k, 60 + c, 3)
        k.I('buffer_store_dword %s, v2, %s, s59 offen offset:%d' % (vr(60 + c), sr(S_WS, 4), c * 128))
    k.label('L_k0_end')
    k.I('s_endpgm')
    return k, dict(vgpr=64, sgpr=64, lds=32768, grid=256, block=256)


LOG2E = 1.4426950408889634
import struct
def f2u(x):
    return struct.unpack('<I', struct.pack('<f', x))[0]


def wg_decode(k, nx_bits_lo, expr):
    pass


def stats_finish(k, vsum, vsq, vmean, vrstd, tmp):
    cross_half_sum(k, vsum, tmp)
    cross_half_sum(k, vsq, tmp)
    k.I('v_mul_f32 %s, 0x%x, %s' % (vr(vmean), f2u(1.0 / 512), vr(vsum)))
    k.I('v_mul_f32 %s, 0x%x, %s' % (vr(vsq), f2u(1.0 / 512), vr(vsq)))
    k.I('v_fma_f32 %s, -%s, %s, %s' % (vr(vsq), vr(vmean), vr(vmean), vr(vsq)))
    k.I('v_max_f32 %s, 0, %s' % (vr(vsq), vr(vsq)))
    k.I('v_add_f32 %s, 0x%x, %s' % (vr(vsq), f2u(1e-5), vr(vsq)))
    k.I('v_rsq_f32 %s, %s' % (vr(vrstd), vr(vsq)))


def phi(k, t, tmp):
    k.I('v_mul_f32 %s, 0x%x, %s' % (vr(tmp), f2u(LOG2E), vr(t)))
    k.I('v_min_f32 %s, 0, %s' % (vr(tmp), vr(tmp)))
    k.I('v_exp_f32 %s, %s' % (vr(tmp), vr(tmp)))
    k.I('v_max_f32 %s, 0, %s' % (vr(t), vr(t)))
    k.I('v_add_f32 %s, %s, %s' % (vr(t), vr(t), vr(tmp)))
    k.I('v_add_f32 %s, 0x%x, %s' % (vr(t), f2u(1e-6), vr(t)))


def gen_k1():
    k = Kernel('qkv_kernel')
    WS = 4
    k.I('s_cmp_ge_u32 s2, 256')
    k.I('s_cbranch_scc1 L_k1_end')
    load_srds(k, [('ws', WS)])
    ws = sr(WS, 4)
    st = Stamper(k, 1, ws); st.stamp(True); st.stamp()
    k.I('v_and_b32 v1, 63, v0')
    k.I('v_lshrrev_b32 v2, 6, v0')
    k.I('v_readfirstlane_b32 s8, v2')
    k.I('v_lshlrev_b32 v2, 4, v1')
    k.I('s_and_b32 s9, s2, 7')
    k.I('s_lshr_b32 s10, s2, 3')
    k.I('s_and_b32 s11, s9, 3')
    k.I('s_lshl_b32 s11, s11, 3')
    k.I('s_and_b32 s12, s10, 7')
    k.I('s_add_u32 s11, s11, s12')
    k.I('s_lshr_b32 s12, s9, 2')
    k.I('s_lshl_b32 s12, s12, 2')
    k.I('s_lshr_b32 s13, s10, 3')
    k.I('s_add_u32 s12, s12, s13')
    k.I('s_and_b32 s13, s8, 1')
    k.I('s_lshr_b32 s14, s8, 1')
    k.I('s_lshl_b32 s15, s11, 1')
    k.I('s_add_u32 s15, s15, s13')
    k.I('s_lshl_b32 s16, s12, 1')
    k.I('s_add_u32 s16, s16, s14')
    k.I('s_lshl_b32 s17, s15, 15')
    k.I('s_lshl_b32 s18, s16, 15')
    k.I('s_add_u32 s18, s18, 0x%x' % OFF_WQKV)
    k.I('s_add_u32 s19, s18, 0x%x' % (16 * 32768))
    k.I('s_add_u32 s20, s18, 0x%x' % (32 * 32768))
    for t in range(1, 8):
        k.I('v_add_u32 %s, %d, v2' % (vr(8 + t), 4096 * t))
    k.I('v_mov_b32 v8, v2')
    k.I('v_and_b32 v3, 31, v1')
    k.I('v_lshlrev_b32 v4, 2, v3')
    k.I('s_lshl_b32 s21, s16, 7')
    k.I('s_add_u32 s21, s21, 0x%x' % OFF_CSQ)
    k.I('s_waitcnt lgkmcnt(0)')
    X = 128
    def ldfrag(dst, soff, ks):
        k.I('buffer_load_dwordx4 %s, %s, %s, %s offen offset:%d' % (dst, vr(8 + ks // 4), ws, sr(soff), (ks % 4) * 1024))
    for p in range(3):
        for kg in range(8):
            k.I('s_add_u32 s22, s21, %d' % (p * 16 * 128 + kg * 48 * 128))
            k.I('buffer_load_dword %s, v4, %s, s22 offen' % (vr(80 + p * 8 + kg), ws))
    for p in range(3):
        for kg in range(1, 8):
            k.I('v_add_f32 %s, %s, %s' % (vr(80 + p * 8), vr(80 + p * 8), vr(80 + p * 8 + kg)))
    CSQ_, CSK_, CSV_ = 80, 88, 96
    for ks in range(32):
        ldfrag(vr(X + 4 * ks, 4), 17, ks)
    seq = [(19, ks, ar(4 * ks, 4)) for ks in range(32)] + [(20, ks, ar(128 + 4 * ks, 4)) for ks in range(32)] + \
          [(18, ks, ar(4 * ks, 4)) for ks in range(32)]
    LOOK = 16
    for n in range(LOOK):
        ldfrag(seq[n][2], seq[n][0], seq[n][1])
    st.stamp()
    ACK, ACV, ACQ = 32, 48, 64
    k.I('s_mov_b32 s23, 0x%x' % ONES_BF16)
    for j in range(4):
        k.I('v_mov_b32 %s, 0' % vr(104 + j))
    for n in range(96):
        part, ks = n // 32, n % 32
        w = seq[n][2]
        x = vr(X + 4 * ks, 4)
        acc = vr([ACK, ACV, ACQ][part], 16)
        c = acc if ks else '0'
        if part < 2:
            k.I('v_mfma_f32_32x32x16_bf16 %s, %s, %s, %s' % (acc, x, w, c))
        else:
            k.I('v_mfma_f32_32x32x16_bf16 %s, %s, %s, %s' % (acc, w, x, c))
        if n + LOOK < 96:
            s_, ks_, d_ = seq[n + LOOK]
            ldfrag(d_, s_, ks_)
        if part == 0:
            for j in range(4):
                k.I('v_dot2c_f32_bf16 %s, s23, %s' % (vr(104 + (j & 1)), vr(X + 4 * ks + j)))
                k.I('v_dot2c_f32_bf16 %s, %s, %s' % (vr(106 + (j & 1)), vr(X + 4 * ks + j), vr(X + 4 * ks + j)))
    k.I('v_add_f32 v104, v104, v105')
    k.I('v_add_f32 v106, v106, v107')
    MEAN, RSTD = 108, 109
    st.stamp()
    stats_finish(k, 104, 106, MEAN, RSTD, 105)
    k.I('s_lshl_b32 s24, s8, 8')
    k.I('v_add_u32 v5, s24, v4')
    k.I('ds_write_b32 v5, %s' % vr(MEAN))
    k.I('ds_write_b32 v5, %s offset:128' % vr(RSTD))
    k.I('s_lshl_b32 s25, s8, 7')
    k.I('v_add_u32 v6, s25, v4')
    k.I('ds_write_b32 v6, %s offset:1024' % vr(CSQ_))
    k.I('v_lshrrev_b32 v7, 5, v1')
    k.I('v_lshlrev_b32 v7, 4, v7')
    k.I('v_add_u32 v5, s24, v7')
    k.I('v_add_u32 v6, s25, v7')
    MN, RS, CQ = 128, 144, 160
    for a in range(4):
        k.I('ds_read_b128 %s, v5 offset:%d' % (vr(MN + 4 * a, 4), a * 32))
        k.I('ds_read_b128 %s, v5 offset:%d' % (vr(RS + 4 * a, 4), 128 + a * 32))
        k.I('ds_read_b128 %s, v6 offset:%d' % (vr(CQ + 4 * a, 4), 1024 + a * 32))
    for i in range(16):
        for acc, cs in ((ACK, CSK_), (ACV, CSV_)):
            k.I('v_fma_f32 %s, -%s, %s, %s' % (vr(acc + i), vr(MN + i), vr(cs), vr(acc + i)))
            k.I('v_mul_f32 %s, %s, %s' % (vr(acc + i), vr(RS + i), vr(acc + i)))
        phi(k, ACK + i, 110)
    PKF, VF, ONE = 176, 184, 192
    for j in range(8):
        k.I('v_cvt_pk_bf16_f32 %s, %s, %s' % (vr(PKF + j), vr(ACK + 2 * j), vr(ACK + 2 * j + 1)))
        k.I('v_cvt_pk_bf16_f32 %s, %s, %s' % (vr(VF + j), vr(ACV + 2 * j), vr(ACV + 2 * j + 1)))
    for j in range(4):
        k.I('v_mov_b32 %s, s23' % vr(ONE + j))
    DKV, DZ = 196, 212
    k.I('v_mfma_f32_32x32x16_bf16 %s, %s, %s, 0' % (vr(DKV, 16), vr(PKF, 4), vr(VF, 4)))
    k.I('v_mfma_f32_32x32x16_bf16 %s, %s, %s, 0' % (vr(DZ, 16), vr(PKF, 4), vr(ONE, 4)))
    k.I('v_mfma_f32_32x32x16_bf16 %s, %s, %s, %s' % (vr(DKV, 16), vr(PKF + 4, 4), vr(VF + 4, 4), vr(DKV, 16)))
    k.I('v_mfma_f32_32x32x16_bf16 %s, %s, %s, %s' % (vr(DZ, 16), vr(PKF + 4, 4), vr(ONE, 4), vr(DZ, 16)))
    for i in range(16):
        k.I('v_fma_f32 %s, -%s, %s, %s' % (vr(ACQ + i), vr(MEAN), vr(CQ + i), vr(ACQ + i)))
        k.I('v_mul_f32 %s, %s, %s' % (vr(ACQ + i), vr(RSTD), vr(ACQ + i)))
        phi(k, ACQ + i, 110)
    for j in range(8):
        k.I('v_cvt_pk_bf16_f32 %s, %s, %s' % (vr(ACQ + j), vr(ACQ + 2 * j), vr(ACQ + 2 * j + 1)))
    k.I('s_lshl_b32 s26, s15, 5')
    k.I('s_lshl_b32 s27, s16, 1')
    k.I('s_add_u32 s26, s26, s27')
    k.I('s_lshl_b32 s26, s26, 10')
    k.I('s_add_u32 s26, s26, 0x%x' % OFF_PQ)
    k.I('buffer_store_dwordx4 %s, v2, %s, s26 offen' % (vr(ACQ, 4), ws))
    k.I('buffer_store_dwordx4 %s, v2, %s, s26 offen offset:1024' % (vr(ACQ + 4, 4), ws))
    k.I('v_and_b32 v5, 16, v1')
    k.I('v_cmp_eq_u32 vcc, 0, v5')
    for j in range(8):
        k.I('v_cndmask_b32 %s, %s, %s, vcc' % (vr(ACK + j), vr(DKV + 8 + j), vr(DKV + j)))
        k.I('v_cndmask_b32 %s, %s, %s, vcc' % (vr(ACK + 8 + j), vr(DZ + 8 + j), vr(DZ + j)))
    k.I('v_lshlrev_b32 v5, 7, v5')
    k.I('v_lshrrev_b32 v6, 5, v1')
    k.I('v_lshlrev_b32 v6, 10, v6')
    k.I('v_add_u32 v5, v5, v6')
    k.I('s_lshl_b32 s27, s14, 1')
    k.I('s_add_u32 s27, s27, s13')
    k.I('s_lshl_b32 s27, s27, 12')
    k.I('s_add_u32 s27, s27, 4096')
    k.I('v_add_u32 v5, s27, v5')
    k.I('v_and_b32 v6, 15, v1')
    k.I('v_lshlrev_b32 v7, 5, v6')
    k.I('v_add_u32 v7, v5, v7')
    k.I('ds_write_b128 v7, %s' % vr(ACK, 4))
    k.I('ds_write_b128 v7, %s offset:16' % vr(ACK + 4, 4))
    k.I('v_cmp_eq_u32 vcc, 0, v6')
    k.I('s_and_saveexec_b64 s[28:29], vcc')
    k.I('ds_write_b128 v5, %s offset:512' % vr(ACK + 8, 4))
    k.I('ds_write_b128 v5, %s offset:528' % vr(ACK + 12, 4))
    k.I('s_mov_b64 exec, s[28:29]')
    k.I('s_waitcnt lgkmcnt(0)')
    k.I('s_barrier')
    k.I('s_lshr_b32 s27, s8, 1')
    k.I('s_lshl_b32 s27, s27, 13')
    k.I('s_and_b32 s30, s8, 1')
    k.I('s_lshl_b32 s30, s30, 11')
    k.I('s_add_u32 s27, s27, s30')
    k.I('s_add_u32 s27, s27, 4096')
    k.I('v_lshlrev_b32 v5, 2, v1')
    k.I('v_add_u32 v6, s27, v5')
    k.I('s_lshl_b32 s30, s12, 2')
    k.I('s_add_u32 s30, s30, s8')
    k.I('s_lshl_b32 s30, s30, 11')
    k.I('s_add_u32 s30, s30, 0x%x' % OFF_KVZ)
    for half in range(2):
        for ch in range(3):
            off = half * 1024 + ch * 256
            d = 32 + (half * 3 + ch) * 2
            k.I('ds_read_b32 %s, v6 offset:%d' % (vr(d), off))
            k.I('ds_read_b32 %s, v6 offset:%d' % (vr(d + 1), off + 4096))
    for half in range(2):
        for ch in range(3):
            d = 32 + (half * 3 + ch) * 2
            k.I('v_add_f32 %s, %s, %s' % (vr(d), vr(d), vr(d + 1)))
    for half in range(2):
        for ch in range(2):
            d = 32 + (half * 3 + ch) * 2
            k.I('buffer_atomic_add_f32 %s, v5, %s, s30 offen offset:%d' % (vr(d), ws, half * 1024 + ch * 256))
    k.I('v_cmp_gt_u32 vcc, 8, v1')
    k.I('s_and_saveexec_b64 s[28:29], vcc')
    for half in range(2):
        d = 32 + (half * 3 + 2) * 2
        k.I('buffer_atomic_add_f32 %s, v5, %s, s30 offen offset:%d' % (vr(d), ws, half * 1024 + 512))
    k.I('s_mov_b64 exec, -1')
    st.stamp(); st.stamp(True); st.flush()
    k.label('L_k1_end')
    k.I('s_endpgm')
    return k, dict(lds=20480 + 4096, grid=256, block=256)


def gen_k2():
    k = Kernel('attn_kernel')
    WS, XS = 4, 8
    k.I('s_cmp_ge_u32 s2, 256')
    k.I('s_cbranch_scc1 L_k2_end')
    load_srds(k, [('ws', WS), ('x', XS)])
    ws = sr(WS, 4)
    st = Stamper(k, 2, ws); st.stamp(True); st.stamp()
    k.I('v_and_b32 v1, 63, v0')
    k.I('v_lshrrev_b32 v2, 6, v0')
    k.I('v_readfirstlane_b32 s12, v2')
    k.I('v_lshlrev_b32 v2, 4, v1')
    k.I('s_and_b32 s13, s2, 7')
    k.I('s_lshr_b32 s14, s2, 3')
    k.I('s_lshl_b32 s15, s13, 2')
    k.I('s_and_b32 s16, s14, 3')
    k.I('s_add_u32 s15, s15, s16')
    k.I('s_lshr_b32 s16, s14, 2')
    k.I('s_lshl_b32 s17, s15, 6')
    k.I('s_lshl_b32 s18, s12, 3')
    k.I('s_add_u32 s17, s17, s18')
    k.I('s_lshl_b32 s17, s17, 10')
    k.I('s_add_u32 s17, s17, 0x%x' % OFF_PQ)
    k.I('s_add_u32 s19, s17, 32768')
    k.I('s_lshl_b32 s20, s18, 4')
    k.I('s_lshl_b32 s21, s16, 1')
    k.I('s_add_u32 s20, s20, s21')
    k.I('s_lshl_b32 s20, s20, 10')
    k.I('s_add_u32 s20, s20, 0x%x' % OFF_WO)
    k.I('s_lshl_b32 s21, s18, 11')
    k.I('s_add_u32 s21, s21, 0x%x' % OFF_KVZ)
    k.I('v_and_b32 v3, 31, v1')
    k.I('v_min_u32 v4, 16, v3')
    k.I('v_lshrrev_b32 v5, 5, v1')
    k.I('v_lshlrev_b32 v6, 5, v5')
    k.I('v_add_u32 v4, v4, v6')
    k.I('v_lshlrev_b32 v4, 5, v4')
    k.I('v_add_u32 v7, 4096, v2')
    k.I('s_lshr_b32 s22, s12, 1')
    k.I('s_and_b32 s23, s12, 1')
    k.I('s_lshl_b32 s24, s15, 1')
    k.I('s_add_u32 s24, s24, s23')
    k.I('s_lshl_b32 s25, s16, 1')
    k.I('s_add_u32 s25, s25, s22')
    k.I('s_lshl_b32 s26, s24, 15')
    k.I('s_lshl_b32 s27, s25, 6')
    k.I('s_add_u32 s26, s26, s27')
    k.I('v_lshlrev_b32 v8, 10, v3')
    k.I('v_lshlrev_b32 v9, 3, v5')
    k.I('v_add_u32 v8, v8, v9')
    k.I('s_waitcnt lgkmcnt(0)')
    KV = 128
    A_ACC, A_WO, A_PQ = 0, 64, 128
    for t in range(8):
        k.I('s_add_u32 s28, s21, %d' % (t * 2048))
        k.I('buffer_load_dwordx4 %s, v4, %s, s28 offen' % (vr(KV + 8 * t, 4), ws))
        k.I('buffer_load_dwordx4 %s, v4, %s, s28 offen offset:16' % (vr(KV + 8 * t + 4, 4), ws))
        for r in range(2):
            k.I('buffer_load_dwordx4 %s, %s, %s, %s offen offset:%d' % (
                ar(A_PQ + (t * 2 + r) * 4, 4), 'v2' if t < 4 else 'v7', ws, 's17' if r == 0 else 's19', (t % 4) * 1024))
        k.I('s_add_u32 s29, s20, %d' % (t * 16384))
        for n in range(2):
            k.I('buffer_load_dwordx4 %s, v2, %s, s29 offen offset:%d' % (ar(A_WO + (t * 2 + n) * 4, 4), ws, n * 1024))
    XR = 112
    for a in range(4):
        k.I('buffer_load_dwordx2 %s, v8, %s, s26 offen offset:%d' % (vr(XR + 2 * a, 2), sr(XS, 4), a * 16))
    st.stamp()
    D1 = [32, 48]
    KF = 64
    OF = [72, 76]
    T = 80
    for t in range(8):
        for j in range(4):
            k.I('v_cvt_pk_bf16_f32 %s, %s, %s' % (vr(KF + (t & 1) * 4 + j), vr(KV + 8 * t + 2 * j), vr(KV + 8 * t + 2 * j + 1)))
        kf = vr(KF + (t & 1) * 4, 4)
        for r in range(2):
            k.I('v_mfma_f32_32x32x16_bf16 %s, %s, %s, 0' % (vr(D1[r], 16), kf, ar(A_PQ + (t * 2 + r) * 4, 4)))
        for r in range(2):
            k.I('v_add_f32 %s, 0x%x, %s' % (vr(T + r), f2u(1e-6), vr(D1[r] + 8)))
            k.I('v_rcp_f32 %s, %s' % (vr(T + r), vr(T + r)))
            for i in range(8):
                k.I('v_mul_f32 %s, %s, %s' % (vr(D1[r] + i), vr(T + r), vr(D1[r] + i)))
            for j in range(4):
                k.I('v_cvt_pk_bf16_f32 %s, %s, %s' % (vr(OF[r] + j), vr(D1[r] + 2 * j), vr(D1[r] + 2 * j + 1)))
        for n in range(2):
            for r in range(2):
                acc = ar(A_ACC + (n * 2 + r) * 16, 16)
                k.I('v_mfma_f32_32x32x16_bf16 %s, %s, %s, %s' % (
                    acc, ar(A_WO + (t * 2 + n) * 4, 4), vr(OF[r], 4), acc if t else '0'))
    st.stamp()
    reduce_tiles(k, A_ACC, 12, 32)
    st.stamp()
    for a in range(4):
        for b in range(2):
            src = XR + 2 * a + b
            k.I('v_lshlrev_b32 v64, 16, %s' % vr(src))
            k.I('v_and_b32 v65, 0xffff0000, %s' % vr(src))
            k.I('v_add_f32 %s, %s, v64' % (vr(32 + 4 * a + 2 * b), vr(32 + 4 * a + 2 * b)))
            k.I('v_add_f32 %s, %s, v65' % (vr(32 + 4 * a + 2 * b + 1), vr(32 + 4 * a + 2 * b + 1)))
    for j in range(8):
        k.I('v_cvt_pk_bf16_f32 %s, %s, %s' % (vr(48 + j), vr(32 + 2 * j), vr(32 + 2 * j + 1)))
    k.I('s_lshl_b32 s26, s24, 5')
    k.I('s_lshl_b32 s27, s25, 1')
    k.I('s_add_u32 s26, s26, s27')
    k.I('s_lshl_b32 s26, s26, 10')
    k.I('s_add_u32 s26, s26, 0x%x' % OFF_H)
    k.I('buffer_store_dwordx4 v[48:51], v2, %s, s26 offen' % ws)
    k.I('buffer_store_dwordx4 v[52:55], v2, %s, s26 offen offset:1024' % ws)
    st.stamp(); st.stamp(True); st.flush()
    k.label('L_k2_end')
    k.I('s_endpgm')
    return k, dict(lds=65536, grid=256, block=256)


def reduce_tiles(k, A_ACC, s_wave, dst):
    k.I('v_lshlrev_b32 v10, 4, v1')
    k.I('s_lshl_b32 s30, %s, 14' % sr(s_wave))
    k.I('v_add_u32 v10, s30, v10')
    for t in range(4):
        for q in range(4):
            k.I('ds_write_b128 v10, %s offset:%d' % (ar(A_ACC + t * 16 + q * 4, 4), t * 4096 + q * 1024))
    k.I('s_waitcnt lgkmcnt(0)')
    k.I('s_barrier')
    k.I('v_lshlrev_b32 v11, 4, v1')
    k.I('s_lshl_b32 s30, %s, 12' % sr(s_wave))
    k.I('v_add_u32 v11, s30, v11')
    for sw in range(4):
        for q in range(4):
            k.I('ds_read_b128 %s, v11 offset:%d' % (vr(dst + sw * 16 + q * 4, 4), sw * 16384 + q * 1024))
    for sw in range(1, 4):
        for i in range(16):
            k.I('v_add_f32 %s, %s, %s' % (vr(dst + i), vr(dst + i), vr(dst + sw * 16 + i)))


OPT = {}

def gen_k3():
    k = Kernel('gateup_kernel')
    WS = 4
    k.I('s_cmp_ge_u32 s2, 256')
    k.I('s_cbranch_scc1 L_k3_end')
    load_srds(k, [('ws', WS)])
    ws = sr(WS, 4)
    st = Stamper(k, 3, ws); st.stamp(True); st.stamp()
    k.I('v_and_b32 v1, 63, v0')
    k.I('v_lshrrev_b32 v2, 6, v0')
    k.I('v_readfirstlane_b32 s8, v2')
    k.I('v_lshlrev_b32 v2, 4, v1')
    k.I('s_and_b32 s9, s2, 7')
    k.I('s_lshr_b32 s10, s2, 3')
    k.I('s_and_b32 s11, s9, 1')
    k.I('s_lshl_b32 s11, s11, 3')
    k.I('s_and_b32 s12, s10, 7')
    k.I('s_add_u32 s11, s11, s12')
    k.I('s_lshr_b32 s12, s9, 1')
    k.I('s_lshl_b32 s12, s12, 2')
    k.I('s_lshr_b32 s13, s10, 3')
    k.I('s_add_u32 s12, s12, s13')
    k.I('s_lshl_b32 s13, s11, 2')
    k.I('s_add_u32 s13, s13, s8')
    k.I('s_lshl_b32 s14, s13, 15')
    k.I('s_add_u32 s14, s14, 0x%x' % OFF_H)
    k.I('s_mul_i32 s15, s12, %d' % (7 * 32768))
    k.I('s_lshl_b32 s16, s8, 13')
    k.I('s_add_u32 s15, s15, s16')
    k.I('s_add_u32 s15, s15, 0x%x' % OFF_WGU)
    k.I('s_mul_i32 s17, s13, 112')
    k.I('s_mul_i32 s18, s12, 7')
    k.I('s_add_u32 s17, s17, s18')
    k.I('s_lshl_b32 s17, s17, 10')
    k.I('s_add_u32 s17, s17, 0x%x' % OFF_ACT)
    for t in range(1, 8):
        k.I('v_add_u32 %s, %d, v2' % (vr(8 + t), 4096 * t))
    k.I('v_mov_b32 v8, v2')
    k.I('v_lshlrev_b32 v3, 2, v0')
    k.I('s_mul_i32 s18, s12, %d' % (7 * 128))
    k.I('s_add_u32 s18, s18, 0x%x' % OFF_CSG)
    k.I('s_waitcnt lgkmcnt(0)')
    CS_LDS = 131072
    for kg in range(16):
        k.I('s_add_u32 s19, s18, %d' % (kg * 112 * 128))
        k.I('buffer_load_dword %s, v3, %s, s19 offen' % (vr(64 + kg), ws))

    def dma(soff, sm0, name):
        for hf in range(2):
            k.I('s_add_u32 s19, %s, %d' % (sr(sm0), hf * 4096))
            k.I('s_mov_b32 m0, s19')
            k.I('s_add_u32 s20, %s, %d' % (sr(soff), hf * 4096))
            for t in range(4):
                k.I('buffer_load_dwordx4 v2, %s, s20 offen offset:%d lds' % (ws, t * 1024), w=[name])
    X = 128
    k.I('s_mov_b32 s21, s16')
    dma(15, 21, 'W0')
    for ks in range(32):
        k.I('buffer_load_dwordx4 %s, %s, %s, s14 offen offset:%d' % (vr(X + 4 * ks, 4), vr(8 + ks // 4), ws, (ks % 4) * 1024))
    for kg in range(1, 16):
        k.I('v_add_f32 v64, v64, %s' % vr(64 + kg))
    k.I('v_add_u32 v3, %d, v3' % CS_LDS)
    k.I('ds_write_b32 v3, v64')
    k.I('s_add_u32 s22, s15, 32768')
    k.I('s_add_u32 s21, s16, 32768')
    dma(22, 21, 'dA')
    k.I('s_add_u32 s22, s15, 65536')
    k.I('s_add_u32 s21, s16, 65536')
    dma(22, 21, 'dB')
    k.I('s_add_u32 s23, s16, %d' % (3 * 32768))
    k.I('s_mov_b32 s24, s16')
    k.I('s_add_u32 s25, s15, %d' % (3 * 32768))
    k.I('s_mov_b32 s26, 0')
    k.I('v_mov_b32 v4, v2')
    k.I('v_add_u32 v5, 32768, v2')
    k.I('v_lshrrev_b32 v6, 5, v1')
    k.I('v_lshlrev_b32 v6, 4, v6')
    k.I('v_add_u32 v6, %d, v6' % CS_LDS)
    k.I('s_mov_b32 s27, 0x%x' % ONES_BF16)
    ACC = [32, 48]
    D, L = 8, 6
    WR = 0
    CSR = 64
    T = 80
    MEAN, RSTD, NMEAN, NA, A2 = 112, 113, 114, 115, 116

    def wread(n, vaddr, ks):
        k.I('ds_read_b128 %s, %s offset:%d' % (ar(WR + (n % D) * 4, 4), vaddr, ks * 1024))

    def epilogue_ops(S, last=False):
        ops = []
        for q in range(4):
            ops.append('ds_read_b128 %s, v6 offset:%d' % (vr(CSR + 4 * q, 4), q * 32))
        pre = len(ops)
        for i0 in range(0, 8, 2):
            a = []
            for u, i in enumerate((i0, i0 + 1)):
                t = T + u * 4
                a.append([
                    'v_fma_f32 %s, %s, %s, %s' % (vr(t), vr(NMEAN), vr(CSR + i), vr(S + i)),
                    'v_fma_f32 %s, %s, %s, %s' % (vr(t + 1), vr(NMEAN), vr(CSR + 8 + i), vr(S + 8 + i)),
                    'v_mul_f32 %s, %s, %s' % (vr(t + 2), vr(NA), vr(t)),
                    'v_exp_f32 %s, %s' % (vr(t + 2), vr(t + 2)),
                    'v_mul_f32 %s, %s, %s' % (vr(t), vr(t), vr(t + 1)),
                    'v_add_f32 %s, 1.0, %s' % (vr(t + 2), vr(t + 2)),
                    'v_rcp_f32 %s, %s' % (vr(t + 2), vr(t + 2)),
                    'v_mul_f32 %s, %s, %s' % (vr(t), vr(A2), vr(t)),
                    'v_mul_f32 %s, %s, %s' % (vr(T + 8 + i), vr(t), vr(t + 2)),
                ])
            for x, y in zip(a[0], a[1]):
                ops += [x, y]
            ops.append('v_cvt_pk_bf16_f32 %s, %s, %s' % (vr(T + 16 + i0 // 2), vr(T + 8 + i0), vr(T + 8 + i0 + 1)))
        ops.append('buffer_store_dwordx4 %s, v2, %s, s17 offen' % (vr(T + 16, 4), ws))
        ops.append('s_add_u32 s17, s17, 1024')
        ops.append('v_add_u32 v6, 128, v6')
        return ops, pre

    def body(par, first, nbase):
        cur, nxt = ('v4', 'v5') if par == 0 else ('v5', 'v4')
        S = ACC[par]
        if first:
            fill = []
            for ks in range(32):
                f = []
                for j in range(4):
                    f.append('v_dot2c_f32_bf16 %s, s27, %s' % (vr(100 + (j & 1)), vr(X + 4 * ks + j)))
                    f.append('v_dot2c_f32_bf16 %s, %s, %s' % (vr(102 + (j & 1)), vr(X + 4 * ks + j), vr(X + 4 * ks + j)))
                fill.append(f)
        else:
            ops, pre = epilogue_ops(ACC[1 - par])
            fill = [[] for _ in range(32)]
            fill[0] = ops[:pre]
            rest = ops[pre:]
            g0, g1 = 3, 30
            per = -(-len(rest) // (g1 - g0))
            for g in range(g0, g1):
                fill[g] = rest[(g - g0) * per:(g - g0 + 1) * per]
        for ks in range(32):
            n = nbase + ks
            k.I('v_mfma_f32_32x32x16_bf16 %s, %s, %s, %s' % (
                vr(S, 16), ar(WR + (n % D) * 4, 4), vr(X + 4 * ks, 4), vr(S, 16) if ks else '0'))
            if ks == 32 - L:
                k.need('dA' if par == 0 else 'dB')
                k.I('s_barrier')
                sm = 23 if par == 0 else 24
                k.I('s_cmp_lt_u32 s26, 4')
                k.I('s_cselect_b32 s28, s25, 0x7fff0000')
                if not OPT.get('nodma') or first:
                    dma(28, sm, 'dA' if par == 0 else 'dB')
                k.I('s_xor_b32 %s, %s, 0x10000' % (sr(sm), sr(sm)))
                k.I('s_add_u32 s25, s25, 32768')
                k.I('s_add_u32 s26, s26, 1')
            if ks + L < 32:
                wread(n + L, cur, ks + L)
            else:
                wread(n + L, nxt, ks + L - 32)
            for ins in fill[ks]:
                if OPT.get('noepi') and not first and ins.startswith('v_'): continue
                if OPT.get('nostats') and first: continue
                k.I(ins)
        k.I('v_xor_b32 %s, 0x10000, %s' % (cur, cur))

    for j in range(4):
        k.I('v_mov_b32 %s, 0' % vr(100 + j))
    st.stamp()
    k.need('W0')
    k.I('s_waitcnt lgkmcnt(0)')
    k.I('s_barrier')
    st.stamp()
    for n in range(L):
        wread(n, 'v4', n)
    body(0, True, 0)
    st.stamp()
    k.I('v_add_f32 v100, v100, v101')
    k.I('v_add_f32 v102, v102, v103')
    stats_finish(k, 100, 102, MEAN, RSTD, 101)
    k.I('v_sub_f32 %s, 0, %s' % (vr(NMEAN), vr(MEAN)))
    k.I('v_mul_f32 %s, 0x%x, %s' % (vr(NA), f2u(-LOG2E), vr(RSTD)))
    k.I('v_mul_f32 %s, %s, %s' % (vr(A2), vr(RSTD), vr(RSTD)))
    k.I('s_mov_b32 s29, 3')
    k.loop_begin('L_k3_loop')
    body(1, False, 0)
    body(0, False, 0)
    k.I('s_sub_u32 s29, s29, 1')
    k.I('s_cmp_lg_u32 s29, 0')
    k.I('s_cbranch_scc1 L_k3_loop')
    k.loop_end('L_k3_loop')
    st.stamp()
    ops, pre = epilogue_ops(ACC[0])
    for ins in ops:
        k.I(ins)
    st.stamp(); st.stamp(True); st.flush()
    k.label('L_k3_end')
    k.I('s_endpgm')
    return k, dict(lds=131072 + 1024, grid=256, block=256)


def gen_k4():
    k = Kernel('down_kernel')
    WS, OS = 4, 8
    k.I('s_cmp_ge_u32 s2, 256')
    k.I('s_cbranch_scc1 L_k4_end')
    load_srds(k, [('ws', WS), ('out', OS)])
    ws = sr(WS, 4)
    st = Stamper(k, 4, ws); st.stamp(True); st.stamp()
    k.I('v_and_b32 v1, 63, v0')
    k.I('v_lshrrev_b32 v2, 6, v0')
    k.I('v_readfirstlane_b32 s12, v2')
    k.I('v_lshlrev_b32 v2, 4, v1')
    k.I('v_add_u32 v3, 4096, v2')
    k.I('s_and_b32 s13, s2, 7')
    k.I('s_lshr_b32 s14, s2, 3')
    k.I('s_lshl_b32 s15, s13, 2')
    k.I('s_and_b32 s16, s14, 3')
    k.I('s_add_u32 s15, s15, s16')
    k.I('s_lshr_b32 s16, s14, 2')
    k.I('s_mul_i32 s17, s12, %d' % (28 * 1024))
    k.I('s_mul_i32 s18, s15, %d' % (2 * 112 * 1024))
    k.I('s_add_u32 s18, s18, s17')
    k.I('s_add_u32 s18, s18, 0x%x' % OFF_ACT)
    k.I('s_add_u32 s19, s18, %d' % (112 * 1024))
    k.I('s_mul_i32 s20, s16, %d' % (2 * 112 * 1024))
    k.I('s_add_u32 s20, s20, s17')
    k.I('s_add_u32 s20, s20, 0x%x' % OFF_WD)
    k.I('s_add_u32 s21, s20, %d' % (112 * 1024))
    k.I('s_lshr_b32 s22, s12, 1')
    k.I('s_and_b32 s23, s12, 1')
    k.I('s_lshl_b32 s24, s15, 1')
    k.I('s_add_u32 s24, s24, s23')
    k.I('s_lshl_b32 s25, s16, 1')
    k.I('s_add_u32 s25, s25, s22')
    k.I('s_lshl_b32 s26, s24, 5')
    k.I('s_lshl_b32 s27, s25, 1')
    k.I('s_add_u32 s26, s26, s27')
    k.I('s_lshl_b32 s26, s26, 10')
    k.I('s_add_u32 s26, s26, 0x%x' % OFF_H)
    k.I('s_waitcnt lgkmcnt(0)')
    HR = 112
    k.I('buffer_load_dwordx4 %s, v2, %s, s26 offen' % (vr(HR, 4), ws))
    k.I('buffer_load_dwordx4 %s, v2, %s, s26 offen offset:1024' % (vr(HR + 4, 4), ws))
    R = 7
    RING = 128
    A_ACC = 0

    def loads(u):
        voff = 'v2' if u < 4 else 'v3'
        for s, so in enumerate((20, 21, 18, 19)):
            k.I('buffer_load_dwordx4 %s, %s, %s, %s offen offset:%d' % (
                vr(RING + u * 16 + s * 4, 4), voff, ws, sr(so), (u % 4) * 1024))

    def adv():
        for so in (18, 19, 20, 21):
            k.I('s_add_u32 %s, %s, %d' % (sr(so), sr(so), R * 1024))

    def mfmas(u, first):
        for n in range(2):
            for r in range(2):
                acc = ar(A_ACC + (n * 2 + r) * 16, 16)
                k.I('v_mfma_f32_32x32x16_bf16 %s, %s, %s, %s' % (
                    acc, vr(RING + u * 16 + n * 4, 4), vr(RING + u * 16 + 8 + r * 4, 4), '0' if first else acc))
    for u in range(R):
        loads(u)
    adv()
    st.stamp()
    for u in range(R):
        mfmas(u, u == 0)
        loads(u)
    adv()
    st.stamp()
    k.I('s_mov_b32 s28, 2')
    k.loop_begin('L_k4_loop')
    for u in range(R):
        mfmas(u, False)
        loads(u)
    adv()
    k.I('s_sub_u32 s28, s28, 1')
    k.I('s_cmp_lg_u32 s28, 0')
    k.I('s_cbranch_scc1 L_k4_loop')
    k.loop_end('L_k4_loop')
    for u in range(R):
        mfmas(u, False)
    st.stamp()
    reduce_tiles(k, A_ACC, 12, 32)
    st.stamp()
    for j in range(8):
        src = HR + j
        k.I('v_lshlrev_b32 v96, 16, %s' % vr(src))
        k.I('v_and_b32 v97, 0xffff0000, %s' % vr(src))
        k.I('v_add_f32 %s, %s, v96' % (vr(32 + 2 * j), vr(32 + 2 * j)))
        k.I('v_add_f32 %s, %s, v97' % (vr(32 + 2 * j + 1), vr(32 + 2 * j + 1)))
    for j in range(8):
        k.I('v_cvt_pk_bf16_f32 %s, %s, %s' % (vr(48 + j), vr(32 + 2 * j), vr(32 + 2 * j + 1)))
    for a in (0, 2):
        b = 48 + 2 * a
        k.I('v_permlane32_swap_b32 %s, %s' % (vr(b), vr(b + 2)))
        k.I('v_permlane32_swap_b32 %s, %s' % (vr(b + 1), vr(b + 3)))
    k.I('v_and_b32 v4, 31, v1')
    k.I('v_lshlrev_b32 v4, 10, v4')
    k.I('v_lshrrev_b32 v5, 5, v1')
    k.I('v_lshlrev_b32 v5, 4, v5')
    k.I('v_add_u32 v4, v4, v5')
    k.I('s_lshl_b32 s26, s24, 15')
    k.I('s_lshl_b32 s27, s25, 6')
    k.I('s_add_u32 s26, s26, s27')
    k.I('buffer_store_dwordx4 v[48:51], v4, %s, s26 offen' % sr(OS, 4))
    k.I('buffer_store_dwordx4 v[52:55], v4, %s, s26 offen offset:32' % sr(OS, 4))
    st.stamp(); st.stamp(True); st.flush()
    k.label('L_k4_end')
    k.I('s_endpgm')
    return k, dict(lds=65536, grid=256, block=256)


def wrap(kernels):
    head = open('cdna_kernels/%s.s.ref' % NAME).read().split('; Override launch geometry')[0]
    out = [head.rstrip()]
    for label, k, cfg in kernels:
        out.append('; @launch kernel=%s grid=(%d,1,1) block=(%d,1,1) lds=%d' % (label, cfg['grid'], cfg['block'], cfg['lds']))
    out.append('.amdgcn_target "amdgcn-amd-amdhsa--gfx950"')
    out.append('.text')
    seen = set()
    for label, k, cfg in kernels:
        if label in seen:
            continue
        seen.add(label)
        out.append('.globl %s' % label)
        out.append('.p2align 8')
        out.append('.type %s,@function' % label)
        out.append('%s:' % label)
        out.append(k.finish())
    out.append('.section .rodata,"a"')
    seen = set()
    for label, k, cfg in kernels:
        if label in seen:
            continue
        seen.add(label)
        mx = k.maxreg()
        acc = cfg.get('accum', None)
        nv = mx['v'] + 1
        na = mx['a'] + 1
        accum = max(4, (nv + 3) // 4 * 4)
        nfv = accum + na if na else nv
        out.append('.p2align 6')
        out.append('.amdhsa_kernel %s' % label)
        out.append('  .amdhsa_next_free_vgpr %d' % nfv)
        out.append('  .amdhsa_next_free_sgpr %d' % max(mx['s'] + 1, 16))
        out.append('  .amdhsa_accum_offset %d' % accum)
        out.append('  .amdhsa_group_segment_fixed_size 0')
        out.append('  .amdhsa_kernarg_size 80')
        out.append('  .amdhsa_user_sgpr_count 2')
        out.append('  .amdhsa_user_sgpr_kernarg_segment_ptr 1')
        out.append('  .amdhsa_system_sgpr_workgroup_id_x 1')
        out.append('  .amdhsa_float_denorm_mode_32 3')
        out.append('.end_amdhsa_kernel')
    return '\n'.join(out) + '\n'


if __name__ == '__main__':
    n = int(sys.argv[2]) if len(sys.argv) > 2 else 5
    STAMPS = len(sys.argv) > 3
    for o in sys.argv[4:]:
        OPT[o] = True
    gens = [('prep_kernel', gen_k0), ('qkv_kernel', gen_k1), ('attn_kernel', gen_k2), ('gateup_kernel', gen_k3), ('down_kernel', gen_k4)]
    ks = []
    for label, g in gens[:n]:
        kk, cc = g()
        ks.append((label, kk, cc))
        print(label, kk.stats(), kk.maxreg())
    open(sys.argv[1], 'w').write(wrap(ks))
```

```python
import sys
from asmgen import Kernel
import gen1
from gen1 import *
from gen2 import Sched, xhalf_ops
from gen3 import emit, ln_phi_ops


class Multi:
    def __init__(self, parts):
        self.parts = parts
    def finish(self):
        return '\n'.join(p.finish() for p in self.parts)
    def maxreg(self):
        mx = {'v': -1, 'a': -1, 's': -1}
        for p in self.parts:
            m = p.maxreg()
            for t in mx:
                mx[t] = max(mx[t], m[t])
        return mx
    def stats(self):
        return [p.stats() for p in self.parts]


def pair_signal(flag_lds_sgpr, vtmp, vone):
    return ['v_mov_b32 %s, %s' % (vr(vtmp), sr(flag_lds_sgpr)), 'v_mov_b32 %s, 1' % vr(vone),
            'ds_write_b32 %s, %s' % (vr(vtmp), vr(vone))]


def pair_wait(k, name, flag_lds_sgpr, vtmp, vval, stmp):
    k.I('v_mov_b32 %s, %s' % (vr(vtmp), sr(flag_lds_sgpr)))
    k.label(name)
    k.I('ds_read_b32 %s, %s' % (vr(vval), vr(vtmp)))
    k.I('v_readfirstlane_b32 %s, %s' % (sr(stmp), vr(vval)))
    k.I('s_cmp_eq_u32 %s, 0' % sr(stmp))
    k.I('s_cbranch_scc1 %s' % name)


def gen_a8():
    kp = Kernel('a_pro')
    k = kp
    XS, WQ, WS, PA, PB, DB = 4, 8, 12, 16, 20, 24
    ws = sr(WS, 4)
    k.I('s_cmp_ge_u32 s2, 256')
    k.I('s_cbranch_scc1 L_a_end')
    load_srds(k, [('x', XS), ('wqkv', WQ), ('ws', WS), ('dbg', DB)])
    k.I('s_load_dwordx2 s[40:41], s[0:1], %d' % KA['wo'])
    k.I('s_load_dwordx4 s[44:47], s[0:1], %d' % KA['wg'])
    k.I('s_load_dwordx2 s[42:43], s[0:1], %d' % KA['wd'])
    if gen1.STAMPS:
        k.I('s_memrealtime s[84:85]')
        k.I('s_memtime s[86:87]')
    k.I('v_and_b32 v1, 63, v0')
    k.I('v_lshrrev_b32 v2, 6, v0')
    k.I('v_readfirstlane_b32 s27, v2')
    k.I('s_mov_b32 s39, s27')
    k.I('s_mov_b32 s27, 0x00020000')
    k.I('s_and_b32 s28, s39, 3')
    k.I('s_and_b32 s34, s2, 7')
    k.I('s_lshr_b32 s35, s2, 3')
    k.I('s_and_b32 s32, s34, 3')
    k.I('s_lshl_b32 s32, s32, 3')
    k.I('s_and_b32 s36, s35, 7')
    k.I('s_add_u32 s32, s32, s36')
    k.I('s_lshr_b32 s33, s34, 2')
    k.I('s_lshl_b32 s33, s33, 2')
    k.I('s_lshr_b32 s36, s35, 3')
    k.I('s_add_u32 s33, s33, s36')
    k.I('s_and_b32 s29, s28, 1')
    k.I('s_lshr_b32 s30, s28, 1')
    k.I('s_xor_b32 s31, s29, s30')
    k.I('s_mov_b32 s70, 0x%x' % ONES_BF16)
    k.I('s_mov_b32 s81, 0x%x' % f2u(1e-6))
    k.I('s_cmp_ge_u32 s39, 4')
    k.I('s_cbranch_scc1 L_a_q')

    X, WR = 112, 80
    LA = 4
    E = 131072
    E_ST = E
    E_CS = E + 1024
    E_TB = E + 4096
    E_FL = E + 3072
    E_KV = E + 8192
    WSLOT = {('k', 0): 1, ('k', 1): 3, ('k', 2): 5, ('k', 3): 7, ('v', 0): 0, ('v', 1): 1, ('v', 2): 2, ('v', 3): 3,
             ('q', 0): 4, ('q', 1): 5, ('q', 2): 6, ('q', 3): 7}
    XA = 16
    WE, WO_, WE2, WO2 = 12, 13, 14, 15
    MEAN, RSTD, CK, CV, T0 = 2, 3, 4, 5, 6
    LN16 = 7

    def common_setup(k, need_w_addr=True):
        k.I('v_and_b32 v2, 31, v1')
        k.I('s_lshl_b32 s37, s29, 5')
        k.I('v_add_u32 v2, s37, v2')
        k.I('v_lshlrev_b32 v2, 8, v2')
        k.I('v_lshrrev_b32 v3, 5, v1')
        k.I('v_and_b32 v4, 15, v1')
        k.I('v_xor_b32 v4, v3, v4')
        k.I('v_lshlrev_b32 v4, 4, v4')
        k.I('s_lshl_b32 s37, s31, 5')
        k.I('v_xor_b32 v4, s37, v4')
        for s in range(8):
            k.I('v_xor_b32 v5, %d, v4' % (32 * s))
            k.I('v_add_u32 %s, v2, v5' % vr(XA + s))
        k.I('v_bfe_u32 v4, v1, 2, 2')
        k.I('v_lshl_add_u32 v4, v3, 3, v4')
        k.I('v_lshlrev_b32 v4, 7, v4')
        k.I('v_bfe_u32 v5, v1, 4, 1')
        k.I('v_lshlrev_b32 v5, 1, v5')
        k.I('v_bfe_u32 v6, v1, 1, 1')
        k.I('v_add_u32 v5, v5, v6')
        k.I('s_lshl_b32 s37, s30, 2')
        k.I('v_add_u32 v5, s37, v5')
        k.I('v_bfe_u32 v6, v1, 3, 1')
        k.I('v_lshlrev_b32 v6, 2, v6')
        k.I('v_xor_b32 v5, v5, v6')
        k.I('v_lshlrev_b32 v5, 4, v5')
        k.I('v_and_b32 v6, 1, v1')
        k.I('v_lshlrev_b32 v6, 3, v6')
        k.I('v_add3_u32 v4, v4, v5, v6')
        k.I('s_lshl_b32 s37, s31, 11')
        k.I('v_add_u32 %s, s37, v4' % vr(WE))
        k.I('s_xor_b32 s37, s37, 2048')
        k.I('v_add_u32 %s, s37, v4' % vr(WO_))
        k.I('v_add_u32 %s, 0x10000, %s' % (vr(WE2), vr(WE)))
        k.I('v_add_u32 %s, 0x10000, %s' % (vr(WO2), vr(WO_)))
        k.I('v_bfe_u32 v5, v1, 4, 1')
        k.I('v_and_b32 v6, 1, v1')
        k.I('v_cmp_eq_u32 vcc, v5, v6')
        k.I('v_mov_b32 v5, s70')
        k.I('v_cndmask_b32 v5, 0, v5, vcc')
        for j in range(4):
            k.I('v_accvgpr_write_b32 a%d, v5' % (4 + j))
        k.I('s_lshl_b32 s72, s29, 1')
        k.I('s_add_u32 s73, s72, s30')
        k.I('s_lshl_b32 s73, s73, 8')
        k.I('s_add_u32 s73, s73, %d' % E_ST)
        k.I('s_xor_b32 s74, s73, 256')
        k.I('s_lshl_b32 s75, s30, 1')
        k.I('s_add_u32 s75, s75, s29')
        k.I('s_lshl_b32 s75, s75, 7')
        k.I('s_add_u32 s75, s75, %d' % E_CS)
        k.I('s_xor_b32 s76, s75, 128')
        k.I('s_lshl_b32 s77, s39, 8')
        k.I('s_add_u32 s77, s77, %d' % E_TB)
        k.I('s_lshl_b32 s40, s28, 2')
        k.I('s_add_u32 s40, s40, %d' % E_FL)
        k.I('s_xor_b32 s41, s40, 4')
        k.I('v_and_b32 v0, 31, v1')
        k.I('v_lshlrev_b32 v0, 2, v0')
        k.I('v_and_b32 v26, 16, v1')
        k.I('v_cmp_ne_u32 s[82:83], 0, v26')
        k.I('v_lshlrev_b32 %s, 4, v1' % vr(LN16))

    def xread(n):
        c, s = n // 8, n % 8
        return 'ds_read_b128 %s, %s offset:%d' % (vr(X + 4 * n, 4), vr(XA + s), (c % 2) * 32768)

    def wreads(part, ks):
        c, s = ks // 8, ks % 8
        slot = WSLOT[(part, c)]
        a = ((WE, WO_) if slot < 4 else (WE2, WO2))[s & 1]
        off = (slot % 4) * 16384 + (s & ~1) * 2048
        return ['ds_read_b64_tr_b16 %s, %s offset:%d' % (vr(WR + 4 * s, 2), vr(a), off),
                'ds_read_b64_tr_b16 %s, %s offset:%d' % (vr(WR + 4 * s + 2, 2), vr(a), off + 512)]

    def stats_finish_ops():
        return ['v_lshlrev_b32 v26, 1, v0', 'v_add_u32 v27, s74, v26', 'v_add_u32 v26, s73, v26',
                'ds_read_b64 v[24:25], v26', 'ds_read_b64 v[28:29], v27',
                'v_add_f32 v24, v24, v28', 'v_add_f32 v25, v25, v29',
                'v_mul_f32 %s, 0x%x, v24' % (vr(MEAN), f2u(1.0 / 512)),
                'v_mul_f32 v25, 0x%x, v25' % f2u(1.0 / 512),
                'v_fma_f32 v25, -%s, %s, v25' % (vr(MEAN), vr(MEAN)),
                'v_max_f32 v25, 0, v25', 'v_add_f32 v25, 0x%x, v25' % f2u(1e-5), 'v_rsq_f32 %s, v25' % vr(RSTD)]

    kk = Kernel('a_kv')
    k = kk
    st = Stamper(k, 1, ws, base=88, tmp=40)
    ACK, ACV = 48, 64
    MN, RS = 16, 32
    k.I('s_lshl_b32 s38, s2, 2')
    k.I('s_add_u32 s38, s38, s28')
    k.I('s_mov_b32 s19, 0x00020000')
    k.I('s_mov_b32 s23, 0x00020000')
    k.I('s_and_b32 s34, s2, 7')
    k.I('s_lshr_b32 s35, s2, 3')
    k.I('s_and_b32 s36, s34, 3')
    k.I('s_lshl_b32 s36, s36, 19')
    k.I('s_lshl_b32 s37, s35, 14')
    k.I('s_add_u32 s36, s36, s37')
    k.I('s_lshl_b32 s37, s28, 12')
    k.I('s_add_u32 s36, s36, s37')
    k.I('v_and_b32 v8, 31, v1')
    k.I('v_lshlrev_b32 v8, 7, v8')
    k.I('v_lshrrev_b32 v9, 2, v1')
    k.I('s_movk_i32 s37, 3072')
    k.I('v_mul_lo_u32 v9, v9, s37')
    k.I('v_and_b32 v10, 3, v1')
    k.I('v_lshl_add_u32 v9, v10, 7, v9')
    k.I('s_mul_i32 s35, s35, %d' % (16 * 3072))
    k.I('s_lshr_b32 s34, s34, 2')
    k.I('s_lshl_b32 s34, s34, 9')
    k.I('s_add_u32 s35, s35, s34')
    k.I('s_lshl_b32 s34, s28, 10')
    k.I('s_add_u32 s35, s35, s34')
    k.I('s_waitcnt lgkmcnt(0)')
    if not OPT.get('nowarm'):
        k.I('buffer_load_dword v10, v8, %s, s36 offen' % sr(XS, 4))
        k.I('buffer_load_dword v11, v9, %s, s35 offen' % sr(WQ, 4))
    prep_decode(k)
    common_setup(k)
    for j in range(4):
        k.I('v_accvgpr_write_b32 a%d, s70' % j)
    k.I('s_lshl_b32 s37, s33, 2')
    k.I('s_add_u32 s37, s37, s28')
    k.I('s_lshl_b32 s37, s37, 11')
    k.I('s_add_u32 s71, s37, 0x%x' % OFF_KVZ)
    k.I('s_lshl_b32 s78, s33, 2')
    k.I('v_lshlrev_b32 v8, 2, v1')
    k.I('v_add_u32 v8, %d, v8' % E_FL)
    k.I('v_mov_b32 v9, 0')
    k.I('v_cmp_gt_u32 vcc, 16, v1')
    k.I('s_and_saveexec_b64 s[60:61], vcc')
    k.I('ds_write_b32 v8, v9')
    k.I('s_mov_b64 exec, s[60:61]')
    k.I('s_waitcnt lgkmcnt(0)')
    S = Sched(64)
    GS = [0, 8, 16, 24, 32, 48]
    pre = ['s_barrier']
    for n in range(LA):
        pre += [xread(n)] + wreads('k', n)
    for g in range(1, 6):
        S.at(GS[g] - LA - 1, ['s_barrier'])
    S.at(47, ['s_barrier'])
    S.at(62, ['s_barrier'])
    for n in range(64):
        part = 'kv'[n // 32]
        s = n % 8
        m = n + LA
        if m < 64:
            if m == 16:
                S.at(n, ['v_add_u32 %s, 0x10000, %s' % (vr(XA + t), vr(XA + t)) for t in range(8)])
            S.at(n, ([xread(m)] if m < 32 else []) + wreads('kv'[m // 32], m % 32))
        if s % 2 == 0:
            ca = ar(8 + 4 * (n // 32), 4)
            S.at(n, ['v_mfma_f32_16x16x32_bf16 %s, a[4:7], %s, %s' % (ca, vr(WR + 4 * s, 4), '0' if n % 32 == 0 else ca)])

    def lane_form(dst, a0, tmp):
        return ['v_accvgpr_read_b32 %s, a%d' % (vr(dst), a0), 'v_accvgpr_read_b32 %s, a%d' % (vr(tmp), a0 + 1),
                'v_cndmask_b32 %s, %s, %s, s[82:83]' % (vr(dst), vr(dst), vr(tmp))]
    S.at(31, lane_form(CK, 8, 27) + ['v_add_u32 v26, s75, v0', 'ds_write_b32 v26, %s' % vr(CK), 's_waitcnt lgkmcnt(0)'])
    S.at(33, ['s_barrier', 'v_add_u32 v26, s76, v0', 'ds_read_b32 v30, v26'] + stats_finish_ops() +
         ['v_add_f32 %s, %s, v30' % (vr(CK), vr(CK)),
          'v_add_u32 v26, s77, v0', 'ds_write_b32 v26, %s' % vr(MEAN), 'ds_write_b32 v26, %s offset:128' % vr(RSTD),
          'v_lshrrev_b32 v26, 5, v1', 'v_lshlrev_b32 v26, 4, v26', 'v_add_u32 %s, s77, v26' % vr(T0)])
    rd = []
    for a in range(4):
        rd.append('ds_read_b128 %s, %s offset:%d' % (vr(MN + 4 * a, 4), vr(T0), a * 32))
        rd.append('ds_read_b128 %s, %s offset:%d' % (vr(RS + 4 * a, 4), vr(T0), 128 + a * 32))
    S.at(34, rd)
    ke = []
    for i in range(0, 16, 2):
        ke += ln_phi_ops([ACK + i, ACK + i + 1], [MN + i, MN + i + 1], [CK, CK], [RS + i, RS + i + 1], [8, 9])
        ke.append('v_cvt_pk_bf16_f32 %s, %s, %s' % (vr(ACK + i // 2), vr(ACK + i), vr(ACK + i + 1)))
    S.spread(36, 61, ke)
    S.at(46, ['v_mov_b32 v6, 0', 'buffer_load_dword v11, v6, %s, s78 offen sc1' % sr(DB, 4)])
    pd = ['v_lshrrev_b32 v10, 3, v1', 'v_mul_lo_u32 v10, v10, s50', 'v_and_b32 v6, 7, v1', 'v_lshlrev_b32 v6, 4, v6',
          'v_add_u32 v10, v10, v6', 's_lshl_b32 s80, s50, 3', 's_lshl_b32 s79, s28, 13']
    for t in range(8):
        base = 's48' if t < 4 else 's49'
        pd.append('s_add_u32 m0, s79, %d' % (t * 1024))
        pd.append(('buffer_load_dwordx4 v10, %s, %s offen lds' % (sr(PA if t < 4 else PB, 4), base), 'prep'))
        pd.append('s_add_u32 %s, %s, s80' % (base, base))
    S.spread(48, 61, pd)
    for o in pre:
        emit(k, o)
    st.stamp()
    for n in range(64):
        part, ks = n // 32, n % 32
        acc = vr([ACK, ACV][part], 16)
        if n % 2 == 0:
            k.touch(vr(WR + 4 * ((n + 1) % 8), 4))
            if part == 0:
                k.touch(vr(X + 4 * (ks + 1), 4))
        k.I('v_mfma_f32_32x32x16_bf16 %s, %s, %s, %s' % (acc, vr(X + 4 * ks, 4), vr(WR + 4 * (n % 8), 4), acc if ks else '0'))
        for o in S.slots[n]:
            emit(k, o)
        if n in (31,):
            st.stamp()
    st.stamp()
    TT = ACK + 8
    for o in lane_form(CV, 12, TT) + ['v_add_u32 %s, s75, v0' % vr(TT), 'ds_write_b32 %s, %s offset:512' % (vr(TT), vr(CV))] + \
            pair_signal(40, TT + 1, TT + 2):
        emit(k, o)
    pair_wait(k, 'L_a_pw0', 41, TT + 1, TT + 2, 79)
    for o in ['v_add_u32 %s, s76, v0' % vr(TT), 'ds_read_b32 %s, %s offset:512' % (vr(TT + 1), vr(TT)),
              'v_add_f32 %s, %s, %s' % (vr(CV), vr(CV), vr(TT + 1))]:
        emit(k, o)
    for i in range(16):
        k.I('v_fma_f32 %s, -%s, %s, %s' % (vr(ACV + i), vr(MN + i), vr(CV), vr(ACV + i)))
    for i in range(16):
        k.I('v_mul_f32 %s, %s, %s' % (vr(ACV + i), vr(RS + i), vr(ACV + i)))
    for j in range(8):
        k.I('v_cvt_pk_bf16_f32 %s, %s, %s' % (vr(ACV + j), vr(ACV + 2 * j), vr(ACV + 2 * j + 1)))
    DKV, DZ = 16, 32
    k.I('v_mfma_f32_32x32x16_bf16 %s, %s, %s, 0' % (vr(DKV, 16), vr(ACK, 4), vr(ACV, 4)))
    k.I('v_mfma_f32_32x32x16_bf16 %s, %s, a[0:3], 0' % (vr(DZ, 16), vr(ACK, 4)))
    k.I('v_mfma_f32_32x32x16_bf16 %s, %s, %s, %s' % (vr(DKV, 16), vr(ACK + 4, 4), vr(ACV + 4, 4), vr(DKV, 16)))
    k.I('v_mfma_f32_32x32x16_bf16 %s, %s, a[0:3], %s' % (vr(DZ, 16), vr(ACK + 4, 4), vr(DZ, 16)))
    for o in ['v_and_b32 %s, 16, v1' % vr(TT), 'v_lshlrev_b32 %s, 7, %s' % (vr(TT), vr(TT)),
              'v_lshrrev_b32 %s, 5, v1' % vr(TT + 1), 'v_lshlrev_b32 %s, 10, %s' % (vr(TT + 1), vr(TT + 1)),
              's_lshl_b32 s79, s30, 1', 's_add_u32 s79, s79, s29', 's_lshl_b32 s79, s79, 12', 's_add_u32 s79, s79, %d' % E_KV,
              'v_add3_u32 %s, %s, %s, s79' % (vr(TT), vr(TT), vr(TT + 1)),
              'v_and_b32 %s, 15, v1' % vr(TT + 1), 'v_lshl_add_u32 %s, %s, 5, %s' % (vr(TT + 2), vr(TT + 1), vr(TT)),
              's_add_u32 s40, s40, 16', 's_add_u32 s41, s41, 16']:
        emit(k, o)
    for j in range(8):
        k.I('v_cndmask_b32 %s, %s, %s, s[82:83]' % (vr(DKV + j), vr(DKV + j), vr(DKV + 8 + j)))
    for j in range(8):
        k.I('v_cndmask_b32 %s, %s, %s, s[82:83]' % (vr(DZ + j), vr(DZ + j), vr(DZ + 8 + j)))
    for o in ['ds_write_b128 %s, %s' % (vr(TT + 2), vr(DKV, 4)), 'ds_write_b128 %s, %s offset:16' % (vr(TT + 2), vr(DKV + 4, 4)),
              'v_cmp_eq_u32 vcc, 0, %s' % vr(TT + 1), 's_and_saveexec_b64 s[60:61], vcc',
              'ds_write_b128 %s, %s offset:512' % (vr(TT), vr(DZ, 4)), 'ds_write_b128 %s, %s offset:528' % (vr(TT), vr(DZ + 4, 4)),
              's_mov_b64 exec, s[60:61]'] + pair_signal(40, TT + 1, TT + 2) + \
            ['s_lshl_b32 s79, s30, 13', 's_lshl_b32 s80, s29, 11', 's_add_u32 s79, s79, s80', 's_add_u32 s79, s79, %d' % E_KV]:
        emit(k, o)
    pair_wait(k, 'L_a_pw1', 41, TT + 1, TT + 2, 80)
    k.I('v_lshlrev_b32 %s, 2, v1' % vr(TT))
    k.I('v_add_u32 %s, s79, %s' % (vr(TT + 1), vr(TT)))
    for half in range(2):
        for ch in range(3):
            d = 16 + (half * 3 + ch) * 2
            off = half * 1024 + ch * 256
            k.I('ds_read_b32 %s, %s offset:%d' % (vr(d), vr(TT + 1), off))
            k.I('ds_read_b32 %s, %s offset:%d' % (vr(d + 1), vr(TT + 1), off + 4096))
    for half in range(2):
        for ch in range(3):
            d = 16 + (half * 3 + ch) * 2
            k.I('v_add_f32 %s, %s, %s' % (vr(d), vr(d), vr(d + 1)))
    k.I('v_readfirstlane_b32 s79, v11')
    k.I('s_cmp_eq_u32 s79, 0')
    k.I('s_cbranch_scc1 L_a_spin')
    k.label('L_a_go')
    for half in range(2):
        for ch in range(2):
            d = 16 + (half * 3 + ch) * 2
            k.I('buffer_atomic_add_f32 %s, %s, %s, s71 offen offset:%d' % (vr(d), vr(TT), ws, half * 1024 + ch * 256))
    k.I('v_cmp_gt_u32 vcc, 8, v1')
    k.I('s_and_saveexec_b64 s[60:61], vcc')
    for half in range(2):
        d = 16 + (half * 3 + 2) * 2
        k.I('buffer_atomic_add_f32 %s, %s, %s, s71 offen offset:%d' % (vr(d), vr(TT), ws, half * 1024 + 512))
    k.I('s_mov_b64 exec, s[60:61]')
    st.stamp()
    for o in ['v_bfe_u32 v16, v1, 2, 2', 'v_lshrrev_b32 v17, 5, v1', 'v_lshl_add_u32 v16, v17, 2, v16', 'v_lshlrev_b32 v16, 7, v16',
              'v_and_b32 v17, 3, v1', 'v_lshl_add_u32 v16, v17, 3, v16', 'v_bfe_u32 v17, v1, 4, 1',
              's_cmp_eq_u32 s68, 1', 's_cselect_b32 s79, 12, 5', 's_cselect_b32 s60, 32, 64', 's_cselect_b32 s61, 64, 2048',
              's_cselect_b32 s62, 11, 12', 's_lshl_b32 s62, 1, s62',
              'v_lshlrev_b32 v17, s79, v17', 's_lshl_b32 s80, s28, 13', 'v_add3_u32 v16, v16, v17, s80',
              'v_add_u32 v17, s60, v16', 'v_add_u32 v18, s61, v16', 'v_add_u32 v19, s61, v17']:
        k.I(o)
    PAD = [16, 17, 18, 19]
    for f in range(4):
        k.I('v_add_u32 %s, s62, %s' % (vr(20 + f), vr(PAD[f])))
    PAD += [20, 21, 22, 23]
    PF = X
    k.need('prep')
    for f in range(8):
        k.I('ds_read_b64_tr_b16 %s, %s' % (vr(PF + 4 * f, 2), vr(PAD[f])))
        k.I('ds_read_b64_tr_b16 %s, %s offset:1024' % (vr(PF + 4 * f + 2, 2), vr(PAD[f])))
    for f in range(8):
        k.I('buffer_store_dwordx4 %s, %s, %s, %s offen' % (vr(PF + 4 * f, 4), vr(LN16), ws, sr(51 + f)))
        ca = ar(8 + 4 * (f & 1), 4) if False else None
    for f in range(8):
        ca = vr(32 + 4 * (f & 3), 4)
        k.I('v_mfma_f32_16x16x32_bf16 %s, a[4:7], %s, %s' % (ca, vr(PF + 4 * f, 4), '0' if f < 4 else ca))
    for c in range(4):
        k.I('v_cndmask_b32 %s, %s, %s, s[82:83]' % (vr(48 + c), vr(32 + 4 * c), vr(33 + 4 * c)))
        k.I('buffer_store_dword %s, v0, %s, s59 offen offset:%d' % (vr(48 + c), ws, c * 128))
    if gen1.STAMPS:
        k.I('s_mov_b32 s88, s88') if False else None
        k.I('v_lshl_add_u32 v4, s39, 6, v1')
        st.tid = 'v4'
        st.stamp(); st.stamp(True)
        flush_stamps(k, st, ws, 1)
    k.label('L_a_end')
    k.I('s_endpgm')
    k.raw('''L_a_spin:
    s_sleep 2
    v_mov_b32 v6, 0
    buffer_load_dword v11, v6, s[%d:%d], s78 offen sc1
    s_waitcnt vmcnt(0)
    v_readfirstlane_b32 s79, v11
    s_nop 3
    s_cmp_eq_u32 s79, 0
    s_cbranch_scc1 L_a_spin
    s_branch L_a_go
''' % (DB, DB + 3))

    kq = Kernel('a_q')
    k = kq
    k.label('L_a_q')
    stq = Stamper(k, 5, ws, base=88, tmp=40)
    ACQ = 48
    k.I('s_lshl_b32 s34, s28, 12')
    k.I('s_lshl_b32 s35, s32, 16')
    k.I('s_mul_i32 s36, s28, %d' % (32 * 3072))
    k.I('s_lshl_b32 s37, s33, 7')
    k.I('s_add_u32 s36, s36, s37')
    k.I('s_add_u32 s38, s32, s33')
    if OPT.get('norot'):
        k.I('s_mov_b32 s38, 0')
    for c in range(4):
        k.I('s_add_u32 s37, s38, %d' % c)
        k.I('s_and_b32 s37, s37, 3')
        k.I('s_lshl_b32 %s, s37, 8' % sr(60 + c))
        k.I('s_add_u32 %s, %s, s35' % (sr(60 + c), sr(60 + c)))
        k.I('s_mul_i32 %s, s37, %d' % (sr(64 + c), 128 * 3072))
        k.I('s_add_u32 %s, %s, s36' % (sr(64 + c), sr(64 + c)))
    XV = [32, 33, 34, 35]
    WV = [8, 9, 10, 11]
    k.I('v_lshrrev_b32 v2, 4, v1')
    k.I('v_and_b32 v3, 15, v1')
    k.I('s_lshl_b32 s37, s28, 4')
    for j in range(4):
        k.I('v_add_u32 v4, %d, v2' % (4 * j))
        k.I('v_xor_b32 v5, v3, v4')
        k.I('v_lshlrev_b32 v5, 4, v5')
        k.I('v_add_u32 v4, s37, v4')
        k.I('v_lshlrev_b32 v4, 10, v4')
        k.I('v_add_u32 v4, v4, v5')
        k.I('v_subrev_u32 %s, %d, v4' % (vr(XV[j]), j * 1024))
    k.I('v_lshrrev_b32 v4, 3, v1')
    k.I('s_movk_i32 s37, 3072')
    k.I('v_mul_lo_u32 v4, v4, s37')
    k.I('v_and_b32 v5, 1, v2')
    k.I('v_lshlrev_b32 v5, 2, v5')
    k.I('v_and_b32 v6, 7, v1')
    k.I('v_xor_b32 v5, v5, v6')
    k.I('v_lshlrev_b32 v5, 4, v5')
    k.I('v_add_u32 v8, v4, v5')
    for j in range(1, 4):
        k.I('v_add_u32 %s, %d, v8' % (vr(WV[j]), j * (8 * 3072 - 1024)))
    k.I('v_lshlrev_b32 %s, 4, v1' % vr(LN16))
    for j in range(4):
        k.I('v_mov_b32 %s, 0' % vr(40 + j))
    k.I('s_lshl_b32 s37, s33, 2')
    k.I('s_add_u32 s37, s37, s28')
    k.I('s_lshl_b32 s37, s37, 11')
    k.I('s_add_u32 s71, s37, 0x%x' % OFF_KVZ)
    k.I('s_cmp_eq_u32 s32, 0')
    k.I('s_cselect_b32 s37, s71, 0x7fff0000')
    k.I('s_waitcnt lgkmcnt(0)')
    if OPT.get('qpro'): stq.stamp()
    k.I('buffer_store_dwordx4 v[40:43], %s, %s, s37 offen sc1' % (vr(LN16), ws), w=['zero'])
    k.I('buffer_store_dwordx4 v[40:43], %s, %s, s37 offen offset:1024 sc1' % (vr(LN16), ws), w=['zero'])
    k.I('s_lshl_b32 s37, s2, 7')
    k.I('s_add_u32 s37, s37, 0x%x' % OFF_CNT)
    k.I('s_lshl_b32 s38, s28, 5')
    k.I('s_or_b32 s38, s38, s2')
    k.I('s_cmp_lt_u32 s38, 32')
    k.I('s_cselect_b32 s37, s37, 0x7fff0000')
    k.I('buffer_store_dword v40, v41, %s, s37 offen' % ws)

    def dma_x_ops(c, slot):
        ops = ['s_add_u32 m0, s34, %d' % (slot * 16384)]
        for j in range(4):
            ops.append(('buffer_load_dwordx4 %s, %s, %s offen offset:%d lds' % (vr(XV[j]), sr(XS, 4), sr(60 + c), j * 1024), 'X%d' % c))
        return ops
    PARTCOL = {'q': 0, 'k': 1024, 'v': 2048}

    def dma_w_ops(part, c, slot):
        ops = ['s_add_u32 m0, s34, %d' % (slot * 16384), 's_add_u32 s69, %s, %d' % (sr(64 + c), PARTCOL[part])]
        for j in range(4):
            ops.append(('buffer_load_dwordx4 %s, %s, s69 offen offset:%d lds' % (vr(WV[j]), sr(WQ, 4), j * 1024), 'W%s%d' % (part, c)))
        return ops
    def interleave(a, b, ratio=None):
        nv = sum(1 for o in a if isinstance(o, tuple))
        out, ib, seen = [], 0, 0
        for o in a:
            out.append(o)
            if isinstance(o, tuple):
                seen += 1
                upto = len(b) * seen // nv
                out += b[ib:upto]
                ib = upto
        return out + b[ib:]
    grp = lambda c: dma_x_ops(c, 2 * c) + dma_w_ops('k', c, 2 * c + 1)
    for o in grp(0):
        emit(k, o)
    ktmp = Kernel('tmp')
    common_setup(ktmp)
    setup_ops = [it.text for it in ktmp.items]
    for o in interleave(grp(1), setup_ops):
        emit(k, o)
    stq.stamp()
    SQ = 24
    k.I('v_mov_b32 v24, 0')
    k.I('v_mov_b32 v25, 0')
    nextdma = {0: grp(2), 1: grp(3), 2: dma_w_ops('v', 0, 0) + dma_w_ops('v', 1, 1), 3: dma_w_ops('v', 2, 2) + dma_w_ops('v', 3, 3)}
    for g in range(4):
        if OPT.get('qg') == (g,): stq.stamp()
        k.need(*(['X%d' % g, 'Wk%d' % g] + (['zero'] if g == 0 else [])))
        if OPT.get('qg') == (g,): stq.stamp()
        k.I('s_barrier')
        if OPT.get('qg') == (g,): stq.stamp()
        work = []
        if g == 0:
            work += ['s_or_b32 s38, s32, s28', 's_cmp_eq_u32 s38, 0', 's_cselect_b32 s38, 0, 0x1000',
                     'v_lshlrev_b32 v26, 12, v1', 's_lshl_b32 s78, s33, 2', 'v_add_u32 v26, s78, v26', 'v_mov_b32 v27, 1']
        if g == 2:
            work += ['v_add_u32 %s, 0x10000, %s' % (vr(XA + t), vr(XA + t)) for t in range(8)]
        work += [xread(8 * g + s) for s in range(8)]
        for s in range(0, 8, 2):
            n = 8 * g + s
            work.append('v_mfma_f32_16x16x32_bf16 a[8:11], a[4:7], %s, %s' % (vr(X + 4 * n, 4), '0' if n == 0 else 'a[8:11]'))
            for j in range(4):
                xr = X + 4 * n + j
                work.append('v_dot2c_f32_bf16 %s, %s, %s' % (vr(SQ + (j & 1)), vr(xr), vr(xr)))
        if OPT.get('noqwork'):
            work = [w for w in work if not (w.startswith('v_mfma') or w.startswith('v_dot2c'))]
        if OPT.get('qafter'):
            for o in nextdma[g] + work:
                emit(k, o)
        else:
            for o in interleave(nextdma[g], work):
                emit(k, o)
        if OPT.get('qg') == (g,): stq.stamp()
        if g == 0:
            k.I('buffer_store_dword v27, v26, %s, s38 offen sc1' % sr(DB, 4))
    if not (OPT.get('qpro') or OPT.get('qg')): stq.stamp()
    k.need('Wv0', 'Wv1')
    k.I('s_waitcnt lgkmcnt(0)')
    k.I('s_barrier')
    for o in dma_w_ops('q', 0, 4) + dma_w_ops('q', 1, 5):
        emit(k, o)
    for o in ['v_add_f32 v25, v24, v25'] + xhalf_ops(25, 26) + \
            ['v_accvgpr_read_b32 v24, a8', 'v_accvgpr_read_b32 v27, a9', 'v_cndmask_b32 v24, v24, v27, s[82:83]',
             'v_lshlrev_b32 v26, 1, v0', 'v_add_u32 v26, s73, v26', 'ds_write_b64 v26, v[24:25]', 's_waitcnt lgkmcnt(0)',
             's_barrier'] + stats_finish_ops():
        emit(k, o)
    k.need('Wv2', 'Wv3')
    k.I('s_barrier')
    for o in dma_w_ops('q', 2, 6) + dma_w_ops('q', 3, 7):
        emit(k, o)
    k.need('Wq0', 'Wq1')
    k.I('s_barrier')
    if not (OPT.get('qpro') or OPT.get('qg')): stq.stamp()
    for n in range(LA):
        for o in wreads('q', n):
            k.I(o)
    for n in range(32):
        if n % 2 == 0:
            k.touch(vr(WR + 4 * ((n + 1) % 8), 4))
        acc = vr(ACQ, 16)
        k.I('v_mfma_f32_32x32x16_bf16 %s, %s, %s, %s' % (acc, vr(WR + 4 * (n % 8), 4), vr(X + 4 * n, 4), acc if n else '0'))
        if n == 16 - LA - 1:
            k.need('Wq2', 'Wq3')
            k.I('s_barrier')
        if n + LA < 32:
            for o in wreads('q', n + LA):
                k.I(o)
        if n % 2 == 0:
            k.I('v_mfma_f32_16x16x32_bf16 a[12:15], a[4:7], %s, %s' % (vr(WR + 4 * (n % 8), 4), '0' if n == 0 else 'a[12:15]'))
    if not (OPT.get('qpro') or OPT.get('qg')): stq.stamp()
    CSQ = 64
    for o in ['v_accvgpr_read_b32 %s, a12' % vr(CSQ), 'v_accvgpr_read_b32 %s, a13' % vr(CSQ + 1),
              'v_cndmask_b32 %s, %s, %s, s[82:83]' % (vr(CSQ), vr(CSQ), vr(CSQ + 1)),
              'v_add_u32 %s, s75, v0' % vr(CSQ + 1), 'ds_write_b32 %s, %s offset:1024' % (vr(CSQ + 1), vr(CSQ)),
              's_add_u32 s40, s40, 32', 's_add_u32 s41, s41, 32'] + pair_signal(40, CSQ + 1, CSQ + 2) + \
             ['v_lshrrev_b32 v20, 5, v1', 'v_lshlrev_b32 v20, 4, v20', 'v_add_u32 v21, s76, v20', 'v_add_u32 v20, s75, v20']:
        k.I(o)
    pair_wait(k, 'L_a_pw2', 41, CSQ + 1, CSQ + 2, 79)
    CQ, CQ2 = 24, 64
    for a in range(4):
        k.I('ds_read_b128 %s, v20 offset:%d' % (vr(CQ + 4 * a, 4), 1024 + a * 32))
        k.I('ds_read_b128 %s, v21 offset:%d' % (vr(CQ2 + 4 * a, 4), 1024 + a * 32))
    for i in range(16):
        k.I('v_add_f32 %s, %s, %s' % (vr(CQ + i), vr(CQ + i), vr(CQ2 + i)))
    for i in range(0, 16, 2):
        for o in ln_phi_ops([ACQ + i, ACQ + i + 1], [MEAN, MEAN], [CQ + i, CQ + i + 1], [RSTD, RSTD], [22, 23]):
            k.I(o)
        k.I('v_cvt_pk_bf16_f32 %s, %s, %s' % (vr(ACQ + i // 2), vr(ACQ + i), vr(ACQ + i + 1)))
    for o in ['s_lshl_b32 s79, s32, 1', 's_add_u32 s79, s79, s29', 's_lshl_b32 s79, s79, 5', 's_lshl_b32 s80, s33, 2',
              's_add_u32 s79, s79, s80', 's_lshl_b32 s80, s30, 1', 's_add_u32 s79, s79, s80', 's_lshl_b32 s79, s79, 10',
              's_add_u32 s79, s79, 0x%x' % OFF_PQ]:
        k.I(o)
    k.I('buffer_store_dwordx4 %s, %s, %s, s79 offen' % (vr(ACQ, 4), vr(LN16), ws))
    k.I('buffer_store_dwordx4 %s, %s, %s, s79 offen offset:1024' % (vr(ACQ + 4, 4), vr(LN16), ws))
    if gen1.STAMPS:
        k.I('v_lshl_add_u32 v4, s39, 6, v1')
        k.I('v_subrev_u32 v4, 256, v4')
        stq.tid = 'v4'
        stq.stamp(); stq.stamp(True)
        flush_stamps(k, stq, ws, 5)
    k.I('s_endpgm')
    return Multi([kp, kq_first(kk, kq)[0], kq_first(kk, kq)[1]]), dict(lds=131072 + 8192 + 16384, grid=256, block=512)


def kq_first(kk, kq):
    return kk, kq


def flush_stamps(k, st, ws, kidx):
    k.I('s_waitcnt lgkmcnt(0)')
    k.I('v_cmp_eq_u32 vcc, 0, %s' % st.tid)
    k.I('s_and_saveexec_b64 s[40:41], vcc')
    k.I('s_lshl_b32 s42, s2, 7')
    k.I('s_add_u32 s42, s42, 0x%x' % (OFF_TS + kidx * 256 * 128))
    k.I('v_mov_b32 v0, 0')
    regs = [84, 86] + [st.base + 2 * i for i in range(st.n)]
    for i, r in enumerate(regs):
        k.I('v_mov_b32 v2, s%d' % r)
        k.I('v_mov_b32 v3, s%d' % (r + 1))
        k.I('buffer_store_dwordx2 v[2:3], v0, %s, s42 offen offset:%d' % (ws, 8 * i))
    k.I('s_mov_b64 exec, s[40:41]')


def prep_decode(k):
    k.I('s_cmp_ge_u32 s38, 448')
    k.I('s_cbranch_scc1 L_a_pstd')
    div_const(k, 37, 38, 28, 48)
    k.I('s_mul_i32 s48, s37, 28')
    k.I('s_sub_u32 s69, s38, s48')
    k.I('s_mov_b32 s16, s44')
    k.I('s_mov_b32 s17, s45')
    k.I('s_mov_b32 s18, 0x%x' % SZ['wg'])
    k.I('s_mov_b32 s20, s46')
    k.I('s_mov_b32 s21, s47')
    k.I('s_mov_b32 s22, 0x%x' % SZ['wu'])
    k.I('s_movk_i32 s50, 3584')
    k.I('s_mul_i32 s48, s37, %d' % (32 * 3584))
    k.I('s_lshl_b32 s49, s69, 7')
    k.I('s_add_u32 s48, s48, s49')
    k.I('s_mov_b32 s49, s48')
    k.I('s_lshl_b32 s59, s69, 7')
    k.I('s_lshl_b32 s51, s37, 1')
    k.I('s_add_u32 s59, s59, s51')
    k.I('s_lshl_b32 s59, s59, 10')
    k.I('s_add_u32 s72, s59, 0x%x' % OFF_WGU)
    k.I('s_mov_b32 s73, %d' % (32 * 1024))
    k.I('s_mov_b32 s74, %d' % (64 * 1024))
    k.I('s_mov_b32 s75, 1024')
    k.I('s_mul_i32 s59, s37, %d' % (112 * 128))
    k.I('s_lshl_b32 s69, s69, 9')
    k.I('s_add_u32 s59, s59, s69')
    k.I('s_add_u32 s59, s59, 0x%x' % OFF_CSG)
    k.I('s_mov_b32 s68, 1')
    k.I('s_branch L_a_pgo')
    k.label('L_a_pstd')
    k.I('s_movk_i32 s50, 1024')
    k.I('s_mov_b32 s68, 0')
    k.I('s_mov_b32 s59, 0x7fff0000')
    k.I('s_cmp_ge_u32 s38, 672')
    k.I('s_cbranch_scc1 L_a_pwo')
    k.I('s_sub_u32 s37, s38, 448')
    k.I('s_and_b32 s69, s37, 7')
    k.I('s_lshr_b32 s37, s37, 3')
    k.I('s_mov_b32 s16, s42')
    k.I('s_mov_b32 s17, s43')
    k.I('s_mov_b32 s18, 0x%x' % SZ['wd'])
    k.I('s_mul_i32 s48, s69, 224')
    k.I('s_lshl_b32 s49, s37, 2')
    k.I('s_add_u32 s48, s48, s49')
    k.I('s_lshl_b32 s48, s48, 10')
    k.I('s_add_u32 s72, s48, 0x%x' % OFF_WD)
    k.I('s_mov_b32 s73, %d' % (112 * 1024))
    k.I('s_mov_b32 s74, 1024')
    k.I('s_mov_b32 s75, 2048')
    k.I('s_branch L_a_pstd2')
    k.label('L_a_pwo')
    k.I('s_sub_u32 s37, s38, 672')
    k.I('s_and_b32 s69, s37, 7')
    k.I('s_lshr_b32 s37, s37, 3')
    k.I('s_mov_b32 s16, s40')
    k.I('s_mov_b32 s17, s41')
    k.I('s_mov_b32 s18, 0x%x' % SZ['wo'])
    k.I('s_lshl_b32 s48, s37, 6')
    k.I('s_lshl_b32 s49, s69, 1')
    k.I('s_add_u32 s48, s48, s49')
    k.I('s_lshl_b32 s48, s48, 10')
    k.I('s_add_u32 s72, s48, 0x%x' % OFF_WO)
    k.I('s_cmp_ge_u32 s38, 736')
    k.I('s_cselect_b32 s72, 0x7fff0000, s72')
    k.I('s_cselect_b32 s18, 0, s18')
    k.I('s_mov_b32 s73, 1024')
    k.I('s_mov_b32 s74, %d' % (16 * 1024))
    k.I('s_mov_b32 s75, %d' % (32 * 1024))
    k.label('L_a_pstd2')
    k.I('s_mov_b32 s20, s16')
    k.I('s_mov_b32 s21, s17')
    k.I('s_mov_b32 s22, s18')
    k.I('s_lshl_b32 s48, s37, 16')
    k.I('s_lshl_b32 s49, s69, 7')
    k.I('s_add_u32 s48, s48, s49')
    k.I('s_add_u32 s49, s48, %d' % (32 * 1024))
    k.label('L_a_pgo')
    k.I('s_mov_b32 s51, s72')
    k.I('s_add_u32 s52, s72, s73')
    k.I('s_add_u32 s53, s72, s74')
    k.I('s_add_u32 s54, s52, s74')
    for f in range(4):
        k.I('s_add_u32 %s, %s, s75' % (sr(55 + f), sr(51 + f)))


if __name__ == '__main__':
    n = int(sys.argv[2]) if len(sys.argv) > 2 else 4
    gen1.STAMPS = len(sys.argv) > 3 and sys.argv[3] == 'stamps'
    for o in sys.argv[4:]:
        if '=' in o:
            kk_, vv_ = o.split('=')
            gen1.OPT[kk_] = tuple(int(x) for x in vv_.split(','))
        else:
            gen1.OPT[o] = True
    gens = [('qkv_kernel', gen_a8), ('attn_kernel', gen_k2), ('gateup_kernel', gen_k3), ('down_kernel', gen_k4)]
    ks = []
    for label, g in gens[:n]:
        kk, cc = g()
        ks.append((label, kk, cc))
        print(label, kk.stats(), kk.maxreg())
    open(sys.argv[1], 'w').write(wrap(ks))
```

```python
import sys
from asmgen import Kernel
import gen1
from gen1 import *
from gen2 import Sched, xhalf_ops
from gen3 import emit
import gen4
from gen4 import gen_a8


def STP():
    return '' if OPT.get('stplain') else ' sc1'


def LSC():
    return '' if OPT.get('ldplain') else ' sc1'


def sync_arrive(k, s_wave, ws, vt, s_arr, name):
    k.I('s_barrier')
    k.raw('''    s_cmp_lg_u32 s%d, 0
    s_cbranch_scc1 %s_noarr
    v_mov_b32 v%d, 0
    v_mov_b32 v%d, 1
    s_mov_b64 exec, 1
    buffer_atomic_add v%d, v%d, %s, s%d offen sc1
    s_nop 0
    s_mov_b64 exec, -1
%s_noarr:''' % (s_wave, name, vt, vt + 1, vt + 1, vt, ws, s_arr, name))


def sync_wait(k, name, s_cnt, s_wave, ws, vt, nexp=16):
    k.raw('''    s_cmp_lg_u32 s%d, 0
    s_cbranch_scc1 %s_done
    v_mov_b32 v%d, 0
    s_mov_b32 s60, 0
%s_spin:
    buffer_load_dword v%d, v%d, %s, s%d offen sc1
    s_waitcnt vmcnt(0)
    v_readfirstlane_b32 s61, v%d
    s_add_u32 s60, s60, 1
    s_cmp_ge_u32 s61, %d
    s_cbranch_scc1 %s_done
    s_sleep 1
    s_cmp_lt_u32 s60, 0x40000
    s_cbranch_scc1 %s_spin
%s_done:''' % (s_wave, name, vt, name, vt + 1, vt, ws, s_cnt, vt + 1, nexp, name, name, name))
    k.I('s_barrier')


def merge(k, main, bg, first=0, last=None):
    if last is None:
        last = len(main)
    ib = 0
    for i, o in enumerate(main):
        if isinstance(o, (str, tuple)):
            emit(k, o)
        else:
            k.items.append(o)
        if first <= i < last:
            upto = len(bg) * (i - first + 1) // (last - first)
            while ib < upto:
                emit(k, bg[ib]); ib += 1
    while ib < len(bg):
        emit(k, bg[ib]); ib += 1


def gen_bcd():
    k = Kernel('bcd_kernel')
    WS, XS, OS = 4, 8, 12
    ws = sr(WS, 4)
    k.I('s_cmp_ge_u32 s2, 256')
    k.I('s_cbranch_scc1 L_f_end')
    load_srds(k, [('ws', WS), ('x', XS), ('out', OS)])
    st = Stamper(k, 2, ws, base=70, tmp=62); st.stamp(True); st.stamp()
    k.I('v_and_b32 v1, 63, v0')
    k.I('v_lshrrev_b32 v2, 6, v0')
    k.I('v_readfirstlane_b32 s16, v2')
    k.I('v_lshlrev_b32 v2, 4, v1')
    k.I('v_add_u32 v3, 4096, v2')
    k.I('s_and_b32 s24, s2, 7')
    k.I('s_lshr_b32 s25, s2, 3')
    k.I('s_and_b32 s17, s24, 1')
    k.I('s_lshl_b32 s17, s17, 3')
    k.I('s_and_b32 s26, s25, 7')
    k.I('s_add_u32 s17, s17, s26')
    k.I('s_lshr_b32 s18, s24, 1')
    k.I('s_lshl_b32 s18, s18, 2')
    k.I('s_lshr_b32 s26, s25, 3')
    k.I('s_add_u32 s18, s18, s26')
    k.I('s_lshl_b32 s19, s24, 2')
    k.I('s_and_b32 s26, s25, 3')
    k.I('s_add_u32 s19, s19, s26')
    k.I('s_lshr_b32 s20, s25, 2')
    k.I('s_lshl_b32 s21, s19, 1')
    k.I('s_and_b32 s26, s16, 1')
    k.I('s_add_u32 s21, s21, s26')
    k.I('s_lshl_b32 s22, s20, 1')
    k.I('s_lshr_b32 s26, s16, 1')
    k.I('s_add_u32 s22, s22, s26')
    k.I('s_lshl_b32 s23, s17, 2')
    k.I('s_add_u32 s23, s23, s16')
    k.I('s_lshl_b32 s27, s16, 3')
    k.I('s_lshl_b32 s28, s19, 6')
    k.I('s_add_u32 s28, s28, s27')
    k.I('s_lshl_b32 s28, s28, 10')
    k.I('s_add_u32 s28, s28, 0x%x' % OFF_PQ)
    k.I('s_add_u32 s29, s28, 32768')
    k.I('s_lshl_b32 s30, s27, 4')
    k.I('s_lshl_b32 s26, s20, 1')
    k.I('s_add_u32 s30, s30, s26')
    k.I('s_lshl_b32 s30, s30, 10')
    k.I('s_add_u32 s30, s30, 0x%x' % OFF_WO)
    k.I('s_lshl_b32 s31, s27, 11')
    k.I('s_add_u32 s31, s31, 0x%x' % OFF_KVZ)
    k.I('v_and_b32 v4, 31, v1')
    k.I('v_min_u32 v5, 16, v4')
    k.I('v_lshrrev_b32 v6, 5, v1')
    k.I('v_lshlrev_b32 v7, 5, v6')
    k.I('v_add_u32 v5, v5, v7')
    k.I('v_lshlrev_b32 v5, 5, v5')
    k.I('s_waitcnt lgkmcnt(0)')

    KV = 128
    A_PQ, A_WO = 96, 160
    ACC = 192
    XR = 56

    def b_loads(t):
        ops = ['s_add_u32 s38, s31, %d' % (t * 2048),
               'buffer_load_dwordx4 %s, v5, %s, s38 offen' % (vr(KV + 8 * t, 4), ws),
               'buffer_load_dwordx4 %s, v5, %s, s38 offen offset:16' % (vr(KV + 8 * t + 4, 4), ws)]
        for r in range(2):
            ops.append('buffer_load_dwordx4 %s, %s, %s, %s offen offset:%d' % (
                ar(A_PQ + (t * 2 + r) * 4, 4), 'v2' if t < 4 else 'v3', ws, 's28' if r == 0 else 's29', (t % 4) * 1024))
        ops.append('s_add_u32 s39, s30, %d' % (t * 16384))
        for n in range(2):
            ops.append('buffer_load_dwordx4 %s, v2, %s, s39 offen offset:%d' % (ar(A_WO + (t * 2 + n) * 4, 4), ws, n * 1024))
        return ops
    PD = 3
    for t in range(PD):
        for o in b_loads(t):
            k.I(o)
    k.I('s_lshl_b32 s32, s21, 15')
    k.I('s_lshl_b32 s26, s22, 6')
    k.I('s_add_u32 s32, s32, s26')
    k.I('v_lshlrev_b32 v7, 10, v4')
    k.I('v_lshlrev_b32 v8, 3, v6')
    k.I('v_add_u32 v7, v7, v8')
    k.I('s_mul_i32 s33, s18, %d' % (7 * 32768))
    k.I('s_lshl_b32 s34, s16, 13')
    k.I('s_add_u32 s33, s33, s34')
    k.I('s_add_u32 s33, s33, 0x%x' % OFF_WGU)
    k.I('s_mul_i32 s35, s16, %d' % (28 * 1024))
    k.I('s_mul_i32 s36, s20, %d' % (2 * 112 * 1024))
    k.I('s_add_u32 s36, s36, s35')
    k.I('s_add_u32 s36, s36, 0x%x' % OFF_WD)
    k.I('s_add_u32 s37, s36, %d' % (112 * 1024))
    k.I('s_lshl_b32 s44, s17, 7')
    k.I('s_add_u32 s44, s44, 0x%x' % OFF_CNT)
    k.I('s_lshr_b32 s57, s19, 1')
    k.I('s_lshl_b32 s57, s57, 7')
    k.I('s_add_u32 s57, s57, 0x%x' % OFF_CNT)
    CS_LDS = 162816
    k.I('v_mov_b32 v8, 0')
    k.I('v_mov_b32 v9, 0')
    k.I('v_mov_b32 v10, 0')
    k.I('v_mov_b32 v11, 0')
    k.I('v_add_u32 v20, %d, v2' % CS_LDS)
    k.I('ds_write_b128 v20, v[8:11]')
    D1 = [[64, 80], [96, 112]]
    KF = [40, 44]
    OF = [48, 52]
    T = 36

    def stageA(t):
        ops = []
        for j in range(4):
            ops.append('v_cvt_pk_bf16_f32 %s, %s, %s' % (vr(KF[t & 1] + j), vr(KV + 8 * t + 2 * j), vr(KV + 8 * t + 2 * j + 1)))
        for r in range(2):
            ops.append('v_mfma_f32_32x32x16_bf16 %s, %s, %s, 0' % (vr(D1[t & 1][r], 16), vr(KF[t & 1], 4), ar(A_PQ + (t * 2 + r) * 4, 4)))
        return ops

    def stageB(t):
        ops = []
        for r in range(2):
            ops.append('v_add_f32 %s, 0x%x, %s' % (vr(T + r), f2u(1e-6), vr(D1[t & 1][r] + 8)))
        for r in range(2):
            ops.append('v_rcp_f32 %s, %s' % (vr(T + r), vr(T + r)))
        for i in range(8):
            for r in range(2):
                d = D1[t & 1][r]
                ops.append('v_mul_f32 %s, %s, %s' % (vr(d + i), vr(T + r), vr(d + i)))
        for r in range(2):
            d = D1[t & 1][r]
            for j in range(4):
                ops.append('v_cvt_pk_bf16_f32 %s, %s, %s' % (vr(OF[r] + j), vr(d + 2 * j), vr(d + 2 * j + 1)))
        for n in range(2):
            for r in range(2):
                acc = vr(ACC + (n * 2 + r) * 16, 16)
                ops.append('v_mfma_f32_32x32x16_bf16 %s, %s, %s, %s' % (acc, ar(A_WO + (t * 2 + n) * 4, 4), vr(OF[r], 4), acc if t else '0'))
        return ops
    for o in stageA(0):
        k.I(o)
    for t in range(8):
        main = (stageA(t + 1) if t + 1 < 8 else []) + stageB(t)
        bg = b_loads(t + PD) if t + PD < 8 else []
        if t == 5:
            bg = ['buffer_load_dwordx2 %s, v7, %s, s32 offen offset:%d' % (vr(XR + 2 * a, 2), sr(XS, 4), a * 16) for a in range(4)]
        merge(k, main, bg)
    st.stamp()
    RB = 98304
    k.I('s_mul_i32 s38, s16, 12288')
    k.I('s_add_u32 s38, s38, %d' % RB)
    k.I('v_add_u32 v10, s38, v2')
    for w in range(4):
        k.raw('    s_cmp_lg_u32 s16, %d\n    s_cbranch_scc1 L_f_rw%d' % (w, w))
        kk = Kernel('t')
        for s_ in range(3):
            t = (w + 1 + s_) & 3
            for q in range(4):
                kk.I('ds_write_b128 v10, %s offset:%d' % (vr(ACC + t * 16 + q * 4, 4), s_ * 4096 + q * 1024))
        for i in range(16):
            kk.I('v_mov_b32 %s, %s' % (vr(64 + i), vr(ACC + w * 16 + i)))
        txt = '\n'.join('    ' + it.text for it in kk.items)
        k.raw('    s_nop 7\n    s_nop 3\n' + txt + '\nL_f_rw%d:' % w)
    k.I('s_nop 0', r=[], w=[])
    k.I('s_waitcnt lgkmcnt(0)')
    k.I('s_barrier')
    H = 64
    for d in range(1, 4):
        k.I('s_add_u32 s38, s16, %d' % d)
        k.I('s_and_b32 s38, s38, 3')
        k.I('s_mul_i32 s38, s38, 12288')
        k.I('s_add_u32 s38, s38, %d' % (RB + (3 - d) * 4096))
        k.I('v_add_u32 v11, s38, v2')
        for q in range(4):
            k.I('ds_read_b128 %s, v11 offset:%d' % (vr(H + d * 16 + q * 4, 4), q * 1024))
    k.I('s_lshl_b32 s32, s21, 15') if False else None
    for i in range(16):
        k.I('v_add_f32 %s, %s, %s' % (vr(H + i), vr(H + i), vr(H + 16 + i)))
        k.I('v_add_f32 %s, %s, %s' % (vr(H + 32 + i), vr(H + 32 + i), vr(H + 48 + i)))
    for a in range(4):
        for b in range(2):
            src = XR + 2 * a + b
            k.I('v_lshlrev_b32 %s, 16, %s' % (vr(H + 16 + 4 * a + 2 * b), vr(src)))
            k.I('v_and_b32 %s, 0xffff0000, %s' % (vr(H + 16 + 4 * a + 2 * b + 1), vr(src)))
    for i in range(16):
        k.I('v_add_f32 %s, %s, %s' % (vr(H + i), vr(H + i), vr(H + 32 + i)))
    for i in range(16):
        k.I('v_add_f32 %s, %s, %s' % (vr(H + i), vr(H + i), vr(H + 16 + i)))
    HP = 12
    for j in range(8):
        k.I('v_cvt_pk_bf16_f32 %s, %s, %s' % (vr(HP + j), vr(H + 2 * j), vr(H + 2 * j + 1)))
    k.I('s_lshl_b32 s38, s21, 5')
    k.I('s_lshl_b32 s39, s22, 1')
    k.I('s_add_u32 s38, s38, s39')
    k.I('s_lshl_b32 s38, s38, 10')
    k.I('s_add_u32 s38, s38, 0x%x' % OFF_H)
    k.I('buffer_store_dwordx4 %s, v2, %s, s38 offen%s' % (vr(HP, 4), ws, STP()), w=['hst'])
    k.I('buffer_store_dwordx4 %s, v2, %s, s38 offen offset:1024%s' % (vr(HP + 4, 4), ws, STP()), w=['hst'])
    k.I('v_add_f32 v36, %s, %s' % (vr(H), vr(H + 1)))
    k.I('v_mul_f32 v37, %s, %s' % (vr(H), vr(H)))
    k.I('v_fmac_f32 v37, %s, %s' % (vr(H + 1), vr(H + 1)))
    for i in range(2, 16):
        k.I('v_add_f32 v36, v36, %s' % vr(H + i))
        k.I('v_fmac_f32 v37, %s, %s' % (vr(H + i), vr(H + i)))
    for o in xhalf_ops(36, 38) + xhalf_ops(37, 38):
        k.I(o)
    k.I('s_lshl_b32 s38, s22, 14')
    k.I('s_lshl_b32 s39, s21, 8')
    k.I('s_add_u32 s38, s38, s39')
    k.I('s_add_u32 s38, s38, 0x%x' % OFF_STAT)
    k.I('v_lshlrev_b32 v38, 3, v4')
    k.I('buffer_store_dwordx2 v[36:37], v38, %s, s38 offen%s' % (ws, STP()), w=['hst'])
    st.stamp()

    def dma(soff, sm0, name):
        ops = []
        for hf in range(2):
            ops.append('s_add_u32 m0, %s, %d' % (sr(sm0), hf * 4096))
            ops.append('s_add_u32 s40, %s, %d' % (sr(soff), hf * 4096))
            for t in range(4):
                ops.append(('buffer_load_dwordx4 v2, %s, s40 offen offset:%d lds' % (ws, t * 1024), name))
        return ops

    def wd_loads(ks_list):
        ops = []
        last = None
        for ks in ks_list:
            grp, rem = ks // 8, ks % 8
            if grp != last:
                ops.append('s_add_u32 s41, s36, %d' % (grp * 8192))
                ops.append('s_add_u32 s58, s37, %d' % (grp * 8192))
                last = grp
            for n in range(2):
                ops.append('buffer_load_dwordx4 %s, %s, %s, %s offen offset:%d' % (
                    ar((ks * 2 + n) * 4, 4), 'v2' if rem < 4 else 'v3', ws, 's41' if n == 0 else 's58', (rem % 4) * 1024))
        return ops
    CSV = 128
    k.I('s_mov_b32 s42, s34')
    for o in dma(33, 42, 'W0'):
        emit(k, o)
    k.I('s_mul_i32 s38, s18, %d' % (7 * 128))
    k.I('s_mul_i32 s39, s16, %d' % (4 * 112 * 128))
    k.I('s_add_u32 s38, s38, s39')
    k.I('s_add_u32 s38, s38, 0x%x' % OFF_CSG)
    for kg in range(4):
        k.I('s_add_u32 s39, s38, %d' % (kg * 112 * 128))
        k.I('buffer_load_dwordx4 %s, v2, %s, s39 offen' % (vr(CSV + 4 * kg, 4), ws))
    k.I('s_add_u32 s43, s33, 32768')
    k.I('s_add_u32 s42, s34, 32768')
    for o in dma(43, 42, 'dA'):
        emit(k, o)
    k.need('hst')
    sync_arrive(k, 16, ws, 36, 57, 'L_f_s1')
    st.stamp()
    k.I('s_add_u32 s43, s33, 65536')
    k.I('s_add_u32 s42, s34, 65536')
    for o in dma(43, 42, 'dB'):
        emit(k, o)
    for o in wd_loads(range(0, 10)):
        emit(k, o)
    for j in range(4):
        k.I('v_add_f32 %s, %s, %s' % (vr(CSV + j), vr(CSV + j), vr(CSV + 4 + j)))
        k.I('v_add_f32 %s, %s, %s' % (vr(CSV + 8 + j), vr(CSV + 8 + j), vr(CSV + 12 + j)))
    for j in range(4):
        k.I('v_add_f32 %s, %s, %s' % (vr(CSV + j), vr(CSV + j), vr(CSV + 8 + j)))
    for j in range(4):
        k.I('ds_add_f32 v20, %s offset:%d' % (vr(CSV + j), 4 * j))
    sync_wait(k, 'L_f_s1', 44, 16, ws, 36)
    st.stamp()

    X = 128
    for t in range(2, 8):
        k.I('v_add_u32 %s, %d, v2' % (vr(20 + t), 4096 * t))
    VOF = [2, 3] + [20 + t for t in range(2, 8)]
    k.I('s_lshl_b32 s45, s23, 15')
    k.I('s_add_u32 s45, s45, 0x%x' % OFF_H)

    def xload(ks):
        return 'buffer_load_dwordx4 %s, %s, %s, s45 offen offset:%d%s' % (vr(X + 4 * ks, 4), vr(VOF[ks // 4]), ws, (ks % 4) * 1024, LSC())
    XD = 12
    for ks in range(XD):
        k.I(xload(ks))
    SP = 104
    k.I('v_lshlrev_b32 v21, 3, v4')
    k.I('v_lshlrev_b32 v28, 17, v6')
    k.I('v_add_u32 v21, v21, v28')
    k.I('s_lshl_b32 s46, s23, 8')
    k.I('s_add_u32 s46, s46, 0x%x' % OFF_STAT)
    stl = []
    for t in range(8):
        stl.append('s_add_u32 s47, s46, %d' % (t * 16384))
        stl.append('buffer_load_dwordx2 %s, v21, %s, s47 offen%s' % (vr(SP + 2 * t, 2), ws, LSC()))
    k.I('s_mul_i32 s48, s23, 112')
    k.I('s_mul_i32 s47, s18, 7')
    k.I('s_add_u32 s48, s48, s47')
    k.I('s_lshl_b32 s48, s48, 10')
    k.I('s_add_u32 s48, s48, 0x%x' % OFF_ACT)
    k.I('s_add_u32 s49, s34, %d' % (3 * 32768))
    k.I('s_mov_b32 s50, s34')
    k.I('s_add_u32 s51, s33, %d' % (3 * 32768))
    k.I('s_mov_b32 s52, 0')
    k.I('v_mov_b32 v8, v2')
    k.I('v_add_u32 v9, 32768, v2')
    k.I('v_lshlrev_b32 v10, 4, v6')
    k.I('v_add_u32 v10, %d, v10' % CS_LDS)
    ACCC = [32, 48]
    D, L = 8, 6
    WR = 224
    CSR = 64
    T = 80
    MEAN, RSTD, NMEAN, NA, A2 = 120, 121, 122, 123, 124

    def wread(n, vaddr, ks):
        return 'ds_read_b128 %s, %s offset:%d' % (ar(WR + (n % D) * 4, 4), vaddr, ks * 1024)

    def epilogue_ops(S):
        ops = []
        for q in range(4):
            ops.append('ds_read_b128 %s, v10 offset:%d' % (vr(CSR + 4 * q, 4), q * 32))
        pre = len(ops)
        for i0 in range(0, 8, 2):
            a = []
            for u, i in enumerate((i0, i0 + 1)):
                t = T + u * 4
                a.append([
                    'v_fma_f32 %s, %s, %s, %s' % (vr(t), vr(NMEAN), vr(CSR + i), vr(S + i)),
                    'v_fma_f32 %s, %s, %s, %s' % (vr(t + 1), vr(NMEAN), vr(CSR + 8 + i), vr(S + 8 + i)),
                    'v_mul_f32 %s, %s, %s' % (vr(t + 2), vr(NA), vr(t)),
                    'v_exp_f32 %s, %s' % (vr(t + 2), vr(t + 2)),
                    'v_mul_f32 %s, %s, %s' % (vr(t), vr(t), vr(t + 1)),
                    'v_add_f32 %s, 1.0, %s' % (vr(t + 2), vr(t + 2)),
                    'v_rcp_f32 %s, %s' % (vr(t + 2), vr(t + 2)),
                    'v_mul_f32 %s, %s, %s' % (vr(t), vr(A2), vr(t)),
                    'v_mul_f32 %s, %s, %s' % (vr(T + 8 + i), vr(t), vr(t + 2)),
                ])
            for x, y in zip(a[0], a[1]):
                ops += [x, y]
            ops.append('v_cvt_pk_bf16_f32 %s, %s, %s' % (vr(T + 16 + i0 // 2), vr(T + 8 + i0), vr(T + 8 + i0 + 1)))
        ops.append(('buffer_store_dwordx4 %s, v2, %s, s48 offen%s' % (vr(T + 16, 4), ws, STP()), 'ast'))
        ops.append('s_add_u32 s48, s48, 1024')
        ops.append('v_add_u32 v10, 128, v10')
        return ops, pre

    def body(par, first):
        cur, nxt = ('v8', 'v9') if par == 0 else ('v9', 'v8')
        S_ = ACCC[par]
        fill = [[] for _ in range(32)]
        sm = 49 if par == 0 else 50
        name = 'dA' if par == 0 else 'dB'

        def half(name_):
            return [('buffer_load_dwordx4 v2, %s, s40 offen offset:%d lds' % (ws, t * 1024), name_) for t in range(4)]
        if first:
            for ks in range(XD, 32):
                fill[ks - XD].append(xload(ks))
            for i, o in enumerate(stl):
                fill[20 + i // 4].append(o)
            so = []
            for t in range(1, 8):
                so.append('v_add_f32 %s, %s, %s' % (vr(SP), vr(SP), vr(SP + 2 * t)))
                so.append('v_add_f32 %s, %s, %s' % (vr(SP + 1), vr(SP + 1), vr(SP + 2 * t + 1)))
            so += xhalf_ops(SP, SP + 2) + xhalf_ops(SP + 1, SP + 2)
            so += ['v_mul_f32 %s, 0x%x, %s' % (vr(MEAN), f2u(1.0 / 512), vr(SP)),
                   'v_mul_f32 %s, 0x%x, %s' % (vr(SP + 1), f2u(1.0 / 512), vr(SP + 1)),
                   'v_fma_f32 %s, -%s, %s, %s' % (vr(SP + 1), vr(MEAN), vr(MEAN), vr(SP + 1)),
                   'v_max_f32 %s, 0, %s' % (vr(SP + 1), vr(SP + 1)),
                   'v_add_f32 %s, 0x%x, %s' % (vr(SP + 1), f2u(1e-5), vr(SP + 1)),
                   'v_rsq_f32 %s, %s' % (vr(RSTD), vr(SP + 1)),
                   'v_sub_f32 %s, 0, %s' % (vr(NMEAN), vr(MEAN)),
                   'v_mul_f32 %s, 0x%x, %s' % (vr(NA), f2u(-LOG2E), vr(RSTD)),
                   'v_mul_f32 %s, %s, %s' % (vr(A2), vr(RSTD), vr(RSTD))]
            post = so
        else:
            post = []
            ops, pre = epilogue_ops(ACCC[1 - par])
            fill[0] = ops[:pre]
            rest = ops[pre:]
            g0, g1 = 3, 26
            for i, o in enumerate(rest):
                fill[g0 + i * (g1 - g0) // len(rest)].append(o)
            pname = 'dB' if par == 0 else 'dA'
            pend = ['s_mov_b32 m0, s55', 's_mov_b32 s40, s56'] + half(pname)
            fill[1] = fill[1] + pend[:3]
            fill[5].insert(0, pend[3]); fill[9].insert(0, pend[4]); fill[13].insert(0, pend[5])
        dm = ['s_cmp_lt_u32 s52, 4', 's_cselect_b32 s40, s51, 0x7fff0000', 's_mov_b32 m0, %s' % sr(sm)] + half(name) + \
             ['s_add_u32 s55, %s, 4096' % sr(sm), 's_add_u32 s56, s40, 4096',
              's_xor_b32 %s, %s, 0x10000' % (sr(sm), sr(sm)), 's_add_u32 s51, s51, 32768', 's_add_u32 s52, s52, 1']
        for ks in range(32):
            if ks % 2 == 0 and ks + 1 < 32:
                k.touch(ar(WR + ((ks + 1) % D) * 4, 4))
            k.I('v_mfma_f32_32x32x16_bf16 %s, %s, %s, %s' % (
                vr(S_, 16), ar(WR + (ks % D) * 4, 4), vr(X + 4 * ks, 4), vr(S_, 16) if ks else '0'))
            if ks == 32 - L:
                k.need(name)
                k.I('s_barrier')
            if ks >= 32 - L:
                i0 = (ks - (32 - L)) * len(dm) // L
                i1 = (ks - (32 - L) + 1) * len(dm) // L
                for o in dm[i0:i1]:
                    emit(k, o)
            k.I(wread(ks + L, cur, ks + L) if ks + L < 32 else wread(ks + L, nxt, ks + L - 32))
            for o in fill[ks]:
                emit(k, o)
        k.I('v_xor_b32 %s, 0x10000, %s' % (cur, cur))
        for o in post:
            emit(k, o)

    k.need('W0')
    k.I('s_waitcnt lgkmcnt(0)')
    k.I('s_barrier')
    for n in range(L):
        k.I(wread(n, 'v8', n))
    body(0, True)
    st.stamp()
    k.I('s_mov_b32 s54, 3')
    k.loop_begin('L_f_cloop')
    body(1, False)
    body(0, False)
    k.I('s_sub_u32 s54, s54, 1')
    k.I('s_cmp_lg_u32 s54, 0')
    k.I('s_cbranch_scc1 L_f_cloop')
    k.loop_end('L_f_cloop')
    st.stamp()
    ops, pre = epilogue_ops(ACCC[0])
    for o in ops:
        emit(k, o)
    for o in wd_loads(range(10, 18)):
        emit(k, o)
    k.need('ast')
    k.I('s_add_u32 s44, s44, 2048')
    k.I('s_add_u32 s57, s57, 2048')
    sync_arrive(k, 16, ws, 36, 44, 'L_f_s2')
    for o in wd_loads(range(18, 28)):
        emit(k, o)
    sync_wait(k, 'L_f_s2', 57, 16, ws, 36)
    st.stamp()

    k.I('s_mul_i32 s45, s19, %d' % (2 * 112 * 1024))
    k.I('s_add_u32 s45, s45, s35')
    k.I('s_add_u32 s45, s45, 0x%x' % OFF_ACT)
    k.I('s_add_u32 s46, s45, %d' % (112 * 1024))
    AR, NR, AD = 128, 10, 8

    def act_load(ks):
        ops = []
        grp, rem = ks // 8, ks % 8
        if rem == 0:
            ops.append('s_add_u32 s47, s45, %d' % (grp * 8192))
            ops.append('s_add_u32 s58, s46, %d' % (grp * 8192))
        for r in range(2):
            ops.append('buffer_load_dwordx4 %s, %s, %s, %s offen offset:%d%s' % (
                vr(AR + ((ks % NR) * 2 + r) * 4, 4), 'v2' if rem < 4 else 'v3', ws, 's47' if r == 0 else 's58', (rem % 4) * 1024, LSC()))
        return ops
    for ks in range(AD):
        for o in act_load(ks):
            k.I(o)
    DACC = [32, 48, 64, 80]
    for ks in range(28):
        mm = []
        for n in range(2):
            for r in range(2):
                acc = vr(DACC[n * 2 + r], 16)
                mm.append('v_mfma_f32_32x32x16_bf16 %s, %s, %s, %s' % (
                    acc, ar((ks * 2 + n) * 4, 4), vr(AR + ((ks % NR) * 2 + r) * 4, 4), acc if ks else '0'))
        merge(k, mm, act_load(ks + AD) if ks + AD < 28 else [])
    st.stamp()
    k.I('s_mul_i32 s38, s16, 12288')
    k.I('v_add_u32 v10, s38, v2')
    O = 96
    for w in range(4):
        k.raw('    s_cmp_lg_u32 s16, %d\n    s_cbranch_scc1 L_f_dw%d' % (w, w))
        kk = Kernel('t')
        for s_ in range(3):
            t = (w + 1 + s_) & 3
            for q in range(4):
                kk.I('ds_write_b128 v10, %s offset:%d' % (vr(DACC[t] + q * 4, 4), s_ * 4096 + q * 1024))
        for i in range(16):
            kk.I('v_mov_b32 %s, %s' % (vr(O + i), vr(DACC[w] + i)))
        txt = '\n'.join('    ' + it.text for it in kk.items)
        k.raw('    s_nop 7\n    s_nop 3\n' + txt + '\nL_f_dw%d:' % w)
    k.I('s_waitcnt lgkmcnt(0)')
    k.I('s_barrier')
    for d in range(1, 4):
        k.I('s_add_u32 s38, s16, %d' % d)
        k.I('s_and_b32 s38, s38, 3')
        k.I('s_mul_i32 s38, s38, 12288')
        k.I('s_add_u32 s38, s38, %d' % ((3 - d) * 4096))
        k.I('v_add_u32 v11, s38, v2')
        for q in range(4):
            k.I('ds_read_b128 %s, v11 offset:%d' % (vr(O + d * 16 + q * 4, 4), q * 1024))
    for j in range(8):
        k.I('v_lshlrev_b32 %s, 16, %s' % (vr(32 + 2 * j), vr(HP + j)))
        k.I('v_and_b32 %s, 0xffff0000, %s' % (vr(32 + 2 * j + 1), vr(HP + j)))
    for i in range(16):
        k.I('v_add_f32 %s, %s, %s' % (vr(O + i), vr(O + i), vr(32 + i)))
    for i in range(16):
        k.I('v_add_f32 %s, %s, %s' % (vr(O + i), vr(O + i), vr(O + 16 + i)))
        k.I('v_add_f32 %s, %s, %s' % (vr(O + 32 + i), vr(O + 32 + i), vr(O + 48 + i)))
    for i in range(16):
        k.I('v_add_f32 %s, %s, %s' % (vr(O + i), vr(O + i), vr(O + 32 + i)))
    P = 48
    for j in range(8):
        k.I('v_cvt_pk_bf16_f32 %s, %s, %s' % (vr(P + j), vr(O + 2 * j), vr(O + 2 * j + 1)))
    for a in (0, 2):
        b = P + 2 * a
        k.I('v_permlane32_swap_b32 %s, %s' % (vr(b), vr(b + 2)))
        k.I('v_permlane32_swap_b32 %s, %s' % (vr(b + 1), vr(b + 3)))
    k.I('v_lshlrev_b32 v8, 10, v4')
    k.I('v_lshlrev_b32 v9, 4, v6')
    k.I('v_add_u32 v8, v8, v9')
    k.I('buffer_store_dwordx4 %s, v8, %s, s32 offen' % (vr(P, 4), sr(OS, 4)))
    k.I('buffer_store_dwordx4 %s, v8, %s, s32 offen offset:32' % (vr(P + 4, 4), sr(OS, 4)))
    st.stamp(); st.stamp(True); st.flush()
    k.label('L_f_end')
    k.I('s_endpgm')
    return k, dict(lds=163840, grid=256, block=256)


if __name__ == '__main__':
    gen1.STAMPS = len(sys.argv) > 2 and sys.argv[2] == 'stamps'
    for o in sys.argv[3:]:
        if '=' in o:
            kk_, vv_ = o.split('=')
            gen1.OPT[kk_] = tuple(int(x) for x in vv_.split(','))
        else:
            gen1.OPT[o] = True
    gens = [('qkv_kernel', gen_a8), ('bcd_kernel', gen_bcd)]
    ks = []
    for label, g in gens:
        kk, cc = g()
        ks.append((label, kk, cc))
        print(label, kk.stats(), kk.maxreg())
    open(sys.argv[1], 'w').write(wrap(ks))
```

```python
import sys
from asmgen import Kernel

NAME = 'sequential_preLN__linear_attn_block__swiglu_ffn__prompt'

OFF_XF = 0x0
OFF_WQKV = 0x200000
OFF_PQ = 0x380000
OFF_KVZ = 0x580000
OFF_WO = 0x590000
OFF_H = 0x610000
OFF_WGU = 0x810000
OFF_CSG = 0xB90000
OFF_CSQ = 0xBC8000
OFF_ACT = 0xBE0000
OFF_WD = 0x12E0000
OFF_STAT = 0x14A0000
OFF_CNT = 0x14E0000
OFF_TS = 0x1500000
WS_USED = 0x1500000 + 8*256*128
STAMPS = False

KA = dict(x=0, wqkv=8, wo=16, bx=24, wg=32, wu=40, wd=48, out=56, dbg=64, ws=72)
SZ = dict(x=2048 * 512 * 2, wqkv=512 * 1536 * 2, wo=512 * 512 * 2, wg=512 * 1792 * 2, wu=512 * 1792 * 2,
          wd=1792 * 512 * 2, out=2048 * 512 * 2, dbg=256, ws=WS_USED)
ONES_BF16 = 0x3f803f80


def vr(lo, n=1):
    return 'v%d' % lo if n == 1 else 'v[%d:%d]' % (lo, lo + n - 1)


def ar(lo, n=1):
    return 'a%d' % lo if n == 1 else 'a[%d:%d]' % (lo, lo + n - 1)


def sr(lo, n=1):
    return 's%d' % lo if n == 1 else 's[%d:%d]' % (lo, lo + n - 1)


def load_srds(k, srds, first=True):
    for name, sb in srds:
        k.I('s_load_dwordx2 %s, s[0:1], %d' % (sr(sb, 2), KA[name]))
    for name, sb in srds:
        k.I('s_mov_b32 %s, 0x%x' % (sr(sb + 2), SZ[name]))
        k.I('s_mov_b32 %s, 0x00020000' % sr(sb + 3))


class Stamper:
    def __init__(self, k, kidx, ws, base=64, tmp=96):
        self.k, self.kidx, self.ws, self.n, self.base, self.tmp = k, kidx, ws, 0, base, tmp
        self.tid = 'v0'
    def stamp(self, real=False):
        if not STAMPS: return
        b = self.base + 2 * self.n
        assert b + 1 <= 101
        self.k.I('%s s[%d:%d]' % ('s_memrealtime' if real else 's_memtime', b, b + 1))
        self.n += 1
    def flush(self):
        if not STAMPS: return
        k = self.k
        k.I('s_waitcnt lgkmcnt(0)')
        k.I('v_cmp_eq_u32 vcc, 0, %s' % self.tid)
        t = self.tmp
        k.I('s_and_saveexec_b64 s[%d:%d], vcc' % (t, t + 1))
        k.I('s_lshl_b32 s%d, s2, 7' % (t + 2))
        k.I('s_add_u32 s%d, s%d, 0x%x' % (t + 2, t + 2, OFF_TS + self.kidx * 256 * 128))
        k.I('v_mov_b32 v0, 0')
        for i in range(self.n):
            k.I('v_mov_b32 v2, s%d' % (self.base + 2 * i))
            k.I('v_mov_b32 v3, s%d' % (self.base + 2 * i + 1))
            k.I('buffer_store_dwordx2 v[2:3], v0, %s, s%d offen offset:%d' % (self.ws, t + 2, 8 * i))
        k.I('s_mov_b64 exec, s[%d:%d]' % (t, t + 1))


def div_const(k, dst, src, d, tmp):
    magic = -(-(1 << 32) // d)
    k.I('s_mov_b32 %s, 0x%x' % (sr(tmp), magic))
    k.I('s_mul_hi_u32 %s, %s, %s' % (sr(dst), sr(src), sr(tmp)))


def cross_half_sum(k, v, tmp):
    k.I('v_mov_b32 %s, %s' % (vr(tmp), vr(v)))
    k.I('v_permlane32_swap_b32 %s, %s' % (vr(v), vr(tmp)))
    k.I('v_add_f32 %s, %s, %s' % (vr(v), vr(v), vr(tmp)))


def gen_k0():
    k = Kernel('prep_kernel')
    S_X, S_WQ, S_WO, S_WG, S_WU, S_WD, S_WS = 4, 8, 12, 16, 20, 24, 28
    k.I('s_cmp_ge_u32 s2, 256')
    k.I('s_cbranch_scc1 L_k0_end')
    load_srds(k, [('x', S_X), ('wqkv', S_WQ), ('wo', S_WO), ('wg', S_WG), ('wu', S_WU), ('wd', S_WD), ('ws', S_WS)])
    k.I('v_and_b32 v1, 63, v0')
    k.I('v_lshrrev_b32 v2, 6, v0')
    k.I('v_readfirstlane_b32 s33, v2')
    k.I('s_lshl_b32 s34, s2, 2')
    k.I('s_add_u32 s34, s34, s33')
    k.I('s_lshl_b32 s35, s33, 13')
    k.I('v_and_b32 v2, 31, v1')
    k.I('v_lshlrev_b32 v2, 10, v2')
    k.I('v_lshrrev_b32 v3, 5, v1')
    k.I('v_lshlrev_b32 v3, 4, v3')
    k.I('v_add_u32 v2, v2, v3')
    k.I('v_lshlrev_b32 v4, 4, v1')
    k.I('s_lshl_b32 s36, s34, 1')
    k.I('s_lshr_b32 s37, s36, 5')
    k.I('s_lshl_b32 s37, s37, 15')
    k.I('s_and_b32 s38, s36, 31')
    k.I('s_lshl_b32 s38, s38, 5')
    k.I('s_add_u32 s37, s37, s38')
    k.I('s_waitcnt lgkmcnt(0)')
    k.I('buffer_load_dwordx4 v[8:11], v2, %s, s37 offen' % sr(S_X, 4))
    k.I('buffer_load_dwordx4 v[12:15], v2, %s, s37 offen offset:32' % sr(S_X, 4))
    k.I('s_lshl_b32 s39, s36, 10')
    k.I('s_add_u32 s39, s39, 0x%x' % OFF_XF)
    k.I('buffer_store_dwordx4 v[8:11], v4, %s, s39 offen' % sr(S_WS, 4))
    k.I('buffer_store_dwordx4 v[12:15], v4, %s, s39 offen offset:1024' % sr(S_WS, 4))
    k.I('s_cmp_ge_u32 s34, 64')
    k.I('s_cbranch_scc1 L_k0_nozero')
    k.I('v_mov_b32 v8, 0')
    k.I('v_mov_b32 v9, 0')
    k.I('v_mov_b32 v10, 0')
    k.I('v_mov_b32 v11, 0')
    k.I('s_lshl_b32 s39, s34, 10')
    k.I('s_add_u32 s39, s39, 0x%x' % OFF_KVZ)
    k.I('buffer_store_dwordx4 v[8:11], v4, %s, s39 offen' % sr(S_WS, 4))
    k.label('L_k0_nozero')
    k.I('s_waitcnt vmcnt(0)')
    k.fence()
    k.I('v_lshrrev_b32 v5, 3, v1')
    k.I('v_and_b32 v6, 7, v1')
    k.I('v_lshlrev_b32 v6, 4, v6')
    k.I('v_lshrrev_b32 v7, 4, v1')
    k.I('v_and_b32 v16, 15, v1')
    k.I('v_lshrrev_b32 v17, 2, v16')
    k.I('v_and_b32 v18, 3, v16')
    k.I('v_lshlrev_b32 v18, 3, v18')
    k.I('v_and_b32 v19, 1, v7')
    k.I('v_lshrrev_b32 v20, 1, v7')
    k.I('s_cmp_ge_u32 s34, 928')
    k.I('s_cbranch_scc1 L_k0_end')
    k.I('s_cmp_ge_u32 s34, 448')
    k.I('s_cbranch_scc1 L_k0_std')
    div_const(k, 40, 34, 28, 41)
    k.I('s_mul_i32 s41, s40, 28')
    k.I('s_sub_u32 s41, s34, s41')
    k.I('s_mov_b32 s42, 3584')
    k.I('v_mul_lo_u32 v21, v5, s42')
    k.I('v_add_u32 v21, v21, v6')
    k.I('s_mul_i32 s43, s40, %d' % (32 * 3584))
    k.I('s_lshl_b32 s44, s41, 7')
    k.I('s_add_u32 s43, s43, s44')
    for t in range(8):
        k.I('s_add_u32 s44, s35, %d' % (t * 1024))
        k.I('s_mov_b32 m0, s44')
        k.I('s_add_u32 s45, s43, %d' % ((t % 4) * 8 * 3584))
        k.I('buffer_load_dwordx4 v21, %s, s45 offen lds' % sr(S_WG if t < 4 else S_WU, 4), w=['img'])
    k.I('v_lshlrev_b32 v22, 5, v19')
    k.I('v_lshlrev_b32 v23, 2, v20')
    k.I('v_add3_u32 v22, v22, v23, v17')
    k.I('v_lshlrev_b32 v22, 7, v22')
    k.I('v_add3_u32 v22, v22, v18, s35')
    k.I('v_add_u32 v23, %d, v22' % (8 * 128))
    k.need('img')
    for c in range(4):
        k.I('v_mov_b32 %s, 0' % vr(60 + c))
    for ks in range(2):
        for c in range(4):
            d = 24 + (ks * 4 + c) * 4
            off = ks * 2048 + c * 32
            k.I('ds_read_b64_tr_b16 %s, v22 offset:%d' % (vr(d, 2), off))
            k.I('ds_read_b64_tr_b16 %s, v23 offset:%d' % (vr(d + 2, 2), off))
    k.I('s_lshl_b32 s44, s41, 7')
    k.I('s_lshl_b32 s45, s40, 1')
    k.I('s_add_u32 s44, s44, s45')
    k.I('s_lshl_b32 s44, s44, 10')
    k.I('s_add_u32 s44, s44, 0x%x' % OFF_WGU)
    k.I('s_mov_b32 s46, 0x%x' % ONES_BF16)
    for ks in range(2):
        for c in range(4):
            d = 24 + (ks * 4 + c) * 4
            k.I('s_add_u32 s45, s44, %d' % ((c * 32 + ks) * 1024))
            k.I('buffer_store_dwordx4 %s, v4, %s, s45 offen' % (vr(d, 4), sr(S_WS, 4)))
            for j in range(4):
                k.I('v_dot2c_f32_bf16 %s, s46, %s' % (vr(60 + c), vr(d + j)))
    k.I('v_and_b32 v2, 31, v1')
    k.I('v_lshlrev_b32 v2, 2, v2')
    k.I('s_mul_i32 s44, s40, %d' % (112 * 128))
    k.I('s_lshl_b32 s45, s41, 9')
    k.I('s_add_u32 s44, s44, s45')
    k.I('s_add_u32 s44, s44, 0x%x' % OFF_CSG)
    for c in range(4):
        cross_half_sum(k, 60 + c, 3)
        k.I('buffer_store_dword %s, v2, %s, s44 offen offset:%d' % (vr(60 + c), sr(S_WS, 4), c * 128))
    k.I('s_endpgm')
    k.fence()
    k.label('L_k0_std')
    k.I('s_cmp_ge_u32 s34, 672')
    k.I('s_cbranch_scc1 L_k0_notwd')
    k.I('s_sub_u32 s40, s34, 448')
    k.I('s_and_b32 s41, s40, 7')
    k.I('s_lshr_b32 s40, s40, 3')
    for j in range(4):
        k.I('s_mov_b32 %s, %s' % (sr(48 + j), sr(S_WD + j)))
    k.I('s_mov_b32 s52, 1024')
    k.I('s_mul_i32 s54, s41, 224')
    k.I('s_lshl_b32 s44, s40, 2')
    k.I('s_add_u32 s54, s54, s44')
    k.I('s_lshl_b32 s54, s54, 10')
    k.I('s_add_u32 s54, s54, 0x%x' % OFF_WD)
    k.I('s_mov_b32 s55, 1024')
    k.I('s_mov_b32 s56, %d' % (112 * 1024))
    k.I('s_mov_b32 s57, 4')
    k.I('s_mov_b32 s58, %d' % (8 * 128))
    k.I('s_mov_b32 s59, 0')
    k.I('s_branch L_k0_go')
    k.label('L_k0_notwd')
    k.I('s_cmp_ge_u32 s34, 864')
    k.I('s_cbranch_scc1 L_k0_wo')
    k.I('s_sub_u32 s44, s34, 672')
    div_const(k, 40, 44, 24, 41)
    k.I('s_mul_i32 s41, s40, 24')
    k.I('s_sub_u32 s41, s44, s41')
    for j in range(4):
        k.I('s_mov_b32 %s, %s' % (sr(48 + j), sr(S_WQ + j)))
    k.I('s_mov_b32 s52, 3072')
    k.I('s_lshl_b32 s54, s41, 6')
    k.I('s_lshl_b32 s44, s40, 2')
    k.I('s_add_u32 s54, s54, s44')
    k.I('s_lshl_b32 s54, s54, 10')
    k.I('s_add_u32 s54, s54, 0x%x' % OFF_WQKV)
    k.I('s_mov_b32 s55, 1024')
    k.I('s_mov_b32 s56, %d' % (32 * 1024))
    k.I('s_mov_b32 s57, 8')
    k.I('s_mov_b32 s58, %d' % (4 * 128))
    k.I('s_mul_i32 s59, s40, 48')
    k.I('s_lshl_b32 s44, s41, 1')
    k.I('s_add_u32 s59, s59, s44')
    k.I('s_lshl_b32 s59, s59, 7')
    k.I('s_add_u32 s59, s59, 0x%x' % OFF_CSQ)
    k.I('s_branch L_k0_go')
    k.label('L_k0_wo')
    k.I('s_sub_u32 s40, s34, 864')
    k.I('s_and_b32 s41, s40, 7')
    k.I('s_lshr_b32 s40, s40, 3')
    for j in range(4):
        k.I('s_mov_b32 %s, %s' % (sr(48 + j), sr(S_WO + j)))
    k.I('s_mov_b32 s52, 1024')
    k.I('s_lshl_b32 s54, s40, 6')
    k.I('s_lshl_b32 s44, s41, 1')
    k.I('s_add_u32 s54, s54, s44')
    k.I('s_lshl_b32 s54, s54, 10')
    k.I('s_add_u32 s54, s54, 0x%x' % OFF_WO)
    k.I('s_mov_b32 s55, %d' % (16 * 1024))
    k.I('s_mov_b32 s56, 1024')
    k.I('s_mov_b32 s57, 4')
    k.I('s_mov_b32 s58, %d' % (8 * 128))
    k.I('s_mov_b32 s59, 0')
    k.label('L_k0_go')
    k.fence()
    k.I('s_lshl_b32 s53, s52, 6')
    k.I('s_mul_i32 s53, s53, s40')
    k.I('s_lshl_b32 s44, s41, 7')
    k.I('s_add_u32 s53, s53, s44')
    k.I('v_mul_lo_u32 v21, v5, s52')
    k.I('v_add_u32 v21, v21, v6')
    k.I('s_lshl_b32 s47, s52, 3')
    for t in range(8):
        k.I('s_add_u32 s44, s35, %d' % (t * 1024))
        k.I('s_mov_b32 m0, s44')
        k.I('buffer_load_dwordx4 v21, s[48:51], s53 offen lds', w=['img2'])
        k.I('s_add_u32 s53, s53, s47')
    k.I('v_mul_lo_u32 v22, v20, s57')
    k.I('v_add_u32 v22, v22, v17')
    k.I('v_lshlrev_b32 v22, 7, v22')
    k.I('v_lshlrev_b32 v23, 5, v19')
    k.I('v_add3_u32 v22, v22, v23, v18')
    k.I('v_add_u32 v22, s35, v22')
    k.I('v_add_u32 v23, s58, v22')
    k.need('img2')
    for c in range(2):
        k.I('v_mov_b32 %s, 0' % vr(60 + c))
    for ks in range(4):
        for nb in range(2):
            d = 24 + (ks * 2 + nb) * 4
            off = ks * 2048 + nb * 64
            k.I('ds_read_b64_tr_b16 %s, v22 offset:%d' % (vr(d, 2), off))
            k.I('ds_read_b64_tr_b16 %s, v23 offset:%d' % (vr(d + 2, 2), off))
    k.I('s_mov_b32 s46, 0x%x' % ONES_BF16)
    for ks in range(4):
        for nb in range(2):
            d = 24 + (ks * 2 + nb) * 4
            k.I('s_mul_i32 s44, s55, %d' % ks)
            k.I('s_mul_i32 s45, s56, %d' % nb)
            k.I('s_add_u32 s44, s44, s45')
            k.I('s_add_u32 s44, s44, s54')
            k.I('buffer_store_dwordx4 %s, v4, %s, s44 offen' % (vr(d, 4), sr(S_WS, 4)))
            for j in range(4):
                k.I('v_dot2c_f32_bf16 %s, s46, %s' % (vr(60 + nb), vr(d + j)))
    k.I('s_cmp_eq_u32 s59, 0')
    k.I('s_cbranch_scc1 L_k0_end')
    k.I('v_and_b32 v2, 31, v1')
    k.I('v_lshlrev_b32 v2, 2, v2')
    for c in range(2):
        cross_half_sum(k, 60 + c, 3)
        k.I('buffer_store_dword %s, v2, %s, s59 offen offset:%d' % (vr(60 + c), sr(S_WS, 4), c * 128))
    k.label('L_k0_end')
    k.I('s_endpgm')
    return k, dict(vgpr=64, sgpr=64, lds=32768, grid=256, block=256)


LOG2E = 1.4426950408889634
import struct
def f2u(x):
    return struct.unpack('<I', struct.pack('<f', x))[0]


def wg_decode(k, nx_bits_lo, expr):
    pass


def stats_finish(k, vsum, vsq, vmean, vrstd, tmp):
    cross_half_sum(k, vsum, tmp)
    cross_half_sum(k, vsq, tmp)
    k.I('v_mul_f32 %s, 0x%x, %s' % (vr(vmean), f2u(1.0 / 512), vr(vsum)))
    k.I('v_mul_f32 %s, 0x%x, %s' % (vr(vsq), f2u(1.0 / 512), vr(vsq)))
    k.I('v_fma_f32 %s, -%s, %s, %s' % (vr(vsq), vr(vmean), vr(vmean), vr(vsq)))
    k.I('v_max_f32 %s, 0, %s' % (vr(vsq), vr(vsq)))
    k.I('v_add_f32 %s, 0x%x, %s' % (vr(vsq), f2u(1e-5), vr(vsq)))
    k.I('v_rsq_f32 %s, %s' % (vr(vrstd), vr(vsq)))


def phi(k, t, tmp):
    k.I('v_mul_f32 %s, 0x%x, %s' % (vr(tmp), f2u(LOG2E), vr(t)))
    k.I('v_min_f32 %s, 0, %s' % (vr(tmp), vr(tmp)))
    k.I('v_exp_f32 %s, %s' % (vr(tmp), vr(tmp)))
    k.I('v_max_f32 %s, 0, %s' % (vr(t), vr(t)))
    k.I('v_add_f32 %s, %s, %s' % (vr(t), vr(t), vr(tmp)))
    k.I('v_add_f32 %s, 0x%x, %s' % (vr(t), f2u(1e-6), vr(t)))


def gen_k1():
    k = Kernel('qkv_kernel')
    WS = 4
    k.I('s_cmp_ge_u32 s2, 256')
    k.I('s_cbranch_scc1 L_k1_end')
    load_srds(k, [('ws', WS)])
    ws = sr(WS, 4)
    st = Stamper(k, 1, ws); st.stamp(True); st.stamp()
    k.I('v_and_b32 v1, 63, v0')
    k.I('v_lshrrev_b32 v2, 6, v0')
    k.I('v_readfirstlane_b32 s8, v2')
    k.I('v_lshlrev_b32 v2, 4, v1')
    k.I('s_and_b32 s9, s2, 7')
    k.I('s_lshr_b32 s10, s2, 3')
    k.I('s_and_b32 s11, s9, 3')
    k.I('s_lshl_b32 s11, s11, 3')
    k.I('s_and_b32 s12, s10, 7')
    k.I('s_add_u32 s11, s11, s12')
    k.I('s_lshr_b32 s12, s9, 2')
    k.I('s_lshl_b32 s12, s12, 2')
    k.I('s_lshr_b32 s13, s10, 3')
    k.I('s_add_u32 s12, s12, s13')
    k.I('s_and_b32 s13, s8, 1')
    k.I('s_lshr_b32 s14, s8, 1')
    k.I('s_lshl_b32 s15, s11, 1')
    k.I('s_add_u32 s15, s15, s13')
    k.I('s_lshl_b32 s16, s12, 1')
    k.I('s_add_u32 s16, s16, s14')
    k.I('s_lshl_b32 s17, s15, 15')
    k.I('s_lshl_b32 s18, s16, 15')
    k.I('s_add_u32 s18, s18, 0x%x' % OFF_WQKV)
    k.I('s_add_u32 s19, s18, 0x%x' % (16 * 32768))
    k.I('s_add_u32 s20, s18, 0x%x' % (32 * 32768))
    for t in range(1, 8):
        k.I('v_add_u32 %s, %d, v2' % (vr(8 + t), 4096 * t))
    k.I('v_mov_b32 v8, v2')
    k.I('v_and_b32 v3, 31, v1')
    k.I('v_lshlrev_b32 v4, 2, v3')
    k.I('s_lshl_b32 s21, s16, 7')
    k.I('s_add_u32 s21, s21, 0x%x' % OFF_CSQ)
    k.I('s_waitcnt lgkmcnt(0)')
    X = 128
    def ldfrag(dst, soff, ks):
        k.I('buffer_load_dwordx4 %s, %s, %s, %s offen offset:%d' % (dst, vr(8 + ks // 4), ws, sr(soff), (ks % 4) * 1024))
    for p in range(3):
        for kg in range(8):
            k.I('s_add_u32 s22, s21, %d' % (p * 16 * 128 + kg * 48 * 128))
            k.I('buffer_load_dword %s, v4, %s, s22 offen' % (vr(80 + p * 8 + kg), ws))
    for p in range(3):
        for kg in range(1, 8):
            k.I('v_add_f32 %s, %s, %s' % (vr(80 + p * 8), vr(80 + p * 8), vr(80 + p * 8 + kg)))
    CSQ_, CSK_, CSV_ = 80, 88, 96
    for ks in range(32):
        ldfrag(vr(X + 4 * ks, 4), 17, ks)
    seq = [(19, ks, ar(4 * ks, 4)) for ks in range(32)] + [(20, ks, ar(128 + 4 * ks, 4)) for ks in range(32)] + \
          [(18, ks, ar(4 * ks, 4)) for ks in range(32)]
    LOOK = 16
    for n in range(LOOK):
        ldfrag(seq[n][2], seq[n][0], seq[n][1])
    st.stamp()
    ACK, ACV, ACQ = 32, 48, 64
    k.I('s_mov_b32 s23, 0x%x' % ONES_BF16)
    for j in range(4):
        k.I('v_mov_b32 %s, 0' % vr(104 + j))
    for n in range(96):
        part, ks = n // 32, n % 32
        w = seq[n][2]
        x = vr(X + 4 * ks, 4)
        acc = vr([ACK, ACV, ACQ][part], 16)
        c = acc if ks else '0'
        if part < 2:
            k.I('v_mfma_f32_32x32x16_bf16 %s, %s, %s, %s' % (acc, x, w, c))
        else:
            k.I('v_mfma_f32_32x32x16_bf16 %s, %s, %s, %s' % (acc, w, x, c))
        if n + LOOK < 96:
            s_, ks_, d_ = seq[n + LOOK]
            ldfrag(d_, s_, ks_)
        if part == 0:
            for j in range(4):
                k.I('v_dot2c_f32_bf16 %s, s23, %s' % (vr(104 + (j & 1)), vr(X + 4 * ks + j)))
                k.I('v_dot2c_f32_bf16 %s, %s, %s' % (vr(106 + (j & 1)), vr(X + 4 * ks + j), vr(X + 4 * ks + j)))
    k.I('v_add_f32 v104, v104, v105')
    k.I('v_add_f32 v106, v106, v107')
    MEAN, RSTD = 108, 109
    st.stamp()
    stats_finish(k, 104, 106, MEAN, RSTD, 105)
    k.I('s_lshl_b32 s24, s8, 8')
    k.I('v_add_u32 v5, s24, v4')
    k.I('ds_write_b32 v5, %s' % vr(MEAN))
    k.I('ds_write_b32 v5, %s offset:128' % vr(RSTD))
    k.I('s_lshl_b32 s25, s8, 7')
    k.I('v_add_u32 v6, s25, v4')
    k.I('ds_write_b32 v6, %s offset:1024' % vr(CSQ_))
    k.I('v_lshrrev_b32 v7, 5, v1')
    k.I('v_lshlrev_b32 v7, 4, v7')
    k.I('v_add_u32 v5, s24, v7')
    k.I('v_add_u32 v6, s25, v7')
    MN, RS, CQ = 128, 144, 160
    for a in range(4):
        k.I('ds_read_b128 %s, v5 offset:%d' % (vr(MN + 4 * a, 4), a * 32))
        k.I('ds_read_b128 %s, v5 offset:%d' % (vr(RS + 4 * a, 4), 128 + a * 32))
        k.I('ds_read_b128 %s, v6 offset:%d' % (vr(CQ + 4 * a, 4), 1024 + a * 32))
    for i in range(16):
        for acc, cs in ((ACK, CSK_), (ACV, CSV_)):
            k.I('v_fma_f32 %s, -%s, %s, %s' % (vr(acc + i), vr(MN + i), vr(cs), vr(acc + i)))
            k.I('v_mul_f32 %s, %s, %s' % (vr(acc + i), vr(RS + i), vr(acc + i)))
        phi(k, ACK + i, 110)
    PKF, VF, ONE = 176, 184, 192
    for j in range(8):
        k.I('v_cvt_pk_bf16_f32 %s, %s, %s' % (vr(PKF + j), vr(ACK + 2 * j), vr(ACK + 2 * j + 1)))
        k.I('v_cvt_pk_bf16_f32 %s, %s, %s' % (vr(VF + j), vr(ACV + 2 * j), vr(ACV + 2 * j + 1)))
    for j in range(4):
        k.I('v_mov_b32 %s, s23' % vr(ONE + j))
    DKV, DZ = 196, 212
    k.I('v_mfma_f32_32x32x16_bf16 %s, %s, %s, 0' % (vr(DKV, 16), vr(PKF, 4), vr(VF, 4)))
    k.I('v_mfma_f32_32x32x16_bf16 %s, %s, %s, 0' % (vr(DZ, 16), vr(PKF, 4), vr(ONE, 4)))
    k.I('v_mfma_f32_32x32x16_bf16 %s, %s, %s, %s' % (vr(DKV, 16), vr(PKF + 4, 4), vr(VF + 4, 4), vr(DKV, 16)))
    k.I('v_mfma_f32_32x32x16_bf16 %s, %s, %s, %s' % (vr(DZ, 16), vr(PKF + 4, 4), vr(ONE, 4), vr(DZ, 16)))
    for i in range(16):
        k.I('v_fma_f32 %s, -%s, %s, %s' % (vr(ACQ + i), vr(MEAN), vr(CQ + i), vr(ACQ + i)))
        k.I('v_mul_f32 %s, %s, %s' % (vr(ACQ + i), vr(RSTD), vr(ACQ + i)))
        phi(k, ACQ + i, 110)
    for j in range(8):
        k.I('v_cvt_pk_bf16_f32 %s, %s, %s' % (vr(ACQ + j), vr(ACQ + 2 * j), vr(ACQ + 2 * j + 1)))
    k.I('s_lshl_b32 s26, s15, 5')
    k.I('s_lshl_b32 s27, s16, 1')
    k.I('s_add_u32 s26, s26, s27')
    k.I('s_lshl_b32 s26, s26, 10')
    k.I('s_add_u32 s26, s26, 0x%x' % OFF_PQ)
    k.I('buffer_store_dwordx4 %s, v2, %s, s26 offen' % (vr(ACQ, 4), ws))
    k.I('buffer_store_dwordx4 %s, v2, %s, s26 offen offset:1024' % (vr(ACQ + 4, 4), ws))
    k.I('v_and_b32 v5, 16, v1')
    k.I('v_cmp_eq_u32 vcc, 0, v5')
    for j in range(8):
        k.I('v_cndmask_b32 %s, %s, %s, vcc' % (vr(ACK + j), vr(DKV + 8 + j), vr(DKV + j)))
        k.I('v_cndmask_b32 %s, %s, %s, vcc' % (vr(ACK + 8 + j), vr(DZ + 8 + j), vr(DZ + j)))
    k.I('v_lshlrev_b32 v5, 7, v5')
    k.I('v_lshrrev_b32 v6, 5, v1')
    k.I('v_lshlrev_b32 v6, 10, v6')
    k.I('v_add_u32 v5, v5, v6')
    k.I('s_lshl_b32 s27, s14, 1')
    k.I('s_add_u32 s27, s27, s13')
    k.I('s_lshl_b32 s27, s27, 12')
    k.I('s_add_u32 s27, s27, 4096')
    k.I('v_add_u32 v5, s27, v5')
    k.I('v_and_b32 v6, 15, v1')
    k.I('v_lshlrev_b32 v7, 5, v6')
    k.I('v_add_u32 v7, v5, v7')
    k.I('ds_write_b128 v7, %s' % vr(ACK, 4))
    k.I('ds_write_b128 v7, %s offset:16' % vr(ACK + 4, 4))
    k.I('v_cmp_eq_u32 vcc, 0, v6')
    k.I('s_and_saveexec_b64 s[28:29], vcc')
    k.I('ds_write_b128 v5, %s offset:512' % vr(ACK + 8, 4))
    k.I('ds_write_b128 v5, %s offset:528' % vr(ACK + 12, 4))
    k.I('s_mov_b64 exec, s[28:29]')
    k.I('s_waitcnt lgkmcnt(0)')
    k.I('s_barrier')
    k.I('s_lshr_b32 s27, s8, 1')
    k.I('s_lshl_b32 s27, s27, 13')
    k.I('s_and_b32 s30, s8, 1')
    k.I('s_lshl_b32 s30, s30, 11')
    k.I('s_add_u32 s27, s27, s30')
    k.I('s_add_u32 s27, s27, 4096')
    k.I('v_lshlrev_b32 v5, 2, v1')
    k.I('v_add_u32 v6, s27, v5')
    k.I('s_lshl_b32 s30, s12, 2')
    k.I('s_add_u32 s30, s30, s8')
    k.I('s_lshl_b32 s30, s30, 11')
    k.I('s_add_u32 s30, s30, 0x%x' % OFF_KVZ)
    for half in range(2):
        for ch in range(3):
            off = half * 1024 + ch * 256
            d = 32 + (half * 3 + ch) * 2
            k.I('ds_read_b32 %s, v6 offset:%d' % (vr(d), off))
            k.I('ds_read_b32 %s, v6 offset:%d' % (vr(d + 1), off + 4096))
    for half in range(2):
        for ch in range(3):
            d = 32 + (half * 3 + ch) * 2
            k.I('v_add_f32 %s, %s, %s' % (vr(d), vr(d), vr(d + 1)))
    for half in range(2):
        for ch in range(2):
            d = 32 + (half * 3 + ch) * 2
            k.I('buffer_atomic_add_f32 %s, v5, %s, s30 offen offset:%d' % (vr(d), ws, half * 1024 + ch * 256))
    k.I('v_cmp_gt_u32 vcc, 8, v1')
    k.I('s_and_saveexec_b64 s[28:29], vcc')
    for half in range(2):
        d = 32 + (half * 3 + 2) * 2
        k.I('buffer_atomic_add_f32 %s, v5, %s, s30 offen offset:%d' % (vr(d), ws, half * 1024 + 512))
    k.I('s_mov_b64 exec, -1')
    st.stamp(); st.stamp(True); st.flush()
    k.label('L_k1_end')
    k.I('s_endpgm')
    return k, dict(lds=20480 + 4096, grid=256, block=256)


def gen_k2():
    k = Kernel('attn_kernel')
    WS, XS = 4, 8
    k.I('s_cmp_ge_u32 s2, 256')
    k.I('s_cbranch_scc1 L_k2_end')
    load_srds(k, [('ws', WS), ('x', XS)])
    ws = sr(WS, 4)
    st = Stamper(k, 2, ws); st.stamp(True); st.stamp()
    k.I('v_and_b32 v1, 63, v0')
    k.I('v_lshrrev_b32 v2, 6, v0')
    k.I('v_readfirstlane_b32 s12, v2')
    k.I('v_lshlrev_b32 v2, 4, v1')
    k.I('s_and_b32 s13, s2, 7')
    k.I('s_lshr_b32 s14, s2, 3')
    k.I('s_lshl_b32 s15, s13, 2')
    k.I('s_and_b32 s16, s14, 3')
    k.I('s_add_u32 s15, s15, s16')
    k.I('s_lshr_b32 s16, s14, 2')
    k.I('s_lshl_b32 s17, s15, 6')
    k.I('s_lshl_b32 s18, s12, 3')
    k.I('s_add_u32 s17, s17, s18')
    k.I('s_lshl_b32 s17, s17, 10')
    k.I('s_add_u32 s17, s17, 0x%x' % OFF_PQ)
    k.I('s_add_u32 s19, s17, 32768')
    k.I('s_lshl_b32 s20, s18, 4')
    k.I('s_lshl_b32 s21, s16, 1')
    k.I('s_add_u32 s20, s20, s21')
    k.I('s_lshl_b32 s20, s20, 10')
    k.I('s_add_u32 s20, s20, 0x%x' % OFF_WO)
    k.I('s_lshl_b32 s21, s18, 11')
    k.I('s_add_u32 s21, s21, 0x%x' % OFF_KVZ)
    k.I('v_and_b32 v3, 31, v1')
    k.I('v_min_u32 v4, 16, v3')
    k.I('v_lshrrev_b32 v5, 5, v1')
    k.I('v_lshlrev_b32 v6, 5, v5')
    k.I('v_add_u32 v4, v4, v6')
    k.I('v_lshlrev_b32 v4, 5, v4')
    k.I('v_add_u32 v7, 4096, v2')
    k.I('s_lshr_b32 s22, s12, 1')
    k.I('s_and_b32 s23, s12, 1')
    k.I('s_lshl_b32 s24, s15, 1')
    k.I('s_add_u32 s24, s24, s23')
    k.I('s_lshl_b32 s25, s16, 1')
    k.I('s_add_u32 s25, s25, s22')
    k.I('s_lshl_b32 s26, s24, 15')
    k.I('s_lshl_b32 s27, s25, 6')
    k.I('s_add_u32 s26, s26, s27')
    k.I('v_lshlrev_b32 v8, 10, v3')
    k.I('v_lshlrev_b32 v9, 3, v5')
    k.I('v_add_u32 v8, v8, v9')
    k.I('s_waitcnt lgkmcnt(0)')
    KV = 128
    A_ACC, A_WO, A_PQ = 0, 64, 128
    for t in range(8):
        k.I('s_add_u32 s28, s21, %d' % (t * 2048))
        k.I('buffer_load_dwordx4 %s, v4, %s, s28 offen' % (vr(KV + 8 * t, 4), ws))
        k.I('buffer_load_dwordx4 %s, v4, %s, s28 offen offset:16' % (vr(KV + 8 * t + 4, 4), ws))
        for r in range(2):
            k.I('buffer_load_dwordx4 %s, %s, %s, %s offen offset:%d' % (
                ar(A_PQ + (t * 2 + r) * 4, 4), 'v2' if t < 4 else 'v7', ws, 's17' if r == 0 else 's19', (t % 4) * 1024))
        k.I('s_add_u32 s29, s20, %d' % (t * 16384))
        for n in range(2):
            k.I('buffer_load_dwordx4 %s, v2, %s, s29 offen offset:%d' % (ar(A_WO + (t * 2 + n) * 4, 4), ws, n * 1024))
    XR = 112
    for a in range(4):
        k.I('buffer_load_dwordx2 %s, v8, %s, s26 offen offset:%d' % (vr(XR + 2 * a, 2), sr(XS, 4), a * 16))
    st.stamp()
    D1 = [32, 48]
    KF = 64
    OF = [72, 76]
    T = 80
    for t in range(8):
        for j in range(4):
            k.I('v_cvt_pk_bf16_f32 %s, %s, %s' % (vr(KF + (t & 1) * 4 + j), vr(KV + 8 * t + 2 * j), vr(KV + 8 * t + 2 * j + 1)))
        kf = vr(KF + (t & 1) * 4, 4)
        for r in range(2):
            k.I('v_mfma_f32_32x32x16_bf16 %s, %s, %s, 0' % (vr(D1[r], 16), kf, ar(A_PQ + (t * 2 + r) * 4, 4)))
        for r in range(2):
            k.I('v_add_f32 %s, 0x%x, %s' % (vr(T + r), f2u(1e-6), vr(D1[r] + 8)))
            k.I('v_rcp_f32 %s, %s' % (vr(T + r), vr(T + r)))
            for i in range(8):
                k.I('v_mul_f32 %s, %s, %s' % (vr(D1[r] + i), vr(T + r), vr(D1[r] + i)))
            for j in range(4):
                k.I('v_cvt_pk_bf16_f32 %s, %s, %s' % (vr(OF[r] + j), vr(D1[r] + 2 * j), vr(D1[r] + 2 * j + 1)))
        for n in range(2):
            for r in range(2):
                acc = ar(A_ACC + (n * 2 + r) * 16, 16)
                k.I('v_mfma_f32_32x32x16_bf16 %s, %s, %s, %s' % (
                    acc, ar(A_WO + (t * 2 + n) * 4, 4), vr(OF[r], 4), acc if t else '0'))
    st.stamp()
    reduce_tiles(k, A_ACC, 12, 32)
    st.stamp()
    for a in range(4):
        for b in range(2):
            src = XR + 2 * a + b
            k.I('v_lshlrev_b32 v64, 16, %s' % vr(src))
            k.I('v_and_b32 v65, 0xffff0000, %s' % vr(src))
            k.I('v_add_f32 %s, %s, v64' % (vr(32 + 4 * a + 2 * b), vr(32 + 4 * a + 2 * b)))
            k.I('v_add_f32 %s, %s, v65' % (vr(32 + 4 * a + 2 * b + 1), vr(32 + 4 * a + 2 * b + 1)))
    for j in range(8):
        k.I('v_cvt_pk_bf16_f32 %s, %s, %s' % (vr(48 + j), vr(32 + 2 * j), vr(32 + 2 * j + 1)))
    k.I('s_lshl_b32 s26, s24, 5')
    k.I('s_lshl_b32 s27, s25, 1')
    k.I('s_add_u32 s26, s26, s27')
    k.I('s_lshl_b32 s26, s26, 10')
    k.I('s_add_u32 s26, s26, 0x%x' % OFF_H)
    k.I('buffer_store_dwordx4 v[48:51], v2, %s, s26 offen' % ws)
    k.I('buffer_store_dwordx4 v[52:55], v2, %s, s26 offen offset:1024' % ws)
    st.stamp(); st.stamp(True); st.flush()
    k.label('L_k2_end')
    k.I('s_endpgm')
    return k, dict(lds=65536, grid=256, block=256)


def reduce_tiles(k, A_ACC, s_wave, dst):
    k.I('v_lshlrev_b32 v10, 4, v1')
    k.I('s_lshl_b32 s30, %s, 14' % sr(s_wave))
    k.I('v_add_u32 v10, s30, v10')
    for t in range(4):
        for q in range(4):
            k.I('ds_write_b128 v10, %s offset:%d' % (ar(A_ACC + t * 16 + q * 4, 4), t * 4096 + q * 1024))
    k.I('s_waitcnt lgkmcnt(0)')
    k.I('s_barrier')
    k.I('v_lshlrev_b32 v11, 4, v1')
    k.I('s_lshl_b32 s30, %s, 12' % sr(s_wave))
    k.I('v_add_u32 v11, s30, v11')
    for sw in range(4):
        for q in range(4):
            k.I('ds_read_b128 %s, v11 offset:%d' % (vr(dst + sw * 16 + q * 4, 4), sw * 16384 + q * 1024))
    for sw in range(1, 4):
        for i in range(16):
            k.I('v_add_f32 %s, %s, %s' % (vr(dst + i), vr(dst + i), vr(dst + sw * 16 + i)))


OPT = {}

def gen_k3():
    k = Kernel('gateup_kernel')
    WS = 4
    k.I('s_cmp_ge_u32 s2, 256')
    k.I('s_cbranch_scc1 L_k3_end')
    load_srds(k, [('ws', WS)])
    ws = sr(WS, 4)
    st = Stamper(k, 3, ws); st.stamp(True); st.stamp()
    k.I('v_and_b32 v1, 63, v0')
    k.I('v_lshrrev_b32 v2, 6, v0')
    k.I('v_readfirstlane_b32 s8, v2')
    k.I('v_lshlrev_b32 v2, 4, v1')
    k.I('s_and_b32 s9, s2, 7')
    k.I('s_lshr_b32 s10, s2, 3')
    k.I('s_and_b32 s11, s9, 1')
    k.I('s_lshl_b32 s11, s11, 3')
    k.I('s_and_b32 s12, s10, 7')
    k.I('s_add_u32 s11, s11, s12')
    k.I('s_lshr_b32 s12, s9, 1')
    k.I('s_lshl_b32 s12, s12, 2')
    k.I('s_lshr_b32 s13, s10, 3')
    k.I('s_add_u32 s12, s12, s13')
    k.I('s_lshl_b32 s13, s11, 2')
    k.I('s_add_u32 s13, s13, s8')
    k.I('s_lshl_b32 s14, s13, 15')
    k.I('s_add_u32 s14, s14, 0x%x' % OFF_H)
    k.I('s_mul_i32 s15, s12, %d' % (7 * 32768))
    k.I('s_lshl_b32 s16, s8, 13')
    k.I('s_add_u32 s15, s15, s16')
    k.I('s_add_u32 s15, s15, 0x%x' % OFF_WGU)
    k.I('s_mul_i32 s17, s13, 112')
    k.I('s_mul_i32 s18, s12, 7')
    k.I('s_add_u32 s17, s17, s18')
    k.I('s_lshl_b32 s17, s17, 10')
    k.I('s_add_u32 s17, s17, 0x%x' % OFF_ACT)
    for t in range(1, 8):
        k.I('v_add_u32 %s, %d, v2' % (vr(8 + t), 4096 * t))
    k.I('v_mov_b32 v8, v2')
    k.I('v_lshlrev_b32 v3, 2, v0')
    k.I('s_mul_i32 s18, s12, %d' % (7 * 128))
    k.I('s_add_u32 s18, s18, 0x%x' % OFF_CSG)
    k.I('s_waitcnt lgkmcnt(0)')
    CS_LDS = 131072
    for kg in range(16):
        k.I('s_add_u32 s19, s18, %d' % (kg * 112 * 128))
        k.I('buffer_load_dword %s, v3, %s, s19 offen' % (vr(64 + kg), ws))

    def dma(soff, sm0, name):
        for hf in range(2):
            k.I('s_add_u32 s19, %s, %d' % (sr(sm0), hf * 4096))
            k.I('s_mov_b32 m0, s19')
            k.I('s_add_u32 s20, %s, %d' % (sr(soff), hf * 4096))
            for t in range(4):
                k.I('buffer_load_dwordx4 v2, %s, s20 offen offset:%d lds' % (ws, t * 1024), w=[name])
    X = 128
    k.I('s_mov_b32 s21, s16')
    dma(15, 21, 'W0')
    for ks in range(32):
        k.I('buffer_load_dwordx4 %s, %s, %s, s14 offen offset:%d' % (vr(X + 4 * ks, 4), vr(8 + ks // 4), ws, (ks % 4) * 1024))
    for kg in range(1, 16):
        k.I('v_add_f32 v64, v64, %s' % vr(64 + kg))
    k.I('v_add_u32 v3, %d, v3' % CS_LDS)
    k.I('ds_write_b32 v3, v64')
    k.I('s_add_u32 s22, s15, 32768')
    k.I('s_add_u32 s21, s16, 32768')
    dma(22, 21, 'dA')
    k.I('s_add_u32 s22, s15, 65536')
    k.I('s_add_u32 s21, s16, 65536')
    dma(22, 21, 'dB')
    k.I('s_add_u32 s23, s16, %d' % (3 * 32768))
    k.I('s_mov_b32 s24, s16')
    k.I('s_add_u32 s25, s15, %d' % (3 * 32768))
    k.I('s_mov_b32 s26, 0')
    k.I('v_mov_b32 v4, v2')
    k.I('v_add_u32 v5, 32768, v2')
    k.I('v_lshrrev_b32 v6, 5, v1')
    k.I('v_lshlrev_b32 v6, 4, v6')
    k.I('v_add_u32 v6, %d, v6' % CS_LDS)
    k.I('s_mov_b32 s27, 0x%x' % ONES_BF16)
    ACC = [32, 48]
    D, L = 8, 6
    WR = 0
    CSR = 64
    T = 80
    MEAN, RSTD, NMEAN, NA, A2 = 112, 113, 114, 115, 116

    def wread(n, vaddr, ks):
        k.I('ds_read_b128 %s, %s offset:%d' % (ar(WR + (n % D) * 4, 4), vaddr, ks * 1024))

    def epilogue_ops(S, last=False):
        ops = []
        for q in range(4):
            ops.append('ds_read_b128 %s, v6 offset:%d' % (vr(CSR + 4 * q, 4), q * 32))
        pre = len(ops)
        for i0 in range(0, 8, 2):
            a = []
            for u, i in enumerate((i0, i0 + 1)):
                t = T + u * 4
                a.append([
                    'v_fma_f32 %s, %s, %s, %s' % (vr(t), vr(NMEAN), vr(CSR + i), vr(S + i)),
                    'v_fma_f32 %s, %s, %s, %s' % (vr(t + 1), vr(NMEAN), vr(CSR + 8 + i), vr(S + 8 + i)),
                    'v_mul_f32 %s, %s, %s' % (vr(t + 2), vr(NA), vr(t)),
                    'v_exp_f32 %s, %s' % (vr(t + 2), vr(t + 2)),
                    'v_mul_f32 %s, %s, %s' % (vr(t), vr(t), vr(t + 1)),
                    'v_add_f32 %s, 1.0, %s' % (vr(t + 2), vr(t + 2)),
                    'v_rcp_f32 %s, %s' % (vr(t + 2), vr(t + 2)),
                    'v_mul_f32 %s, %s, %s' % (vr(t), vr(A2), vr(t)),
                    'v_mul_f32 %s, %s, %s' % (vr(T + 8 + i), vr(t), vr(t + 2)),
                ])
            for x, y in zip(a[0], a[1]):
                ops += [x, y]
            ops.append('v_cvt_pk_bf16_f32 %s, %s, %s' % (vr(T + 16 + i0 // 2), vr(T + 8 + i0), vr(T + 8 + i0 + 1)))
        ops.append('buffer_store_dwordx4 %s, v2, %s, s17 offen' % (vr(T + 16, 4), ws))
        ops.append('s_add_u32 s17, s17, 1024')
        ops.append('v_add_u32 v6, 128, v6')
        return ops, pre

    def body(par, first, nbase):
        cur, nxt = ('v4', 'v5') if par == 0 else ('v5', 'v4')
        S = ACC[par]
        if first:
            fill = []
            for ks in range(32):
                f = []
                for j in range(4):
                    f.append('v_dot2c_f32_bf16 %s, s27, %s' % (vr(100 + (j & 1)), vr(X + 4 * ks + j)))
                    f.append('v_dot2c_f32_bf16 %s, %s, %s' % (vr(102 + (j & 1)), vr(X + 4 * ks + j), vr(X + 4 * ks + j)))
                fill.append(f)
        else:
            ops, pre = epilogue_ops(ACC[1 - par])
            fill = [[] for _ in range(32)]
            fill[0] = ops[:pre]
            rest = ops[pre:]
            g0, g1 = 3, 30
            per = -(-len(rest) // (g1 - g0))
            for g in range(g0, g1):
                fill[g] = rest[(g - g0) * per:(g - g0 + 1) * per]
        for ks in range(32):
            n = nbase + ks
            k.I('v_mfma_f32_32x32x16_bf16 %s, %s, %s, %s' % (
                vr(S, 16), ar(WR + (n % D) * 4, 4), vr(X + 4 * ks, 4), vr(S, 16) if ks else '0'))
            if ks == 32 - L:
                k.need('dA' if par == 0 else 'dB')
                k.I('s_barrier')
                sm = 23 if par == 0 else 24
                k.I('s_cmp_lt_u32 s26, 4')
                k.I('s_cselect_b32 s28, s25, 0x7fff0000')
                if not OPT.get('nodma') or first:
                    dma(28, sm, 'dA' if par == 0 else 'dB')
                k.I('s_xor_b32 %s, %s, 0x10000' % (sr(sm), sr(sm)))
                k.I('s_add_u32 s25, s25, 32768')
                k.I('s_add_u32 s26, s26, 1')
            if ks + L < 32:
                wread(n + L, cur, ks + L)
            else:
                wread(n + L, nxt, ks + L - 32)
            for ins in fill[ks]:
                if OPT.get('noepi') and not first and ins.startswith('v_'): continue
                if OPT.get('nostats') and first: continue
                k.I(ins)
        k.I('v_xor_b32 %s, 0x10000, %s' % (cur, cur))

    for j in range(4):
        k.I('v_mov_b32 %s, 0' % vr(100 + j))
    st.stamp()
    k.need('W0')
    k.I('s_waitcnt lgkmcnt(0)')
    k.I('s_barrier')
    st.stamp()
    for n in range(L):
        wread(n, 'v4', n)
    body(0, True, 0)
    st.stamp()
    k.I('v_add_f32 v100, v100, v101')
    k.I('v_add_f32 v102, v102, v103')
    stats_finish(k, 100, 102, MEAN, RSTD, 101)
    k.I('v_sub_f32 %s, 0, %s' % (vr(NMEAN), vr(MEAN)))
    k.I('v_mul_f32 %s, 0x%x, %s' % (vr(NA), f2u(-LOG2E), vr(RSTD)))
    k.I('v_mul_f32 %s, %s, %s' % (vr(A2), vr(RSTD), vr(RSTD)))
    k.I('s_mov_b32 s29, 3')
    k.loop_begin('L_k3_loop')
    body(1, False, 0)
    body(0, False, 0)
    k.I('s_sub_u32 s29, s29, 1')
    k.I('s_cmp_lg_u32 s29, 0')
    k.I('s_cbranch_scc1 L_k3_loop')
    k.loop_end('L_k3_loop')
    st.stamp()
    ops, pre = epilogue_ops(ACC[0])
    for ins in ops:
        k.I(ins)
    st.stamp(); st.stamp(True); st.flush()
    k.label('L_k3_end')
    k.I('s_endpgm')
    return k, dict(lds=131072 + 1024, grid=256, block=256)


def gen_k4():
    k = Kernel('down_kernel')
    WS, OS = 4, 8
    k.I('s_cmp_ge_u32 s2, 256')
    k.I('s_cbranch_scc1 L_k4_end')
    load_srds(k, [('ws', WS), ('out', OS)])
    ws = sr(WS, 4)
    st = Stamper(k, 4, ws); st.stamp(True); st.stamp()
    k.I('v_and_b32 v1, 63, v0')
    k.I('v_lshrrev_b32 v2, 6, v0')
    k.I('v_readfirstlane_b32 s12, v2')
    k.I('v_lshlrev_b32 v2, 4, v1')
    k.I('v_add_u32 v3, 4096, v2')
    k.I('s_and_b32 s13, s2, 7')
    k.I('s_lshr_b32 s14, s2, 3')
    k.I('s_lshl_b32 s15, s13, 2')
    k.I('s_and_b32 s16, s14, 3')
    k.I('s_add_u32 s15, s15, s16')
    k.I('s_lshr_b32 s16, s14, 2')
    k.I('s_mul_i32 s17, s12, %d' % (28 * 1024))
    k.I('s_mul_i32 s18, s15, %d' % (2 * 112 * 1024))
    k.I('s_add_u32 s18, s18, s17')
    k.I('s_add_u32 s18, s18, 0x%x' % OFF_ACT)
    k.I('s_add_u32 s19, s18, %d' % (112 * 1024))
    k.I('s_mul_i32 s20, s16, %d' % (2 * 112 * 1024))
    k.I('s_add_u32 s20, s20, s17')
    k.I('s_add_u32 s20, s20, 0x%x' % OFF_WD)
    k.I('s_add_u32 s21, s20, %d' % (112 * 1024))
    k.I('s_lshr_b32 s22, s12, 1')
    k.I('s_and_b32 s23, s12, 1')
    k.I('s_lshl_b32 s24, s15, 1')
    k.I('s_add_u32 s24, s24, s23')
    k.I('s_lshl_b32 s25, s16, 1')
    k.I('s_add_u32 s25, s25, s22')
    k.I('s_lshl_b32 s26, s24, 5')
    k.I('s_lshl_b32 s27, s25, 1')
    k.I('s_add_u32 s26, s26, s27')
    k.I('s_lshl_b32 s26, s26, 10')
    k.I('s_add_u32 s26, s26, 0x%x' % OFF_H)
    k.I('s_waitcnt lgkmcnt(0)')
    HR = 112
    k.I('buffer_load_dwordx4 %s, v2, %s, s26 offen' % (vr(HR, 4), ws))
    k.I('buffer_load_dwordx4 %s, v2, %s, s26 offen offset:1024' % (vr(HR + 4, 4), ws))
    R = 7
    RING = 128
    A_ACC = 0

    def loads(u):
        voff = 'v2' if u < 4 else 'v3'
        for s, so in enumerate((20, 21, 18, 19)):
            k.I('buffer_load_dwordx4 %s, %s, %s, %s offen offset:%d' % (
                vr(RING + u * 16 + s * 4, 4), voff, ws, sr(so), (u % 4) * 1024))

    def adv():
        for so in (18, 19, 20, 21):
            k.I('s_add_u32 %s, %s, %d' % (sr(so), sr(so), R * 1024))

    def mfmas(u, first):
        for n in range(2):
            for r in range(2):
                acc = ar(A_ACC + (n * 2 + r) * 16, 16)
                k.I('v_mfma_f32_32x32x16_bf16 %s, %s, %s, %s' % (
                    acc, vr(RING + u * 16 + n * 4, 4), vr(RING + u * 16 + 8 + r * 4, 4), '0' if first else acc))
    for u in range(R):
        loads(u)
    adv()
    st.stamp()
    for u in range(R):
        mfmas(u, u == 0)
        loads(u)
    adv()
    st.stamp()
    k.I('s_mov_b32 s28, 2')
    k.loop_begin('L_k4_loop')
    for u in range(R):
        mfmas(u, False)
        loads(u)
    adv()
    k.I('s_sub_u32 s28, s28, 1')
    k.I('s_cmp_lg_u32 s28, 0')
    k.I('s_cbranch_scc1 L_k4_loop')
    k.loop_end('L_k4_loop')
    for u in range(R):
        mfmas(u, False)
    st.stamp()
    reduce_tiles(k, A_ACC, 12, 32)
    st.stamp()
    for j in range(8):
        src = HR + j
        k.I('v_lshlrev_b32 v96, 16, %s' % vr(src))
        k.I('v_and_b32 v97, 0xffff0000, %s' % vr(src))
        k.I('v_add_f32 %s, %s, v96' % (vr(32 + 2 * j), vr(32 + 2 * j)))
        k.I('v_add_f32 %s, %s, v97' % (vr(32 + 2 * j + 1), vr(32 + 2 * j + 1)))
    for j in range(8):
        k.I('v_cvt_pk_bf16_f32 %s, %s, %s' % (vr(48 + j), vr(32 + 2 * j), vr(32 + 2 * j + 1)))
    for a in (0, 2):
        b = 48 + 2 * a
        k.I('v_permlane32_swap_b32 %s, %s' % (vr(b), vr(b + 2)))
        k.I('v_permlane32_swap_b32 %s, %s' % (vr(b + 1), vr(b + 3)))
    k.I('v_and_b32 v4, 31, v1')
    k.I('v_lshlrev_b32 v4, 10, v4')
    k.I('v_lshrrev_b32 v5, 5, v1')
    k.I('v_lshlrev_b32 v5, 4, v5')
    k.I('v_add_u32 v4, v4, v5')
    k.I('s_lshl_b32 s26, s24, 15')
    k.I('s_lshl_b32 s27, s25, 6')
    k.I('s_add_u32 s26, s26, s27')
    k.I('buffer_store_dwordx4 v[48:51], v4, %s, s26 offen' % sr(OS, 4))
    k.I('buffer_store_dwordx4 v[52:55], v4, %s, s26 offen offset:32' % sr(OS, 4))
    st.stamp(); st.stamp(True); st.flush()
    k.label('L_k4_end')
    k.I('s_endpgm')
    return k, dict(lds=65536, grid=256, block=256)


def wrap(kernels):
    head = open('cdna_kernels/%s.s.ref' % NAME).read().split('; Override launch geometry')[0]
    out = [head.rstrip()]
    for label, k, cfg in kernels:
        out.append('; @launch kernel=%s grid=(%d,1,1) block=(%d,1,1) lds=%d' % (label, cfg['grid'], cfg['block'], cfg['lds']))
    out.append('.amdgcn_target "amdgcn-amd-amdhsa--gfx950"')
    out.append('.text')
    seen = set()
    for label, k, cfg in kernels:
        if label in seen:
            continue
        seen.add(label)
        out.append('.globl %s' % label)
        out.append('.p2align 8')
        out.append('.type %s,@function' % label)
        out.append('%s:' % label)
        out.append(k.finish())
    out.append('L_text_end:')
    out.append('    s_endpgm')
    out.append('.section .rodata,"a"')
    seen = set()
    for label, k, cfg in kernels:
        if label in seen:
            continue
        seen.add(label)
        mx = k.maxreg()
        acc = cfg.get('accum', None)
        nv = mx['v'] + 1
        na = mx['a'] + 1
        accum = max(4, (nv + 3) // 4 * 4)
        nfv = accum + na if na else nv
        out.append('.p2align 6')
        out.append('.amdhsa_kernel %s' % label)
        out.append('  .amdhsa_next_free_vgpr %d' % nfv)
        out.append('  .amdhsa_next_free_sgpr %d' % max(mx['s'] + 1, 90))
        out.append('  .amdhsa_accum_offset %d' % accum)
        out.append('  .amdhsa_group_segment_fixed_size 0')
        out.append('  .amdhsa_kernarg_size 80')
        out.append('  .amdhsa_user_sgpr_count 2')
        out.append('  .amdhsa_user_sgpr_kernarg_segment_ptr 1')
        out.append('  .amdhsa_system_sgpr_workgroup_id_x 1')
        out.append('  .amdhsa_float_denorm_mode_32 3')
        out.append('.end_amdhsa_kernel')
    return '\n'.join(out) + '\n'


if __name__ == '__main__':
    n = int(sys.argv[2]) if len(sys.argv) > 2 else 5
    STAMPS = len(sys.argv) > 3
    for o in sys.argv[4:]:
        OPT[o] = True
    gens = [('prep_kernel', gen_k0), ('qkv_kernel', gen_k1), ('attn_kernel', gen_k2), ('gateup_kernel', gen_k3), ('down_kernel', gen_k4)]
    ks = []
    for label, g in gens[:n]:
        kk, cc = g()
        ks.append((label, kk, cc))
        print(label, kk.stats(), kk.maxreg())
    open(sys.argv[1], 'w').write(wrap(ks))
```

```python
import sys
from asmgen import Kernel
import gen1
from gen1 import *
from gen2 import Sched, xhalf_ops
from gen3 import emit, ln_phi_ops


class Multi:
    def __init__(self, parts):
        self.parts = parts
    def finish(self):
        return '\n'.join(p.finish() for p in self.parts)
    def maxreg(self):
        mx = {'v': -1, 'a': -1, 's': -1}
        for p in self.parts:
            m = p.maxreg()
            for t in mx:
                mx[t] = max(mx[t], m[t])
        return mx
    def stats(self):
        return [p.stats() for p in self.parts]


def pair_signal(flag_lds_sgpr, vtmp, vone):
    return ['v_mov_b32 %s, %s' % (vr(vtmp), sr(flag_lds_sgpr)), 'v_mov_b32 %s, 1' % vr(vone),
            'ds_write_b32 %s, %s' % (vr(vtmp), vr(vone))]


def pair_wait(k, name, flag_lds_sgpr, vtmp, vval, stmp):
    k.I('v_mov_b32 %s, %s' % (vr(vtmp), sr(flag_lds_sgpr)))
    k.label(name)
    k.I('ds_read_b32 %s, %s' % (vr(vval), vr(vtmp)))
    k.I('v_readfirstlane_b32 %s, %s' % (sr(stmp), vr(vval)))
    k.I('s_cmp_eq_u32 %s, 0' % sr(stmp))
    k.I('s_cbranch_scc1 %s' % name)


def gen_a8():
    kp = Kernel('a_pro')
    k = kp
    XS, WQ, WS, PA, PB, DB = 4, 8, 12, 16, 20, 24
    ws = sr(WS, 4)
    k.I('s_cmp_ge_u32 s2, 256')
    k.I('s_cbranch_scc1 L_a_end')
    load_srds(k, [('x', XS), ('wqkv', WQ), ('ws', WS), ('dbg', DB)])
    k.I('s_load_dwordx2 s[40:41], s[0:1], %d' % KA['wo'])
    k.I('s_load_dwordx4 s[44:47], s[0:1], %d' % KA['wg'])
    k.I('s_load_dwordx2 s[42:43], s[0:1], %d' % KA['wd'])
    if gen1.STAMPS:
        k.I('s_memrealtime s[84:85]')
        k.I('s_memtime s[86:87]')
    k.I('v_and_b32 v1, 63, v0')
    k.I('v_lshrrev_b32 v2, 6, v0')
    k.I('v_readfirstlane_b32 s27, v2')
    k.I('s_mov_b32 s39, s27')
    k.I('s_mov_b32 s27, 0x00020000')
    k.I('s_and_b32 s28, s39, 3')
    k.I('s_and_b32 s34, s2, 7')
    k.I('s_lshr_b32 s35, s2, 3')
    k.I('s_and_b32 s32, s34, 3')
    k.I('s_lshl_b32 s32, s32, 3')
    k.I('s_and_b32 s36, s35, 7')
    k.I('s_add_u32 s32, s32, s36')
    k.I('s_lshr_b32 s33, s34, 2')
    k.I('s_lshl_b32 s33, s33, 2')
    k.I('s_lshr_b32 s36, s35, 3')
    k.I('s_add_u32 s33, s33, s36')
    k.I('s_and_b32 s29, s28, 1')
    k.I('s_lshr_b32 s30, s28, 1')
    k.I('s_xor_b32 s31, s29, s30')
    k.I('s_mov_b32 s70, 0x%x' % ONES_BF16)
    k.I('s_mov_b32 s81, 0x%x' % f2u(1e-6))
    k.I('s_cmp_ge_u32 s39, 4')
    k.I('s_cbranch_scc1 L_a_q')

    X, WR = 112, 80
    LA = 4
    E = 131072
    E_ST = E
    E_CS = E + 1024
    E_TB = E + 4096
    E_FL = E + 3072
    E_KV = E + 8192
    WSLOT = {('k', 0): 1, ('k', 1): 3, ('k', 2): 5, ('k', 3): 7, ('v', 0): 0, ('v', 1): 1, ('v', 2): 2, ('v', 3): 3,
             ('q', 0): 4, ('q', 1): 5, ('q', 2): 6, ('q', 3): 7}
    XA = 16
    WE, WO_, WE2, WO2 = 12, 13, 14, 15
    MEAN, RSTD, CK, CV, T0 = 2, 3, 4, 5, 6
    LN16 = 7

    def common_setup(k, need_w_addr=True):
        k.I('v_and_b32 v2, 31, v1')
        k.I('s_lshl_b32 s37, s29, 5')
        k.I('v_add_u32 v2, s37, v2')
        k.I('v_lshlrev_b32 v2, 8, v2')
        k.I('v_lshrrev_b32 v3, 5, v1')
        k.I('v_and_b32 v4, 15, v1')
        k.I('v_xor_b32 v4, v3, v4')
        k.I('v_lshlrev_b32 v4, 4, v4')
        k.I('s_lshl_b32 s37, s31, 5')
        k.I('v_xor_b32 v4, s37, v4')
        for s in range(8):
            k.I('v_xor_b32 v5, %d, v4' % (32 * s))
            k.I('v_add_u32 %s, v2, v5' % vr(XA + s))
        k.I('v_bfe_u32 v4, v1, 2, 2')
        k.I('v_lshl_add_u32 v4, v3, 3, v4')
        k.I('v_lshlrev_b32 v4, 7, v4')
        k.I('v_bfe_u32 v5, v1, 4, 1')
        k.I('v_lshlrev_b32 v5, 1, v5')
        k.I('v_bfe_u32 v6, v1, 1, 1')
        k.I('v_add_u32 v5, v5, v6')
        k.I('s_lshl_b32 s37, s30, 2')
        k.I('v_add_u32 v5, s37, v5')
        k.I('v_bfe_u32 v6, v1, 3, 1')
        k.I('v_lshlrev_b32 v6, 2, v6')
        k.I('v_xor_b32 v5, v5, v6')
        k.I('v_lshlrev_b32 v5, 4, v5')
        k.I('v_and_b32 v6, 1, v1')
        k.I('v_lshlrev_b32 v6, 3, v6')
        k.I('v_add3_u32 v4, v4, v5, v6')
        k.I('s_lshl_b32 s37, s31, 11')
        k.I('v_add_u32 %s, s37, v4' % vr(WE))
        k.I('s_xor_b32 s37, s37, 2048')
        k.I('v_add_u32 %s, s37, v4' % vr(WO_))
        k.I('v_add_u32 %s, 0x10000, %s' % (vr(WE2), vr(WE)))
        k.I('v_add_u32 %s, 0x10000, %s' % (vr(WO2), vr(WO_)))
        k.I('v_bfe_u32 v5, v1, 4, 1')
        k.I('v_and_b32 v6, 1, v1')
        k.I('v_cmp_eq_u32 vcc, v5, v6')
        k.I('v_mov_b32 v5, s70')
        k.I('v_cndmask_b32 v5, 0, v5, vcc')
        for j in range(4):
            k.I('v_accvgpr_write_b32 a%d, v5' % (4 + j))
        k.I('s_lshl_b32 s72, s29, 1')
        k.I('s_add_u32 s73, s72, s30')
        k.I('s_lshl_b32 s73, s73, 8')
        k.I('s_add_u32 s73, s73, %d' % E_ST)
        k.I('s_xor_b32 s74, s73, 256')
        k.I('s_lshl_b32 s75, s30, 1')
        k.I('s_add_u32 s75, s75, s29')
        k.I('s_lshl_b32 s75, s75, 7')
        k.I('s_add_u32 s75, s75, %d' % E_CS)
        k.I('s_xor_b32 s76, s75, 128')
        k.I('s_lshl_b32 s77, s39, 8')
        k.I('s_add_u32 s77, s77, %d' % E_TB)
        k.I('s_lshl_b32 s40, s28, 2')
        k.I('s_add_u32 s40, s40, %d' % E_FL)
        k.I('s_xor_b32 s41, s40, 4')
        k.I('v_and_b32 v0, 31, v1')
        k.I('v_lshlrev_b32 v0, 2, v0')
        k.I('v_and_b32 v26, 16, v1')
        k.I('v_cmp_ne_u32 s[82:83], 0, v26')
        k.I('v_lshlrev_b32 %s, 4, v1' % vr(LN16))

    def xread(n):
        c, s = n // 8, n % 8
        return 'ds_read_b128 %s, %s offset:%d' % (vr(X + 4 * n, 4), vr(XA + s), (c % 2) * 32768)

    def wreads(part, ks):
        c, s = ks // 8, ks % 8
        slot = WSLOT[(part, c)]
        a = ((WE, WO_) if slot < 4 else (WE2, WO2))[s & 1]
        off = (slot % 4) * 16384 + (s & ~1) * 2048
        return ['ds_read_b64_tr_b16 %s, %s offset:%d' % (vr(WR + 4 * s, 2), vr(a), off),
                'ds_read_b64_tr_b16 %s, %s offset:%d' % (vr(WR + 4 * s + 2, 2), vr(a), off + 512)]

    def stats_finish_ops():
        return ['v_lshlrev_b32 v26, 1, v0', 'v_add_u32 v27, s74, v26', 'v_add_u32 v26, s73, v26',
                'ds_read_b64 v[24:25], v26', 'ds_read_b64 v[28:29], v27',
                'v_add_f32 v24, v24, v28', 'v_add_f32 v25, v25, v29',
                'v_mul_f32 %s, 0x%x, v24' % (vr(MEAN), f2u(1.0 / 512)),
                'v_mul_f32 v25, 0x%x, v25' % f2u(1.0 / 512),
                'v_fma_f32 v25, -%s, %s, v25' % (vr(MEAN), vr(MEAN)),
                'v_max_f32 v25, 0, v25', 'v_add_f32 v25, 0x%x, v25' % f2u(1e-5), 'v_rsq_f32 %s, v25' % vr(RSTD)]

    kk = Kernel('a_kv')
    k = kk
    st = Stamper(k, 1, ws, base=88, tmp=40)
    ACK, ACV = 48, 64
    MN, RS = 16, 32
    k.I('s_lshl_b32 s38, s2, 2')
    k.I('s_add_u32 s38, s38, s28')
    k.I('s_mov_b32 s19, 0x00020000')
    k.I('s_mov_b32 s23, 0x00020000')
    if not OPT.get('nocode'):
        k.I('s_getpc_b64 s[34:35]')
        k.label('L_a_pc')
        k.I('s_sub_u32 s34, s34, L_a_pc-qkv_kernel')
        k.I('s_subb_u32 s35, s35, 0')
        k.I('s_lshr_b32 s36, s2, 3')
        k.I('s_lshl_b32 s36, s36, 2')
        k.I('s_add_u32 s36, s36, s28')
        k.I('s_lshl_b32 s36, s36, 10')
        k.I('v_lshlrev_b32 v8, 4, v1')
        k.I('v_add_u32 v8, s36, v8')
        k.I('v_min_u32 v8, L_text_end-qkv_kernel-4, v8')
        k.I('global_load_dword v239, v8, s[34:35]')
    k.I('s_waitcnt lgkmcnt(0)')
    prep_decode(k)
    common_setup(k)
    for j in range(4):
        k.I('v_accvgpr_write_b32 a%d, s70' % j)
    k.I('s_lshl_b32 s37, s33, 2')
    k.I('s_add_u32 s37, s37, s28')
    k.I('s_lshl_b32 s37, s37, 11')
    k.I('s_add_u32 s71, s37, 0x%x' % OFF_KVZ)
    k.I('s_lshl_b32 s78, s33, 2')
    if OPT.get('touch'):
        k.I('s_and_b32 s34, s2, 7')
        k.I('s_lshr_b32 s35, s2, 3')
        k.I('s_and_b32 s36, s34, 3')
        k.I('s_lshl_b32 s36, s36, 19')
        k.I('s_lshl_b32 s37, s35, 14')
        k.I('s_add_u32 s36, s36, s37')
        k.I('s_lshl_b32 s37, s28, 12')
        k.I('s_add_u32 s36, s36, s37')
        k.I('v_lshlrev_b32 v8, 4, v1')
        for t in range(4):
            k.I('buffer_load_dword %s, v8, %s, s36 offen offset:%d' % (vr(220 + t), sr(XS, 4), t * 1024))
        k.I('v_lshrrev_b32 v9, 5, v1')
        k.I('s_movk_i32 s37, 3072')
        k.I('v_mul_lo_u32 v9, v9, s37')
        k.I('v_and_b32 v10, 31, v1')
        k.I('v_lshl_add_u32 v9, v10, 4, v9')
        k.I('s_lshl_b32 s35, s35, 4')
        k.I('s_lshl_b32 s37, s28, 2')
        k.I('s_add_u32 s35, s35, s37')
        k.I('s_mul_i32 s35, s35, 3072')
        k.I('s_lshr_b32 s34, s34, 2')
        k.I('s_lshl_b32 s34, s34, 9')
        k.I('s_add_u32 s35, s35, s34')
        for hh in range(2):
            for p in range(3):
                k.I('s_add_u32 s34, s35, %d' % (hh * 2 * 3072))
                k.I('buffer_load_dword %s, v9, %s, s34 offen offset:%d' % (vr(224 + hh * 3 + p), sr(WQ, 4), p * 1024))
        k.I('v_lshrrev_b32 v10, 3, v1')
        k.I('v_mul_lo_u32 v10, v10, s50')
        k.I('v_and_b32 v9, 7, v1')
        k.I('v_lshl_add_u32 v10, v9, 4, v10')
        k.I('s_lshl_b32 s36, s50, 3')
        k.I('s_mov_b32 s34, s48')
        k.I('s_mov_b32 s35, s49')
        for t in range(4):
            k.I('buffer_load_dword %s, v10, %s, s34 offen' % (vr(230 + t), sr(PA, 4)))
            k.I('buffer_load_dword %s, v10, %s, s35 offen' % (vr(234 + t), sr(PB, 4)))
            k.I('s_add_u32 s34, s34, s36')
            k.I('s_add_u32 s35, s35, s36')
    k.I('v_lshlrev_b32 v8, 2, v1')
    k.I('v_add_u32 v8, %d, v8' % E_FL)
    k.I('v_mov_b32 v9, 0')
    k.I('v_cmp_gt_u32 vcc, 16, v1')
    k.I('s_and_saveexec_b64 s[60:61], vcc')
    k.I('ds_write_b32 v8, v9')
    k.I('s_mov_b64 exec, s[60:61]')
    k.I('s_waitcnt lgkmcnt(0)')
    S = Sched(64)
    GS = [0, 8, 16, 24, 32, 48]
    pre = ['s_barrier']
    for n in range(LA):
        pre += [xread(n)] + wreads('k', n)
    for g in range(1, 6):
        S.at(GS[g] - LA - 1, ['s_barrier'])
    S.at(47, ['s_barrier'])
    S.at(62, ['s_barrier'])
    for n in range(64):
        part = 'kv'[n // 32]
        s = n % 8
        m = n + LA
        if m < 64:
            if m == 16:
                S.at(n, ['v_add_u32 %s, 0x10000, %s' % (vr(XA + t), vr(XA + t)) for t in range(8)])
            S.at(n, ([xread(m)] if m < 32 else []) + wreads('kv'[m // 32], m % 32))
        if s % 2 == 0:
            ca = ar(8 + 4 * (n // 32), 4)
            S.at(n, ['v_mfma_f32_16x16x32_bf16 %s, a[4:7], %s, %s' % (ca, vr(WR + 4 * s, 4), '0' if n % 32 == 0 else ca)])

    def lane_form(dst, a0, tmp):
        return ['v_accvgpr_read_b32 %s, a%d' % (vr(dst), a0), 'v_accvgpr_read_b32 %s, a%d' % (vr(tmp), a0 + 1),
                'v_cndmask_b32 %s, %s, %s, s[82:83]' % (vr(dst), vr(dst), vr(tmp))]
    S.at(31, lane_form(CK, 8, 27) + ['v_add_u32 v26, s75, v0', 'ds_write_b32 v26, %s' % vr(CK), 's_waitcnt lgkmcnt(0)'])
    S.at(33, ['s_barrier', 'v_add_u32 v26, s76, v0', 'ds_read_b32 v30, v26'] + stats_finish_ops() +
         ['v_add_f32 %s, %s, v30' % (vr(CK), vr(CK)),
          'v_add_u32 v26, s77, v0', 'ds_write_b32 v26, %s' % vr(MEAN), 'ds_write_b32 v26, %s offset:128' % vr(RSTD),
          'v_lshrrev_b32 v26, 5, v1', 'v_lshlrev_b32 v26, 4, v26', 'v_add_u32 %s, s77, v26' % vr(T0)])
    rd = []
    for a in range(4):
        rd.append('ds_read_b128 %s, %s offset:%d' % (vr(MN + 4 * a, 4), vr(T0), a * 32))
        rd.append('ds_read_b128 %s, %s offset:%d' % (vr(RS + 4 * a, 4), vr(T0), 128 + a * 32))
    S.at(34, rd)
    ke = []
    for i in range(0, 16, 2):
        ke += ln_phi_ops([ACK + i, ACK + i + 1], [MN + i, MN + i + 1], [CK, CK], [RS + i, RS + i + 1], [8, 9])
        ke.append('v_cvt_pk_bf16_f32 %s, %s, %s' % (vr(ACK + i // 2), vr(ACK + i), vr(ACK + i + 1)))
    S.spread(36, 61, ke)
    S.at(46, ['v_mov_b32 v6, 0', 'buffer_load_dword v11, v6, %s, s78 offen sc1' % sr(DB, 4)])
    pd = ['v_lshrrev_b32 v10, 3, v1', 'v_mul_lo_u32 v10, v10, s50', 'v_and_b32 v6, 7, v1', 'v_lshlrev_b32 v6, 4, v6',
          'v_add_u32 v10, v10, v6', 's_lshl_b32 s80, s50, 3', 's_lshl_b32 s79, s28, 13']
    for t in range(8):
        base = 's48' if t < 4 else 's49'
        pd.append('s_add_u32 m0, s79, %d' % (t * 1024))
        pd.append(('buffer_load_dwordx4 v10, %s, %s offen lds' % (sr(PA if t < 4 else PB, 4), base), 'prep'))
        pd.append('s_add_u32 %s, %s, s80' % (base, base))
    S.spread(48, 61, pd)
    for o in pre:
        emit(k, o)
    st.stamp()
    for n in range(64):
        part, ks = n // 32, n % 32
        acc = vr([ACK, ACV][part], 16)
        if n % 2 == 0:
            k.touch(vr(WR + 4 * ((n + 1) % 8), 4))
            if part == 0:
                k.touch(vr(X + 4 * (ks + 1), 4))
        k.I('v_mfma_f32_32x32x16_bf16 %s, %s, %s, %s' % (acc, vr(X + 4 * ks, 4), vr(WR + 4 * (n % 8), 4), acc if ks else '0'))
        for o in S.slots[n]:
            emit(k, o)
        if n in (31,):
            st.stamp()
    st.stamp()
    TT = ACK + 8
    for o in lane_form(CV, 12, TT) + ['v_add_u32 %s, s75, v0' % vr(TT), 'ds_write_b32 %s, %s offset:512' % (vr(TT), vr(CV))] + \
            pair_signal(40, TT + 1, TT + 2):
        emit(k, o)
    pair_wait(k, 'L_a_pw0', 41, TT + 1, TT + 2, 79)
    for o in ['v_add_u32 %s, s76, v0' % vr(TT), 'ds_read_b32 %s, %s offset:512' % (vr(TT + 1), vr(TT)),
              'v_add_f32 %s, %s, %s' % (vr(CV), vr(CV), vr(TT + 1))]:
        emit(k, o)
    for i in range(16):
        k.I('v_fma_f32 %s, -%s, %s, %s' % (vr(ACV + i), vr(MN + i), vr(CV), vr(ACV + i)))
    for i in range(16):
        k.I('v_mul_f32 %s, %s, %s' % (vr(ACV + i), vr(RS + i), vr(ACV + i)))
    for j in range(8):
        k.I('v_cvt_pk_bf16_f32 %s, %s, %s' % (vr(ACV + j), vr(ACV + 2 * j), vr(ACV + 2 * j + 1)))
    DKV, DZ = 16, 32
    k.I('v_mfma_f32_32x32x16_bf16 %s, %s, %s, 0' % (vr(DKV, 16), vr(ACK, 4), vr(ACV, 4)))
    k.I('v_mfma_f32_32x32x16_bf16 %s, %s, a[0:3], 0' % (vr(DZ, 16), vr(ACK, 4)))
    k.I('v_mfma_f32_32x32x16_bf16 %s, %s, %s, %s' % (vr(DKV, 16), vr(ACK + 4, 4), vr(ACV + 4, 4), vr(DKV, 16)))
    k.I('v_mfma_f32_32x32x16_bf16 %s, %s, a[0:3], %s' % (vr(DZ, 16), vr(ACK + 4, 4), vr(DZ, 16)))
    for o in ['v_and_b32 %s, 16, v1' % vr(TT), 'v_lshlrev_b32 %s, 7, %s' % (vr(TT), vr(TT)),
              'v_lshrrev_b32 %s, 5, v1' % vr(TT + 1), 'v_lshlrev_b32 %s, 10, %s' % (vr(TT + 1), vr(TT + 1)),
              's_lshl_b32 s79, s30, 1', 's_add_u32 s79, s79, s29', 's_lshl_b32 s79, s79, 12', 's_add_u32 s79, s79, %d' % E_KV,
              'v_add3_u32 %s, %s, %s, s79' % (vr(TT), vr(TT), vr(TT + 1)),
              'v_and_b32 %s, 15, v1' % vr(TT + 1), 'v_lshl_add_u32 %s, %s, 5, %s' % (vr(TT + 2), vr(TT + 1), vr(TT)),
              's_add_u32 s40, s40, 16', 's_add_u32 s41, s41, 16']:
        emit(k, o)
    for j in range(8):
        k.I('v_cndmask_b32 %s, %s, %s, s[82:83]' % (vr(DKV + j), vr(DKV + j), vr(DKV + 8 + j)))
    for j in range(8):
        k.I('v_cndmask_b32 %s, %s, %s, s[82:83]' % (vr(DZ + j), vr(DZ + j), vr(DZ + 8 + j)))
    for o in ['ds_write_b128 %s, %s' % (vr(TT + 2), vr(DKV, 4)), 'ds_write_b128 %s, %s offset:16' % (vr(TT + 2), vr(DKV + 4, 4)),
              'v_cmp_eq_u32 vcc, 0, %s' % vr(TT + 1), 's_and_saveexec_b64 s[60:61], vcc',
              'ds_write_b128 %s, %s offset:512' % (vr(TT), vr(DZ, 4)), 'ds_write_b128 %s, %s offset:528' % (vr(TT), vr(DZ + 4, 4)),
              's_mov_b64 exec, s[60:61]'] + pair_signal(40, TT + 1, TT + 2) + \
            ['s_lshl_b32 s79, s30, 13', 's_lshl_b32 s80, s29, 11', 's_add_u32 s79, s79, s80', 's_add_u32 s79, s79, %d' % E_KV]:
        emit(k, o)
    pair_wait(k, 'L_a_pw1', 41, TT + 1, TT + 2, 80)
    k.I('v_lshlrev_b32 %s, 2, v1' % vr(TT))
    k.I('v_add_u32 %s, s79, %s' % (vr(TT + 1), vr(TT)))
    for half in range(2):
        for ch in range(3):
            d = 16 + (half * 3 + ch) * 2
            off = half * 1024 + ch * 256
            k.I('ds_read_b32 %s, %s offset:%d' % (vr(d), vr(TT + 1), off))
            k.I('ds_read_b32 %s, %s offset:%d' % (vr(d + 1), vr(TT + 1), off + 4096))
    for half in range(2):
        for ch in range(3):
            d = 16 + (half * 3 + ch) * 2
            k.I('v_add_f32 %s, %s, %s' % (vr(d), vr(d), vr(d + 1)))
    k.I('v_readfirstlane_b32 s79, v11')
    k.I('s_cmp_eq_u32 s79, 0')
    k.I('s_cbranch_scc1 L_a_spin')
    k.label('L_a_go')
    for half in range(2):
        for ch in range(2):
            d = 16 + (half * 3 + ch) * 2
            k.I('buffer_atomic_add_f32 %s, %s, %s, s71 offen offset:%d' % (vr(d), vr(TT), ws, half * 1024 + ch * 256))
    k.I('v_cmp_gt_u32 vcc, 8, v1')
    k.I('s_and_saveexec_b64 s[60:61], vcc')
    for half in range(2):
        d = 16 + (half * 3 + 2) * 2
        k.I('buffer_atomic_add_f32 %s, %s, %s, s71 offen offset:%d' % (vr(d), vr(TT), ws, half * 1024 + 512))
    k.I('s_mov_b64 exec, s[60:61]')
    st.stamp()
    for o in ['v_bfe_u32 v16, v1, 2, 2', 'v_lshrrev_b32 v17, 5, v1', 'v_lshl_add_u32 v16, v17, 2, v16', 'v_lshlrev_b32 v16, 7, v16',
              'v_and_b32 v17, 3, v1', 'v_lshl_add_u32 v16, v17, 3, v16', 'v_bfe_u32 v17, v1, 4, 1',
              's_cmp_eq_u32 s68, 1', 's_cselect_b32 s79, 12, 5', 's_cselect_b32 s60, 32, 64', 's_cselect_b32 s61, 64, 2048',
              's_cselect_b32 s62, 11, 12', 's_lshl_b32 s62, 1, s62',
              'v_lshlrev_b32 v17, s79, v17', 's_lshl_b32 s80, s28, 13', 'v_add3_u32 v16, v16, v17, s80',
              'v_add_u32 v17, s60, v16', 'v_add_u32 v18, s61, v16', 'v_add_u32 v19, s61, v17']:
        k.I(o)
    PAD = [16, 17, 18, 19]
    for f in range(4):
        k.I('v_add_u32 %s, s62, %s' % (vr(20 + f), vr(PAD[f])))
    PAD += [20, 21, 22, 23]
    PF = X
    k.need('prep')
    for f in range(8):
        k.I('ds_read_b64_tr_b16 %s, %s' % (vr(PF + 4 * f, 2), vr(PAD[f])))
        k.I('ds_read_b64_tr_b16 %s, %s offset:1024' % (vr(PF + 4 * f + 2, 2), vr(PAD[f])))
    for f in range(8):
        k.I('buffer_store_dwordx4 %s, %s, %s, %s offen' % (vr(PF + 4 * f, 4), vr(LN16), ws, sr(51 + f)))
        ca = ar(8 + 4 * (f & 1), 4) if False else None
    for f in range(8):
        ca = vr(32 + 4 * (f & 3), 4)
        k.I('v_mfma_f32_16x16x32_bf16 %s, a[4:7], %s, %s' % (ca, vr(PF + 4 * f, 4), '0' if f < 4 else ca))
    for c in range(4):
        k.I('v_cndmask_b32 %s, %s, %s, s[82:83]' % (vr(48 + c), vr(32 + 4 * c), vr(33 + 4 * c)))
        k.I('buffer_store_dword %s, v0, %s, s59 offen offset:%d' % (vr(48 + c), ws, c * 128))
    if gen1.STAMPS:
        k.I('s_mov_b32 s88, s88') if False else None
        k.I('v_lshl_add_u32 v4, s39, 6, v1')
        st.tid = 'v4'
        st.stamp(); st.stamp(True)
        flush_stamps(k, st, ws, 1)
    k.label('L_a_end')
    k.I('s_endpgm')
    k.raw('''L_a_spin:
    s_sleep 2
    v_mov_b32 v6, 0
    buffer_load_dword v11, v6, s[%d:%d], s78 offen sc1
    s_waitcnt vmcnt(0)
    v_readfirstlane_b32 s79, v11
    s_nop 3
    s_cmp_eq_u32 s79, 0
    s_cbranch_scc1 L_a_spin
    s_branch L_a_go
''' % (DB, DB + 3))

    kq = Kernel('a_q')
    k = kq
    k.label('L_a_q')
    stq = Stamper(k, 5, ws, base=88, tmp=40)
    ACQ = 48
    k.I('s_lshl_b32 s34, s28, 12')
    k.I('s_lshl_b32 s35, s32, 16')
    k.I('s_mul_i32 s36, s28, %d' % (32 * 3072))
    k.I('s_lshl_b32 s37, s33, 7')
    k.I('s_add_u32 s36, s36, s37')
    k.I('s_add_u32 s38, s32, s33')
    if OPT.get('norot'):
        k.I('s_mov_b32 s38, 0')
    for c in range(4):
        k.I('s_add_u32 s37, s38, %d' % c)
        k.I('s_and_b32 s37, s37, 3')
        k.I('s_lshl_b32 %s, s37, 8' % sr(60 + c))
        k.I('s_add_u32 %s, %s, s35' % (sr(60 + c), sr(60 + c)))
        k.I('s_mul_i32 %s, s37, %d' % (sr(64 + c), 128 * 3072))
        k.I('s_add_u32 %s, %s, s36' % (sr(64 + c), sr(64 + c)))
    XV = [32, 33, 34, 35]
    WV = [8, 9, 10, 11]
    k.I('v_lshrrev_b32 v2, 4, v1')
    k.I('v_and_b32 v3, 15, v1')
    k.I('s_lshl_b32 s37, s28, 4')
    for j in range(4):
        k.I('v_add_u32 v4, %d, v2' % (4 * j))
        k.I('v_xor_b32 v5, v3, v4')
        k.I('v_lshlrev_b32 v5, 4, v5')
        k.I('v_add_u32 v4, s37, v4')
        k.I('v_lshlrev_b32 v4, 10, v4')
        k.I('v_add_u32 v4, v4, v5')
        k.I('v_subrev_u32 %s, %d, v4' % (vr(XV[j]), j * 1024))
    k.I('v_lshrrev_b32 v4, 3, v1')
    k.I('s_movk_i32 s37, 3072')
    k.I('v_mul_lo_u32 v4, v4, s37')
    k.I('v_and_b32 v5, 1, v2')
    k.I('v_lshlrev_b32 v5, 2, v5')
    k.I('v_and_b32 v6, 7, v1')
    k.I('v_xor_b32 v5, v5, v6')
    k.I('v_lshlrev_b32 v5, 4, v5')
    k.I('v_add_u32 v8, v4, v5')
    for j in range(1, 4):
        k.I('v_add_u32 %s, %d, v8' % (vr(WV[j]), j * (8 * 3072 - 1024)))
    k.I('v_lshlrev_b32 %s, 4, v1' % vr(LN16))
    for j in range(4):
        k.I('v_mov_b32 %s, 0' % vr(40 + j))
    k.I('s_lshl_b32 s37, s33, 2')
    k.I('s_add_u32 s37, s37, s28')
    k.I('s_lshl_b32 s37, s37, 11')
    k.I('s_add_u32 s71, s37, 0x%x' % OFF_KVZ)
    k.I('s_cmp_eq_u32 s32, 0')
    k.I('s_cselect_b32 s37, s71, 0x7fff0000')
    k.I('s_waitcnt lgkmcnt(0)')
    if OPT.get('qpro'): stq.stamp()
    k.I('buffer_store_dwordx4 v[40:43], %s, %s, s37 offen sc1' % (vr(LN16), ws), w=['zero'])
    k.I('buffer_store_dwordx4 v[40:43], %s, %s, s37 offen offset:1024 sc1' % (vr(LN16), ws), w=['zero'])
    k.I('s_lshl_b32 s37, s2, 7')
    k.I('s_lshl_b32 s38, s28, 15')
    k.I('s_add_u32 s37, s37, s38')
    k.I('s_add_u32 s37, s37, 0x%x' % OFF_CNT)
    k.I('s_cmp_lt_u32 s28, 3')
    k.I('s_cselect_b32 s37, s37, 0x7fff0000')
    k.I('v_and_b32 v41, 15, v1')
    k.I('v_lshlrev_b32 v41, 2, v41')
    k.I('buffer_store_dword v40, v41, %s, s37 offen' % ws)

    def dma_x_ops(c, slot):
        ops = ['s_add_u32 m0, s34, %d' % (slot * 16384)]
        for j in range(4):
            ops.append(('buffer_load_dwordx4 %s, %s, %s offen offset:%d lds' % (vr(XV[j]), sr(XS, 4), sr(60 + c), j * 1024), 'X%d' % c))
        return ops
    PARTCOL = {'q': 0, 'k': 1024, 'v': 2048}

    def dma_w_ops(part, c, slot):
        ops = ['s_add_u32 m0, s34, %d' % (slot * 16384), 's_add_u32 s69, %s, %d' % (sr(64 + c), PARTCOL[part])]
        for j in range(4):
            ops.append(('buffer_load_dwordx4 %s, %s, s69 offen offset:%d lds' % (vr(WV[j]), sr(WQ, 4), j * 1024), 'W%s%d' % (part, c)))
        return ops
    def interleave(a, b, ratio=None):
        nv = sum(1 for o in a if isinstance(o, tuple))
        out, ib, seen = [], 0, 0
        for o in a:
            out.append(o)
            if isinstance(o, tuple):
                seen += 1
                upto = len(b) * seen // nv
                out += b[ib:upto]
                ib = upto
        return out + b[ib:]
    grp = lambda c: dma_x_ops(c, 2 * c) + dma_w_ops('k', c, 2 * c + 1)
    for o in grp(0):
        emit(k, o)
    if OPT.get('qpro'): stq.stamp()
    ktmp = Kernel('tmp')
    common_setup(ktmp)
    setup_ops = [it.text for it in ktmp.items]
    for o in interleave(grp(1), setup_ops):
        emit(k, o)
    stq.stamp()
    SQ = 24
    k.I('v_mov_b32 v24, 0')
    k.I('v_mov_b32 v25, 0')
    nextdma = {0: grp(2), 1: grp(3), 2: dma_w_ops('v', 0, 0) + dma_w_ops('v', 1, 1), 3: dma_w_ops('v', 2, 2) + dma_w_ops('v', 3, 3)}
    for g in range(4):
        if OPT.get('qg') == (g,): stq.stamp()
        k.need(*(['X%d' % g, 'Wk%d' % g] + (['zero'] if g == 0 else [])))
        if OPT.get('qg') == (g,) or (OPT.get('qpro') and g == 0): stq.stamp()
        k.I('s_barrier')
        if OPT.get('qg') == (g,): stq.stamp()
        work = []
        if g == 0:
            work += ['s_or_b32 s38, s32, s28', 's_cmp_eq_u32 s38, 0', 's_cselect_b32 s38, 0, 0x1000',
                     'v_lshlrev_b32 v26, 12, v1', 's_lshl_b32 s78, s33, 2', 'v_add_u32 v26, s78, v26', 'v_mov_b32 v27, 1']
        if g == 2:
            work += ['v_add_u32 %s, 0x10000, %s' % (vr(XA + t), vr(XA + t)) for t in range(8)]
        work += [xread(8 * g + s) for s in range(8)]
        for s in range(0, 8, 2):
            n = 8 * g + s
            work.append('v_mfma_f32_16x16x32_bf16 a[8:11], a[4:7], %s, %s' % (vr(X + 4 * n, 4), '0' if n == 0 else 'a[8:11]'))
            for j in range(4):
                xr = X + 4 * n + j
                work.append('v_dot2c_f32_bf16 %s, %s, %s' % (vr(SQ + (j & 1)), vr(xr), vr(xr)))
        if OPT.get('noqwork'):
            work = [w for w in work if not (w.startswith('v_mfma') or w.startswith('v_dot2c'))]
        if OPT.get('qafter'):
            for o in nextdma[g] + work:
                emit(k, o)
        else:
            for o in interleave(nextdma[g], work):
                emit(k, o)
        if OPT.get('qg') == (g,): stq.stamp()
        if g == 0:
            k.I('buffer_store_dword v27, v26, %s, s38 offen sc1' % sr(DB, 4))
    if not (OPT.get('qpro') or OPT.get('qg')): stq.stamp()
    k.need('Wv0', 'Wv1')
    k.I('s_waitcnt lgkmcnt(0)')
    k.I('s_barrier')
    for o in dma_w_ops('q', 0, 4) + dma_w_ops('q', 1, 5):
        emit(k, o)
    for o in ['v_add_f32 v25, v24, v25'] + xhalf_ops(25, 26) + \
            ['v_accvgpr_read_b32 v24, a8', 'v_accvgpr_read_b32 v27, a9', 'v_cndmask_b32 v24, v24, v27, s[82:83]',
             'v_lshlrev_b32 v26, 1, v0', 'v_add_u32 v26, s73, v26', 'ds_write_b64 v26, v[24:25]', 's_waitcnt lgkmcnt(0)',
             's_barrier'] + stats_finish_ops():
        emit(k, o)
    k.need('Wv2', 'Wv3')
    k.I('s_barrier')
    for o in dma_w_ops('q', 2, 6) + dma_w_ops('q', 3, 7):
        emit(k, o)
    k.need('Wq0', 'Wq1')
    k.I('s_barrier')
    if not (OPT.get('qpro') or OPT.get('qg')): stq.stamp()
    for n in range(LA):
        for o in wreads('q', n):
            k.I(o)
    for n in range(32):
        if n % 2 == 0:
            k.touch(vr(WR + 4 * ((n + 1) % 8), 4))
        acc = vr(ACQ, 16)
        k.I('v_mfma_f32_32x32x16_bf16 %s, %s, %s, %s' % (acc, vr(WR + 4 * (n % 8), 4), vr(X + 4 * n, 4), acc if n else '0'))
        if n == 16 - LA - 1:
            k.need('Wq2', 'Wq3')
            k.I('s_barrier')
        if n + LA < 32:
            for o in wreads('q', n + LA):
                k.I(o)
        if n % 2 == 0:
            k.I('v_mfma_f32_16x16x32_bf16 a[12:15], a[4:7], %s, %s' % (vr(WR + 4 * (n % 8), 4), '0' if n == 0 else 'a[12:15]'))
    if not (OPT.get('qpro') or OPT.get('qg')): stq.stamp()
    CSQ = 64
    for o in ['v_accvgpr_read_b32 %s, a12' % vr(CSQ), 'v_accvgpr_read_b32 %s, a13' % vr(CSQ + 1),
              'v_cndmask_b32 %s, %s, %s, s[82:83]' % (vr(CSQ), vr(CSQ), vr(CSQ + 1)),
              'v_add_u32 %s, s75, v0' % vr(CSQ + 1), 'ds_write_b32 %s, %s offset:1024' % (vr(CSQ + 1), vr(CSQ)),
              's_add_u32 s40, s40, 32', 's_add_u32 s41, s41, 32'] + pair_signal(40, CSQ + 1, CSQ + 2) + \
             ['v_lshrrev_b32 v20, 5, v1', 'v_lshlrev_b32 v20, 4, v20', 'v_add_u32 v21, s76, v20', 'v_add_u32 v20, s75, v20']:
        k.I(o)
    pair_wait(k, 'L_a_pw2', 41, CSQ + 1, CSQ + 2, 79)
    CQ, CQ2 = 24, 64
    for a in range(4):
        k.I('ds_read_b128 %s, v20 offset:%d' % (vr(CQ + 4 * a, 4), 1024 + a * 32))
        k.I('ds_read_b128 %s, v21 offset:%d' % (vr(CQ2 + 4 * a, 4), 1024 + a * 32))
    for i in range(16):
        k.I('v_add_f32 %s, %s, %s' % (vr(CQ + i), vr(CQ + i), vr(CQ2 + i)))
    for i in range(0, 16, 2):
        for o in ln_phi_ops([ACQ + i, ACQ + i + 1], [MEAN, MEAN], [CQ + i, CQ + i + 1], [RSTD, RSTD], [22, 23]):
            k.I(o)
        k.I('v_cvt_pk_bf16_f32 %s, %s, %s' % (vr(ACQ + i // 2), vr(ACQ + i), vr(ACQ + i + 1)))
    for o in ['s_lshl_b32 s79, s32, 1', 's_add_u32 s79, s79, s29', 's_lshl_b32 s79, s79, 5', 's_lshl_b32 s80, s33, 2',
              's_add_u32 s79, s79, s80', 's_lshl_b32 s80, s30, 1', 's_add_u32 s79, s79, s80', 's_lshl_b32 s79, s79, 10',
              's_add_u32 s79, s79, 0x%x' % OFF_PQ]:
        k.I(o)
    k.I('buffer_store_dwordx4 %s, %s, %s, s79 offen' % (vr(ACQ, 4), vr(LN16), ws))
    k.I('buffer_store_dwordx4 %s, %s, %s, s79 offen offset:1024' % (vr(ACQ + 4, 4), vr(LN16), ws))
    if gen1.STAMPS:
        k.I('v_lshl_add_u32 v4, s39, 6, v1')
        k.I('v_subrev_u32 v4, 256, v4')
        stq.tid = 'v4'
        stq.stamp(); stq.stamp(True)
        flush_stamps(k, stq, ws, 5)
    k.I('s_endpgm')
    return Multi([kp, kq_first(kk, kq)[0], kq_first(kk, kq)[1]]), dict(lds=131072 + 8192 + 16384, grid=256, block=512)


def kq_first(kk, kq):
    return kk, kq


def flush_stamps(k, st, ws, kidx):
    k.I('s_waitcnt lgkmcnt(0)')
    k.I('v_cmp_eq_u32 vcc, 0, %s' % st.tid)
    k.I('s_and_saveexec_b64 s[40:41], vcc')
    k.I('s_lshl_b32 s42, s2, 7')
    k.I('s_add_u32 s42, s42, 0x%x' % (OFF_TS + kidx * 256 * 128))
    k.I('v_mov_b32 v0, 0')
    regs = [84, 86] + [st.base + 2 * i for i in range(st.n)]
    for i, r in enumerate(regs):
        k.I('v_mov_b32 v2, s%d' % r)
        k.I('v_mov_b32 v3, s%d' % (r + 1))
        k.I('buffer_store_dwordx2 v[2:3], v0, %s, s42 offen offset:%d' % (ws, 8 * i))
    k.I('s_mov_b64 exec, s[40:41]')


def prep_decode(k):
    k.I('s_cmp_ge_u32 s38, 448')
    k.I('s_cbranch_scc1 L_a_pstd')
    div_const(k, 37, 38, 28, 48)
    k.I('s_mul_i32 s48, s37, 28')
    k.I('s_sub_u32 s69, s38, s48')
    k.I('s_mov_b32 s16, s44')
    k.I('s_mov_b32 s17, s45')
    k.I('s_mov_b32 s18, 0x%x' % SZ['wg'])
    k.I('s_mov_b32 s20, s46')
    k.I('s_mov_b32 s21, s47')
    k.I('s_mov_b32 s22, 0x%x' % SZ['wu'])
    k.I('s_movk_i32 s50, 3584')
    k.I('s_mul_i32 s48, s37, %d' % (32 * 3584))
    k.I('s_lshl_b32 s49, s69, 7')
    k.I('s_add_u32 s48, s48, s49')
    k.I('s_mov_b32 s49, s48')
    k.I('s_lshl_b32 s59, s69, 7')
    k.I('s_lshl_b32 s51, s37, 1')
    k.I('s_add_u32 s59, s59, s51')
    k.I('s_lshl_b32 s59, s59, 10')
    k.I('s_add_u32 s72, s59, 0x%x' % OFF_WGU)
    k.I('s_mov_b32 s73, %d' % (32 * 1024))
    k.I('s_mov_b32 s74, %d' % (64 * 1024))
    k.I('s_mov_b32 s75, 1024')
    k.I('s_mul_i32 s59, s37, %d' % (112 * 128))
    k.I('s_lshl_b32 s69, s69, 9')
    k.I('s_add_u32 s59, s59, s69')
    k.I('s_add_u32 s59, s59, 0x%x' % OFF_CSG)
    k.I('s_mov_b32 s68, 1')
    k.I('s_branch L_a_pgo')
    k.label('L_a_pstd')
    k.I('s_movk_i32 s50, 1024')
    k.I('s_mov_b32 s68, 0')
    k.I('s_mov_b32 s59, 0x7fff0000')
    k.I('s_cmp_ge_u32 s38, 672')
    k.I('s_cbranch_scc1 L_a_pwo')
    k.I('s_sub_u32 s37, s38, 448')
    k.I('s_and_b32 s69, s37, 7')
    k.I('s_lshr_b32 s37, s37, 3')
    k.I('s_mov_b32 s16, s42')
    k.I('s_mov_b32 s17, s43')
    k.I('s_mov_b32 s18, 0x%x' % SZ['wd'])
    k.I('s_mul_i32 s48, s69, 224')
    k.I('s_lshl_b32 s49, s37, 2')
    k.I('s_add_u32 s48, s48, s49')
    k.I('s_lshl_b32 s48, s48, 10')
    k.I('s_add_u32 s72, s48, 0x%x' % OFF_WD)
    k.I('s_mov_b32 s73, %d' % (112 * 1024))
    k.I('s_mov_b32 s74, 1024')
    k.I('s_mov_b32 s75, 2048')
    k.I('s_branch L_a_pstd2')
    k.label('L_a_pwo')
    k.I('s_sub_u32 s37, s38, 672')
    k.I('s_and_b32 s69, s37, 7')
    k.I('s_lshr_b32 s37, s37, 3')
    k.I('s_mov_b32 s16, s40')
    k.I('s_mov_b32 s17, s41')
    k.I('s_mov_b32 s18, 0x%x' % SZ['wo'])
    k.I('s_lshl_b32 s48, s37, 6')
    k.I('s_lshl_b32 s49, s69, 1')
    k.I('s_add_u32 s48, s48, s49')
    k.I('s_lshl_b32 s48, s48, 10')
    k.I('s_add_u32 s72, s48, 0x%x' % OFF_WO)
    k.I('s_cmp_ge_u32 s38, 736')
    k.I('s_cselect_b32 s72, 0x7fff0000, s72')
    k.I('s_cselect_b32 s18, 0, s18')
    k.I('s_mov_b32 s73, 1024')
    k.I('s_mov_b32 s74, %d' % (16 * 1024))
    k.I('s_mov_b32 s75, %d' % (32 * 1024))
    k.label('L_a_pstd2')
    k.I('s_mov_b32 s20, s16')
    k.I('s_mov_b32 s21, s17')
    k.I('s_mov_b32 s22, s18')
    k.I('s_lshl_b32 s48, s37, 16')
    k.I('s_lshl_b32 s49, s69, 7')
    k.I('s_add_u32 s48, s48, s49')
    k.I('s_add_u32 s49, s48, %d' % (32 * 1024))
    k.label('L_a_pgo')
    k.I('s_mov_b32 s51, s72')
    k.I('s_add_u32 s52, s72, s73')
    k.I('s_add_u32 s53, s72, s74')
    k.I('s_add_u32 s54, s52, s74')
    for f in range(4):
        k.I('s_add_u32 %s, %s, s75' % (sr(55 + f), sr(51 + f)))


if __name__ == '__main__':
    n = int(sys.argv[2]) if len(sys.argv) > 2 else 4
    gen1.STAMPS = len(sys.argv) > 3 and sys.argv[3] == 'stamps'
    for o in sys.argv[4:]:
        if '=' in o:
            kk_, vv_ = o.split('=')
            gen1.OPT[kk_] = tuple(int(x) for x in vv_.split(','))
        else:
            gen1.OPT[o] = True
    gens = [('qkv_kernel', gen_a8), ('attn_kernel', gen_k2), ('gateup_kernel', gen_k3), ('down_kernel', gen_k4)]
    ks = []
    for label, g in gens[:n]:
        kk, cc = g()
        ks.append((label, kk, cc))
        print(label, kk.stats(), kk.maxreg())
    open(sys.argv[1], 'w').write(wrap(ks))
```

```python
import sys
from asmgen import Kernel
import gen1
from gen1 import *
from gen2 import Sched, xhalf_ops
from gen3 import emit
import gen4
from gen4 import gen_a8


def STP():
    return '' if OPT.get('stplain') else ' sc1'


def LSC():
    return '' if OPT.get('ldplain') else ' sc1'


def sync_arrive(k, s_wave, ws, vt, s_arr, name):
    k.I('s_barrier')
    k.raw("""    s_cmp_lg_u32 s%d, 0
    s_cbranch_scc1 %s_noarr
    v_lshlrev_b32 v%d, 7, v1
    v_mov_b32 v%d, 1
    s_mov_b64 exec, 0xffff
    buffer_store_dword v%d, v%d, %s, s%d offen sc1
    s_nop 0
    s_mov_b64 exec, -1
%s_noarr:""" % (s_wave, name, vt, vt + 1, vt + 1, vt, ws, s_arr, name))


def sync_wait(k, name, s_cnt, s_wave, ws, vt, bg, nbatch=4):
    k.raw("""    s_cmp_lg_u32 s%d, 0
    s_cselect_b32 s59, 1, 0
    v_and_b32 v%d, 15, v1
    v_lshlrev_b32 v%d, 2, v%d""" % (s_wave, vt, vt, vt))
    vm = [i for i, o in enumerate(bg) if (isinstance(o, tuple) or o.startswith('buffer_'))]
    per = -(-len(vm) // nbatch)
    cuts = [0] + [vm[min(len(vm) - 1, per * (b + 1) - 1)] + 1 for b in range(nbatch)]
    cuts[-1] = len(bg)
    check = """    v_cmp_eq_u32 vcc, 1, v%d
    s_nop 4
    s_cmp_eq_u64 vcc, exec
    s_cselect_b32 s59, 1, 0""" % (vt + 1)
    for b in range(nbatch):
        batch = bg[cuts[b]:cuts[b + 1]]
        nv = sum(1 for o in batch if (isinstance(o, tuple) or o.startswith('buffer_')))
        k.raw("""    s_cmp_lg_u32 s59, 0
    s_cbranch_scc1 %s_np%d
    buffer_load_dword v%d, v%d, %s, s%d offen sc1
%s_np%d:""" % (name, b, vt + 1, vt, ws, s_cnt, name, b))
        for o in batch:
            emit(k, o)
        k.raw("""    s_cmp_lg_u32 s59, 0
    s_cbranch_scc1 %s_nq%d
    s_waitcnt vmcnt(%d)
%s
%s_nq%d:""" % (name, b, nv, check, name, b))
    k.raw("""    s_mov_b32 s60, 0
%s_spin:
    s_cmp_lg_u32 s59, 0
    s_cbranch_scc1 %s_done
    buffer_load_dword v%d, v%d, %s, s%d offen sc1
    s_waitcnt vmcnt(0)
%s
    s_add_u32 s60, s60, 1
    s_cmp_lt_u32 s60, 0x40000
    s_cbranch_scc1 %s_spin
%s_done:""" % (name, name, vt + 1, vt, ws, s_cnt, check, name, name))
    k.I('s_barrier')


def flag_store(k, s_wave, ws, vt, s_arr, name):
    k.raw("""    s_cmp_lg_u32 s%d, 0
    s_cbranch_scc1 %s_nf
    v_lshlrev_b32 v%d, 7, v1
    v_mov_b32 v%d, 1
    s_mov_b64 exec, 0xffff
    buffer_store_dword v%d, v%d, %s, s%d offen sc1
    s_nop 0
    s_mov_b64 exec, -1
%s_nf:""" % (s_wave, name, vt, vt + 1, vt + 1, vt, ws, s_arr, name))


_pi = [0]


def poll_issue(k, s_wave, ws, vt, s_cnt):
    _pi[0] += 1
    k.raw("""    s_cmp_lg_u32 s%d, 0
    s_cbranch_scc1 L_f_pi%d
    v_and_b32 v%d, 15, v1
    v_lshlrev_b32 v%d, 2, v%d
    buffer_load_dword v%d, v%d, %s, s%d offen sc1
L_f_pi%d:""" % (s_wave, _pi[0], vt, vt, vt, vt + 1, vt, ws, s_cnt, _pi[0]))


def poll_check_spin(k, name, s_wave, ws, vt, s_cnt):
    k.raw("""    s_cmp_lg_u32 s%d, 0
    s_cbranch_scc1 %s_done
    s_mov_b32 s60, 0
%s_chk:
    s_waitcnt vmcnt(0)
    v_cmp_eq_u32 vcc, 1, v%d
    s_nop 4
    s_cmp_eq_u64 vcc, exec
    s_cbranch_scc1 %s_done
    buffer_load_dword v%d, v%d, %s, s%d offen sc1
    s_add_u32 s60, s60, 1
    s_cmp_lt_u32 s60, 0x40000
    s_cbranch_scc1 %s_chk
    s_waitcnt vmcnt(0)
%s_done:""" % (s_wave, name, name, vt + 1, name, vt + 1, vt, ws, s_cnt, name, name))


def merge(k, main, bg, first=0, last=None):
    if last is None:
        last = len(main)
    ib = 0
    for i, o in enumerate(main):
        if isinstance(o, (str, tuple)):
            emit(k, o)
        else:
            k.items.append(o)
        if first <= i < last:
            upto = len(bg) * (i - first + 1) // (last - first)
            while ib < upto:
                emit(k, bg[ib]); ib += 1
    while ib < len(bg):
        emit(k, bg[ib]); ib += 1


def gen_bcd():
    k = Kernel('bcd_kernel')
    WS, XS, OS = 4, 8, 12
    ws = sr(WS, 4)
    k.I('s_cmp_ge_u32 s2, 256')
    k.I('s_cbranch_scc1 L_f_end')
    load_srds(k, [('ws', WS), ('x', XS), ('out', OS)])
    st = Stamper(k, 2, ws, base=70, tmp=64); st.stamp(True); st.stamp()
    k.I('v_and_b32 v1, 63, v0')
    k.I('v_lshrrev_b32 v2, 6, v0')
    k.I('v_readfirstlane_b32 s16, v2')
    k.I('v_lshlrev_b32 v2, 4, v1')
    k.I('v_add_u32 v3, 4096, v2')
    k.I('s_and_b32 s24, s2, 7')
    k.I('s_lshr_b32 s25, s2, 3')
    if OPT.get('rowmap'):
        k.I('s_lshl_b32 s17, s24, 1')
        k.I('s_lshr_b32 s26, s25, 4')
        k.I('s_add_u32 s17, s17, s26')
        k.I('s_and_b32 s18, s25, 15')
        k.I('s_lshl_b32 s19, s17, 1')
        k.I('s_lshr_b32 s26, s18, 3')
        k.I('s_add_u32 s19, s19, s26')
        k.I('s_and_b32 s20, s18, 7')
    else:
        k.I('s_and_b32 s17, s24, 1')
        k.I('s_lshl_b32 s17, s17, 3')
        k.I('s_and_b32 s26, s25, 7')
        k.I('s_add_u32 s17, s17, s26')
        k.I('s_lshr_b32 s18, s24, 1')
        k.I('s_lshl_b32 s18, s18, 2')
        k.I('s_lshr_b32 s26, s25, 3')
        k.I('s_add_u32 s18, s18, s26')
        k.I('s_lshl_b32 s19, s24, 2')
        k.I('s_and_b32 s26, s25, 3')
        k.I('s_add_u32 s19, s19, s26')
        k.I('s_lshr_b32 s20, s25, 2')
    k.I('s_lshl_b32 s21, s19, 1')
    k.I('s_and_b32 s26, s16, 1')
    k.I('s_add_u32 s21, s21, s26')
    k.I('s_lshl_b32 s22, s20, 1')
    k.I('s_lshr_b32 s26, s16, 1')
    k.I('s_add_u32 s22, s22, s26')
    k.I('s_lshl_b32 s23, s17, 2')
    k.I('s_add_u32 s23, s23, s16')
    k.I('s_lshl_b32 s27, s16, 3')
    k.I('s_lshl_b32 s28, s19, 6')
    k.I('s_add_u32 s28, s28, s27')
    k.I('s_lshl_b32 s28, s28, 10')
    k.I('s_add_u32 s28, s28, 0x%x' % OFF_PQ)
    k.I('s_add_u32 s29, s28, 32768')
    k.I('s_lshl_b32 s30, s27, 4')
    k.I('s_lshl_b32 s26, s20, 1')
    k.I('s_add_u32 s30, s30, s26')
    k.I('s_lshl_b32 s30, s30, 10')
    k.I('s_add_u32 s30, s30, 0x%x' % OFF_WO)
    k.I('s_lshl_b32 s31, s27, 11')
    k.I('s_add_u32 s31, s31, 0x%x' % OFF_KVZ)
    k.I('v_and_b32 v4, 31, v1')
    k.I('v_min_u32 v5, 16, v4')
    k.I('v_lshrrev_b32 v6, 5, v1')
    k.I('v_lshlrev_b32 v7, 5, v6')
    k.I('v_add_u32 v5, v5, v7')
    k.I('v_lshlrev_b32 v5, 5, v5')
    k.I('s_waitcnt lgkmcnt(0)')

    KV = 128
    A_PQ, A_WO = 96, 160
    ACC = 192
    XR = 56

    def b_loads(t):
        ops = ['s_add_u32 s38, s31, %d' % (t * 2048),
               'buffer_load_dwordx4 %s, v5, %s, s38 offen' % (vr(KV + 8 * t, 4), ws),
               'buffer_load_dwordx4 %s, v5, %s, s38 offen offset:16' % (vr(KV + 8 * t + 4, 4), ws)]
        for r in range(2):
            ops.append('buffer_load_dwordx4 %s, %s, %s, %s offen offset:%d' % (
                ar(A_PQ + (t * 2 + r) * 4, 4), 'v2' if t < 4 else 'v3', ws, 's28' if r == 0 else 's29', (t % 4) * 1024))
        ops.append('s_add_u32 s39, s30, %d' % (t * 16384))
        for n in range(2):
            ops.append('buffer_load_dwordx4 %s, v2, %s, s39 offen offset:%d' % (ar(A_WO + (t * 2 + n) * 4, 4), ws, n * 1024))
        return ops
    PD = 3
    for t in range(PD):
        for o in b_loads(t):
            k.I(o)
    k.I('s_lshl_b32 s32, s21, 15')
    k.I('s_lshl_b32 s26, s22, 6')
    k.I('s_add_u32 s32, s32, s26')
    k.I('v_lshlrev_b32 v7, 10, v4')
    k.I('v_lshlrev_b32 v8, 3, v6')
    k.I('v_add_u32 v7, v7, v8')
    k.I('s_mul_i32 s33, s18, %d' % (7 * 32768))
    k.I('s_lshl_b32 s34, s16, 13')
    k.I('s_add_u32 s33, s33, s34')
    k.I('s_add_u32 s33, s33, 0x%x' % OFF_WGU)
    k.I('s_mul_i32 s35, s16, %d' % (28 * 1024))
    k.I('s_mul_i32 s36, s20, %d' % (2 * 112 * 1024))
    k.I('s_add_u32 s36, s36, s35')
    k.I('s_add_u32 s36, s36, 0x%x' % OFF_WD)
    k.I('s_add_u32 s37, s36, %d' % (112 * 1024))
    k.I('s_lshl_b32 s44, s17, 4')
    k.I('s_add_u32 s44, s44, s18')
    k.I('s_lshl_b32 s44, s44, 7')
    k.I('s_add_u32 s44, s44, 0x%x' % OFF_CNT)
    k.I('s_and_b32 s26, s19, 1')
    k.I('s_lshl_b32 s26, s26, 3')
    k.I('s_add_u32 s26, s26, s20')
    k.I('s_lshr_b32 s57, s19, 1')
    k.I('s_lshl_b32 s62, s57, 11')
    k.I('s_lshl_b32 s63, s26, 2')
    k.I('s_add_u32 s62, s62, s63')
    k.I('s_add_u32 s62, s62, 0x%x' % OFF_CNT)
    k.I('s_lshl_b32 s57, s57, 4')
    k.I('s_add_u32 s57, s57, s26')
    k.I('s_lshl_b32 s57, s57, 7')
    k.I('s_add_u32 s57, s57, 0x%x' % (OFF_CNT + 32768))
    k.I('s_lshl_b32 s63, s17, 11')
    k.I('s_lshl_b32 s26, s18, 2')
    k.I('s_add_u32 s63, s63, s26')
    k.I('s_add_u32 s63, s63, 0x%x' % (OFF_CNT + 32768))
    CS_LDS = 162816
    k.I('v_mov_b32 v8, 0')
    k.I('v_mov_b32 v9, 0')
    k.I('v_mov_b32 v10, 0')
    k.I('v_mov_b32 v11, 0')
    k.I('v_add_u32 v20, %d, v2' % CS_LDS)
    k.I('ds_write_b128 v20, v[8:11]')
    D1 = [[64, 80], [96, 112]]
    KF = [40, 44]
    OF = [48, 52]
    T = 36

    def stageA(t):
        ops = []
        for j in range(4):
            ops.append('v_cvt_pk_bf16_f32 %s, %s, %s' % (vr(KF[t & 1] + j), vr(KV + 8 * t + 2 * j), vr(KV + 8 * t + 2 * j + 1)))
        for r in range(2):
            ops.append('v_mfma_f32_32x32x16_bf16 %s, %s, %s, 0' % (vr(D1[t & 1][r], 16), vr(KF[t & 1], 4), ar(A_PQ + (t * 2 + r) * 4, 4)))
        return ops

    def stageB(t):
        ops = []
        for r in range(2):
            ops.append('v_add_f32 %s, 0x%x, %s' % (vr(T + r), f2u(1e-6), vr(D1[t & 1][r] + 8)))
        for r in range(2):
            ops.append('v_rcp_f32 %s, %s' % (vr(T + r), vr(T + r)))
        for i in range(8):
            for r in range(2):
                d = D1[t & 1][r]
                ops.append('v_mul_f32 %s, %s, %s' % (vr(d + i), vr(T + r), vr(d + i)))
        for r in range(2):
            d = D1[t & 1][r]
            for j in range(4):
                ops.append('v_cvt_pk_bf16_f32 %s, %s, %s' % (vr(OF[r] + j), vr(d + 2 * j), vr(d + 2 * j + 1)))
        for n in range(2):
            for r in range(2):
                acc = vr(ACC + (n * 2 + r) * 16, 16)
                ops.append('v_mfma_f32_32x32x16_bf16 %s, %s, %s, %s' % (acc, ar(A_WO + (t * 2 + n) * 4, 4), vr(OF[r], 4), acc if t else '0'))
        return ops
    for o in stageA(0):
        k.I(o)
    for t in range(8):
        main = (stageA(t + 1) if t + 1 < 8 else []) + stageB(t)
        bg = b_loads(t + PD) if t + PD < 8 else []
        if t == 5:
            bg = ['buffer_load_dwordx2 %s, v7, %s, s32 offen offset:%d' % (vr(XR + 2 * a, 2), sr(XS, 4), a * 16) for a in range(4)]
        merge(k, main, bg)
    st.stamp()
    RB = 98304
    k.I('s_mul_i32 s38, s16, 12288')
    k.I('s_add_u32 s38, s38, %d' % RB)
    k.I('v_add_u32 v10, s38, v2')
    for w in range(4):
        k.raw('    s_cmp_lg_u32 s16, %d\n    s_cbranch_scc1 L_f_rw%d' % (w, w))
        kk = Kernel('t')
        for s_ in range(3):
            t = (w + 1 + s_) & 3
            for q in range(4):
                kk.I('ds_write_b128 v10, %s offset:%d' % (vr(ACC + t * 16 + q * 4, 4), s_ * 4096 + q * 1024))
        for i in range(16):
            kk.I('v_mov_b32 %s, %s' % (vr(64 + i), vr(ACC + w * 16 + i)))
        txt = '\n'.join('    ' + it.text for it in kk.items)
        k.raw('    s_nop 7\n    s_nop 3\n' + txt + '\nL_f_rw%d:' % w)
    k.I('s_nop 0', r=[], w=[])
    k.I('s_waitcnt lgkmcnt(0)')
    k.I('s_barrier')
    H = 64
    for d in range(1, 4):
        k.I('s_add_u32 s38, s16, %d' % d)
        k.I('s_and_b32 s38, s38, 3')
        k.I('s_mul_i32 s38, s38, 12288')
        k.I('s_add_u32 s38, s38, %d' % (RB + (3 - d) * 4096))
        k.I('v_add_u32 v11, s38, v2')
        for q in range(4):
            k.I('ds_read_b128 %s, v11 offset:%d' % (vr(H + d * 16 + q * 4, 4), q * 1024))
    k.I('s_lshl_b32 s32, s21, 15') if False else None
    for i in range(16):
        k.I('v_add_f32 %s, %s, %s' % (vr(H + i), vr(H + i), vr(H + 16 + i)))
        k.I('v_add_f32 %s, %s, %s' % (vr(H + 32 + i), vr(H + 32 + i), vr(H + 48 + i)))
    for a in range(4):
        for b in range(2):
            src = XR + 2 * a + b
            k.I('v_lshlrev_b32 %s, 16, %s' % (vr(H + 16 + 4 * a + 2 * b), vr(src)))
            k.I('v_and_b32 %s, 0xffff0000, %s' % (vr(H + 16 + 4 * a + 2 * b + 1), vr(src)))
    for i in range(16):
        k.I('v_add_f32 %s, %s, %s' % (vr(H + i), vr(H + i), vr(H + 32 + i)))
    for i in range(16):
        k.I('v_add_f32 %s, %s, %s' % (vr(H + i), vr(H + i), vr(H + 16 + i)))
    HP = 12
    for j in range(8):
        k.I('v_cvt_pk_bf16_f32 %s, %s, %s' % (vr(HP + j), vr(H + 2 * j), vr(H + 2 * j + 1)))
    k.I('s_lshl_b32 s38, s21, 5')
    k.I('s_lshl_b32 s39, s22, 1')
    k.I('s_add_u32 s38, s38, s39')
    k.I('s_lshl_b32 s38, s38, 10')
    k.I('s_add_u32 s38, s38, 0x%x' % OFF_H)
    k.I('buffer_store_dwordx4 %s, v2, %s, s38 offen%s' % (vr(HP, 4), ws, STP()), w=['hst'])
    k.I('buffer_store_dwordx4 %s, v2, %s, s38 offen offset:1024%s' % (vr(HP + 4, 4), ws, STP()), w=['hst'])
    k.I('v_add_f32 v36, %s, %s' % (vr(H), vr(H + 1)))
    k.I('v_mul_f32 v37, %s, %s' % (vr(H), vr(H)))
    k.I('v_fmac_f32 v37, %s, %s' % (vr(H + 1), vr(H + 1)))
    for i in range(2, 16):
        k.I('v_add_f32 v36, v36, %s' % vr(H + i))
        k.I('v_fmac_f32 v37, %s, %s' % (vr(H + i), vr(H + i)))
    for o in xhalf_ops(36, 38) + xhalf_ops(37, 38):
        k.I(o)
    k.I('s_lshl_b32 s38, s22, 14')
    k.I('s_lshl_b32 s39, s21, 8')
    k.I('s_add_u32 s38, s38, s39')
    k.I('s_add_u32 s38, s38, 0x%x' % OFF_STAT)
    k.I('v_lshlrev_b32 v38, 3, v4')
    k.I('buffer_store_dwordx2 v[36:37], v38, %s, s38 offen%s' % (ws, STP()), w=['hst'])
    st.stamp()

    def dma(soff, sm0, name):
        ops = []
        for hf in range(2):
            ops.append('s_add_u32 m0, %s, %d' % (sr(sm0), hf * 4096))
            ops.append('s_add_u32 s40, %s, %d' % (sr(soff), hf * 4096))
            for t in range(4):
                ops.append(('buffer_load_dwordx4 v2, %s, s40 offen offset:%d lds' % (ws, t * 1024), name))
        return ops

    def d_ks(f):
        return (f >> 2) * 7 + (f & 3) if f < 16 else ((f - 16) // 3) * 7 + 4 + (f - 16) % 3

    def wd_loads(f_list):
        ops = []
        last = None
        for f in f_list:
            ks = d_ks(f)
            grp, rem = ks // 8, ks % 8
            if grp != last:
                ops.append('s_add_u32 s41, s36, %d' % (grp * 8192))
                ops.append('s_add_u32 s58, s37, %d' % (grp * 8192))
                last = grp
            for n in range(2):
                ops.append('buffer_load_dwordx4 %s, %s, %s, %s offen offset:%d' % (
                    ar((f * 2 + n) * 4, 4), 'v2' if rem < 4 else 'v3', ws, 's41' if n == 0 else 's58', (rem % 4) * 1024))
        return ops
    CSV = 128
    NWD0 = OPT.get('nwd0', (3,))[0]
    pre1 = ['s_mov_b32 s42, s34'] + dma(33, 42, 'W0')
    pre1 += ['s_mul_i32 s38, s18, %d' % (7 * 128), 's_mul_i32 s39, s16, %d' % (4 * 112 * 128), 's_add_u32 s38, s38, s39',
             's_add_u32 s38, s38, 0x%x' % OFF_CSG]
    for kg in range(4):
        pre1 += ['s_add_u32 s39, s38, %d' % (kg * 112 * 128), 'buffer_load_dwordx4 %s, v2, %s, s39 offen' % (vr(CSV + 4 * kg, 4), ws)]
    if not OPT.get('nopre'):
        for o in pre1:
            emit(k, o)
    k.need('hst')
    sync_arrive(k, 16, ws, 36, 62, 'L_f_s1')
    st.stamp()
    if OPT.get('nopre'):
        sync_wait(k, 'L_f_s0', 44, 16, ws, 36, ['s_nop 0', 'buffer_load_dword v38, v36, %s, s44 offen' % ws], nbatch=1)
        st.stamp()
        for o in pre1:
            emit(k, o)
    for j in range(4):
        k.I('v_add_f32 %s, %s, %s' % (vr(CSV + j), vr(CSV + j), vr(CSV + 4 + j)))
        k.I('v_add_f32 %s, %s, %s' % (vr(CSV + 8 + j), vr(CSV + 8 + j), vr(CSV + 12 + j)))
    for j in range(4):
        k.I('v_add_f32 %s, %s, %s' % (vr(CSV + j), vr(CSV + j), vr(CSV + 8 + j)))
    for j in range(4):
        k.I('ds_add_f32 v20, %s offset:%d' % (vr(CSV + j), 4 * j))
    bg2 = ['s_add_u32 s43, s33, 32768', 's_add_u32 s42, s34, 32768'] + dma(43, 42, 'W1') + \
          ['s_add_u32 s43, s33, 65536', 's_add_u32 s42, s34, 65536'] + dma(43, 42, 'W2') + wd_loads(range(0, NWD0))
    if OPT.get('nobg'):
        sync_wait(k, 'L_f_s1', 44, 16, ws, 36, ['s_nop 0', 'buffer_load_dword v38, v36, %s, s44 offen' % ws], nbatch=1)
        st.stamp()
        for o in bg2:
            emit(k, o)
    else:
        sync_wait(k, 'L_f_s1', 44, 16, ws, 36, bg2)
    st.stamp()

    X = 128
    for t in range(2, 8):
        k.I('v_add_u32 %s, %d, v2' % (vr(20 + t), 4096 * t))
    VOF = [2, 3] + [20 + t for t in range(2, 8)]
    k.I('s_lshl_b32 s45, s23, 15')
    k.I('s_add_u32 s45, s45, 0x%x' % OFF_H)

    def xload(ks):
        return 'buffer_load_dwordx4 %s, %s, %s, s45 offen offset:%d%s' % (vr(X + 4 * ks, 4), vr(VOF[ks // 4]), ws, (ks % 4) * 1024, LSC())
    XD = 12
    for ks in range(XD):
        k.I(xload(ks))
    SP = 104
    k.I('v_lshlrev_b32 v21, 3, v4')
    k.I('v_lshlrev_b32 v28, 17, v6')
    k.I('v_add_u32 v21, v21, v28')
    k.I('s_lshl_b32 s46, s23, 8')
    k.I('s_add_u32 s46, s46, 0x%x' % OFF_STAT)
    stl = []
    for t in range(8):
        stl.append('s_add_u32 s47, s46, %d' % (t * 16384))
        stl.append('buffer_load_dwordx2 %s, v21, %s, s47 offen%s' % (vr(SP + 2 * t, 2), ws, LSC()))
    k.I('s_mul_i32 s48, s23, 112')
    k.I('s_mul_i32 s47, s18, 7')
    k.I('s_add_u32 s48, s48, s47')
    k.I('s_lshl_b32 s48, s48, 10')
    k.I('s_add_u32 s48, s48, 0x%x' % OFF_ACT)
    k.I('v_add_u32 v8, 0x10000, v2')
    k.I('v_lshlrev_b32 v10, 4, v6')
    k.I('v_add_u32 v10, %d, v10' % CS_LDS)
    ACCC = [32, 48]
    D, L = 8, 6
    WR = 224
    CSR = 64
    T = 80
    MEAN, RSTD, NMEAN, NA, A2 = 120, 121, 122, 123, 124

    def wread(c, ks):
        slot = c % 4
        return 'ds_read_b128 %s, %s offset:%d' % (ar(WR + (ks % D) * 4, 4), 'v2' if slot < 2 else 'v8', (slot % 2) * 32768 + ks * 1024)

    def epilogue_ops(S, c):
        ops = []
        for q in range(4):
            ops.append('ds_read_b128 %s, v10 offset:%d' % (vr(CSR + 4 * q, 4), c * 128 + q * 32))
        pre = len(ops)
        for i0 in range(0, 8, 2):
            a = []
            for u, i in enumerate((i0, i0 + 1)):
                t = T + u * 4
                a.append([
                    'v_fma_f32 %s, %s, %s, %s' % (vr(t), vr(NMEAN), vr(CSR + i), vr(S + i)),
                    'v_fma_f32 %s, %s, %s, %s' % (vr(t + 1), vr(NMEAN), vr(CSR + 8 + i), vr(S + 8 + i)),
                    'v_mul_f32 %s, %s, %s' % (vr(t + 2), vr(NA), vr(t)),
                    'v_exp_f32 %s, %s' % (vr(t + 2), vr(t + 2)),
                    'v_mul_f32 %s, %s, %s' % (vr(t), vr(t), vr(t + 1)),
                    'v_add_f32 %s, 1.0, %s' % (vr(t + 2), vr(t + 2)),
                    'v_rcp_f32 %s, %s' % (vr(t + 2), vr(t + 2)),
                    'v_mul_f32 %s, %s, %s' % (vr(t), vr(A2), vr(t)),
                    'v_mul_f32 %s, %s, %s' % (vr(T + 8 + i), vr(t), vr(t + 2)),
                ])
            for x, y in zip(a[0], a[1]):
                ops += [x, y]
            ops.append('v_cvt_pk_bf16_f32 %s, %s, %s' % (vr(T + 16 + i0 // 2), vr(T + 8 + i0), vr(T + 8 + i0 + 1)))
        ops.append('s_add_u32 s49, s48, %d' % (c * 1024))
        ops.append(('buffer_store_dwordx4 %s, v2, %s, s49 offen%s' % (vr(T + 16, 4), ws, STP()), 'ast%d' % c))
        return ops, pre

    wd_plan = {}
    nxt = NWD0
    for c, cnt in ((1, 3), (2, 3), (3, 3), (4, 3), (5, 7), (6, 7)):
        wd_plan[c] = list(range(nxt, min(28, nxt + cnt)))
        nxt = min(28, nxt + cnt)
    wd_plan[6] += list(range(nxt, 28))

    def refill(c):
        return ['s_add_u32 s43, s33, %d' % (c * 32768), 's_add_u32 s42, s34, %d' % ((c % 4) * 32768)] + dma(43, 42, 'W%d' % c)

    def is_vm(o):
        return isinstance(o, tuple) or o.startswith('buffer_')

    def place(fill, ops, lo, hi):
        groups, cur = [], []
        for o in ops:
            cur.append(o)
            if is_vm(o):
                groups.append(cur); cur = []
        if cur:
            groups.append(cur)
        for i, g in enumerate(groups):
            fill[lo + i * (hi - lo) // len(groups)] += g

    carry = []

    def body(c):
        nonlocal carry
        S_ = ACCC[c & 1]
        fill = [[] for _ in range(32)]
        post = []
        if c == 0:
            for ks in range(XD, 32):
                fill[ks - XD].append(xload(ks))
            for i, o in enumerate(stl):
                fill[20 + i // 4].append(o)
            for t in range(1, 8):
                post.append('v_add_f32 %s, %s, %s' % (vr(SP), vr(SP), vr(SP + 2 * t)))
                post.append('v_add_f32 %s, %s, %s' % (vr(SP + 1), vr(SP + 1), vr(SP + 2 * t + 1)))
            post += xhalf_ops(SP, SP + 2) + xhalf_ops(SP + 1, SP + 2)
            post += ['v_mul_f32 %s, 0x%x, %s' % (vr(MEAN), f2u(1.0 / 512), vr(SP)),
                     'v_mul_f32 %s, 0x%x, %s' % (vr(SP + 1), f2u(1.0 / 512), vr(SP + 1)),
                     'v_fma_f32 %s, -%s, %s, %s' % (vr(SP + 1), vr(MEAN), vr(MEAN), vr(SP + 1)),
                     'v_max_f32 %s, 0, %s' % (vr(SP + 1), vr(SP + 1)),
                     'v_add_f32 %s, 0x%x, %s' % (vr(SP + 1), f2u(1e-5), vr(SP + 1)),
                     'v_rsq_f32 %s, %s' % (vr(RSTD), vr(SP + 1)),
                     'v_sub_f32 %s, 0, %s' % (vr(NMEAN), vr(MEAN)),
                     'v_mul_f32 %s, 0x%x, %s' % (vr(NA), f2u(-LOG2E), vr(RSTD)),
                     'v_mul_f32 %s, %s, %s' % (vr(A2), vr(RSTD), vr(RSTD))]
        else:
            ops, pre = epilogue_ops(ACCC[1 - (c & 1)], c - 1)
            fill[0] = ops[:pre]
            rest = ops[pre:]
            g0, g1 = 3, 26
            for i, o in enumerate(rest):
                fill[g0 + i * (g1 - g0) // len(rest)].append(o)
            vmops = list(carry) + wd_loads(wd_plan[c])
            carry = []
            if vmops:
                place(fill, vmops, 1, 26)
        for ks in range(32):
            if ks % 2 == 0 and ks + 1 < 32:
                k.touch(ar(WR + ((ks + 1) % D) * 4, 4))
            k.I('v_mfma_f32_32x32x16_bf16 %s, %s, %s, %s' % (
                vr(S_, 16), ar(WR + (ks % D) * 4, 4), vr(X + 4 * ks, 4), vr(S_, 16) if ks else '0'))
            if ks == 32 - L and c < 6:
                k.need('W%d' % (c + 1))
                if c == 5:
                    k.need('ast0', 'ast1', 'ast2', 'ast3')
                k.I('s_barrier')
                if c == 5:
                    flag_store(k, 16, ws, 28, 63, 'L_f_fa')
                if c + 3 <= 6:
                    r = refill(c + 3)
                    for o in r[:2 + 2 + 4]:
                        fill[ks].append(o) if not is_vm(o) else None
                    first4 = [o for o in r[4:8]]
                    for i, o in enumerate(first4):
                        fill[ks + 1 + i].append(o)
                    carry = r[8:]
            if ks + L < 32:
                k.I(wread(c, ks + L))
            elif c < 6:
                k.I(wread(c + 1, ks + L - 32))
            for o in fill[ks]:
                emit(k, o)
            if c == 6 and ks == 22:
                poll_issue(k, 16, ws, 28, 57)
        for o in post:
            emit(k, o)

    k.need('W0')
    k.I('s_waitcnt lgkmcnt(0)')
    k.I('s_barrier')
    for n in range(L):
        k.I(wread(0, n))
    body(0)
    st.stamp()
    for c in range(1, 7):
        body(c)
    st.stamp()
    ops, pre = epilogue_ops(ACCC[0], 6)
    for o in ops:
        emit(k, o)
    poll_check_spin(k, 'L_f_sa', 16, ws, 28, 57)
    k.I('s_barrier')
    st.stamp()

    k.I('s_mul_i32 s45, s19, %d' % (2 * 112 * 1024))
    k.I('s_add_u32 s45, s45, s35')
    k.I('s_add_u32 s45, s45, 0x%x' % OFF_ACT)
    k.I('s_add_u32 s46, s45, %d' % (112 * 1024))
    AR, NR, AD = 128, 10, 8

    def act_load(f):
        ks = d_ks(f)
        grp, rem = ks // 8, ks % 8
        ops = ['s_add_u32 s47, s45, %d' % (grp * 8192), 's_add_u32 s58, s46, %d' % (grp * 8192)]
        for r in range(2):
            ops.append('buffer_load_dwordx4 %s, %s, %s, %s offen offset:%d%s' % (
                vr(AR + ((f % NR) * 2 + r) * 4, 4), 'v2' if rem < 4 else 'v3', ws, 's47' if r == 0 else 's58', (rem % 4) * 1024, LSC()))
        return ops
    DACC = [32, 48, 64, 80]

    def d_mfmas(f):
        mm = []
        for n in range(2):
            for r in range(2):
                acc = vr(DACC[n * 2 + r], 16)
                mm.append('v_mfma_f32_32x32x16_bf16 %s, %s, %s, %s' % (
                    acc, ar((f * 2 + n) * 4, 4), vr(AR + ((f % NR) * 2 + r) * 4, 4), acc if f else '0'))
        return mm
    for f in range(AD):
        for o in act_load(f):
            k.I(o)
    k.need('ast4', 'ast5', 'ast6')
    k.I('s_barrier')
    k.I('s_add_u32 s63, s63, 32768')
    flag_store(k, 16, ws, 28, 63, 'L_f_fb')
    k.I('s_add_u32 s57, s57, 32768')
    for f in range(16):
        merge(k, d_mfmas(f), act_load(f + AD) if f + AD < 16 else [])
        if f == 9:
            poll_issue(k, 16, ws, 28, 57)
    st.stamp()
    poll_check_spin(k, 'L_f_sb', 16, ws, 28, 57)
    k.I('s_barrier')
    for f in range(16, 16 + AD):
        for o in act_load(f):
            k.I(o)
    for f in range(16, 28):
        merge(k, d_mfmas(f), act_load(f + AD) if f + AD < 28 else [])
    st.stamp()
    k.I('s_mul_i32 s38, s16, 12288')
    k.I('v_add_u32 v10, s38, v2')
    O = 96
    for w in range(4):
        k.raw('    s_cmp_lg_u32 s16, %d\n    s_cbranch_scc1 L_f_dw%d' % (w, w))
        kk = Kernel('t')
        for s_ in range(3):
            t = (w + 1 + s_) & 3
            for q in range(4):
                kk.I('ds_write_b128 v10, %s offset:%d' % (vr(DACC[t] + q * 4, 4), s_ * 4096 + q * 1024))
        for i in range(16):
            kk.I('v_mov_b32 %s, %s' % (vr(O + i), vr(DACC[w] + i)))
        txt = '\n'.join('    ' + it.text for it in kk.items)
        k.raw('    s_nop 7\n    s_nop 3\n' + txt + '\nL_f_dw%d:' % w)
    k.I('s_waitcnt lgkmcnt(0)')
    k.I('s_barrier')
    for d in range(1, 4):
        k.I('s_add_u32 s38, s16, %d' % d)
        k.I('s_and_b32 s38, s38, 3')
        k.I('s_mul_i32 s38, s38, 12288')
        k.I('s_add_u32 s38, s38, %d' % ((3 - d) * 4096))
        k.I('v_add_u32 v11, s38, v2')
        for q in range(4):
            k.I('ds_read_b128 %s, v11 offset:%d' % (vr(O + d * 16 + q * 4, 4), q * 1024))
    for j in range(8):
        k.I('v_lshlrev_b32 %s, 16, %s' % (vr(32 + 2 * j), vr(HP + j)))
        k.I('v_and_b32 %s, 0xffff0000, %s' % (vr(32 + 2 * j + 1), vr(HP + j)))
    for i in range(16):
        k.I('v_add_f32 %s, %s, %s' % (vr(O + i), vr(O + i), vr(32 + i)))
    for i in range(16):
        k.I('v_add_f32 %s, %s, %s' % (vr(O + i), vr(O + i), vr(O + 16 + i)))
        k.I('v_add_f32 %s, %s, %s' % (vr(O + 32 + i), vr(O + 32 + i), vr(O + 48 + i)))
    for i in range(16):
        k.I('v_add_f32 %s, %s, %s' % (vr(O + i), vr(O + i), vr(O + 32 + i)))
    P = 48
    for j in range(8):
        k.I('v_cvt_pk_bf16_f32 %s, %s, %s' % (vr(P + j), vr(O + 2 * j), vr(O + 2 * j + 1)))
    for a in (0, 2):
        b = P + 2 * a
        k.I('v_permlane32_swap_b32 %s, %s' % (vr(b), vr(b + 2)))
        k.I('v_permlane32_swap_b32 %s, %s' % (vr(b + 1), vr(b + 3)))
    k.I('v_lshlrev_b32 v8, 10, v4')
    k.I('v_lshlrev_b32 v9, 4, v6')
    k.I('v_add_u32 v8, v8, v9')
    k.I('buffer_store_dwordx4 %s, v8, %s, s32 offen' % (vr(P, 4), sr(OS, 4)))
    k.I('buffer_store_dwordx4 %s, v8, %s, s32 offen offset:32' % (vr(P + 4, 4), sr(OS, 4)))
    st.stamp(); st.stamp(True)
    if OPT.get('xcc'):
        b = st.base + 2 * st.n
        k.I('s_getreg_b32 s%d, hwreg(HW_REG_XCC_ID)' % b)
        k.I('s_getreg_b32 s%d, hwreg(HW_REG_HW_ID)' % (b + 1))
        st.n += 1
    st.flush()
    k.label('L_f_end')
    k.I('s_endpgm')
    return k, dict(lds=163840, grid=256, block=256)


if __name__ == '__main__':
    gen1.STAMPS = len(sys.argv) > 2 and sys.argv[2] == 'stamps'
    for o in sys.argv[3:]:
        if '=' in o:
            kk_, vv_ = o.split('=')
            gen1.OPT[kk_] = tuple(int(x) for x in vv_.split(','))
        else:
            gen1.OPT[o] = True
    gens = [('qkv_kernel', gen_a8), ('bcd_kernel', gen_bcd)]
    ks = []
    for label, g in gens:
        kk, cc = g()
        ks.append((label, kk, cc))
        print(label, kk.stats(), kk.maxreg())
    open(sys.argv[1], 'w').write(wrap(ks))
```

```python
import sys
from asmgen import Kernel
import gen1
from gen1 import *
from gen2 import Sched, xhalf_ops
from gen3 import emit, ln_phi_ops


def APOL():
    return ' sc1' if OPT.get('asc1') else (' nt' if OPT.get('ant') else '')


class Multi:
    def __init__(self, parts):
        self.parts = parts
    def finish(self):
        return '\n'.join(p.finish() for p in self.parts)
    def maxreg(self):
        mx = {'v': -1, 'a': -1, 's': -1}
        for p in self.parts:
            m = p.maxreg()
            for t in mx:
                mx[t] = max(mx[t], m[t])
        return mx
    def stats(self):
        return [p.stats() for p in self.parts]


def pair_signal(flag_lds_sgpr, vtmp, vone):
    return ['v_mov_b32 %s, %s' % (vr(vtmp), sr(flag_lds_sgpr)), 'v_mov_b32 %s, 1' % vr(vone),
            'ds_write_b32 %s, %s' % (vr(vtmp), vr(vone))]


def pair_wait(k, name, flag_lds_sgpr, vtmp, vval, stmp):
    k.I('v_mov_b32 %s, %s' % (vr(vtmp), sr(flag_lds_sgpr)))
    k.label(name)
    k.I('ds_read_b32 %s, %s' % (vr(vval), vr(vtmp)))
    k.I('v_readfirstlane_b32 %s, %s' % (sr(stmp), vr(vval)))
    k.I('s_cmp_eq_u32 %s, 0' % sr(stmp))
    k.I('s_cbranch_scc1 %s' % name)


def gen_a8():
    kp = Kernel('a_pro')
    k = kp
    XS, WQ, WS, PA, PB, DB = 4, 8, 12, 16, 20, 24
    ws = sr(WS, 4)
    k.I('s_cmp_ge_u32 s2, 256')
    k.I('s_cbranch_scc1 L_a_end')
    load_srds(k, [('x', XS), ('wqkv', WQ), ('ws', WS), ('dbg', DB)])
    k.I('s_load_dwordx2 s[40:41], s[0:1], %d' % KA['wo'])
    k.I('s_load_dwordx4 s[44:47], s[0:1], %d' % KA['wg'])
    k.I('s_load_dwordx2 s[42:43], s[0:1], %d' % KA['wd'])
    if gen1.STAMPS:
        k.I('s_memrealtime s[84:85]')
        k.I('s_memtime s[86:87]')
    k.I('v_and_b32 v1, 63, v0')
    k.I('v_lshrrev_b32 v2, 6, v0')
    k.I('v_readfirstlane_b32 s27, v2')
    k.I('s_mov_b32 s39, s27')
    k.I('s_mov_b32 s27, 0x00020000')
    k.I('s_and_b32 s28, s39, 3')
    k.I('s_and_b32 s34, s2, 7')
    k.I('s_lshr_b32 s35, s2, 3')
    k.I('s_and_b32 s32, s34, 3')
    k.I('s_lshl_b32 s32, s32, 3')
    k.I('s_and_b32 s36, s35, 7')
    k.I('s_add_u32 s32, s32, s36')
    k.I('s_lshr_b32 s33, s34, 2')
    k.I('s_lshl_b32 s33, s33, 2')
    k.I('s_lshr_b32 s36, s35, 3')
    k.I('s_add_u32 s33, s33, s36')
    k.I('s_and_b32 s29, s28, 1')
    k.I('s_lshr_b32 s30, s28, 1')
    k.I('s_xor_b32 s31, s29, s30')
    k.I('s_mov_b32 s70, 0x%x' % ONES_BF16)
    k.I('s_mov_b32 s81, 0x%x' % f2u(1e-6))
    k.I('s_cmp_ge_u32 s39, 4')
    k.I('s_cbranch_scc1 L_a_q')

    X, WR = 112, 80
    LA = 4
    E = 131072
    E_ST = E
    E_CS = E + 1024
    E_TB = E + 4096
    E_FL = E + 3072
    E_KV = E + 8192
    WSLOT = {('k', 0): 1, ('k', 1): 3, ('k', 2): 5, ('k', 3): 7, ('v', 0): 0, ('v', 1): 1, ('v', 2): 2, ('v', 3): 3,
             ('q', 0): 4, ('q', 1): 5, ('q', 2): 6, ('q', 3): 7}
    XA = 16
    WE, WO_, WE2, WO2 = 12, 13, 14, 15
    MEAN, RSTD, CK, CV, T0 = 2, 3, 4, 5, 6
    LN16 = 7

    def common_setup(k, need_w_addr=True):
        k.I('v_and_b32 v2, 31, v1')
        k.I('s_lshl_b32 s37, s29, 5')
        k.I('v_add_u32 v2, s37, v2')
        k.I('v_lshlrev_b32 v2, 8, v2')
        k.I('v_lshrrev_b32 v3, 5, v1')
        k.I('v_and_b32 v4, 15, v1')
        k.I('v_xor_b32 v4, v3, v4')
        k.I('v_lshlrev_b32 v4, 4, v4')
        k.I('s_lshl_b32 s37, s31, 5')
        k.I('v_xor_b32 v4, s37, v4')
        for s in range(8):
            k.I('v_xor_b32 v5, %d, v4' % (32 * s))
            k.I('v_add_u32 %s, v2, v5' % vr(XA + s))
        k.I('v_bfe_u32 v4, v1, 2, 2')
        k.I('v_lshl_add_u32 v4, v3, 3, v4')
        k.I('v_lshlrev_b32 v4, 7, v4')
        k.I('v_bfe_u32 v5, v1, 4, 1')
        k.I('v_lshlrev_b32 v5, 1, v5')
        k.I('v_bfe_u32 v6, v1, 1, 1')
        k.I('v_add_u32 v5, v5, v6')
        k.I('s_lshl_b32 s37, s30, 2')
        k.I('v_add_u32 v5, s37, v5')
        k.I('v_bfe_u32 v6, v1, 3, 1')
        k.I('v_lshlrev_b32 v6, 2, v6')
        k.I('v_xor_b32 v5, v5, v6')
        k.I('v_lshlrev_b32 v5, 4, v5')
        k.I('v_and_b32 v6, 1, v1')
        k.I('v_lshlrev_b32 v6, 3, v6')
        k.I('v_add3_u32 v4, v4, v5, v6')
        k.I('s_lshl_b32 s37, s31, 11')
        k.I('v_add_u32 %s, s37, v4' % vr(WE))
        k.I('s_xor_b32 s37, s37, 2048')
        k.I('v_add_u32 %s, s37, v4' % vr(WO_))
        k.I('v_add_u32 %s, 0x10000, %s' % (vr(WE2), vr(WE)))
        k.I('v_add_u32 %s, 0x10000, %s' % (vr(WO2), vr(WO_)))
        k.I('v_bfe_u32 v5, v1, 4, 1')
        k.I('v_and_b32 v6, 1, v1')
        k.I('v_cmp_eq_u32 vcc, v5, v6')
        k.I('v_mov_b32 v5, s70')
        k.I('v_cndmask_b32 v5, 0, v5, vcc')
        for j in range(4):
            k.I('v_accvgpr_write_b32 a%d, v5' % (4 + j))
        k.I('s_lshl_b32 s72, s29, 1')
        k.I('s_add_u32 s73, s72, s30')
        k.I('s_lshl_b32 s73, s73, 8')
        k.I('s_add_u32 s73, s73, %d' % E_ST)
        k.I('s_xor_b32 s74, s73, 256')
        k.I('s_lshl_b32 s75, s30, 1')
        k.I('s_add_u32 s75, s75, s29')
        k.I('s_lshl_b32 s75, s75, 7')
        k.I('s_add_u32 s75, s75, %d' % E_CS)
        k.I('s_xor_b32 s76, s75, 128')
        k.I('s_lshl_b32 s77, s39, 8')
        k.I('s_add_u32 s77, s77, %d' % E_TB)
        k.I('s_lshl_b32 s40, s28, 2')
        k.I('s_add_u32 s40, s40, %d' % E_FL)
        k.I('s_xor_b32 s41, s40, 4')
        k.I('v_and_b32 v0, 31, v1')
        k.I('v_lshlrev_b32 v0, 2, v0')
        k.I('v_and_b32 v26, 16, v1')
        k.I('v_cmp_ne_u32 s[82:83], 0, v26')
        k.I('v_lshlrev_b32 %s, 4, v1' % vr(LN16))

    def xread(n):
        c, s = n // 8, n % 8
        return 'ds_read_b128 %s, %s offset:%d' % (vr(X + 4 * n, 4), vr(XA + s), (c % 2) * 32768)

    def wreads(part, ks):
        c, s = ks // 8, ks % 8
        slot = WSLOT[(part, c)]
        a = ((WE, WO_) if slot < 4 else (WE2, WO2))[s & 1]
        off = (slot % 4) * 16384 + (s & ~1) * 2048
        return ['ds_read_b64_tr_b16 %s, %s offset:%d' % (vr(WR + 4 * s, 2), vr(a), off),
                'ds_read_b64_tr_b16 %s, %s offset:%d' % (vr(WR + 4 * s + 2, 2), vr(a), off + 512)]

    def stats_finish_ops():
        return ['v_lshlrev_b32 v26, 1, v0', 'v_add_u32 v27, s74, v26', 'v_add_u32 v26, s73, v26',
                'ds_read_b64 v[24:25], v26', 'ds_read_b64 v[28:29], v27',
                'v_add_f32 v24, v24, v28', 'v_add_f32 v25, v25, v29',
                'v_mul_f32 %s, 0x%x, v24' % (vr(MEAN), f2u(1.0 / 512)),
                'v_mul_f32 v25, 0x%x, v25' % f2u(1.0 / 512),
                'v_fma_f32 v25, -%s, %s, v25' % (vr(MEAN), vr(MEAN)),
                'v_max_f32 v25, 0, v25', 'v_add_f32 v25, 0x%x, v25' % f2u(1e-5), 'v_rsq_f32 %s, v25' % vr(RSTD)]

    kk = Kernel('a_kv')
    k = kk
    st = Stamper(k, 1, ws, base=88, tmp=40)
    ACK, ACV = 48, 64
    MN, RS = 16, 32
    k.I('s_lshl_b32 s38, s2, 2')
    k.I('s_add_u32 s38, s38, s28')
    k.I('s_mov_b32 s19, 0x00020000')
    k.I('s_mov_b32 s23, 0x00020000')
    if not OPT.get('nocode'):
        k.I('s_getpc_b64 s[34:35]')
        k.label('L_a_pc')
        k.I('s_sub_u32 s34, s34, L_a_pc-qkv_kernel')
        k.I('s_subb_u32 s35, s35, 0')
        k.I('s_lshr_b32 s36, s2, 3')
        k.I('s_lshl_b32 s36, s36, 2')
        k.I('s_add_u32 s36, s36, s28')
        k.I('s_lshl_b32 s36, s36, 10')
        k.I('v_lshlrev_b32 v8, 4, v1')
        k.I('v_add_u32 v8, s36, v8')
        k.I('v_min_u32 v8, L_text_end-qkv_kernel-4, v8')
        k.I('global_load_dword v239, v8, s[34:35]')
    k.I('s_waitcnt lgkmcnt(0)')
    prep_decode(k)
    common_setup(k)
    for j in range(4):
        k.I('v_accvgpr_write_b32 a%d, s70' % j)
    k.I('s_lshl_b32 s37, s33, 2')
    k.I('s_add_u32 s37, s37, s28')
    k.I('s_lshl_b32 s37, s37, 11')
    k.I('s_add_u32 s71, s37, 0x%x' % OFF_KVZ)
    k.I('s_lshl_b32 s78, s33, 2')
    if OPT.get('touch'):
        k.I('s_and_b32 s34, s2, 7')
        k.I('s_lshr_b32 s35, s2, 3')
        k.I('s_and_b32 s36, s34, 3')
        k.I('s_lshl_b32 s36, s36, 19')
        k.I('s_lshl_b32 s37, s35, 14')
        k.I('s_add_u32 s36, s36, s37')
        k.I('s_lshl_b32 s37, s28, 12')
        k.I('s_add_u32 s36, s36, s37')
        k.I('v_lshlrev_b32 v8, 4, v1')
        for t in range(4):
            k.I('buffer_load_dword %s, v8, %s, s36 offen offset:%d' % (vr(220 + t), sr(XS, 4), t * 1024))
        k.I('v_lshrrev_b32 v9, 5, v1')
        k.I('s_movk_i32 s37, 3072')
        k.I('v_mul_lo_u32 v9, v9, s37')
        k.I('v_and_b32 v10, 31, v1')
        k.I('v_lshl_add_u32 v9, v10, 4, v9')
        k.I('s_lshl_b32 s35, s35, 4')
        k.I('s_lshl_b32 s37, s28, 2')
        k.I('s_add_u32 s35, s35, s37')
        k.I('s_mul_i32 s35, s35, 3072')
        k.I('s_lshr_b32 s34, s34, 2')
        k.I('s_lshl_b32 s34, s34, 9')
        k.I('s_add_u32 s35, s35, s34')
        for hh in range(2):
            for p in range(3):
                k.I('s_add_u32 s34, s35, %d' % (hh * 2 * 3072))
                k.I('buffer_load_dword %s, v9, %s, s34 offen offset:%d' % (vr(224 + hh * 3 + p), sr(WQ, 4), p * 1024))
        k.I('v_lshrrev_b32 v10, 3, v1')
        k.I('v_mul_lo_u32 v10, v10, s50')
        k.I('v_and_b32 v9, 7, v1')
        k.I('v_lshl_add_u32 v10, v9, 4, v10')
        k.I('s_lshl_b32 s36, s50, 3')
        k.I('s_mov_b32 s34, s48')
        k.I('s_mov_b32 s35, s49')
        for t in range(4):
            k.I('buffer_load_dword %s, v10, %s, s34 offen' % (vr(230 + t), sr(PA, 4)))
            k.I('buffer_load_dword %s, v10, %s, s35 offen' % (vr(234 + t), sr(PB, 4)))
            k.I('s_add_u32 s34, s34, s36')
            k.I('s_add_u32 s35, s35, s36')
    k.I('v_lshlrev_b32 v8, 2, v1')
    k.I('v_add_u32 v8, %d, v8' % E_FL)
    k.I('v_mov_b32 v9, 0')
    k.I('v_cmp_gt_u32 vcc, 16, v1')
    k.I('s_and_saveexec_b64 s[60:61], vcc')
    k.I('ds_write_b32 v8, v9')
    k.I('s_mov_b64 exec, s[60:61]')
    k.I('s_waitcnt lgkmcnt(0)')
    S = Sched(64)
    GS = [0, 8, 16, 24, 32, 48]
    pre = ['s_barrier']
    for n in range(LA):
        pre += [xread(n)] + wreads('k', n)
    for g in range(1, 6):
        S.at(GS[g] - LA - 1, ['s_barrier'])
    S.at(47, ['s_barrier'])
    S.at(62, ['s_barrier'])
    for n in range(64):
        part = 'kv'[n // 32]
        s = n % 8
        m = n + LA
        if m < 64:
            if m == 16:
                S.at(n, ['v_add_u32 %s, 0x10000, %s' % (vr(XA + t), vr(XA + t)) for t in range(8)])
            S.at(n, ([xread(m)] if m < 32 else []) + wreads('kv'[m // 32], m % 32))
        if s % 2 == 0:
            ca = ar(8 + 4 * (n // 32), 4)
            S.at(n, ['v_mfma_f32_16x16x32_bf16 %s, a[4:7], %s, %s' % (ca, vr(WR + 4 * s, 4), '0' if n % 32 == 0 else ca)])

    def lane_form(dst, a0, tmp):
        return ['v_accvgpr_read_b32 %s, a%d' % (vr(dst), a0), 'v_accvgpr_read_b32 %s, a%d' % (vr(tmp), a0 + 1),
                'v_cndmask_b32 %s, %s, %s, s[82:83]' % (vr(dst), vr(dst), vr(tmp))]
    S.at(31, lane_form(CK, 8, 27) + ['v_add_u32 v26, s75, v0', 'ds_write_b32 v26, %s' % vr(CK), 's_waitcnt lgkmcnt(0)'])
    S.at(33, ['s_barrier', 'v_add_u32 v26, s76, v0', 'ds_read_b32 v30, v26'] + stats_finish_ops() +
         ['v_add_f32 %s, %s, v30' % (vr(CK), vr(CK)),
          'v_add_u32 v26, s77, v0', 'ds_write_b32 v26, %s' % vr(MEAN), 'ds_write_b32 v26, %s offset:128' % vr(RSTD),
          'v_lshrrev_b32 v26, 5, v1', 'v_lshlrev_b32 v26, 4, v26', 'v_add_u32 %s, s77, v26' % vr(T0)])
    rd = []
    for a in range(4):
        rd.append('ds_read_b128 %s, %s offset:%d' % (vr(MN + 4 * a, 4), vr(T0), a * 32))
        rd.append('ds_read_b128 %s, %s offset:%d' % (vr(RS + 4 * a, 4), vr(T0), 128 + a * 32))
    S.at(34, rd)
    ke = []
    for i in range(0, 16, 2):
        ke += ln_phi_ops([ACK + i, ACK + i + 1], [MN + i, MN + i + 1], [CK, CK], [RS + i, RS + i + 1], [8, 9])
        ke.append('v_cvt_pk_bf16_f32 %s, %s, %s' % (vr(ACK + i // 2), vr(ACK + i), vr(ACK + i + 1)))
    S.spread(36, 61, ke)
    if OPT.get('touch2'):
        tp = ['s_lshr_b32 s35, s2, 3', 's_lshl_b32 s35, s35, 4', 's_lshl_b32 s34, s28, 2', 's_add_u32 s35, s35, s34',
              's_mul_i32 s35, s35, 3072', 's_and_b32 s34, s2, 7', 's_lshr_b32 s34, s34, 2', 's_lshl_b32 s34, s34, 9',
              's_add_u32 s35, s35, s34',
              'v_lshrrev_b32 v9, 5, v1', 'v_mul_u32_u24 v9, 0xc00, v9', 'v_and_b32 v8, 31, v1', 'v_lshl_add_u32 v9, v8, 4, v9']
        for hh in range(2):
            tp.append('s_add_u32 s34, s35, %d' % (hh * 2 * 3072))
            tp.append('buffer_load_dword %s, v9, %s, s34 offen offset:2048' % (vr(64 + hh * 2), sr(WQ, 4)))
            tp.append('buffer_load_dword %s, v9, %s, s34 offen' % (vr(65 + hh * 2), sr(WQ, 4)))
        if OPT.get('touch3'):
            tp += ['v_lshrrev_b32 v9, 3, v1', 'v_mul_lo_u32 v9, v9, s50', 'v_and_b32 v8, 7, v1', 'v_lshl_add_u32 v9, v8, 4, v9',
                   's_lshl_b32 s36, s50, 3', 's_mov_b32 s34, s48', 's_mov_b32 s35, s49']
            for t in range(4):
                tp.append('buffer_load_dword %s, v9, %s, s34 offen' % (vr(68 + t), sr(PA, 4)))
                tp.append('buffer_load_dword %s, v9, %s, s35 offen' % (vr(72 + t), sr(PB, 4)))
                tp.append('s_add_u32 s34, s34, s36')
                tp.append('s_add_u32 s35, s35, s36')
        S.spread(OPT.get('tpos', (1,))[0], OPT.get('tpos', (1,))[0] + 14, tp)
    S.at(46, ['v_mov_b32 v6, 0', 'buffer_load_dword v11, v6, %s, s78 offen sc1' % sr(DB, 4)])
    pd = ['v_lshrrev_b32 v10, 3, v1', 'v_mul_lo_u32 v10, v10, s50', 'v_and_b32 v6, 7, v1', 'v_lshlrev_b32 v6, 4, v6',
          'v_add_u32 v10, v10, v6', 's_lshl_b32 s80, s50, 3', 's_lshl_b32 s79, s28, 13']
    for t in range(8):
        base = 's48' if t < 4 else 's49'
        pd.append('s_add_u32 m0, s79, %d' % (t * 1024))
        pd.append(('buffer_load_dwordx4 v10, %s, %s offen lds' % (sr(PA if t < 4 else PB, 4), base), 'prep'))
        pd.append('s_add_u32 %s, %s, s80' % (base, base))
    S.spread(48, 61, pd)
    for o in pre:
        emit(k, o)
    st.stamp()
    for n in range(64):
        part, ks = n // 32, n % 32
        acc = vr([ACK, ACV][part], 16)
        if n % 2 == 0:
            k.touch(vr(WR + 4 * ((n + 1) % 8), 4))
            if part == 0:
                k.touch(vr(X + 4 * (ks + 1), 4))
        k.I('v_mfma_f32_32x32x16_bf16 %s, %s, %s, %s' % (acc, vr(X + 4 * ks, 4), vr(WR + 4 * (n % 8), 4), acc if ks else '0'))
        for o in S.slots[n]:
            emit(k, o)
        if n in (31,):
            st.stamp()
    st.stamp()
    TT = ACK + 8
    for o in lane_form(CV, 12, TT) + ['v_add_u32 %s, s75, v0' % vr(TT), 'ds_write_b32 %s, %s offset:512' % (vr(TT), vr(CV))] + \
            pair_signal(40, TT + 1, TT + 2):
        emit(k, o)
    pair_wait(k, 'L_a_pw0', 41, TT + 1, TT + 2, 79)
    for o in ['v_add_u32 %s, s76, v0' % vr(TT), 'ds_read_b32 %s, %s offset:512' % (vr(TT + 1), vr(TT)),
              'v_add_f32 %s, %s, %s' % (vr(CV), vr(CV), vr(TT + 1))]:
        emit(k, o)
    for i in range(16):
        k.I('v_fma_f32 %s, -%s, %s, %s' % (vr(ACV + i), vr(MN + i), vr(CV), vr(ACV + i)))
    for i in range(16):
        k.I('v_mul_f32 %s, %s, %s' % (vr(ACV + i), vr(RS + i), vr(ACV + i)))
    for j in range(8):
        k.I('v_cvt_pk_bf16_f32 %s, %s, %s' % (vr(ACV + j), vr(ACV + 2 * j), vr(ACV + 2 * j + 1)))
    DKV, DZ = 16, 32
    k.I('v_mfma_f32_32x32x16_bf16 %s, %s, %s, 0' % (vr(DKV, 16), vr(ACK, 4), vr(ACV, 4)))
    k.I('v_mfma_f32_32x32x16_bf16 %s, %s, a[0:3], 0' % (vr(DZ, 16), vr(ACK, 4)))
    k.I('v_mfma_f32_32x32x16_bf16 %s, %s, %s, %s' % (vr(DKV, 16), vr(ACK + 4, 4), vr(ACV + 4, 4), vr(DKV, 16)))
    k.I('v_mfma_f32_32x32x16_bf16 %s, %s, a[0:3], %s' % (vr(DZ, 16), vr(ACK + 4, 4), vr(DZ, 16)))
    for o in ['v_and_b32 %s, 16, v1' % vr(TT), 'v_lshlrev_b32 %s, 7, %s' % (vr(TT), vr(TT)),
              'v_lshrrev_b32 %s, 5, v1' % vr(TT + 1), 'v_lshlrev_b32 %s, 10, %s' % (vr(TT + 1), vr(TT + 1)),
              's_lshl_b32 s79, s30, 1', 's_add_u32 s79, s79, s29', 's_lshl_b32 s79, s79, 12', 's_add_u32 s79, s79, %d' % E_KV,
              'v_add3_u32 %s, %s, %s, s79' % (vr(TT), vr(TT), vr(TT + 1)),
              'v_and_b32 %s, 15, v1' % vr(TT + 1), 'v_lshl_add_u32 %s, %s, 5, %s' % (vr(TT + 2), vr(TT + 1), vr(TT)),
              's_add_u32 s40, s40, 16', 's_add_u32 s41, s41, 16']:
        emit(k, o)
    for j in range(8):
        k.I('v_cndmask_b32 %s, %s, %s, s[82:83]' % (vr(DKV + j), vr(DKV + j), vr(DKV + 8 + j)))
    for j in range(8):
        k.I('v_cndmask_b32 %s, %s, %s, s[82:83]' % (vr(DZ + j), vr(DZ + j), vr(DZ + 8 + j)))
    for o in ['ds_write_b128 %s, %s' % (vr(TT + 2), vr(DKV, 4)), 'ds_write_b128 %s, %s offset:16' % (vr(TT + 2), vr(DKV + 4, 4)),
              'v_cmp_eq_u32 vcc, 0, %s' % vr(TT + 1), 's_and_saveexec_b64 s[60:61], vcc',
              'ds_write_b128 %s, %s offset:512' % (vr(TT), vr(DZ, 4)), 'ds_write_b128 %s, %s offset:528' % (vr(TT), vr(DZ + 4, 4)),
              's_mov_b64 exec, s[60:61]'] + pair_signal(40, TT + 1, TT + 2) + \
            ['s_lshl_b32 s79, s30, 13', 's_lshl_b32 s80, s29, 11', 's_add_u32 s79, s79, s80', 's_add_u32 s79, s79, %d' % E_KV]:
        emit(k, o)
    pair_wait(k, 'L_a_pw1', 41, TT + 1, TT + 2, 80)
    k.I('v_lshlrev_b32 %s, 2, v1' % vr(TT))
    k.I('v_add_u32 %s, s79, %s' % (vr(TT + 1), vr(TT)))
    for half in range(2):
        for ch in range(3):
            d = 16 + (half * 3 + ch) * 2
            off = half * 1024 + ch * 256
            k.I('ds_read_b32 %s, %s offset:%d' % (vr(d), vr(TT + 1), off))
            k.I('ds_read_b32 %s, %s offset:%d' % (vr(d + 1), vr(TT + 1), off + 4096))
    for half in range(2):
        for ch in range(3):
            d = 16 + (half * 3 + ch) * 2
            k.I('v_add_f32 %s, %s, %s' % (vr(d), vr(d), vr(d + 1)))
    k.I('v_readfirstlane_b32 s79, v11')
    k.I('s_cmp_eq_u32 s79, 0')
    k.I('s_cbranch_scc1 L_a_spin')
    k.label('L_a_go')
    for half in range(2):
        for ch in range(2):
            d = 16 + (half * 3 + ch) * 2
            k.I('buffer_atomic_add_f32 %s, %s, %s, s71 offen offset:%d' % (vr(d), vr(TT), ws, half * 1024 + ch * 256))
    k.I('v_cmp_gt_u32 vcc, 8, v1')
    k.I('s_and_saveexec_b64 s[60:61], vcc')
    for half in range(2):
        d = 16 + (half * 3 + 2) * 2
        k.I('buffer_atomic_add_f32 %s, %s, %s, s71 offen offset:%d' % (vr(d), vr(TT), ws, half * 1024 + 512))
    k.I('s_mov_b64 exec, s[60:61]')
    st.stamp()
    for o in ['v_bfe_u32 v16, v1, 2, 2', 'v_lshrrev_b32 v17, 5, v1', 'v_lshl_add_u32 v16, v17, 2, v16', 'v_lshlrev_b32 v16, 7, v16',
              'v_and_b32 v17, 3, v1', 'v_lshl_add_u32 v16, v17, 3, v16', 'v_bfe_u32 v17, v1, 4, 1',
              's_cmp_eq_u32 s68, 1', 's_cselect_b32 s79, 12, 5', 's_cselect_b32 s60, 32, 64', 's_cselect_b32 s61, 64, 2048',
              's_cselect_b32 s62, 11, 12', 's_lshl_b32 s62, 1, s62',
              'v_lshlrev_b32 v17, s79, v17', 's_lshl_b32 s80, s28, 13', 'v_add3_u32 v16, v16, v17, s80',
              'v_add_u32 v17, s60, v16', 'v_add_u32 v18, s61, v16', 'v_add_u32 v19, s61, v17']:
        k.I(o)
    PAD = [16, 17, 18, 19]
    for f in range(4):
        k.I('v_add_u32 %s, s62, %s' % (vr(20 + f), vr(PAD[f])))
    PAD += [20, 21, 22, 23]
    PF = X
    k.need('prep')
    for f in range(8):
        k.I('ds_read_b64_tr_b16 %s, %s' % (vr(PF + 4 * f, 2), vr(PAD[f])))
        k.I('ds_read_b64_tr_b16 %s, %s offset:1024' % (vr(PF + 4 * f + 2, 2), vr(PAD[f])))
    for f in range(8):
        k.I('buffer_store_dwordx4 %s, %s, %s, %s offen%s' % (vr(PF + 4 * f, 4), vr(LN16), ws, sr(51 + f), APOL()))
        ca = ar(8 + 4 * (f & 1), 4) if False else None
    for f in range(8):
        ca = vr(32 + 4 * (f & 3), 4)
        k.I('v_mfma_f32_16x16x32_bf16 %s, a[4:7], %s, %s' % (ca, vr(PF + 4 * f, 4), '0' if f < 4 else ca))
    for c in range(4):
        k.I('v_cndmask_b32 %s, %s, %s, s[82:83]' % (vr(48 + c), vr(32 + 4 * c), vr(33 + 4 * c)))
        k.I('buffer_store_dword %s, v0, %s, s59 offen offset:%d' % (vr(48 + c), ws, c * 128))
    if gen1.STAMPS:
        k.I('s_mov_b32 s88, s88') if False else None
        k.I('v_lshl_add_u32 v4, s39, 6, v1')
        st.tid = 'v4'
        st.stamp(); st.stamp(True)
        flush_stamps(k, st, ws, 1)
    k.label('L_a_end')
    k.I('s_endpgm')
    k.raw('''L_a_spin:
    s_sleep 2
    v_mov_b32 v6, 0
    buffer_load_dword v11, v6, s[%d:%d], s78 offen sc1
    s_waitcnt vmcnt(0)
    v_readfirstlane_b32 s79, v11
    s_nop 3
    s_cmp_eq_u32 s79, 0
    s_cbranch_scc1 L_a_spin
    s_branch L_a_go
''' % (DB, DB + 3))

    kq = Kernel('a_q')
    k = kq
    k.label('L_a_q')
    stq = Stamper(k, 5, ws, base=88, tmp=40)
    ACQ = 48
    k.I('s_lshl_b32 s34, s28, 12')
    k.I('s_lshl_b32 s35, s32, 16')
    k.I('s_mul_i32 s36, s28, %d' % (32 * 3072))
    k.I('s_lshl_b32 s37, s33, 7')
    k.I('s_add_u32 s36, s36, s37')
    k.I('s_add_u32 s38, s32, s33')
    if OPT.get('norot'):
        k.I('s_mov_b32 s38, 0')
    for c in range(4):
        k.I('s_add_u32 s37, s38, %d' % c)
        k.I('s_and_b32 s37, s37, 3')
        k.I('s_lshl_b32 %s, s37, 8' % sr(60 + c))
        k.I('s_add_u32 %s, %s, s35' % (sr(60 + c), sr(60 + c)))
        k.I('s_mul_i32 %s, s37, %d' % (sr(64 + c), 128 * 3072))
        k.I('s_add_u32 %s, %s, s36' % (sr(64 + c), sr(64 + c)))
    XV = [32, 33, 34, 35]
    WV = [8, 9, 10, 11]
    k.I('v_lshrrev_b32 v2, 4, v1')
    k.I('v_and_b32 v3, 15, v1')
    k.I('s_lshl_b32 s37, s28, 4')
    for j in range(4):
        k.I('v_add_u32 v4, %d, v2' % (4 * j))
        k.I('v_xor_b32 v5, v3, v4')
        k.I('v_lshlrev_b32 v5, 4, v5')
        k.I('v_add_u32 v4, s37, v4')
        k.I('v_lshlrev_b32 v4, 10, v4')
        k.I('v_add_u32 v4, v4, v5')
        k.I('v_subrev_u32 %s, %d, v4' % (vr(XV[j]), j * 1024))
    k.I('v_lshrrev_b32 v4, 3, v1')
    k.I('s_movk_i32 s37, 3072')
    k.I('v_mul_lo_u32 v4, v4, s37')
    k.I('v_and_b32 v5, 1, v2')
    k.I('v_lshlrev_b32 v5, 2, v5')
    k.I('v_and_b32 v6, 7, v1')
    k.I('v_xor_b32 v5, v5, v6')
    k.I('v_lshlrev_b32 v5, 4, v5')
    k.I('v_add_u32 v8, v4, v5')
    for j in range(1, 4):
        k.I('v_add_u32 %s, %d, v8' % (vr(WV[j]), j * (8 * 3072 - 1024)))
    k.I('v_lshlrev_b32 %s, 4, v1' % vr(LN16))
    for j in range(4):
        k.I('v_mov_b32 %s, 0' % vr(40 + j))
    k.I('s_lshl_b32 s37, s33, 2')
    k.I('s_add_u32 s37, s37, s28')
    k.I('s_lshl_b32 s37, s37, 11')
    k.I('s_add_u32 s71, s37, 0x%x' % OFF_KVZ)
    k.I('s_cmp_eq_u32 s32, 0')
    k.I('s_cselect_b32 s37, s71, 0x7fff0000')
    k.I('s_waitcnt lgkmcnt(0)')
    if OPT.get('qpro'): stq.stamp()
    k.I('buffer_store_dwordx4 v[40:43], %s, %s, s37 offen sc1' % (vr(LN16), ws), w=['zero'])
    k.I('buffer_store_dwordx4 v[40:43], %s, %s, s37 offen offset:1024 sc1' % (vr(LN16), ws), w=['zero'])
    k.I('s_lshl_b32 s37, s2, 7')
    k.I('s_lshl_b32 s38, s28, 15')
    k.I('s_add_u32 s37, s37, s38')
    k.I('s_add_u32 s37, s37, 0x%x' % OFF_CNT)
    k.I('s_cmp_lt_u32 s28, 3')
    k.I('s_cselect_b32 s37, s37, 0x7fff0000')
    k.I('v_and_b32 v41, 15, v1')
    k.I('v_lshlrev_b32 v41, 2, v41')
    k.I('buffer_store_dword v40, v41, %s, s37 offen' % ws)

    def dma_x_ops(c, slot):
        ops = ['s_add_u32 m0, s34, %d' % (slot * 16384)]
        for j in range(4):
            ops.append(('buffer_load_dwordx4 %s, %s, %s offen offset:%d lds' % (vr(XV[j]), sr(XS, 4), sr(60 + c), j * 1024), 'X%d' % c))
        return ops
    PARTCOL = {'q': 0, 'k': 1024, 'v': 2048}

    def dma_w_ops(part, c, slot):
        ops = ['s_add_u32 m0, s34, %d' % (slot * 16384), 's_add_u32 s69, %s, %d' % (sr(64 + c), PARTCOL[part])]
        for j in range(4):
            ops.append(('buffer_load_dwordx4 %s, %s, s69 offen offset:%d lds' % (vr(WV[j]), sr(WQ, 4), j * 1024), 'W%s%d' % (part, c)))
        return ops
    def interleave(a, b, ratio=None):
        nv = sum(1 for o in a if isinstance(o, tuple))
        out, ib, seen = [], 0, 0
        for o in a:
            out.append(o)
            if isinstance(o, tuple):
                seen += 1
                upto = len(b) * seen // nv
                out += b[ib:upto]
                ib = upto
        return out + b[ib:]
    grp = lambda c: dma_x_ops(c, 2 * c) + dma_w_ops('k', c, 2 * c + 1)
    for o in grp(0):
        emit(k, o)
    if OPT.get('qpro'): stq.stamp()
    ktmp = Kernel('tmp')
    common_setup(ktmp)
    setup_ops = [it.text for it in ktmp.items]
    for o in interleave(grp(1), setup_ops):
        emit(k, o)
    stq.stamp()
    SQ = 24
    k.I('v_mov_b32 v24, 0')
    k.I('v_mov_b32 v25, 0')
    nextdma = {0: grp(2), 1: grp(3), 2: dma_w_ops('v', 0, 0) + dma_w_ops('v', 1, 1), 3: dma_w_ops('v', 2, 2) + dma_w_ops('v', 3, 3)}
    for g in range(4):
        if OPT.get('qg') == (g,): stq.stamp()
        k.need(*(['X%d' % g, 'Wk%d' % g] + (['zero'] if g == 0 else [])))
        if OPT.get('qg') == (g,) or (OPT.get('qpro') and g == 0): stq.stamp()
        k.I('s_barrier')
        if OPT.get('qg') == (g,): stq.stamp()
        work = []
        if g == 0:
            work += ['s_or_b32 s38, s32, s28', 's_cmp_eq_u32 s38, 0', 's_cselect_b32 s38, 0, 0x1000',
                     'v_lshlrev_b32 v26, 12, v1', 's_lshl_b32 s78, s33, 2', 'v_add_u32 v26, s78, v26', 'v_mov_b32 v27, 1']
        if g == 2:
            work += ['v_add_u32 %s, 0x10000, %s' % (vr(XA + t), vr(XA + t)) for t in range(8)]
        work += [xread(8 * g + s) for s in range(8)]
        for s in range(0, 8, 2):
            n = 8 * g + s
            work.append('v_mfma_f32_16x16x32_bf16 a[8:11], a[4:7], %s, %s' % (vr(X + 4 * n, 4), '0' if n == 0 else 'a[8:11]'))
            for j in range(4):
                xr = X + 4 * n + j
                work.append('v_dot2c_f32_bf16 %s, %s, %s' % (vr(SQ + (j & 1)), vr(xr), vr(xr)))
        if OPT.get('noqwork'):
            work = [w for w in work if not (w.startswith('v_mfma') or w.startswith('v_dot2c'))]
        if OPT.get('qafter'):
            for o in nextdma[g] + work:
                emit(k, o)
        else:
            for o in interleave(nextdma[g], work):
                emit(k, o)
        if OPT.get('qg') == (g,): stq.stamp()
        if g == 0:
            k.I('buffer_store_dword v27, v26, %s, s38 offen sc1' % sr(DB, 4))
    if not (OPT.get('qpro') or OPT.get('qg')): stq.stamp()
    k.need('Wv0', 'Wv1')
    k.I('s_waitcnt lgkmcnt(0)')
    k.I('s_barrier')
    for o in dma_w_ops('q', 0, 4) + dma_w_ops('q', 1, 5):
        emit(k, o)
    for o in ['v_add_f32 v25, v24, v25'] + xhalf_ops(25, 26) + \
            ['v_accvgpr_read_b32 v24, a8', 'v_accvgpr_read_b32 v27, a9', 'v_cndmask_b32 v24, v24, v27, s[82:83]',
             'v_lshlrev_b32 v26, 1, v0', 'v_add_u32 v26, s73, v26', 'ds_write_b64 v26, v[24:25]', 's_waitcnt lgkmcnt(0)',
             's_barrier'] + stats_finish_ops():
        emit(k, o)
    k.need('Wv2', 'Wv3')
    k.I('s_barrier')
    for o in dma_w_ops('q', 2, 6) + dma_w_ops('q', 3, 7):
        emit(k, o)
    k.need('Wq0', 'Wq1')
    k.I('s_barrier')
    if not (OPT.get('qpro') or OPT.get('qg')): stq.stamp()
    for n in range(LA):
        for o in wreads('q', n):
            k.I(o)
    for n in range(32):
        if n % 2 == 0:
            k.touch(vr(WR + 4 * ((n + 1) % 8), 4))
        acc = vr(ACQ, 16)
        k.I('v_mfma_f32_32x32x16_bf16 %s, %s, %s, %s' % (acc, vr(WR + 4 * (n % 8), 4), vr(X + 4 * n, 4), acc if n else '0'))
        if n == 16 - LA - 1:
            k.need('Wq2', 'Wq3')
            k.I('s_barrier')
        if n + LA < 32:
            for o in wreads('q', n + LA):
                k.I(o)
        if n % 2 == 0:
            k.I('v_mfma_f32_16x16x32_bf16 a[12:15], a[4:7], %s, %s' % (vr(WR + 4 * (n % 8), 4), '0' if n == 0 else 'a[12:15]'))
    if not (OPT.get('qpro') or OPT.get('qg')): stq.stamp()
    CSQ = 64
    for o in ['v_accvgpr_read_b32 %s, a12' % vr(CSQ), 'v_accvgpr_read_b32 %s, a13' % vr(CSQ + 1),
              'v_cndmask_b32 %s, %s, %s, s[82:83]' % (vr(CSQ), vr(CSQ), vr(CSQ + 1)),
              'v_add_u32 %s, s75, v0' % vr(CSQ + 1), 'ds_write_b32 %s, %s offset:1024' % (vr(CSQ + 1), vr(CSQ)),
              's_add_u32 s40, s40, 32', 's_add_u32 s41, s41, 32'] + pair_signal(40, CSQ + 1, CSQ + 2) + \
             ['v_lshrrev_b32 v20, 5, v1', 'v_lshlrev_b32 v20, 4, v20', 'v_add_u32 v21, s76, v20', 'v_add_u32 v20, s75, v20']:
        k.I(o)
    pair_wait(k, 'L_a_pw2', 41, CSQ + 1, CSQ + 2, 79)
    CQ, CQ2 = 24, 64
    for a in range(4):
        k.I('ds_read_b128 %s, v20 offset:%d' % (vr(CQ + 4 * a, 4), 1024 + a * 32))
        k.I('ds_read_b128 %s, v21 offset:%d' % (vr(CQ2 + 4 * a, 4), 1024 + a * 32))
    for i in range(16):
        k.I('v_add_f32 %s, %s, %s' % (vr(CQ + i), vr(CQ + i), vr(CQ2 + i)))
    for i in range(0, 16, 2):
        for o in ln_phi_ops([ACQ + i, ACQ + i + 1], [MEAN, MEAN], [CQ + i, CQ + i + 1], [RSTD, RSTD], [22, 23]):
            k.I(o)
        k.I('v_cvt_pk_bf16_f32 %s, %s, %s' % (vr(ACQ + i // 2), vr(ACQ + i), vr(ACQ + i + 1)))
    for o in ['s_lshl_b32 s79, s32, 1', 's_add_u32 s79, s79, s29', 's_lshl_b32 s79, s79, 5', 's_lshl_b32 s80, s33, 2',
              's_add_u32 s79, s79, s80', 's_lshl_b32 s80, s30, 1', 's_add_u32 s79, s79, s80', 's_lshl_b32 s79, s79, 10',
              's_add_u32 s79, s79, 0x%x' % OFF_PQ]:
        k.I(o)
    k.I('buffer_store_dwordx4 %s, %s, %s, s79 offen%s' % (vr(ACQ, 4), vr(LN16), ws, APOL()))
    k.I('buffer_store_dwordx4 %s, %s, %s, s79 offen offset:1024%s' % (vr(ACQ + 4, 4), vr(LN16), ws, APOL()))
    if gen1.STAMPS:
        k.I('v_lshl_add_u32 v4, s39, 6, v1')
        k.I('v_subrev_u32 v4, 256, v4')
        stq.tid = 'v4'
        stq.stamp(); stq.stamp(True)
        flush_stamps(k, stq, ws, 5)
    k.I('s_endpgm')
    return Multi([kp, kq_first(kk, kq)[0], kq_first(kk, kq)[1]]), dict(lds=131072 + 8192 + 16384, grid=256, block=512)


def kq_first(kk, kq):
    return kk, kq


def flush_stamps(k, st, ws, kidx):
    k.I('s_waitcnt lgkmcnt(0)')
    k.I('v_cmp_eq_u32 vcc, 0, %s' % st.tid)
    k.I('s_and_saveexec_b64 s[40:41], vcc')
    k.I('s_lshl_b32 s42, s2, 7')
    k.I('s_add_u32 s42, s42, 0x%x' % (OFF_TS + kidx * 256 * 128))
    k.I('v_mov_b32 v0, 0')
    regs = [84, 86] + [st.base + 2 * i for i in range(st.n)]
    for i, r in enumerate(regs):
        k.I('v_mov_b32 v2, s%d' % r)
        k.I('v_mov_b32 v3, s%d' % (r + 1))
        k.I('buffer_store_dwordx2 v[2:3], v0, %s, s42 offen offset:%d' % (ws, 8 * i))
    k.I('s_mov_b64 exec, s[40:41]')


def prep_decode(k):
    k.I('s_cmp_ge_u32 s38, 448')
    k.I('s_cbranch_scc1 L_a_pstd')
    div_const(k, 37, 38, 28, 48)
    k.I('s_mul_i32 s48, s37, 28')
    k.I('s_sub_u32 s69, s38, s48')
    k.I('s_mov_b32 s16, s44')
    k.I('s_mov_b32 s17, s45')
    k.I('s_mov_b32 s18, 0x%x' % SZ['wg'])
    k.I('s_mov_b32 s20, s46')
    k.I('s_mov_b32 s21, s47')
    k.I('s_mov_b32 s22, 0x%x' % SZ['wu'])
    k.I('s_movk_i32 s50, 3584')
    k.I('s_mul_i32 s48, s37, %d' % (32 * 3584))
    k.I('s_lshl_b32 s49, s69, 7')
    k.I('s_add_u32 s48, s48, s49')
    k.I('s_mov_b32 s49, s48')
    k.I('s_lshl_b32 s59, s69, 7')
    k.I('s_lshl_b32 s51, s37, 1')
    k.I('s_add_u32 s59, s59, s51')
    k.I('s_lshl_b32 s59, s59, 10')
    k.I('s_add_u32 s72, s59, 0x%x' % OFF_WGU)
    k.I('s_mov_b32 s73, %d' % (32 * 1024))
    k.I('s_mov_b32 s74, %d' % (64 * 1024))
    k.I('s_mov_b32 s75, 1024')
    k.I('s_mul_i32 s59, s37, %d' % (112 * 128))
    k.I('s_lshl_b32 s69, s69, 9')
    k.I('s_add_u32 s59, s59, s69')
    k.I('s_add_u32 s59, s59, 0x%x' % OFF_CSG)
    k.I('s_mov_b32 s68, 1')
    k.I('s_branch L_a_pgo')
    k.label('L_a_pstd')
    k.I('s_movk_i32 s50, 1024')
    k.I('s_mov_b32 s68, 0')
    k.I('s_mov_b32 s59, 0x7fff0000')
    k.I('s_cmp_ge_u32 s38, 672')
    k.I('s_cbranch_scc1 L_a_pwo')
    k.I('s_sub_u32 s37, s38, 448')
    k.I('s_and_b32 s69, s37, 7')
    k.I('s_lshr_b32 s37, s37, 3')
    k.I('s_mov_b32 s16, s42')
    k.I('s_mov_b32 s17, s43')
    k.I('s_mov_b32 s18, 0x%x' % SZ['wd'])
    k.I('s_mul_i32 s48, s69, 224')
    k.I('s_lshl_b32 s49, s37, 2')
    k.I('s_add_u32 s48, s48, s49')
    k.I('s_lshl_b32 s48, s48, 10')
    k.I('s_add_u32 s72, s48, 0x%x' % OFF_WD)
    k.I('s_mov_b32 s73, %d' % (112 * 1024))
    k.I('s_mov_b32 s74, 1024')
    k.I('s_mov_b32 s75, 2048')
    k.I('s_branch L_a_pstd2')
    k.label('L_a_pwo')
    k.I('s_sub_u32 s37, s38, 672')
    k.I('s_and_b32 s69, s37, 7')
    k.I('s_lshr_b32 s37, s37, 3')
    k.I('s_mov_b32 s16, s40')
    k.I('s_mov_b32 s17, s41')
    k.I('s_mov_b32 s18, 0x%x' % SZ['wo'])
    k.I('s_lshl_b32 s48, s37, 6')
    k.I('s_lshl_b32 s49, s69, 1')
    k.I('s_add_u32 s48, s48, s49')
    k.I('s_lshl_b32 s48, s48, 10')
    k.I('s_add_u32 s72, s48, 0x%x' % OFF_WO)
    k.I('s_cmp_ge_u32 s38, 736')
    k.I('s_cselect_b32 s72, 0x7fff0000, s72')
    k.I('s_cselect_b32 s18, 0, s18')
    k.I('s_mov_b32 s73, 1024')
    k.I('s_mov_b32 s74, %d' % (16 * 1024))
    k.I('s_mov_b32 s75, %d' % (32 * 1024))
    k.label('L_a_pstd2')
    k.I('s_mov_b32 s20, s16')
    k.I('s_mov_b32 s21, s17')
    k.I('s_mov_b32 s22, s18')
    k.I('s_lshl_b32 s48, s37, 16')
    k.I('s_lshl_b32 s49, s69, 7')
    k.I('s_add_u32 s48, s48, s49')
    k.I('s_add_u32 s49, s48, %d' % (32 * 1024))
    k.label('L_a_pgo')
    k.I('s_mov_b32 s51, s72')
    k.I('s_add_u32 s52, s72, s73')
    k.I('s_add_u32 s53, s72, s74')
    k.I('s_add_u32 s54, s52, s74')
    for f in range(4):
        k.I('s_add_u32 %s, %s, s75' % (sr(55 + f), sr(51 + f)))


if __name__ == '__main__':
    n = int(sys.argv[2]) if len(sys.argv) > 2 else 4
    gen1.STAMPS = len(sys.argv) > 3 and sys.argv[3] == 'stamps'
    for o in sys.argv[4:]:
        if '=' in o:
            kk_, vv_ = o.split('=')
            gen1.OPT[kk_] = tuple(int(x) for x in vv_.split(','))
        else:
            gen1.OPT[o] = True
    gens = [('qkv_kernel', gen_a8), ('attn_kernel', gen_k2), ('gateup_kernel', gen_k3), ('down_kernel', gen_k4)]
    ks = []
    for label, g in gens[:n]:
        kk, cc = g()
        ks.append((label, kk, cc))
        print(label, kk.stats(), kk.maxreg())
    open(sys.argv[1], 'w').write(wrap(ks))
```

```python
import sys
from asmgen import Kernel
import gen1
from gen1 import *
from gen2 import Sched, xhalf_ops
from gen3 import emit
import gen4
from gen4 import gen_a8


def STP():
    return '' if OPT.get('stplain') else ' sc1'


def LSC():
    return '' if OPT.get('ldplain') else ' sc1'


def sync_arrive(k, s_wave, ws, vt, s_arr, name):
    k.I('s_barrier')
    k.raw("""    s_cmp_lg_u32 s%d, 0
    s_cbranch_scc1 %s_noarr
    v_lshlrev_b32 v%d, 7, v1
    v_mov_b32 v%d, 1
    s_mov_b64 exec, 0xffff
    buffer_store_dword v%d, v%d, %s, s%d offen sc1
    s_nop 0
    s_mov_b64 exec, -1
%s_noarr:""" % (s_wave, name, vt, vt + 1, vt + 1, vt, ws, s_arr, name))


def sync_wait(k, name, s_cnt, s_wave, ws, vt, bg, nbatch=4):
    k.raw("""    s_cmp_lg_u32 s%d, 0
    s_cselect_b32 s59, 1, 0
    v_and_b32 v%d, 15, v1
    v_lshlrev_b32 v%d, 2, v%d""" % (s_wave, vt, vt, vt))
    vm = [i for i, o in enumerate(bg) if (isinstance(o, tuple) or o.startswith('buffer_'))]
    per = -(-len(vm) // nbatch)
    cuts = [0] + [vm[min(len(vm) - 1, per * (b + 1) - 1)] + 1 for b in range(nbatch)]
    cuts[-1] = len(bg)
    check = """    v_cmp_eq_u32 vcc, 1, v%d
    s_nop 4
    s_cmp_eq_u64 vcc, exec
    s_cselect_b32 s59, 1, 0""" % (vt + 1)
    for b in range(nbatch):
        batch = bg[cuts[b]:cuts[b + 1]]
        nv = sum(1 for o in batch if (isinstance(o, tuple) or o.startswith('buffer_')))
        k.raw("""    s_cmp_lg_u32 s59, 0
    s_cbranch_scc1 %s_np%d
    buffer_load_dword v%d, v%d, %s, s%d offen sc1
%s_np%d:""" % (name, b, vt + 1, vt, ws, s_cnt, name, b))
        for o in batch:
            emit(k, o)
        k.raw("""    s_cmp_lg_u32 s59, 0
    s_cbranch_scc1 %s_nq%d
    s_waitcnt vmcnt(%d)
%s
%s_nq%d:""" % (name, b, nv, check, name, b))
    k.raw("""    s_mov_b32 s60, 0
%s_spin:
    s_cmp_lg_u32 s59, 0
    s_cbranch_scc1 %s_done
    buffer_load_dword v%d, v%d, %s, s%d offen sc1
    s_waitcnt vmcnt(0)
%s
    s_add_u32 s60, s60, 1
    s_cmp_lt_u32 s60, 0x40000
    s_cbranch_scc1 %s_spin
%s_done:""" % (name, name, vt + 1, vt, ws, s_cnt, check, name, name))
    k.I('s_barrier')


def flag_store(k, s_wave, ws, vt, s_arr, name):
    k.raw("""    s_cmp_lg_u32 s%d, 0
    s_cbranch_scc1 %s_nf
    v_lshlrev_b32 v%d, 7, v1
    v_mov_b32 v%d, 1
    s_mov_b64 exec, 0xffff
    buffer_store_dword v%d, v%d, %s, s%d offen sc1
    s_nop 0
    s_mov_b64 exec, -1
%s_nf:""" % (s_wave, name, vt, vt + 1, vt + 1, vt, ws, s_arr, name))


_pi = [0]


def poll_issue(k, s_wave, ws, vt, s_cnt):
    _pi[0] += 1
    k.raw("""    s_cmp_lg_u32 s%d, 0
    s_cbranch_scc1 L_f_pi%d
    v_and_b32 v%d, 15, v1
    v_lshlrev_b32 v%d, 2, v%d
    buffer_load_dword v%d, v%d, %s, s%d offen sc1
L_f_pi%d:""" % (s_wave, _pi[0], vt, vt, vt, vt + 1, vt, ws, s_cnt, _pi[0]))


def poll_check_spin(k, name, s_wave, ws, vt, s_cnt):
    k.raw("""    s_cmp_lg_u32 s%d, 0
    s_cbranch_scc1 %s_done
    s_mov_b32 s60, 0
%s_chk:
    s_waitcnt vmcnt(0)
    v_cmp_eq_u32 vcc, 1, v%d
    s_nop 4
    s_cmp_eq_u64 vcc, exec
    s_cbranch_scc1 %s_done
    buffer_load_dword v%d, v%d, %s, s%d offen sc1
    s_add_u32 s60, s60, 1
    s_cmp_lt_u32 s60, 0x40000
    s_cbranch_scc1 %s_chk
    s_waitcnt vmcnt(0)
%s_done:""" % (s_wave, name, name, vt + 1, name, vt + 1, vt, ws, s_cnt, name, name))


def merge(k, main, bg, first=0, last=None):
    if last is None:
        last = len(main)
    ib = 0
    for i, o in enumerate(main):
        if isinstance(o, (str, tuple)):
            emit(k, o)
        else:
            k.items.append(o)
        if first <= i < last:
            upto = len(bg) * (i - first + 1) // (last - first)
            while ib < upto:
                emit(k, bg[ib]); ib += 1
    while ib < len(bg):
        emit(k, bg[ib]); ib += 1


def gen_bcd():
    k = Kernel('bcd_kernel')
    WS, XS, OS = 4, 8, 12
    ws = sr(WS, 4)
    k.I('s_cmp_ge_u32 s2, 256')
    k.I('s_cbranch_scc1 L_f_end')
    load_srds(k, [('ws', WS), ('x', XS), ('out', OS)])
    st = Stamper(k, 2, ws, base=72, tmp=68); st.stamp(True); st.stamp()
    k.I('v_and_b32 v1, 63, v0')
    k.I('v_lshrrev_b32 v2, 6, v0')
    k.I('v_readfirstlane_b32 s16, v2')
    k.I('v_lshlrev_b32 v2, 4, v1')
    k.I('v_add_u32 v3, 4096, v2')
    k.I('s_and_b32 s24, s2, 7')
    k.I('s_lshr_b32 s25, s2, 3')
    if OPT.get('rowmap'):
        k.I('s_lshl_b32 s17, s24, 1')
        k.I('s_lshr_b32 s26, s25, 4')
        k.I('s_add_u32 s17, s17, s26')
        k.I('s_and_b32 s18, s25, 15')
        k.I('s_lshl_b32 s19, s17, 1')
        k.I('s_lshr_b32 s26, s18, 3')
        k.I('s_add_u32 s19, s19, s26')
        k.I('s_and_b32 s20, s18, 7')
    else:
        k.I('s_and_b32 s17, s24, 1')
        k.I('s_lshl_b32 s17, s17, 3')
        k.I('s_and_b32 s26, s25, 7')
        k.I('s_add_u32 s17, s17, s26')
        k.I('s_lshr_b32 s18, s24, 1')
        k.I('s_lshl_b32 s18, s18, 2')
        k.I('s_lshr_b32 s26, s25, 3')
        k.I('s_add_u32 s18, s18, s26')
        k.I('s_lshl_b32 s19, s24, 2')
        k.I('s_and_b32 s26, s25, 3')
        k.I('s_add_u32 s19, s19, s26')
        k.I('s_lshr_b32 s20, s25, 2')
    k.I('s_lshl_b32 s21, s19, 1')
    k.I('s_and_b32 s26, s16, 1')
    k.I('s_add_u32 s21, s21, s26')
    k.I('s_lshl_b32 s22, s20, 1')
    k.I('s_lshr_b32 s26, s16, 1')
    k.I('s_add_u32 s22, s22, s26')
    k.I('s_lshl_b32 s23, s17, 2')
    k.I('s_add_u32 s23, s23, s16')
    k.I('s_lshl_b32 s27, s16, 3')
    k.I('s_lshl_b32 s28, s19, 6')
    k.I('s_add_u32 s28, s28, s27')
    k.I('s_lshl_b32 s28, s28, 10')
    k.I('s_add_u32 s28, s28, 0x%x' % OFF_PQ)
    k.I('s_and_b32 s26, s16, 1')
    k.I('s_lshl_b32 s26, s26, 15')
    k.I('s_add_u32 s29, s28, 32768')
    k.I('s_sub_u32 s29, s29, s26')
    k.I('s_add_u32 s28, s28, s26')
    k.I('s_lshl_b32 s30, s27, 4')
    k.I('s_lshl_b32 s26, s20, 1')
    k.I('s_add_u32 s30, s30, s26')
    k.I('s_lshl_b32 s30, s30, 10')
    k.I('s_add_u32 s30, s30, 0x%x' % OFF_WO)
    k.I('s_lshr_b32 s26, s16, 1')
    k.I('s_lshl_b32 s26, s26, 10')
    k.I('s_add_u32 s64, s30, 1024')
    k.I('s_sub_u32 s64, s64, s26')
    k.I('s_add_u32 s30, s30, s26')
    k.I('s_lshl_b32 s31, s27, 11')
    k.I('s_add_u32 s31, s31, 0x%x' % OFF_KVZ)
    k.I('v_and_b32 v4, 31, v1')
    k.I('v_min_u32 v5, 16, v4')
    k.I('v_lshrrev_b32 v6, 5, v1')
    k.I('v_lshlrev_b32 v7, 5, v6')
    k.I('v_add_u32 v5, v5, v7')
    k.I('v_lshlrev_b32 v5, 5, v5')
    k.I('s_waitcnt lgkmcnt(0)')

    KV = 128
    A_PQ, A_WO = 96, 160
    ACC = 192
    XR = 56

    def b_loads(t):
        ops = ['s_add_u32 s38, s31, %d' % (t * 2048),
               'buffer_load_dwordx4 %s, v5, %s, s38 offen' % (vr(KV + 8 * t, 4), ws),
               'buffer_load_dwordx4 %s, v5, %s, s38 offen offset:16' % (vr(KV + 8 * t + 4, 4), ws)]
        for r in range(2):
            ops.append('buffer_load_dwordx4 %s, %s, %s, %s offen offset:%d' % (
                ar(A_PQ + (t * 2 + r) * 4, 4), 'v2' if t < 4 else 'v3', ws, 's28' if r == 0 else 's29', (t % 4) * 1024))
        ops.append('s_add_u32 s39, s30, %d' % (t * 16384))
        ops.append('s_add_u32 s65, s64, %d' % (t * 16384))
        for n in range(2):
            ops.append('buffer_load_dwordx4 %s, v2, %s, %s offen' % (ar(A_WO + (t * 2 + n) * 4, 4), ws, 's39' if n == 0 else 's65'))
        return ops
    PD = 3
    for t in range(PD):
        for o in b_loads(t):
            k.I(o)
    k.I('s_lshl_b32 s32, s21, 15')
    k.I('s_lshl_b32 s26, s22, 6')
    k.I('s_add_u32 s32, s32, s26')
    k.I('v_lshlrev_b32 v7, 10, v4')
    k.I('v_lshlrev_b32 v8, 3, v6')
    k.I('v_add_u32 v7, v7, v8')
    k.I('s_mul_i32 s33, s18, %d' % (7 * 32768))
    k.I('s_lshl_b32 s34, s16, 13')
    k.I('s_add_u32 s33, s33, s34')
    k.I('s_add_u32 s33, s33, 0x%x' % OFF_WGU)
    k.I('s_mul_i32 s35, s16, %d' % (28 * 1024))
    k.I('s_mul_i32 s36, s20, %d' % (2 * 112 * 1024))
    k.I('s_add_u32 s36, s36, s35')
    k.I('s_add_u32 s36, s36, 0x%x' % OFF_WD)
    k.I('s_lshr_b32 s26, s16, 1')
    k.I('s_mul_i32 s26, s26, %d' % (112 * 1024))
    k.I('s_add_u32 s37, s36, %d' % (112 * 1024))
    k.I('s_sub_u32 s37, s37, s26')
    k.I('s_add_u32 s36, s36, s26')
    k.I('s_lshl_b32 s44, s17, 4')
    k.I('s_add_u32 s44, s44, s18')
    k.I('s_lshl_b32 s44, s44, 7')
    k.I('s_add_u32 s44, s44, 0x%x' % OFF_CNT)
    k.I('s_and_b32 s26, s19, 1')
    k.I('s_lshl_b32 s26, s26, 3')
    k.I('s_add_u32 s26, s26, s20')
    k.I('s_lshr_b32 s57, s19, 1')
    k.I('s_lshl_b32 s62, s57, 11')
    k.I('s_lshl_b32 s63, s26, 2')
    k.I('s_add_u32 s62, s62, s63')
    k.I('s_add_u32 s62, s62, 0x%x' % OFF_CNT)
    k.I('s_lshl_b32 s57, s57, 4')
    k.I('s_add_u32 s57, s57, s26')
    k.I('s_lshl_b32 s57, s57, 7')
    k.I('s_add_u32 s57, s57, 0x%x' % (OFF_CNT + 32768))
    k.I('s_lshl_b32 s63, s17, 11')
    k.I('s_lshl_b32 s26, s18, 2')
    k.I('s_add_u32 s63, s63, s26')
    k.I('s_add_u32 s63, s63, 0x%x' % (OFF_CNT + 32768))
    CS_LDS = 162816
    k.I('v_mov_b32 v8, 0')
    k.I('v_mov_b32 v9, 0')
    k.I('v_mov_b32 v10, 0')
    k.I('v_mov_b32 v11, 0')
    k.I('v_add_u32 v20, %d, v2' % CS_LDS)
    k.I('ds_write_b128 v20, v[8:11]')
    D1 = [[64, 80], [96, 112]]
    KF = [40, 44]
    OF = [48, 52]
    T = 36

    def stageA(t):
        ops = []
        for j in range(4):
            ops.append('v_cvt_pk_bf16_f32 %s, %s, %s' % (vr(KF[t & 1] + j), vr(KV + 8 * t + 2 * j), vr(KV + 8 * t + 2 * j + 1)))
        for r in range(2):
            ops.append('v_mfma_f32_32x32x16_bf16 %s, %s, %s, 0' % (vr(D1[t & 1][r], 16), vr(KF[t & 1], 4), ar(A_PQ + (t * 2 + r) * 4, 4)))
        return ops

    def stageB(t):
        ops = []
        for r in range(2):
            ops.append('v_add_f32 %s, 0x%x, %s' % (vr(T + r), f2u(1e-6), vr(D1[t & 1][r] + 8)))
        for r in range(2):
            ops.append('v_rcp_f32 %s, %s' % (vr(T + r), vr(T + r)))
        for i in range(8):
            for r in range(2):
                d = D1[t & 1][r]
                ops.append('v_mul_f32 %s, %s, %s' % (vr(d + i), vr(T + r), vr(d + i)))
        for r in range(2):
            d = D1[t & 1][r]
            for j in range(4):
                ops.append('v_cvt_pk_bf16_f32 %s, %s, %s' % (vr(OF[r] + j), vr(d + 2 * j), vr(d + 2 * j + 1)))
        for n in range(2):
            for r in range(2):
                acc = vr(ACC + (n * 2 + r) * 16, 16)
                ops.append('v_mfma_f32_32x32x16_bf16 %s, %s, %s, %s' % (acc, ar(A_WO + (t * 2 + n) * 4, 4), vr(OF[r], 4), acc if t else '0'))
        return ops
    for o in stageA(0):
        k.I(o)
    for t in range(8):
        main = (stageA(t + 1) if t + 1 < 8 else []) + stageB(t)
        bg = b_loads(t + PD) if t + PD < 8 else []
        if t == 5:
            bg = ['buffer_load_dwordx2 %s, v7, %s, s32 offen offset:%d' % (vr(XR + 2 * a, 2), sr(XS, 4), a * 16) for a in range(4)]
        merge(k, main, bg)
    st.stamp()
    RB = 98304
    red = Kernel('red')
    kmain, k = k, red
    k.I('s_mul_i32 s38, s16, 12288')
    k.I('s_add_u32 s38, s38, %d' % RB)
    k.I('v_add_u32 v10, s38, v2')
    for tp in range(1, 4):
        for q in range(4):
            k.I('ds_write_b128 v10, %s offset:%d' % (vr(ACC + tp * 16 + q * 4, 4), (tp - 1) * 4096 + q * 1024))
    H = ACC
    for tp in range(1, 4):
        k.I('s_xor_b32 s38, s16, %d' % tp)
        k.I('s_mul_i32 s38, s38, 12288')
        k.I('s_add_u32 s38, s38, %d' % (RB + (tp - 1) * 4096))
        k.I('v_add_u32 %s, s38, v2' % vr(40 + tp))
    XU = 64
    for a_ in range(4):
        for b_ in range(2):
            src = XR + 2 * a_ + b_
            k.I('v_lshlrev_b32 %s, 16, %s' % (vr(XU + 4 * a_ + 2 * b_), vr(src)))
            k.I('v_and_b32 %s, 0xffff0000, %s' % (vr(XU + 4 * a_ + 2 * b_ + 1), vr(src)))
    for i in range(16):
        k.I('v_add_f32 %s, %s, %s' % (vr(H + i), vr(H + i), vr(XU + i)))
    k.I('s_waitcnt lgkmcnt(0)')
    k.I('s_barrier')
    for tp in range(1, 4):
        for q in range(4):
            k.I('ds_read_b128 %s, %s offset:%d' % (vr(H + tp * 16 + q * 4, 4), vr(40 + tp), q * 1024))
    for i in range(16):
        k.I('v_add_f32 %s, %s, %s' % (vr(H + i), vr(H + i), vr(H + 16 + i)))
    for i in range(16):
        k.I('v_add_f32 %s, %s, %s' % (vr(H + 32 + i), vr(H + 32 + i), vr(H + 48 + i)))
    for i in range(16):
        k.I('v_add_f32 %s, %s, %s' % (vr(H + i), vr(H + i), vr(H + 32 + i)))
    HP = 12
    for j in range(8):
        k.I('v_cvt_pk_bf16_f32 %s, %s, %s' % (vr(HP + j), vr(H + 2 * j), vr(H + 2 * j + 1)))
    k.I('s_lshl_b32 s38, s21, 5')
    k.I('s_lshl_b32 s39, s22, 1')
    k.I('s_add_u32 s38, s38, s39')
    k.I('s_lshl_b32 s38, s38, 10')
    k.I('s_add_u32 s38, s38, 0x%x' % OFF_H)
    k.I('buffer_store_dwordx4 %s, v2, %s, s38 offen%s' % (vr(HP, 4), ws, STP()), w=['hst'])
    k.I('buffer_store_dwordx4 %s, v2, %s, s38 offen offset:1024%s' % (vr(HP + 4, 4), ws, STP()), w=['hst'])
    k.I('v_add_f32 v36, %s, %s' % (vr(H), vr(H + 1)))
    k.I('v_mul_f32 v37, %s, %s' % (vr(H), vr(H)))
    k.I('v_fmac_f32 v37, %s, %s' % (vr(H + 1), vr(H + 1)))
    for i in range(2, 16):
        k.I('v_add_f32 v36, v36, %s' % vr(H + i))
        k.I('v_fmac_f32 v37, %s, %s' % (vr(H + i), vr(H + i)))
    for o in xhalf_ops(36, 38) + xhalf_ops(37, 38):
        k.I(o)
    k.I('s_lshl_b32 s38, s22, 14')
    k.I('s_lshl_b32 s39, s21, 8')
    k.I('s_add_u32 s38, s38, s39')
    k.I('s_add_u32 s38, s38, 0x%x' % OFF_STAT)
    k.I('v_lshlrev_b32 v38, 3, v4')
    k.I('buffer_store_dwordx2 v[36:37], v38, %s, s38 offen%s' % (ws, STP()), w=['hst'])
    k = kmain
    REDITEMS = red.items

    def dma(soff, sm0, name):
        ops = []
        for hf in range(2):
            ops.append('s_add_u32 m0, %s, %d' % (sr(sm0), hf * 4096))
            ops.append('s_add_u32 s40, %s, %d' % (sr(soff), hf * 4096))
            for t in range(4):
                ops.append(('buffer_load_dwordx4 v2, %s, s40 offen offset:%d lds' % (ws, t * 1024), name))
        return ops

    def d_ks(f):
        return (f >> 2) * 7 + (f & 3) if f < 16 else ((f - 16) // 3) * 7 + 4 + (f - 16) % 3

    def wd_loads(f_list):
        ops = []
        last = None
        for f in f_list:
            ks = d_ks(f)
            grp, rem = ks // 8, ks % 8
            if grp != last:
                ops.append('s_add_u32 s41, s36, %d' % (grp * 8192))
                ops.append('s_add_u32 s58, s37, %d' % (grp * 8192))
                last = grp
            for n in range(2):
                ops.append('buffer_load_dwordx4 %s, %s, %s, %s offen offset:%d' % (
                    ar((f * 2 + n) * 4, 4), 'v2' if rem < 4 else 'v3', ws, 's41' if n == 0 else 's58', (rem % 4) * 1024))
        return ops
    CSV = 128
    NWD0 = OPT.get('nwd0', (14,))[0]
    pre0 = ['s_mov_b32 s42, s34'] + dma(33, 42, 'W0')
    pre0 += ['s_add_u32 s43, s33, 32768', 's_add_u32 s42, s34, 32768'] + dma(43, 42, 'W1')
    pre1 = ['s_mul_i32 s66, s18, %d' % (7 * 128), 's_mul_i32 s39, s16, %d' % (4 * 112 * 128), 's_add_u32 s66, s66, s39',
            's_add_u32 s66, s66, 0x%x' % OFF_CSG]
    for kg in range(4):
        pre1 += ['s_add_u32 s39, s66, %d' % (kg * 112 * 128), 'buffer_load_dwordx4 %s, v2, %s, s39 offen' % (vr(CSV + 4 * kg, 4), ws)]
    pre1 += ['s_add_u32 s43, s33, 65536', 's_add_u32 s42, s34, 65536'] + dma(43, 42, 'W2')
    merge(k, REDITEMS, pre0 if not OPT.get('nopre0') else [], first=0, last=len(REDITEMS) - 30)
    st.stamp()
    if OPT.get('nopre0'):
        for o in pre0:
            emit(k, o)
    for o in pre1:
        emit(k, o)
    k.need('hst')
    sync_arrive(k, 16, ws, 36, 62, 'L_f_s1')
    st.stamp()
    for j in range(4):
        k.I('v_add_f32 %s, %s, %s' % (vr(CSV + j), vr(CSV + j), vr(CSV + 4 + j)))
        k.I('v_add_f32 %s, %s, %s' % (vr(CSV + 8 + j), vr(CSV + 8 + j), vr(CSV + 12 + j)))
    for j in range(4):
        k.I('v_add_f32 %s, %s, %s' % (vr(CSV + j), vr(CSV + j), vr(CSV + 8 + j)))
    for j in range(4):
        k.I('ds_add_f32 v20, %s offset:%d' % (vr(CSV + j), 4 * j))
    bg2 = wd_loads(range(0, NWD0))
    sync_wait(k, 'L_f_s1', 44, 16, ws, 36, bg2)
    st.stamp()

    X = 128
    for t in range(2, 8):
        k.I('v_add_u32 %s, %d, v2' % (vr(20 + t), 4096 * t))
    VOF = [2, 3] + [20 + t for t in range(2, 8)]
    k.I('s_lshl_b32 s45, s23, 15')
    k.I('s_add_u32 s45, s45, 0x%x' % OFF_H)

    def xload(ks):
        return 'buffer_load_dwordx4 %s, %s, %s, s45 offen offset:%d%s' % (vr(X + 4 * ks, 4), vr(VOF[ks // 4]), ws, (ks % 4) * 1024, LSC())
    XD = OPT.get('xd', (14,))[0]
    for ks in range(XD):
        k.I(xload(ks))
    SP = 104
    k.I('v_lshlrev_b32 v21, 3, v4')
    k.I('v_lshlrev_b32 v28, 17, v6')
    k.I('v_add_u32 v21, v21, v28')
    k.I('s_lshl_b32 s46, s23, 8')
    k.I('s_add_u32 s46, s46, 0x%x' % OFF_STAT)
    stl = []
    for t in range(8):
        stl.append('s_add_u32 s47, s46, %d' % (t * 16384))
        stl.append('buffer_load_dwordx2 %s, v21, %s, s47 offen%s' % (vr(SP + 2 * t, 2), ws, LSC()))
    k.I('s_mul_i32 s48, s23, 112')
    k.I('s_mul_i32 s47, s18, 7')
    k.I('s_add_u32 s48, s48, s47')
    k.I('s_lshl_b32 s48, s48, 10')
    k.I('s_add_u32 s48, s48, 0x%x' % OFF_ACT)
    k.I('s_mul_i32 s50, s19, %d' % (2 * 112 * 1024))
    k.I('s_add_u32 s50, s50, s35')
    k.I('s_add_u32 s50, s50, 0x%x' % OFF_ACT)
    k.I('s_and_b32 s26, s16, 1')
    k.I('s_mul_i32 s26, s26, %d' % (112 * 1024))
    k.I('s_add_u32 s51, s50, %d' % (112 * 1024))
    k.I('s_sub_u32 s51, s51, s26')
    k.I('s_add_u32 s50, s50, s26')
    k.I('v_add_u32 v8, 0x10000, v2')
    k.I('v_lshlrev_b32 v10, 4, v6')
    k.I('v_add_u32 v10, %d, v10' % CS_LDS)
    ACCC = [32, 48]
    D, L = 8, 6
    WR = 224
    CSR = 64
    T = 80
    MEAN, RSTD, NMEAN, NA, A2 = 120, 121, 122, 123, 124

    def wread(c, ks):
        slot = c % 4
        return 'ds_read_b128 %s, %s offset:%d' % (ar(WR + (ks % D) * 4, 4), 'v2' if slot < 2 else 'v8', (slot % 2) * 32768 + ks * 1024)

    def epilogue_ops(S, c):
        ops = []
        for q in range(4):
            ops.append('ds_read_b128 %s, v10 offset:%d' % (vr(CSR + 4 * q, 4), c * 128 + q * 32))
        pre = len(ops)
        for i0 in range(0, 8, 2):
            a = []
            for u, i in enumerate((i0, i0 + 1)):
                t = T + u * 4
                a.append([
                    'v_fma_f32 %s, %s, %s, %s' % (vr(t), vr(NMEAN), vr(CSR + i), vr(S + i)),
                    'v_fma_f32 %s, %s, %s, %s' % (vr(t + 1), vr(NMEAN), vr(CSR + 8 + i), vr(S + 8 + i)),
                    'v_mul_f32 %s, %s, %s' % (vr(t + 2), vr(NA), vr(t)),
                    'v_exp_f32 %s, %s' % (vr(t + 2), vr(t + 2)),
                    'v_mul_f32 %s, %s, %s' % (vr(t), vr(t), vr(t + 1)),
                    'v_add_f32 %s, 1.0, %s' % (vr(t + 2), vr(t + 2)),
                    'v_rcp_f32 %s, %s' % (vr(t + 2), vr(t + 2)),
                    'v_mul_f32 %s, %s, %s' % (vr(t), vr(A2), vr(t)),
                    'v_mul_f32 %s, %s, %s' % (vr(T + 8 + i), vr(t), vr(t + 2)),
                ])
            for x, y in zip(a[0], a[1]):
                ops += [x, y]
            ops.append('v_cvt_pk_bf16_f32 %s, %s, %s' % (vr(T + 16 + i0 // 2), vr(T + 8 + i0), vr(T + 8 + i0 + 1)))
        ops.append('s_add_u32 s49, s48, %d' % (c * 1024))
        ops.append(('buffer_store_dwordx4 %s, v2, %s, s49 offen%s' % (vr(T + 16, 4), ws, STP()), 'ast%d' % c))
        return ops, pre

    wd_plan = {}
    rest = list(range(NWD0, 28))
    wts = [1, 1, 1, 1, 3, 3]
    tot = sum(wts); acc_ = 0; pos = 0
    for c, wgt in zip(range(1, 7), wts):
        acc_ += wgt
        upto = len(rest) * acc_ // tot
        wd_plan[c] = rest[pos:upto]; pos = upto

    def refill(c):
        return ['s_add_u32 s43, s33, %d' % (c * 32768), 's_add_u32 s42, s34, %d' % ((c % 4) * 32768)] + dma(43, 42, 'W%d' % c)

    def is_vm(o):
        return isinstance(o, tuple) or o.startswith('buffer_')

    def place(fill, ops, lo, hi):
        groups, cur = [], []
        for o in ops:
            cur.append(o)
            if is_vm(o):
                groups.append(cur); cur = []
        if cur:
            groups.append(cur)
        for i, g in enumerate(groups):
            fill[lo + i * (hi - lo) // len(groups)] += g

    AR, NR, AD = 128, 10, 8

    def act_load(f):
        ks = d_ks(f)
        grp, rem = ks // 8, ks % 8
        ops = ['s_add_u32 s47, s50, %d' % (grp * 8192), 's_add_u32 s52, s51, %d' % (grp * 8192)]
        for r in range(2):
            ops.append('buffer_load_dwordx4 %s, %s, %s, %s offen offset:%d%s' % (
                vr(AR + ((f % NR) * 2 + r) * 4, 4), 'v2' if rem < 4 else 'v3', ws, 's47' if r == 0 else 's52', (rem % 4) * 1024, LSC()))
        return ops
    DACC = [32, 48, 64, 80]

    def d_mfmas(f):
        mm = []
        for n in range(2):
            for r in range(2):
                acc = vr(DACC[n * 2 + r], 16)
                mm.append('v_mfma_f32_32x32x16_bf16 %s, %s, %s, %s' % (
                    acc, ar((f * 2 + n) * 4, 4), vr(AR + ((f % NR) * 2 + r) * 4, 4), acc if f else '0'))
        return mm

    carry = []

    def body(c):
        nonlocal carry
        S_ = ACCC[c & 1]
        fill = [[] for _ in range(32)]
        post = []
        if c == 0:
            for ks in range(XD, 32):
                fill[ks - XD].append(xload(ks))
            for i, o in enumerate(stl):
                fill[20 + i // 4].append(o)
            for t in range(1, 8):
                post.append('v_add_f32 %s, %s, %s' % (vr(SP), vr(SP), vr(SP + 2 * t)))
                post.append('v_add_f32 %s, %s, %s' % (vr(SP + 1), vr(SP + 1), vr(SP + 2 * t + 1)))
            post += xhalf_ops(SP, SP + 2) + xhalf_ops(SP + 1, SP + 2)
            post += ['v_mul_f32 %s, 0x%x, %s' % (vr(MEAN), f2u(1.0 / 512), vr(SP)),
                     'v_mul_f32 %s, 0x%x, %s' % (vr(SP + 1), f2u(1.0 / 512), vr(SP + 1)),
                     'v_fma_f32 %s, -%s, %s, %s' % (vr(SP + 1), vr(MEAN), vr(MEAN), vr(SP + 1)),
                     'v_max_f32 %s, 0, %s' % (vr(SP + 1), vr(SP + 1)),
                     'v_add_f32 %s, 0x%x, %s' % (vr(SP + 1), f2u(1e-5), vr(SP + 1)),
                     'v_rsq_f32 %s, %s' % (vr(RSTD), vr(SP + 1)),
                     'v_sub_f32 %s, 0, %s' % (vr(NMEAN), vr(MEAN)),
                     'v_mul_f32 %s, 0x%x, %s' % (vr(NA), f2u(-LOG2E), vr(RSTD)),
                     'v_mul_f32 %s, %s, %s' % (vr(A2), vr(RSTD), vr(RSTD))]
        else:
            ops, pre = epilogue_ops(ACCC[1 - (c & 1)], c - 1)
            fill[0] = ops[:pre]
            rest = ops[pre:]
            g0, g1 = 3, 26
            for i, o in enumerate(rest):
                fill[g0 + i * (g1 - g0) // len(rest)].append(o)
            vmops = list(carry) + wd_loads(wd_plan[c])
            carry = []
            if vmops:
                place(fill, vmops, 1, 26)
        for ks in range(32):
            TW = OPT.get('tw', (2,))[0]
            if ks % TW == 0:
                k.touch(ar(WR + ((min(31, ks + TW - 1)) % D) * 4, 4))
            k.I('v_mfma_f32_32x32x16_bf16 %s, %s, %s, %s' % (
                vr(S_, 16), ar(WR + (ks % D) * 4, 4), vr(X + 4 * ks, 4), vr(S_, 16) if ks else '0'))
            if ks == 32 - L and c < 6:
                k.need('W%d' % (c + 1))
                k.I('s_barrier')
                if c + 3 <= 6:
                    r = refill(c + 3)
                    for o in r[:2 + 2 + 4]:
                        fill[ks].append(o) if not is_vm(o) else None
                    first4 = [o for o in r[4:8]]
                    for i, o in enumerate(first4):
                        fill[ks + 1 + i].append(o)
                    carry = r[8:]
            if c == 5 and ks == 8:
                k.need('ast0', 'ast1', 'ast2', 'ast3')
                k.I('s_barrier')
                flag_store(k, 16, ws, 28, 63, 'L_f_fa')
            if c == 6 and ks == 27:
                poll_check_spin(k, 'L_f_sa', 16, ws, 28, 57)
                k.I('s_barrier')
            if c == 6 and ks >= 27:
                for o in act_load(ks - 27):
                    k.I(o)
            if ks + L < 32:
                k.I(wread(c, ks + L))
            elif c < 6:
                k.I(wread(c + 1, ks + L - 32))
            for o in fill[ks]:
                if OPT.get('noepi') and isinstance(o, str) and o.startswith('v_') and c > 0: continue
                if OPT.get('novm') and c > 0 and is_vm(o) and not (isinstance(o, tuple) and o[1].startswith('ast')): continue
                emit(k, o)
            if c == 6 and ks == 14:
                poll_issue(k, 16, ws, 28, 57)
        for o in post:
            emit(k, o)

    k.need('W0')
    k.I('s_waitcnt lgkmcnt(0)')
    k.I('s_barrier')
    for n in range(L):
        k.I(wread(0, n))
    body(0)
    st.stamp()
    for c in range(1, 7):
        body(c)
    st.stamp()
    ops, pre = epilogue_ops(ACCC[0], 6)
    for o in ops:
        emit(k, o)
    for o in act_load(5) + act_load(6) + act_load(7):
        k.I(o)
    st.stamp()

    k.need('ast4', 'ast5', 'ast6')
    k.I('s_barrier')
    k.I('s_add_u32 s63, s63, 32768')
    flag_store(k, 16, ws, 28, 63, 'L_f_fb')
    k.I('s_add_u32 s57, s57, 32768')
    for f in range(16):
        merge(k, d_mfmas(f), act_load(f + AD) if f + AD < 16 else [])
        if f == 9:
            poll_issue(k, 16, ws, 28, 57)
    st.stamp()
    poll_check_spin(k, 'L_f_sb', 16, ws, 28, 57)
    k.I('s_barrier')
    for f in range(16, 16 + AD):
        for o in act_load(f):
            k.I(o)
    for f in range(16, 28):
        merge(k, d_mfmas(f), act_load(f + AD) if f + AD < 28 else [])
    st.stamp()
    k.I('s_mul_i32 s38, s16, 12288')
    k.I('v_add_u32 v10, s38, v2')
    for tp in range(1, 4):
        for q in range(4):
            k.I('ds_write_b128 v10, %s offset:%d' % (vr(DACC[tp] + q * 4, 4), (tp - 1) * 4096 + q * 1024))
    for tp in range(1, 4):
        k.I('s_xor_b32 s38, s16, %d' % tp)
        k.I('s_mul_i32 s38, s38, 12288')
        k.I('s_add_u32 s38, s38, %d' % ((tp - 1) * 4096))
        k.I('v_add_u32 %s, s38, v2' % vr(20 + tp))
    O = DACC[0]
    for j in range(8):
        k.I('v_lshlrev_b32 %s, 16, %s' % (vr(96 + 2 * j), vr(HP + j)))
        k.I('v_and_b32 %s, 0xffff0000, %s' % (vr(96 + 2 * j + 1), vr(HP + j)))
    for i in range(16):
        k.I('v_add_f32 %s, %s, %s' % (vr(O + i), vr(O + i), vr(96 + i)))
    k.I('s_waitcnt lgkmcnt(0)')
    k.I('s_barrier')
    for tp in range(1, 4):
        for q in range(4):
            k.I('ds_read_b128 %s, %s offset:%d' % (vr(DACC[tp] + q * 4, 4), vr(20 + tp), q * 1024))
    for i in range(16):
        k.I('v_add_f32 %s, %s, %s' % (vr(O + i), vr(O + i), vr(DACC[1] + i)))
    for i in range(16):
        k.I('v_add_f32 %s, %s, %s' % (vr(DACC[2] + i), vr(DACC[2] + i), vr(DACC[3] + i)))
    for i in range(16):
        k.I('v_add_f32 %s, %s, %s' % (vr(O + i), vr(O + i), vr(DACC[2] + i)))
    P = 96
    for j in range(8):
        k.I('v_cvt_pk_bf16_f32 %s, %s, %s' % (vr(P + j), vr(O + 2 * j), vr(O + 2 * j + 1)))
    for a in (0, 2):
        b = P + 2 * a
        k.I('v_permlane32_swap_b32 %s, %s' % (vr(b), vr(b + 2)))
        k.I('v_permlane32_swap_b32 %s, %s' % (vr(b + 1), vr(b + 3)))
    k.I('v_lshlrev_b32 v8, 10, v4')
    k.I('v_lshlrev_b32 v9, 4, v6')
    k.I('v_add_u32 v8, v8, v9')
    k.I('buffer_store_dwordx4 %s, v8, %s, s32 offen' % (vr(P, 4), sr(OS, 4)))
    k.I('buffer_store_dwordx4 %s, v8, %s, s32 offen offset:32' % (vr(P + 4, 4), sr(OS, 4)))
    st.stamp(); st.stamp(True)
    if OPT.get('xcc'):
        b = st.base + 2 * st.n
        k.I('s_getreg_b32 s%d, hwreg(HW_REG_XCC_ID)' % b)
        k.I('s_getreg_b32 s%d, hwreg(HW_REG_HW_ID)' % (b + 1))
        st.n += 1
    st.flush()
    k.label('L_f_end')
    k.I('s_endpgm')
    return k, dict(lds=163840, grid=256, block=256)


if __name__ == '__main__':
    gen1.STAMPS = len(sys.argv) > 2 and sys.argv[2] == 'stamps'
    for o in sys.argv[3:]:
        if '=' in o:
            kk_, vv_ = o.split('=')
            gen1.OPT[kk_] = tuple(int(x) for x in vv_.split(','))
        else:
            gen1.OPT[o] = True
    gens = [('qkv_kernel', gen_a8), ('bcd_kernel', gen_bcd)]
    ks = []
    for label, g in gens:
        kk, cc = g()
        ks.append((label, kk, cc))
        print(label, kk.stats(), kk.maxreg())
    open(sys.argv[1], 'w').write(wrap(ks))
```

```python
import sys
from asmgen import Kernel
import gen1
from gen1 import *
from gen2 import Sched, xhalf_ops
from gen3 import emit, ln_phi_ops


def APOL():
    return ' sc1' if OPT.get('asc1') else (' nt' if OPT.get('ant') else '')


class Multi:
    def __init__(self, parts):
        self.parts = parts
    def finish(self):
        return '\n'.join(p.finish() for p in self.parts)
    def maxreg(self):
        mx = {'v': -1, 'a': -1, 's': -1}
        for p in self.parts:
            m = p.maxreg()
            for t in mx:
                mx[t] = max(mx[t], m[t])
        return mx
    def stats(self):
        return [p.stats() for p in self.parts]


def pair_signal(flag_lds_sgpr, vtmp, vone):
    return ['v_mov_b32 %s, %s' % (vr(vtmp), sr(flag_lds_sgpr)), 'v_mov_b32 %s, 1' % vr(vone),
            'ds_write_b32 %s, %s' % (vr(vtmp), vr(vone))]


def pair_wait(k, name, flag_lds_sgpr, vtmp, vval, stmp):
    k.I('v_mov_b32 %s, %s' % (vr(vtmp), sr(flag_lds_sgpr)))
    k.label(name)
    k.I('ds_read_b32 %s, %s' % (vr(vval), vr(vtmp)))
    k.I('v_readfirstlane_b32 %s, %s' % (sr(stmp), vr(vval)))
    k.I('s_cmp_eq_u32 %s, 0' % sr(stmp))
    k.I('s_cbranch_scc1 %s' % name)


def gen_a8():
    kp = Kernel('a_pro')
    k = kp
    XS, WQ, WS, PA, PB, DB = 4, 8, 12, 16, 20, 24
    ws = sr(WS, 4)
    k.I('s_cmp_ge_u32 s2, 256')
    k.I('s_cbranch_scc1 L_a_end')
    load_srds(k, [('x', XS), ('wqkv', WQ), ('ws', WS), ('dbg', DB)])
    k.I('s_load_dwordx2 s[40:41], s[0:1], %d' % KA['wo'])
    k.I('s_load_dwordx4 s[44:47], s[0:1], %d' % KA['wg'])
    k.I('s_load_dwordx2 s[42:43], s[0:1], %d' % KA['wd'])
    if gen1.STAMPS:
        k.I('s_memrealtime s[84:85]')
        k.I('s_memtime s[86:87]')
    k.I('v_and_b32 v1, 63, v0')
    k.I('v_lshrrev_b32 v2, 6, v0')
    k.I('v_readfirstlane_b32 s27, v2')
    k.I('s_mov_b32 s39, s27')
    k.I('s_mov_b32 s27, 0x00020000')
    k.I('s_and_b32 s28, s39, 3')
    k.I('s_and_b32 s34, s2, 7')
    k.I('s_lshr_b32 s35, s2, 3')
    k.I('s_and_b32 s32, s34, 3')
    k.I('s_lshl_b32 s32, s32, 3')
    k.I('s_and_b32 s36, s35, 7')
    k.I('s_add_u32 s32, s32, s36')
    k.I('s_lshr_b32 s33, s34, 2')
    k.I('s_lshl_b32 s33, s33, 2')
    k.I('s_lshr_b32 s36, s35, 3')
    k.I('s_add_u32 s33, s33, s36')
    k.I('s_and_b32 s29, s28, 1')
    k.I('s_lshr_b32 s30, s28, 1')
    k.I('s_xor_b32 s31, s29, s30')
    k.I('s_mov_b32 s70, 0x%x' % ONES_BF16)
    k.I('s_mov_b32 s81, 0x%x' % f2u(1e-6))
    if OPT.get('dbgt'):
        k.I('s_memrealtime s[90:91]')
    k.I('s_cmp_ge_u32 s39, 4')
    k.I('s_cbranch_scc1 L_a_q')

    X, WR = 112, 80
    LA = 4
    E = 131072
    E_ST = E
    E_CS = E + 1024
    E_TB = E + 4096
    E_FL = E + 3072
    E_KV = E + 8192
    WSLOT = {('k', 0): 1, ('k', 1): 3, ('k', 2): 5, ('k', 3): 7, ('v', 0): 0, ('v', 1): 1, ('v', 2): 2, ('v', 3): 3,
             ('q', 0): 4, ('q', 1): 5, ('q', 2): 6, ('q', 3): 7}
    XA = 16
    WE, WO_, WE2, WO2 = 12, 13, 14, 15
    MEAN, RSTD, CK, CV, T0 = 2, 3, 4, 5, 6
    LN16 = 7

    def common_setup(k, need_w_addr=True):
        k.I('v_and_b32 v2, 31, v1')
        k.I('s_lshl_b32 s37, s29, 5')
        k.I('v_add_u32 v2, s37, v2')
        k.I('v_lshlrev_b32 v2, 8, v2')
        k.I('v_lshrrev_b32 v3, 5, v1')
        k.I('v_and_b32 v4, 15, v1')
        k.I('v_xor_b32 v4, v3, v4')
        k.I('v_lshlrev_b32 v4, 4, v4')
        k.I('s_lshl_b32 s37, s31, 5')
        k.I('v_xor_b32 v4, s37, v4')
        for s in range(8):
            k.I('v_xor_b32 v5, %d, v4' % (32 * s))
            k.I('v_add_u32 %s, v2, v5' % vr(XA + s))
        k.I('v_bfe_u32 v4, v1, 2, 2')
        k.I('v_lshl_add_u32 v4, v3, 3, v4')
        k.I('v_lshlrev_b32 v4, 7, v4')
        k.I('v_bfe_u32 v5, v1, 4, 1')
        k.I('v_lshlrev_b32 v5, 1, v5')
        k.I('v_bfe_u32 v6, v1, 1, 1')
        k.I('v_add_u32 v5, v5, v6')
        k.I('s_lshl_b32 s37, s30, 2')
        k.I('v_add_u32 v5, s37, v5')
        k.I('v_bfe_u32 v6, v1, 3, 1')
        k.I('v_lshlrev_b32 v6, 2, v6')
        k.I('v_xor_b32 v5, v5, v6')
        k.I('v_lshlrev_b32 v5, 4, v5')
        k.I('v_and_b32 v6, 1, v1')
        k.I('v_lshlrev_b32 v6, 3, v6')
        k.I('v_add3_u32 v4, v4, v5, v6')
        k.I('s_lshl_b32 s37, s31, 11')
        k.I('v_add_u32 %s, s37, v4' % vr(WE))
        k.I('s_xor_b32 s37, s37, 2048')
        k.I('v_add_u32 %s, s37, v4' % vr(WO_))
        k.I('v_add_u32 %s, 0x10000, %s' % (vr(WE2), vr(WE)))
        k.I('v_add_u32 %s, 0x10000, %s' % (vr(WO2), vr(WO_)))
        k.I('v_bfe_u32 v5, v1, 4, 1')
        k.I('v_and_b32 v6, 1, v1')
        k.I('v_cmp_eq_u32 vcc, v5, v6')
        k.I('v_mov_b32 v5, s70')
        k.I('v_cndmask_b32 v5, 0, v5, vcc')
        for j in range(4):
            k.I('v_accvgpr_write_b32 a%d, v5' % (4 + j))
        k.I('s_lshl_b32 s72, s29, 1')
        k.I('s_add_u32 s73, s72, s30')
        k.I('s_lshl_b32 s73, s73, 8')
        k.I('s_add_u32 s73, s73, %d' % E_ST)
        k.I('s_xor_b32 s74, s73, 256')
        k.I('s_lshl_b32 s75, s30, 1')
        k.I('s_add_u32 s75, s75, s29')
        k.I('s_lshl_b32 s75, s75, 7')
        k.I('s_add_u32 s75, s75, %d' % E_CS)
        k.I('s_xor_b32 s76, s75, 128')
        k.I('s_lshl_b32 s77, s39, 8')
        k.I('s_add_u32 s77, s77, %d' % E_TB)
        k.I('s_lshl_b32 s40, s28, 2')
        k.I('s_add_u32 s40, s40, %d' % E_FL)
        k.I('s_xor_b32 s41, s40, 4')
        k.I('v_and_b32 v0, 31, v1')
        k.I('v_lshlrev_b32 v0, 2, v0')
        k.I('v_and_b32 v26, 16, v1')
        k.I('v_cmp_ne_u32 s[82:83], 0, v26')
        k.I('v_lshlrev_b32 %s, 4, v1' % vr(LN16))

    def xread(n):
        c, s = n // 8, n % 8
        return 'ds_read_b128 %s, %s offset:%d' % (vr(X + 4 * n, 4), vr(XA + s), (c % 2) * 32768)

    def wreads(part, ks):
        c, s = ks // 8, ks % 8
        slot = WSLOT[(part, c)]
        a = ((WE, WO_) if slot < 4 else (WE2, WO2))[s & 1]
        off = (slot % 4) * 16384 + (s & ~1) * 2048
        return ['ds_read_b64_tr_b16 %s, %s offset:%d' % (vr(WR + 4 * s, 2), vr(a), off),
                'ds_read_b64_tr_b16 %s, %s offset:%d' % (vr(WR + 4 * s + 2, 2), vr(a), off + 512)]

    def stats_finish_ops():
        return ['v_lshlrev_b32 v26, 1, v0', 'v_add_u32 v27, s74, v26', 'v_add_u32 v26, s73, v26',
                'ds_read_b64 v[24:25], v26', 'ds_read_b64 v[28:29], v27',
                'v_add_f32 v24, v24, v28', 'v_add_f32 v25, v25, v29',
                'v_mul_f32 %s, 0x%x, v24' % (vr(MEAN), f2u(1.0 / 512)),
                'v_mul_f32 v25, 0x%x, v25' % f2u(1.0 / 512),
                'v_fma_f32 v25, -%s, %s, v25' % (vr(MEAN), vr(MEAN)),
                'v_max_f32 v25, 0, v25', 'v_add_f32 v25, 0x%x, v25' % f2u(1e-5), 'v_rsq_f32 %s, v25' % vr(RSTD)]

    kk = Kernel('a_kv')
    k = kk
    st = Stamper(k, 1, ws, base=88, tmp=40)
    ACK, ACV = 48, 64
    MN, RS = 16, 32
    k.I('s_lshl_b32 s38, s2, 2')
    k.I('s_add_u32 s38, s38, s28')
    k.I('s_mov_b32 s19, 0x00020000')
    k.I('s_mov_b32 s23, 0x00020000')
    if not OPT.get('nocode'):
        k.I('s_getpc_b64 s[34:35]')
        k.label('L_a_pc')
        k.I('s_sub_u32 s34, s34, L_a_pc-qkv_kernel')
        k.I('s_subb_u32 s35, s35, 0')
        k.I('s_lshr_b32 s36, s2, 3')
        k.I('s_lshl_b32 s36, s36, 2')
        k.I('s_add_u32 s36, s36, s28')
        k.I('s_lshl_b32 s36, s36, 10')
        k.I('v_lshlrev_b32 v8, 4, v1')
        k.I('v_add_u32 v8, s36, v8')
        k.I('v_min_u32 v8, L_text_end-qkv_kernel-4, v8')
        k.I('global_load_dword v239, v8, s[34:35]')
    k.I('s_waitcnt lgkmcnt(0)')
    prep_decode(k)
    common_setup(k)
    for j in range(4):
        k.I('v_accvgpr_write_b32 a%d, s70' % j)
    k.I('s_lshl_b32 s37, s33, 2')
    k.I('s_add_u32 s37, s37, s28')
    k.I('s_lshl_b32 s37, s37, 11')
    k.I('s_add_u32 s71, s37, 0x%x' % OFF_KVZ)
    k.I('s_lshl_b32 s78, s33, 2')
    if OPT.get('touch'):
        k.I('s_and_b32 s34, s2, 7')
        k.I('s_lshr_b32 s35, s2, 3')
        k.I('s_and_b32 s36, s34, 3')
        k.I('s_lshl_b32 s36, s36, 19')
        k.I('s_lshl_b32 s37, s35, 14')
        k.I('s_add_u32 s36, s36, s37')
        k.I('s_lshl_b32 s37, s28, 12')
        k.I('s_add_u32 s36, s36, s37')
        k.I('v_lshlrev_b32 v8, 4, v1')
        for t in range(4):
            k.I('buffer_load_dword %s, v8, %s, s36 offen offset:%d' % (vr(220 + t), sr(XS, 4), t * 1024))
        k.I('v_lshrrev_b32 v9, 5, v1')
        k.I('s_movk_i32 s37, 3072')
        k.I('v_mul_lo_u32 v9, v9, s37')
        k.I('v_and_b32 v10, 31, v1')
        k.I('v_lshl_add_u32 v9, v10, 4, v9')
        k.I('s_lshl_b32 s35, s35, 4')
        k.I('s_lshl_b32 s37, s28, 2')
        k.I('s_add_u32 s35, s35, s37')
        k.I('s_mul_i32 s35, s35, 3072')
        k.I('s_lshr_b32 s34, s34, 2')
        k.I('s_lshl_b32 s34, s34, 9')
        k.I('s_add_u32 s35, s35, s34')
        for hh in range(2):
            for p in range(3):
                k.I('s_add_u32 s34, s35, %d' % (hh * 2 * 3072))
                k.I('buffer_load_dword %s, v9, %s, s34 offen offset:%d' % (vr(224 + hh * 3 + p), sr(WQ, 4), p * 1024))
        k.I('v_lshrrev_b32 v10, 3, v1')
        k.I('v_mul_lo_u32 v10, v10, s50')
        k.I('v_and_b32 v9, 7, v1')
        k.I('v_lshl_add_u32 v10, v9, 4, v10')
        k.I('s_lshl_b32 s36, s50, 3')
        k.I('s_mov_b32 s34, s48')
        k.I('s_mov_b32 s35, s49')
        for t in range(4):
            k.I('buffer_load_dword %s, v10, %s, s34 offen' % (vr(230 + t), sr(PA, 4)))
            k.I('buffer_load_dword %s, v10, %s, s35 offen' % (vr(234 + t), sr(PB, 4)))
            k.I('s_add_u32 s34, s34, s36')
            k.I('s_add_u32 s35, s35, s36')
    k.I('v_lshlrev_b32 v8, 2, v1')
    k.I('v_add_u32 v8, %d, v8' % E_FL)
    k.I('v_mov_b32 v9, 0')
    k.I('v_cmp_gt_u32 vcc, 16, v1')
    k.I('s_and_saveexec_b64 s[60:61], vcc')
    k.I('ds_write_b32 v8, v9')
    k.I('s_mov_b64 exec, s[60:61]')
    k.I('s_waitcnt lgkmcnt(0)')
    S = Sched(64)
    GS = [0, 8, 16, 24, 32, 48]
    pre = ['s_barrier']
    for n in range(LA):
        pre += [xread(n)] + wreads('k', n)
    for g in range(1, 6):
        S.at(GS[g] - LA - 1, ['s_barrier'])
    S.at(47, ['s_barrier'])
    S.at(62, ['s_barrier'])
    for n in range(64):
        part = 'kv'[n // 32]
        s = n % 8
        m = n + LA
        if m < 64:
            if m == 16:
                S.at(n, ['v_add_u32 %s, 0x10000, %s' % (vr(XA + t), vr(XA + t)) for t in range(8)])
            S.at(n, ([xread(m)] if m < 32 else []) + wreads('kv'[m // 32], m % 32))
        if s % 2 == 0:
            ca = ar(8 + 4 * (n // 32), 4)
            S.at(n, ['v_mfma_f32_16x16x32_bf16 %s, a[4:7], %s, %s' % (ca, vr(WR + 4 * s, 4), '0' if n % 32 == 0 else ca)])

    def lane_form(dst, a0, tmp):
        return ['v_accvgpr_read_b32 %s, a%d' % (vr(dst), a0), 'v_accvgpr_read_b32 %s, a%d' % (vr(tmp), a0 + 1),
                'v_cndmask_b32 %s, %s, %s, s[82:83]' % (vr(dst), vr(dst), vr(tmp))]
    S.at(31, lane_form(CK, 8, 27) + ['v_add_u32 v26, s75, v0', 'ds_write_b32 v26, %s' % vr(CK), 's_waitcnt lgkmcnt(0)'])
    S.at(33, ['s_barrier', 'v_add_u32 v26, s76, v0', 'ds_read_b32 v30, v26'] + stats_finish_ops() +
         ['v_add_f32 %s, %s, v30' % (vr(CK), vr(CK)),
          'v_add_u32 v26, s77, v0', 'ds_write_b32 v26, %s' % vr(MEAN), 'ds_write_b32 v26, %s offset:128' % vr(RSTD),
          'v_lshrrev_b32 v26, 5, v1', 'v_lshlrev_b32 v26, 4, v26', 'v_add_u32 %s, s77, v26' % vr(T0)])
    rd = []
    for a in range(4):
        rd.append('ds_read_b128 %s, %s offset:%d' % (vr(MN + 4 * a, 4), vr(T0), a * 32))
        rd.append('ds_read_b128 %s, %s offset:%d' % (vr(RS + 4 * a, 4), vr(T0), 128 + a * 32))
    S.at(34, rd)
    ke = []
    for i in range(0, 16, 2):
        ke += ln_phi_ops([ACK + i, ACK + i + 1], [MN + i, MN + i + 1], [CK, CK], [RS + i, RS + i + 1], [8, 9])
        ke.append('v_cvt_pk_bf16_f32 %s, %s, %s' % (vr(ACK + i // 2), vr(ACK + i), vr(ACK + i + 1)))
    S.spread(36, 61, ke)
    if OPT.get('touch2'):
        tp = ['s_lshr_b32 s35, s2, 3', 's_lshl_b32 s35, s35, 4', 's_lshl_b32 s34, s28, 2', 's_add_u32 s35, s35, s34',
              's_mul_i32 s35, s35, 3072', 's_and_b32 s34, s2, 7', 's_lshr_b32 s34, s34, 2', 's_lshl_b32 s34, s34, 9',
              's_add_u32 s35, s35, s34',
              'v_lshrrev_b32 v9, 5, v1', 'v_mul_u32_u24 v9, 0xc00, v9', 'v_and_b32 v8, 31, v1', 'v_lshl_add_u32 v9, v8, 4, v9']
        for hh in range(2):
            tp.append('s_add_u32 s34, s35, %d' % (hh * 2 * 3072))
            tp.append('buffer_load_dword %s, v9, %s, s34 offen offset:2048' % (vr(64 + hh * 2), sr(WQ, 4)))
            tp.append('buffer_load_dword %s, v9, %s, s34 offen' % (vr(65 + hh * 2), sr(WQ, 4)))
        if OPT.get('touch3'):
            tp += ['v_lshrrev_b32 v9, 3, v1', 'v_mul_lo_u32 v9, v9, s50', 'v_and_b32 v8, 7, v1', 'v_lshl_add_u32 v9, v8, 4, v9',
                   's_lshl_b32 s36, s50, 3', 's_mov_b32 s34, s48', 's_mov_b32 s35, s49']
            for t in range(4):
                tp.append('buffer_load_dword %s, v9, %s, s34 offen' % (vr(68 + t), sr(PA, 4)))
                tp.append('buffer_load_dword %s, v9, %s, s35 offen' % (vr(72 + t), sr(PB, 4)))
                tp.append('s_add_u32 s34, s34, s36')
                tp.append('s_add_u32 s35, s35, s36')
        S.spread(OPT.get('tpos', (1,))[0], OPT.get('tpos', (1,))[0] + 14, tp)
    S.at(46, ['v_mov_b32 v6, 0', 'buffer_load_dword v11, v6, %s, s78 offen sc1' % sr(DB, 4)])
    pd = ['v_lshrrev_b32 v10, 3, v1', 'v_mul_lo_u32 v10, v10, s50', 'v_and_b32 v6, 7, v1', 'v_lshlrev_b32 v6, 4, v6',
          'v_add_u32 v10, v10, v6', 's_lshl_b32 s80, s50, 3', 's_lshl_b32 s79, s28, 13']
    for t in range(8):
        base = 's48' if t < 4 else 's49'
        pd.append('s_add_u32 m0, s79, %d' % (t * 1024))
        pd.append(('buffer_load_dwordx4 v10, %s, %s offen lds' % (sr(PA if t < 4 else PB, 4), base), 'prep'))
        pd.append('s_add_u32 %s, %s, s80' % (base, base))
    S.spread(48, 61, pd)
    for o in pre:
        emit(k, o)
    st.stamp()
    for n in range(64):
        part, ks = n // 32, n % 32
        acc = vr([ACK, ACV][part], 16)
        if n % 2 == 0:
            k.touch(vr(WR + 4 * ((n + 1) % 8), 4))
            if part == 0:
                k.touch(vr(X + 4 * (ks + 1), 4))
        k.I('v_mfma_f32_32x32x16_bf16 %s, %s, %s, %s' % (acc, vr(X + 4 * ks, 4), vr(WR + 4 * (n % 8), 4), acc if ks else '0'))
        for o in S.slots[n]:
            emit(k, o)
        if n in (31,):
            st.stamp()
    st.stamp()
    TT = ACK + 8
    for o in lane_form(CV, 12, TT) + ['v_add_u32 %s, s75, v0' % vr(TT), 'ds_write_b32 %s, %s offset:512' % (vr(TT), vr(CV))] + \
            pair_signal(40, TT + 1, TT + 2):
        emit(k, o)
    pair_wait(k, 'L_a_pw0', 41, TT + 1, TT + 2, 79)
    for o in ['v_add_u32 %s, s76, v0' % vr(TT), 'ds_read_b32 %s, %s offset:512' % (vr(TT + 1), vr(TT)),
              'v_add_f32 %s, %s, %s' % (vr(CV), vr(CV), vr(TT + 1))]:
        emit(k, o)
    for i in range(16):
        k.I('v_fma_f32 %s, -%s, %s, %s' % (vr(ACV + i), vr(MN + i), vr(CV), vr(ACV + i)))
    for i in range(16):
        k.I('v_mul_f32 %s, %s, %s' % (vr(ACV + i), vr(RS + i), vr(ACV + i)))
    for j in range(8):
        k.I('v_cvt_pk_bf16_f32 %s, %s, %s' % (vr(ACV + j), vr(ACV + 2 * j), vr(ACV + 2 * j + 1)))
    DKV, DZ = 16, 32
    k.I('v_mfma_f32_32x32x16_bf16 %s, %s, %s, 0' % (vr(DKV, 16), vr(ACK, 4), vr(ACV, 4)))
    k.I('v_mfma_f32_32x32x16_bf16 %s, %s, a[0:3], 0' % (vr(DZ, 16), vr(ACK, 4)))
    k.I('v_mfma_f32_32x32x16_bf16 %s, %s, %s, %s' % (vr(DKV, 16), vr(ACK + 4, 4), vr(ACV + 4, 4), vr(DKV, 16)))
    k.I('v_mfma_f32_32x32x16_bf16 %s, %s, a[0:3], %s' % (vr(DZ, 16), vr(ACK + 4, 4), vr(DZ, 16)))
    for o in ['v_and_b32 %s, 16, v1' % vr(TT), 'v_lshlrev_b32 %s, 7, %s' % (vr(TT), vr(TT)),
              'v_lshrrev_b32 %s, 5, v1' % vr(TT + 1), 'v_lshlrev_b32 %s, 10, %s' % (vr(TT + 1), vr(TT + 1)),
              's_lshl_b32 s79, s30, 1', 's_add_u32 s79, s79, s29', 's_lshl_b32 s79, s79, 12', 's_add_u32 s79, s79, %d' % E_KV,
              'v_add3_u32 %s, %s, %s, s79' % (vr(TT), vr(TT), vr(TT + 1)),
              'v_and_b32 %s, 15, v1' % vr(TT + 1), 'v_lshl_add_u32 %s, %s, 5, %s' % (vr(TT + 2), vr(TT + 1), vr(TT)),
              's_add_u32 s40, s40, 16', 's_add_u32 s41, s41, 16']:
        emit(k, o)
    for j in range(8):
        k.I('v_cndmask_b32 %s, %s, %s, s[82:83]' % (vr(DKV + j), vr(DKV + j), vr(DKV + 8 + j)))
    for j in range(8):
        k.I('v_cndmask_b32 %s, %s, %s, s[82:83]' % (vr(DZ + j), vr(DZ + j), vr(DZ + 8 + j)))
    for o in ['ds_write_b128 %s, %s' % (vr(TT + 2), vr(DKV, 4)), 'ds_write_b128 %s, %s offset:16' % (vr(TT + 2), vr(DKV + 4, 4)),
              'v_cmp_eq_u32 vcc, 0, %s' % vr(TT + 1), 's_and_saveexec_b64 s[60:61], vcc',
              'ds_write_b128 %s, %s offset:512' % (vr(TT), vr(DZ, 4)), 'ds_write_b128 %s, %s offset:528' % (vr(TT), vr(DZ + 4, 4)),
              's_mov_b64 exec, s[60:61]'] + pair_signal(40, TT + 1, TT + 2) + \
            ['s_lshl_b32 s79, s30, 13', 's_lshl_b32 s80, s29, 11', 's_add_u32 s79, s79, s80', 's_add_u32 s79, s79, %d' % E_KV]:
        emit(k, o)
    pair_wait(k, 'L_a_pw1', 41, TT + 1, TT + 2, 80)
    k.I('v_lshlrev_b32 %s, 2, v1' % vr(TT))
    k.I('v_add_u32 %s, s79, %s' % (vr(TT + 1), vr(TT)))
    for half in range(2):
        for ch in range(3):
            d = 16 + (half * 3 + ch) * 2
            off = half * 1024 + ch * 256
            k.I('ds_read_b32 %s, %s offset:%d' % (vr(d), vr(TT + 1), off))
            k.I('ds_read_b32 %s, %s offset:%d' % (vr(d + 1), vr(TT + 1), off + 4096))
    for half in range(2):
        for ch in range(3):
            d = 16 + (half * 3 + ch) * 2
            k.I('v_add_f32 %s, %s, %s' % (vr(d), vr(d), vr(d + 1)))
    k.I('v_readfirstlane_b32 s79, v11')
    k.I('s_cmp_eq_u32 s79, 0')
    k.I('s_cbranch_scc1 L_a_spin')
    k.label('L_a_go')
    for half in range(2):
        for ch in range(2):
            d = 16 + (half * 3 + ch) * 2
            k.I('buffer_atomic_add_f32 %s, %s, %s, s71 offen offset:%d' % (vr(d), vr(TT), ws, half * 1024 + ch * 256))
    k.I('v_cmp_gt_u32 vcc, 8, v1')
    k.I('s_and_saveexec_b64 s[60:61], vcc')
    for half in range(2):
        d = 16 + (half * 3 + 2) * 2
        k.I('buffer_atomic_add_f32 %s, %s, %s, s71 offen offset:%d' % (vr(d), vr(TT), ws, half * 1024 + 512))
    k.I('s_mov_b64 exec, s[60:61]')
    st.stamp()
    for o in ['v_bfe_u32 v16, v1, 2, 2', 'v_lshrrev_b32 v17, 5, v1', 'v_lshl_add_u32 v16, v17, 2, v16', 'v_lshlrev_b32 v16, 7, v16',
              'v_and_b32 v17, 3, v1', 'v_lshl_add_u32 v16, v17, 3, v16', 'v_bfe_u32 v17, v1, 4, 1',
              's_cmp_eq_u32 s68, 1', 's_cselect_b32 s79, 12, 5', 's_cselect_b32 s60, 32, 64', 's_cselect_b32 s61, 64, 2048',
              's_cselect_b32 s62, 11, 12', 's_lshl_b32 s62, 1, s62',
              'v_lshlrev_b32 v17, s79, v17', 's_lshl_b32 s80, s28, 13', 'v_add3_u32 v16, v16, v17, s80',
              'v_add_u32 v17, s60, v16', 'v_add_u32 v18, s61, v16', 'v_add_u32 v19, s61, v17']:
        k.I(o)
    PAD = [16, 17, 18, 19]
    for f in range(4):
        k.I('v_add_u32 %s, s62, %s' % (vr(20 + f), vr(PAD[f])))
    PAD += [20, 21, 22, 23]
    PF = X
    k.need('prep')
    for f in range(8):
        k.I('ds_read_b64_tr_b16 %s, %s' % (vr(PF + 4 * f, 2), vr(PAD[f])))
        k.I('ds_read_b64_tr_b16 %s, %s offset:1024' % (vr(PF + 4 * f + 2, 2), vr(PAD[f])))
    for f in range(8):
        k.I('buffer_store_dwordx4 %s, %s, %s, %s offen%s' % (vr(PF + 4 * f, 4), vr(LN16), ws, sr(51 + f), APOL()))
        ca = ar(8 + 4 * (f & 1), 4) if False else None
    for f in range(8):
        ca = vr(32 + 4 * (f & 3), 4)
        k.I('v_mfma_f32_16x16x32_bf16 %s, a[4:7], %s, %s' % (ca, vr(PF + 4 * f, 4), '0' if f < 4 else ca))
    for c in range(4):
        k.I('v_cndmask_b32 %s, %s, %s, s[82:83]' % (vr(48 + c), vr(32 + 4 * c), vr(33 + 4 * c)))
        k.I('buffer_store_dword %s, v0, %s, s59 offen offset:%d' % (vr(48 + c), ws, c * 128))
    if gen1.STAMPS:
        k.I('s_mov_b32 s88, s88') if False else None
        k.I('v_lshl_add_u32 v4, s39, 6, v1')
        st.tid = 'v4'
        st.stamp(); st.stamp(True)
        flush_stamps(k, st, ws, 1)
    if OPT.get('dbgt'):
        dbg_time(k, 24, 90, 8, 28)
    k.label('L_a_end')
    k.I('s_endpgm')
    k.raw('''L_a_spin:
    s_sleep 2
    v_mov_b32 v6, 0
    buffer_load_dword v11, v6, s[%d:%d], s78 offen sc1
    s_waitcnt vmcnt(0)
    v_readfirstlane_b32 s79, v11
    s_nop 3
    s_cmp_eq_u32 s79, 0
    s_cbranch_scc1 L_a_spin
    s_branch L_a_go
''' % (DB, DB + 3))

    kq = Kernel('a_q')
    k = kq
    k.label('L_a_q')
    stq = Stamper(k, 5, ws, base=88, tmp=40)
    ACQ = 48
    k.I('s_lshl_b32 s34, s28, 12')
    k.I('s_lshl_b32 s35, s32, 16')
    k.I('s_mul_i32 s36, s28, %d' % (32 * 3072))
    k.I('s_lshl_b32 s37, s33, 7')
    k.I('s_add_u32 s36, s36, s37')
    k.I('s_add_u32 s38, s32, s33')
    if OPT.get('norot'):
        k.I('s_mov_b32 s38, 0')
    for c in range(4):
        k.I('s_add_u32 s37, s38, %d' % c)
        k.I('s_and_b32 s37, s37, 3')
        k.I('s_lshl_b32 %s, s37, 8' % sr(60 + c))
        k.I('s_add_u32 %s, %s, s35' % (sr(60 + c), sr(60 + c)))
        k.I('s_mul_i32 %s, s37, %d' % (sr(64 + c), 128 * 3072))
        k.I('s_add_u32 %s, %s, s36' % (sr(64 + c), sr(64 + c)))
    XV = [32, 33, 34, 35]
    WV = [8, 9, 10, 11]
    k.I('v_lshrrev_b32 v2, 4, v1')
    k.I('v_and_b32 v3, 15, v1')
    k.I('s_lshl_b32 s37, s28, 4')
    for j in range(4):
        k.I('v_add_u32 v4, %d, v2' % (4 * j))
        k.I('v_xor_b32 v5, v3, v4')
        k.I('v_lshlrev_b32 v5, 4, v5')
        k.I('v_add_u32 v4, s37, v4')
        k.I('v_lshlrev_b32 v4, 10, v4')
        k.I('v_add_u32 v4, v4, v5')
        k.I('v_subrev_u32 %s, %d, v4' % (vr(XV[j]), j * 1024))
    k.I('v_lshrrev_b32 v4, 3, v1')
    k.I('s_movk_i32 s37, 3072')
    k.I('v_mul_lo_u32 v4, v4, s37')
    k.I('v_and_b32 v5, 1, v2')
    k.I('v_lshlrev_b32 v5, 2, v5')
    k.I('v_and_b32 v6, 7, v1')
    k.I('v_xor_b32 v5, v5, v6')
    k.I('v_lshlrev_b32 v5, 4, v5')
    k.I('v_add_u32 v8, v4, v5')
    for j in range(1, 4):
        k.I('v_add_u32 %s, %d, v8' % (vr(WV[j]), j * (8 * 3072 - 1024)))
    k.I('v_lshlrev_b32 %s, 4, v1' % vr(LN16))
    for j in range(4):
        k.I('v_mov_b32 %s, 0' % vr(40 + j))
    k.I('s_lshl_b32 s37, s33, 2')
    k.I('s_add_u32 s37, s37, s28')
    k.I('s_lshl_b32 s37, s37, 11')
    k.I('s_add_u32 s71, s37, 0x%x' % OFF_KVZ)
    k.I('s_cmp_eq_u32 s32, 0')
    k.I('s_cselect_b32 s37, s71, 0x7fff0000')
    k.I('s_waitcnt lgkmcnt(0)')
    if OPT.get('qpro'): stq.stamp()
    k.I('buffer_store_dwordx4 v[40:43], %s, %s, s37 offen sc1' % (vr(LN16), ws), w=['zero'])
    k.I('buffer_store_dwordx4 v[40:43], %s, %s, s37 offen offset:1024 sc1' % (vr(LN16), ws), w=['zero'])
    k.I('s_lshl_b32 s37, s2, 7')
    k.I('s_lshl_b32 s38, s28, 15')
    k.I('s_add_u32 s37, s37, s38')
    k.I('s_add_u32 s37, s37, 0x%x' % OFF_CNT)
    k.I('s_cmp_lt_u32 s28, 3')
    k.I('s_cselect_b32 s37, s37, 0x7fff0000')
    k.I('v_and_b32 v41, 15, v1')
    k.I('v_lshlrev_b32 v41, 2, v41')
    k.I('buffer_store_dword v40, v41, %s, s37 offen' % ws)

    def dma_x_ops(c, slot):
        ops = ['s_add_u32 m0, s34, %d' % (slot * 16384)]
        for j in range(4):
            ops.append(('buffer_load_dwordx4 %s, %s, %s offen offset:%d lds' % (vr(XV[j]), sr(XS, 4), sr(60 + c), j * 1024), 'X%d' % c))
        return ops
    PARTCOL = {'q': 0, 'k': 1024, 'v': 2048}

    def dma_w_ops(part, c, slot):
        ops = ['s_add_u32 m0, s34, %d' % (slot * 16384), 's_add_u32 s69, %s, %d' % (sr(64 + c), PARTCOL[part])]
        for j in range(4):
            ops.append(('buffer_load_dwordx4 %s, %s, s69 offen offset:%d lds' % (vr(WV[j]), sr(WQ, 4), j * 1024), 'W%s%d' % (part, c)))
        return ops
    def interleave(a, b, ratio=None):
        nv = sum(1 for o in a if isinstance(o, tuple))
        out, ib, seen = [], 0, 0
        for o in a:
            out.append(o)
            if isinstance(o, tuple):
                seen += 1
                upto = len(b) * seen // nv
                out += b[ib:upto]
                ib = upto
        return out + b[ib:]
    grp = lambda c: dma_x_ops(c, 2 * c) + dma_w_ops('k', c, 2 * c + 1)
    for o in grp(0):
        emit(k, o)
    if OPT.get('qpro'): stq.stamp()
    ktmp = Kernel('tmp')
    common_setup(ktmp)
    setup_ops = [it.text for it in ktmp.items]
    for o in interleave(grp(1), setup_ops):
        emit(k, o)
    stq.stamp()
    SQ = 24
    k.I('v_mov_b32 v24, 0')
    k.I('v_mov_b32 v25, 0')
    nextdma = {0: grp(2), 1: grp(3), 2: dma_w_ops('v', 0, 0) + dma_w_ops('v', 1, 1), 3: dma_w_ops('v', 2, 2) + dma_w_ops('v', 3, 3)}
    for g in range(4):
        if OPT.get('qg') == (g,): stq.stamp()
        k.need(*(['X%d' % g, 'Wk%d' % g] + (['zero'] if g == 0 else [])))
        if OPT.get('qg') == (g,) or (OPT.get('qpro') and g == 0): stq.stamp()
        k.I('s_barrier')
        if OPT.get('qg') == (g,): stq.stamp()
        work = []
        if g == 0:
            work += ['s_or_b32 s38, s32, s28', 's_cmp_eq_u32 s38, 0', 's_cselect_b32 s38, 0, 0x1000',
                     'v_lshlrev_b32 v26, 12, v1', 's_lshl_b32 s78, s33, 2', 'v_add_u32 v26, s78, v26', 'v_mov_b32 v27, 1']
        if g == 2:
            work += ['v_add_u32 %s, 0x10000, %s' % (vr(XA + t), vr(XA + t)) for t in range(8)]
        work += [xread(8 * g + s) for s in range(8)]
        for s in range(0, 8, 2):
            n = 8 * g + s
            work.append('v_mfma_f32_16x16x32_bf16 a[8:11], a[4:7], %s, %s' % (vr(X + 4 * n, 4), '0' if n == 0 else 'a[8:11]'))
            for j in range(4):
                xr = X + 4 * n + j
                work.append('v_dot2c_f32_bf16 %s, %s, %s' % (vr(SQ + (j & 1)), vr(xr), vr(xr)))
        if OPT.get('noqwork'):
            work = [w for w in work if not (w.startswith('v_mfma') or w.startswith('v_dot2c'))]
        if OPT.get('qafter'):
            for o in nextdma[g] + work:
                emit(k, o)
        else:
            for o in interleave(nextdma[g], work):
                emit(k, o)
        if OPT.get('qg') == (g,): stq.stamp()
        if g == 0:
            k.I('buffer_store_dword v27, v26, %s, s38 offen sc1' % sr(DB, 4))
    if not (OPT.get('qpro') or OPT.get('qg')): stq.stamp()
    k.need('Wv0', 'Wv1')
    k.I('s_waitcnt lgkmcnt(0)')
    k.I('s_barrier')
    for o in dma_w_ops('q', 0, 4) + dma_w_ops('q', 1, 5):
        emit(k, o)
    for o in ['v_add_f32 v25, v24, v25'] + xhalf_ops(25, 26) + \
            ['v_accvgpr_read_b32 v24, a8', 'v_accvgpr_read_b32 v27, a9', 'v_cndmask_b32 v24, v24, v27, s[82:83]',
             'v_lshlrev_b32 v26, 1, v0', 'v_add_u32 v26, s73, v26', 'ds_write_b64 v26, v[24:25]', 's_waitcnt lgkmcnt(0)',
             's_barrier'] + stats_finish_ops():
        emit(k, o)
    k.need('Wv2', 'Wv3')
    k.I('s_barrier')
    for o in dma_w_ops('q', 2, 6) + dma_w_ops('q', 3, 7):
        emit(k, o)
    k.need('Wq0', 'Wq1')
    k.I('s_barrier')
    if not (OPT.get('qpro') or OPT.get('qg')): stq.stamp()
    for n in range(LA):
        for o in wreads('q', n):
            k.I(o)
    for n in range(32):
        if n % 2 == 0:
            k.touch(vr(WR + 4 * ((n + 1) % 8), 4))
        acc = vr(ACQ, 16)
        k.I('v_mfma_f32_32x32x16_bf16 %s, %s, %s, %s' % (acc, vr(WR + 4 * (n % 8), 4), vr(X + 4 * n, 4), acc if n else '0'))
        if n == 16 - LA - 1:
            k.need('Wq2', 'Wq3')
            k.I('s_barrier')
        if n + LA < 32:
            for o in wreads('q', n + LA):
                k.I(o)
        if n % 2 == 0:
            k.I('v_mfma_f32_16x16x32_bf16 a[12:15], a[4:7], %s, %s' % (vr(WR + 4 * (n % 8), 4), '0' if n == 0 else 'a[12:15]'))
    if not (OPT.get('qpro') or OPT.get('qg')): stq.stamp()
    CSQ = 64
    for o in ['v_accvgpr_read_b32 %s, a12' % vr(CSQ), 'v_accvgpr_read_b32 %s, a13' % vr(CSQ + 1),
              'v_cndmask_b32 %s, %s, %s, s[82:83]' % (vr(CSQ), vr(CSQ), vr(CSQ + 1)),
              'v_add_u32 %s, s75, v0' % vr(CSQ + 1), 'ds_write_b32 %s, %s offset:1024' % (vr(CSQ + 1), vr(CSQ)),
              's_add_u32 s40, s40, 32', 's_add_u32 s41, s41, 32'] + pair_signal(40, CSQ + 1, CSQ + 2) + \
             ['v_lshrrev_b32 v20, 5, v1', 'v_lshlrev_b32 v20, 4, v20', 'v_add_u32 v21, s76, v20', 'v_add_u32 v20, s75, v20']:
        k.I(o)
    pair_wait(k, 'L_a_pw2', 41, CSQ + 1, CSQ + 2, 79)
    CQ, CQ2 = 24, 64
    for a in range(4):
        k.I('ds_read_b128 %s, v20 offset:%d' % (vr(CQ + 4 * a, 4), 1024 + a * 32))
        k.I('ds_read_b128 %s, v21 offset:%d' % (vr(CQ2 + 4 * a, 4), 1024 + a * 32))
    for i in range(16):
        k.I('v_add_f32 %s, %s, %s' % (vr(CQ + i), vr(CQ + i), vr(CQ2 + i)))
    for i in range(0, 16, 2):
        for o in ln_phi_ops([ACQ + i, ACQ + i + 1], [MEAN, MEAN], [CQ + i, CQ + i + 1], [RSTD, RSTD], [22, 23]):
            k.I(o)
        k.I('v_cvt_pk_bf16_f32 %s, %s, %s' % (vr(ACQ + i // 2), vr(ACQ + i), vr(ACQ + i + 1)))
    for o in ['s_lshl_b32 s79, s32, 1', 's_add_u32 s79, s79, s29', 's_lshl_b32 s79, s79, 5', 's_lshl_b32 s80, s33, 2',
              's_add_u32 s79, s79, s80', 's_lshl_b32 s80, s30, 1', 's_add_u32 s79, s79, s80', 's_lshl_b32 s79, s79, 10',
              's_add_u32 s79, s79, 0x%x' % OFF_PQ]:
        k.I(o)
    k.I('buffer_store_dwordx4 %s, %s, %s, s79 offen%s' % (vr(ACQ, 4), vr(LN16), ws, APOL()))
    k.I('buffer_store_dwordx4 %s, %s, %s, s79 offen offset:1024%s' % (vr(ACQ + 4, 4), vr(LN16), ws, APOL()))
    if gen1.STAMPS:
        k.I('v_lshl_add_u32 v4, s39, 6, v1')
        k.I('v_subrev_u32 v4, 256, v4')
        stq.tid = 'v4'
        stq.stamp(); stq.stamp(True)
        flush_stamps(k, stq, ws, 5)
    if OPT.get('dbgt'):
        dbg_time(k, 24, 90, 8, 28)
    k.I('s_endpgm')
    return Multi([kp, kq_first(kk, kq)[0], kq_first(kk, kq)[1]]), dict(lds=131072 + 8192 + 16384, grid=256, block=512)


def dbg_time(k, DB, s_start, slot, s_wave):
    k.I('s_memrealtime s[92:93]')
    k.I('s_waitcnt lgkmcnt(0)')
    k.I('s_not_b32 s94, s%d' % s_start)
    k.I('s_mov_b64 exec, 1')
    k.I('v_mov_b32 v0, 0')
    k.I('v_mov_b32 v2, s94')
    k.I('v_mov_b32 v3, s%d' % s_start)
    k.I('v_mov_b32 v4, s92')
    k.I('buffer_atomic_umax v2, v0, %s, 0 offen offset:%d' % (sr(DB, 4), slot * 4))
    k.I('buffer_atomic_umax v3, v0, %s, 0 offen offset:%d' % (sr(DB, 4), slot * 4 + 4))
    k.I('buffer_atomic_umax v4, v0, %s, 0 offen offset:%d' % (sr(DB, 4), slot * 4 + 8))


def kq_first(kk, kq):
    return kk, kq


def flush_stamps(k, st, ws, kidx):
    k.I('s_waitcnt lgkmcnt(0)')
    k.I('v_cmp_eq_u32 vcc, 0, %s' % st.tid)
    k.I('s_and_saveexec_b64 s[40:41], vcc')
    k.I('s_lshl_b32 s42, s2, 7')
    k.I('s_add_u32 s42, s42, 0x%x' % (OFF_TS + kidx * 256 * 128))
    k.I('v_mov_b32 v0, 0')
    regs = [84, 86] + [st.base + 2 * i for i in range(st.n)]
    for i, r in enumerate(regs):
        k.I('v_mov_b32 v2, s%d' % r)
        k.I('v_mov_b32 v3, s%d' % (r + 1))
        k.I('buffer_store_dwordx2 v[2:3], v0, %s, s42 offen offset:%d' % (ws, 8 * i))
    k.I('s_mov_b64 exec, s[40:41]')


def prep_decode(k):
    k.I('s_cmp_ge_u32 s38, 448')
    k.I('s_cbranch_scc1 L_a_pstd')
    div_const(k, 37, 38, 28, 48)
    k.I('s_mul_i32 s48, s37, 28')
    k.I('s_sub_u32 s69, s38, s48')
    k.I('s_mov_b32 s16, s44')
    k.I('s_mov_b32 s17, s45')
    k.I('s_mov_b32 s18, 0x%x' % SZ['wg'])
    k.I('s_mov_b32 s20, s46')
    k.I('s_mov_b32 s21, s47')
    k.I('s_mov_b32 s22, 0x%x' % SZ['wu'])
    k.I('s_movk_i32 s50, 3584')
    k.I('s_mul_i32 s48, s37, %d' % (32 * 3584))
    k.I('s_lshl_b32 s49, s69, 7')
    k.I('s_add_u32 s48, s48, s49')
    k.I('s_mov_b32 s49, s48')
    k.I('s_lshl_b32 s59, s69, 7')
    k.I('s_lshl_b32 s51, s37, 1')
    k.I('s_add_u32 s59, s59, s51')
    k.I('s_lshl_b32 s59, s59, 10')
    k.I('s_add_u32 s72, s59, 0x%x' % OFF_WGU)
    k.I('s_mov_b32 s73, %d' % (32 * 1024))
    k.I('s_mov_b32 s74, %d' % (64 * 1024))
    k.I('s_mov_b32 s75, 1024')
    k.I('s_mul_i32 s59, s37, %d' % (112 * 128))
    k.I('s_lshl_b32 s69, s69, 9')
    k.I('s_add_u32 s59, s59, s69')
    k.I('s_add_u32 s59, s59, 0x%x' % OFF_CSG)
    k.I('s_mov_b32 s68, 1')
    k.I('s_branch L_a_pgo')
    k.label('L_a_pstd')
    k.I('s_movk_i32 s50, 1024')
    k.I('s_mov_b32 s68, 0')
    k.I('s_mov_b32 s59, 0x7fff0000')
    k.I('s_cmp_ge_u32 s38, 672')
    k.I('s_cbranch_scc1 L_a_pwo')
    k.I('s_sub_u32 s37, s38, 448')
    k.I('s_and_b32 s69, s37, 7')
    k.I('s_lshr_b32 s37, s37, 3')
    k.I('s_mov_b32 s16, s42')
    k.I('s_mov_b32 s17, s43')
    k.I('s_mov_b32 s18, 0x%x' % SZ['wd'])
    k.I('s_mul_i32 s48, s69, 224')
    k.I('s_lshl_b32 s49, s37, 2')
    k.I('s_add_u32 s48, s48, s49')
    k.I('s_lshl_b32 s48, s48, 10')
    k.I('s_add_u32 s72, s48, 0x%x' % OFF_WD)
    k.I('s_mov_b32 s73, %d' % (112 * 1024))
    k.I('s_mov_b32 s74, 1024')
    k.I('s_mov_b32 s75, 2048')
    k.I('s_branch L_a_pstd2')
    k.label('L_a_pwo')
    k.I('s_sub_u32 s37, s38, 672')
    k.I('s_and_b32 s69, s37, 7')
    k.I('s_lshr_b32 s37, s37, 3')
    k.I('s_mov_b32 s16, s40')
    k.I('s_mov_b32 s17, s41')
    k.I('s_mov_b32 s18, 0x%x' % SZ['wo'])
    k.I('s_lshl_b32 s48, s37, 6')
    k.I('s_lshl_b32 s49, s69, 1')
    k.I('s_add_u32 s48, s48, s49')
    k.I('s_lshl_b32 s48, s48, 10')
    k.I('s_add_u32 s72, s48, 0x%x' % OFF_WO)
    k.I('s_cmp_ge_u32 s38, 736')
    k.I('s_cselect_b32 s72, 0x7fff0000, s72')
    k.I('s_cselect_b32 s18, 0, s18')
    k.I('s_mov_b32 s73, 1024')
    k.I('s_mov_b32 s74, %d' % (16 * 1024))
    k.I('s_mov_b32 s75, %d' % (32 * 1024))
    k.label('L_a_pstd2')
    k.I('s_mov_b32 s20, s16')
    k.I('s_mov_b32 s21, s17')
    k.I('s_mov_b32 s22, s18')
    k.I('s_lshl_b32 s48, s37, 16')
    k.I('s_lshl_b32 s49, s69, 7')
    k.I('s_add_u32 s48, s48, s49')
    k.I('s_add_u32 s49, s48, %d' % (32 * 1024))
    k.label('L_a_pgo')
    k.I('s_mov_b32 s51, s72')
    k.I('s_add_u32 s52, s72, s73')
    k.I('s_add_u32 s53, s72, s74')
    k.I('s_add_u32 s54, s52, s74')
    for f in range(4):
        k.I('s_add_u32 %s, %s, s75' % (sr(55 + f), sr(51 + f)))


if __name__ == '__main__':
    n = int(sys.argv[2]) if len(sys.argv) > 2 else 4
    gen1.STAMPS = len(sys.argv) > 3 and sys.argv[3] == 'stamps'
    for o in sys.argv[4:]:
        if '=' in o:
            kk_, vv_ = o.split('=')
            gen1.OPT[kk_] = tuple(int(x) for x in vv_.split(','))
        else:
            gen1.OPT[o] = True
    gens = [('qkv_kernel', gen_a8), ('attn_kernel', gen_k2), ('gateup_kernel', gen_k3), ('down_kernel', gen_k4)]
    ks = []
    for label, g in gens[:n]:
        kk, cc = g()
        ks.append((label, kk, cc))
        print(label, kk.stats(), kk.maxreg())
    open(sys.argv[1], 'w').write(wrap(ks))
```

```python
import sys
from asmgen import Kernel
import gen1
from gen1 import *
from gen2 import Sched, xhalf_ops
from gen3 import emit
import gen4
from gen4 import gen_a8


def STP():
    return '' if OPT.get('stplain') else ' sc1'


def LSC():
    return '' if OPT.get('ldplain') else ' sc1'


def sync_arrive(k, s_wave, ws, vt, s_arr, name):
    k.I('s_barrier')
    k.raw("""    s_cmp_lg_u32 s%d, 0
    s_cbranch_scc1 %s_noarr
    v_lshlrev_b32 v%d, 7, v1
    v_mov_b32 v%d, 1
    s_mov_b64 exec, 0xffff
    buffer_store_dword v%d, v%d, %s, s%d offen sc1
    s_nop 0
    s_mov_b64 exec, -1
%s_noarr:""" % (s_wave, name, vt, vt + 1, vt + 1, vt, ws, s_arr, name))


def sync_wait(k, name, s_cnt, s_wave, ws, vt, bg, nbatch=4):
    k.raw("""    s_cmp_lg_u32 s%d, 0
    s_cselect_b32 s59, 1, 0
    v_and_b32 v%d, 15, v1
    v_lshlrev_b32 v%d, 2, v%d""" % (s_wave, vt, vt, vt))
    vm = [i for i, o in enumerate(bg) if (isinstance(o, tuple) or o.startswith('buffer_'))]
    per = -(-len(vm) // nbatch)
    cuts = [0] + [vm[min(len(vm) - 1, per * (b + 1) - 1)] + 1 for b in range(nbatch)]
    cuts[-1] = len(bg)
    check = """    v_cmp_eq_u32 vcc, 1, v%d
    s_nop 4
    s_cmp_eq_u64 vcc, exec
    s_cselect_b32 s59, 1, 0""" % (vt + 1)
    for b in range(nbatch):
        batch = bg[cuts[b]:cuts[b + 1]]
        nv = sum(1 for o in batch if (isinstance(o, tuple) or o.startswith('buffer_')))
        k.raw("""    s_cmp_lg_u32 s59, 0
    s_cbranch_scc1 %s_np%d
    buffer_load_dword v%d, v%d, %s, s%d offen sc1
%s_np%d:""" % (name, b, vt + 1, vt, ws, s_cnt, name, b))
        for o in batch:
            emit(k, o)
        k.raw("""    s_cmp_lg_u32 s59, 0
    s_cbranch_scc1 %s_nq%d
    s_waitcnt vmcnt(%d)
%s
%s_nq%d:""" % (name, b, nv, check, name, b))
    k.raw("""    s_mov_b32 s60, 0
%s_spin:
    s_cmp_lg_u32 s59, 0
    s_cbranch_scc1 %s_done
    buffer_load_dword v%d, v%d, %s, s%d offen sc1
    s_waitcnt vmcnt(0)
%s
    s_add_u32 s60, s60, 1
    s_cmp_lt_u32 s60, 0x40000
    s_cbranch_scc1 %s_spin
%s_done:""" % (name, name, vt + 1, vt, ws, s_cnt, check, name, name))
    k.I('s_barrier')


def flag_store(k, s_wave, ws, vt, s_arr, name):
    k.raw("""    s_cmp_lg_u32 s%d, 0
    s_cbranch_scc1 %s_nf
    v_lshlrev_b32 v%d, 7, v1
    v_mov_b32 v%d, 1
    s_mov_b64 exec, 0xffff
    buffer_store_dword v%d, v%d, %s, s%d offen sc1
    s_nop 0
    s_mov_b64 exec, -1
%s_nf:""" % (s_wave, name, vt, vt + 1, vt + 1, vt, ws, s_arr, name))


_pi = [0]


def poll_issue(k, s_wave, ws, vt, s_cnt):
    _pi[0] += 1
    k.raw("""    s_cmp_lg_u32 s%d, 0
    s_cbranch_scc1 L_f_pi%d
    v_and_b32 v%d, 15, v1
    v_lshlrev_b32 v%d, 2, v%d
    buffer_load_dword v%d, v%d, %s, s%d offen sc1
L_f_pi%d:""" % (s_wave, _pi[0], vt, vt, vt, vt + 1, vt, ws, s_cnt, _pi[0]))


def poll_check_spin(k, name, s_wave, ws, vt, s_cnt):
    k.raw("""    s_cmp_lg_u32 s%d, 0
    s_cbranch_scc1 %s_done
    s_mov_b32 s60, 0
%s_chk:
    s_waitcnt vmcnt(0)
    v_cmp_eq_u32 vcc, 1, v%d
    s_nop 4
    s_cmp_eq_u64 vcc, exec
    s_cbranch_scc1 %s_done
    buffer_load_dword v%d, v%d, %s, s%d offen sc1
    s_add_u32 s60, s60, 1
    s_cmp_lt_u32 s60, 0x40000
    s_cbranch_scc1 %s_chk
    s_waitcnt vmcnt(0)
%s_done:""" % (s_wave, name, name, vt + 1, name, vt + 1, vt, ws, s_cnt, name, name))


def merge(k, main, bg, first=0, last=None):
    if last is None:
        last = len(main)
    ib = 0
    for i, o in enumerate(main):
        if isinstance(o, (str, tuple)):
            emit(k, o)
        else:
            k.items.append(o)
        if first <= i < last:
            upto = len(bg) * (i - first + 1) // (last - first)
            while ib < upto:
                emit(k, bg[ib]); ib += 1
    while ib < len(bg):
        emit(k, bg[ib]); ib += 1


def gen_bcd():
    k = Kernel('bcd_kernel')
    WS, XS, OS = 4, 8, 12
    ws = sr(WS, 4)
    k.I('s_cmp_ge_u32 s2, 256')
    k.I('s_cbranch_scc1 L_f_end')
    load_srds(k, [('ws', WS), ('x', XS), ('out', OS)])
    st = Stamper(k, 2, ws, base=72, tmp=68); st.stamp(True); st.stamp()
    if OPT.get('dbgt'):
        k.I('s_memrealtime s[90:91]')
        k.I('s_load_dwordx2 s[96:97], s[0:1], %d' % KA['dbg'])
    k.I('v_and_b32 v1, 63, v0')
    k.I('v_lshrrev_b32 v2, 6, v0')
    k.I('v_readfirstlane_b32 s16, v2')
    k.I('v_lshlrev_b32 v2, 4, v1')
    k.I('v_add_u32 v3, 4096, v2')
    k.I('s_and_b32 s24, s2, 7')
    k.I('s_lshr_b32 s25, s2, 3')
    if OPT.get('rowmap'):
        k.I('s_lshl_b32 s17, s24, 1')
        k.I('s_lshr_b32 s26, s25, 4')
        k.I('s_add_u32 s17, s17, s26')
        k.I('s_and_b32 s18, s25, 15')
        k.I('s_lshl_b32 s19, s17, 1')
        k.I('s_lshr_b32 s26, s18, 3')
        k.I('s_add_u32 s19, s19, s26')
        k.I('s_and_b32 s20, s18, 7')
    else:
        k.I('s_and_b32 s17, s24, 1')
        k.I('s_lshl_b32 s17, s17, 3')
        k.I('s_and_b32 s26, s25, 7')
        k.I('s_add_u32 s17, s17, s26')
        k.I('s_lshr_b32 s18, s24, 1')
        k.I('s_lshl_b32 s18, s18, 2')
        k.I('s_lshr_b32 s26, s25, 3')
        k.I('s_add_u32 s18, s18, s26')
        k.I('s_lshl_b32 s19, s24, 2')
        k.I('s_and_b32 s26, s25, 3')
        k.I('s_add_u32 s19, s19, s26')
        k.I('s_lshr_b32 s20, s25, 2')
    k.I('s_lshl_b32 s21, s19, 1')
    k.I('s_and_b32 s26, s16, 1')
    k.I('s_add_u32 s21, s21, s26')
    k.I('s_lshl_b32 s22, s20, 1')
    k.I('s_lshr_b32 s26, s16, 1')
    k.I('s_add_u32 s22, s22, s26')
    k.I('s_lshl_b32 s23, s17, 2')
    k.I('s_add_u32 s23, s23, s16')
    k.I('s_lshl_b32 s27, s16, 3')
    k.I('s_lshl_b32 s28, s19, 6')
    k.I('s_add_u32 s28, s28, s27')
    k.I('s_lshl_b32 s28, s28, 10')
    k.I('s_add_u32 s28, s28, 0x%x' % OFF_PQ)
    k.I('s_and_b32 s26, s16, 1')
    k.I('s_lshl_b32 s26, s26, 15')
    k.I('s_add_u32 s29, s28, 32768')
    k.I('s_sub_u32 s29, s29, s26')
    k.I('s_add_u32 s28, s28, s26')
    k.I('s_lshl_b32 s30, s27, 4')
    k.I('s_lshl_b32 s26, s20, 1')
    k.I('s_add_u32 s30, s30, s26')
    k.I('s_lshl_b32 s30, s30, 10')
    k.I('s_add_u32 s30, s30, 0x%x' % OFF_WO)
    k.I('s_lshr_b32 s26, s16, 1')
    k.I('s_lshl_b32 s26, s26, 10')
    k.I('s_add_u32 s64, s30, 1024')
    k.I('s_sub_u32 s64, s64, s26')
    k.I('s_add_u32 s30, s30, s26')
    k.I('s_lshl_b32 s31, s27, 11')
    k.I('s_add_u32 s31, s31, 0x%x' % OFF_KVZ)
    k.I('v_and_b32 v4, 31, v1')
    k.I('v_min_u32 v5, 16, v4')
    k.I('v_lshrrev_b32 v6, 5, v1')
    k.I('v_lshlrev_b32 v7, 5, v6')
    k.I('v_add_u32 v5, v5, v7')
    k.I('v_lshlrev_b32 v5, 5, v5')
    k.I('s_waitcnt lgkmcnt(0)')

    KV = 128
    A_PQ, A_WO = 96, 160
    ACC = 192
    XR = 56

    def b_loads(t):
        ops = ['s_add_u32 s38, s31, %d' % (t * 2048),
               'buffer_load_dwordx4 %s, v5, %s, s38 offen' % (vr(KV + 8 * t, 4), ws),
               'buffer_load_dwordx4 %s, v5, %s, s38 offen offset:16' % (vr(KV + 8 * t + 4, 4), ws)]
        for r in range(2):
            ops.append('buffer_load_dwordx4 %s, %s, %s, %s offen offset:%d' % (
                ar(A_PQ + (t * 2 + r) * 4, 4), 'v2' if t < 4 else 'v3', ws, 's28' if r == 0 else 's29', (t % 4) * 1024))
        ops.append('s_add_u32 s39, s30, %d' % (t * 16384))
        ops.append('s_add_u32 s65, s64, %d' % (t * 16384))
        for n in range(2):
            ops.append('buffer_load_dwordx4 %s, v2, %s, %s offen' % (ar(A_WO + (t * 2 + n) * 4, 4), ws, 's39' if n == 0 else 's65'))
        return ops
    PD = 3
    for t in range(PD):
        for o in b_loads(t):
            k.I(o)
    k.I('s_lshl_b32 s32, s21, 15')
    k.I('s_lshl_b32 s26, s22, 6')
    k.I('s_add_u32 s32, s32, s26')
    k.I('v_lshlrev_b32 v7, 10, v4')
    k.I('v_lshlrev_b32 v8, 3, v6')
    k.I('v_add_u32 v7, v7, v8')
    k.I('s_mul_i32 s33, s18, %d' % (7 * 32768))
    k.I('s_lshl_b32 s34, s16, 13')
    k.I('s_add_u32 s33, s33, s34')
    k.I('s_add_u32 s33, s33, 0x%x' % OFF_WGU)
    k.I('s_mul_i32 s35, s16, %d' % (28 * 1024))
    k.I('s_mul_i32 s36, s20, %d' % (2 * 112 * 1024))
    k.I('s_add_u32 s36, s36, s35')
    k.I('s_add_u32 s36, s36, 0x%x' % OFF_WD)
    k.I('s_lshr_b32 s26, s16, 1')
    k.I('s_mul_i32 s26, s26, %d' % (112 * 1024))
    k.I('s_add_u32 s37, s36, %d' % (112 * 1024))
    k.I('s_sub_u32 s37, s37, s26')
    k.I('s_add_u32 s36, s36, s26')
    k.I('s_lshl_b32 s44, s17, 4')
    k.I('s_add_u32 s44, s44, s18')
    k.I('s_lshl_b32 s44, s44, 7')
    k.I('s_add_u32 s44, s44, 0x%x' % OFF_CNT)
    k.I('s_and_b32 s26, s19, 1')
    k.I('s_lshl_b32 s26, s26, 3')
    k.I('s_add_u32 s26, s26, s20')
    k.I('s_lshr_b32 s57, s19, 1')
    k.I('s_lshl_b32 s62, s57, 11')
    k.I('s_lshl_b32 s63, s26, 2')
    k.I('s_add_u32 s62, s62, s63')
    k.I('s_add_u32 s62, s62, 0x%x' % OFF_CNT)
    k.I('s_lshl_b32 s57, s57, 4')
    k.I('s_add_u32 s57, s57, s26')
    k.I('s_lshl_b32 s57, s57, 7')
    k.I('s_add_u32 s57, s57, 0x%x' % (OFF_CNT + 32768))
    k.I('s_lshl_b32 s63, s17, 11')
    k.I('s_lshl_b32 s26, s18, 2')
    k.I('s_add_u32 s63, s63, s26')
    k.I('s_add_u32 s63, s63, 0x%x' % (OFF_CNT + 32768))
    CS_LDS = 162816
    k.I('v_mov_b32 v8, 0')
    k.I('v_mov_b32 v9, 0')
    k.I('v_mov_b32 v10, 0')
    k.I('v_mov_b32 v11, 0')
    k.I('v_add_u32 v20, %d, v2' % CS_LDS)
    k.I('ds_write_b128 v20, v[8:11]')
    D1 = [[64, 80], [96, 112]]
    KF = [40, 44]
    OF = [48, 52]
    T = 36

    def stageA(t):
        ops = []
        for j in range(4):
            ops.append('v_cvt_pk_bf16_f32 %s, %s, %s' % (vr(KF[t & 1] + j), vr(KV + 8 * t + 2 * j), vr(KV + 8 * t + 2 * j + 1)))
        for r in range(2):
            ops.append('v_mfma_f32_32x32x16_bf16 %s, %s, %s, 0' % (vr(D1[t & 1][r], 16), vr(KF[t & 1], 4), ar(A_PQ + (t * 2 + r) * 4, 4)))
        return ops

    def stageB(t):
        ops = []
        for r in range(2):
            ops.append('v_add_f32 %s, 0x%x, %s' % (vr(T + r), f2u(1e-6), vr(D1[t & 1][r] + 8)))
        for r in range(2):
            ops.append('v_rcp_f32 %s, %s' % (vr(T + r), vr(T + r)))
        for i in range(8):
            for r in range(2):
                d = D1[t & 1][r]
                ops.append('v_mul_f32 %s, %s, %s' % (vr(d + i), vr(T + r), vr(d + i)))
        for r in range(2):
            d = D1[t & 1][r]
            for j in range(4):
                ops.append('v_cvt_pk_bf16_f32 %s, %s, %s' % (vr(OF[r] + j), vr(d + 2 * j), vr(d + 2 * j + 1)))
        for n in range(2):
            for r in range(2):
                acc = vr(ACC + (n * 2 + r) * 16, 16)
                ops.append('v_mfma_f32_32x32x16_bf16 %s, %s, %s, %s' % (acc, ar(A_WO + (t * 2 + n) * 4, 4), vr(OF[r], 4), acc if t else '0'))
        return ops
    for o in stageA(0):
        k.I(o)
    for t in range(8):
        main = (stageA(t + 1) if t + 1 < 8 else []) + stageB(t)
        bg = b_loads(t + PD) if t + PD < 8 else []
        if t == 5:
            bg = ['buffer_load_dwordx2 %s, v7, %s, s32 offen offset:%d' % (vr(XR + 2 * a, 2), sr(XS, 4), a * 16) for a in range(4)]
        merge(k, main, bg)
    st.stamp()
    RB = 98304
    red = Kernel('red')
    kmain, k = k, red
    k.I('s_mul_i32 s38, s16, 12288')
    k.I('s_add_u32 s38, s38, %d' % RB)
    k.I('v_add_u32 v10, s38, v2')
    for tp in range(1, 4):
        for q in range(4):
            k.I('ds_write_b128 v10, %s offset:%d' % (vr(ACC + tp * 16 + q * 4, 4), (tp - 1) * 4096 + q * 1024))
    H = ACC
    for tp in range(1, 4):
        k.I('s_xor_b32 s38, s16, %d' % tp)
        k.I('s_mul_i32 s38, s38, 12288')
        k.I('s_add_u32 s38, s38, %d' % (RB + (tp - 1) * 4096))
        k.I('v_add_u32 %s, s38, v2' % vr(40 + tp))
    XU = 64
    for a_ in range(4):
        for b_ in range(2):
            src = XR + 2 * a_ + b_
            k.I('v_lshlrev_b32 %s, 16, %s' % (vr(XU + 4 * a_ + 2 * b_), vr(src)))
            k.I('v_and_b32 %s, 0xffff0000, %s' % (vr(XU + 4 * a_ + 2 * b_ + 1), vr(src)))
    for i in range(16):
        k.I('v_add_f32 %s, %s, %s' % (vr(H + i), vr(H + i), vr(XU + i)))
    k.I('s_waitcnt lgkmcnt(0)')
    k.I('s_barrier')
    for tp in range(1, 4):
        for q in range(4):
            k.I('ds_read_b128 %s, %s offset:%d' % (vr(H + tp * 16 + q * 4, 4), vr(40 + tp), q * 1024))
    for i in range(16):
        k.I('v_add_f32 %s, %s, %s' % (vr(H + i), vr(H + i), vr(H + 16 + i)))
    for i in range(16):
        k.I('v_add_f32 %s, %s, %s' % (vr(H + 32 + i), vr(H + 32 + i), vr(H + 48 + i)))
    for i in range(16):
        k.I('v_add_f32 %s, %s, %s' % (vr(H + i), vr(H + i), vr(H + 32 + i)))
    HP = 12
    for j in range(8):
        k.I('v_cvt_pk_bf16_f32 %s, %s, %s' % (vr(HP + j), vr(H + 2 * j), vr(H + 2 * j + 1)))
    k.I('s_lshl_b32 s38, s21, 5')
    k.I('s_lshl_b32 s39, s22, 1')
    k.I('s_add_u32 s38, s38, s39')
    k.I('s_lshl_b32 s38, s38, 10')
    k.I('s_add_u32 s38, s38, 0x%x' % OFF_H)
    k.I('buffer_store_dwordx4 %s, v2, %s, s38 offen%s' % (vr(HP, 4), ws, STP()), w=['hst'])
    k.I('buffer_store_dwordx4 %s, v2, %s, s38 offen offset:1024%s' % (vr(HP + 4, 4), ws, STP()), w=['hst'])
    k.I('v_add_f32 v36, %s, %s' % (vr(H), vr(H + 1)))
    k.I('v_mul_f32 v37, %s, %s' % (vr(H), vr(H)))
    k.I('v_fmac_f32 v37, %s, %s' % (vr(H + 1), vr(H + 1)))
    for i in range(2, 16):
        k.I('v_add_f32 v36, v36, %s' % vr(H + i))
        k.I('v_fmac_f32 v37, %s, %s' % (vr(H + i), vr(H + i)))
    for o in xhalf_ops(36, 38) + xhalf_ops(37, 38):
        k.I(o)
    k.I('s_lshl_b32 s38, s22, 14')
    k.I('s_lshl_b32 s39, s21, 8')
    k.I('s_add_u32 s38, s38, s39')
    k.I('s_add_u32 s38, s38, 0x%x' % OFF_STAT)
    k.I('v_lshlrev_b32 v38, 3, v4')
    k.I('buffer_store_dwordx2 v[36:37], v38, %s, s38 offen%s' % (ws, STP()), w=['hst'])
    k = kmain
    REDITEMS = red.items

    def dma(soff, sm0, name):
        ops = []
        for hf in range(2):
            ops.append('s_add_u32 m0, %s, %d' % (sr(sm0), hf * 4096))
            ops.append('s_add_u32 s40, %s, %d' % (sr(soff), hf * 4096))
            for t in range(4):
                ops.append(('buffer_load_dwordx4 v2, %s, s40 offen offset:%d lds' % (ws, t * 1024), name))
        return ops

    def d_ks(f):
        return (f >> 2) * 7 + (f & 3) if f < 16 else ((f - 16) // 3) * 7 + 4 + (f - 16) % 3

    def wd_loads(f_list):
        ops = []
        last = None
        for f in f_list:
            ks = d_ks(f)
            grp, rem = ks // 8, ks % 8
            if grp != last:
                ops.append('s_add_u32 s41, s36, %d' % (grp * 8192))
                ops.append('s_add_u32 s58, s37, %d' % (grp * 8192))
                last = grp
            for n in range(2):
                ops.append('buffer_load_dwordx4 %s, %s, %s, %s offen offset:%d' % (
                    ar((f * 2 + n) * 4, 4), 'v2' if rem < 4 else 'v3', ws, 's41' if n == 0 else 's58', (rem % 4) * 1024))
        return ops
    CSV = 128
    NWD0 = OPT.get('nwd0', (14,))[0]
    pre0 = ['s_mov_b32 s42, s34'] + dma(33, 42, 'W0')
    pre0 += ['s_add_u32 s43, s33, 32768', 's_add_u32 s42, s34, 32768'] + dma(43, 42, 'W1')
    pre1 = ['s_mul_i32 s66, s18, %d' % (7 * 128), 's_mul_i32 s39, s16, %d' % (4 * 112 * 128), 's_add_u32 s66, s66, s39',
            's_add_u32 s66, s66, 0x%x' % OFF_CSG]
    for kg in range(4):
        pre1 += ['s_add_u32 s39, s66, %d' % (kg * 112 * 128), 'buffer_load_dwordx4 %s, v2, %s, s39 offen' % (vr(CSV + 4 * kg, 4), ws)]
    pre1 += ['s_add_u32 s43, s33, 65536', 's_add_u32 s42, s34, 65536'] + dma(43, 42, 'W2')
    merge(k, REDITEMS, pre0 if not OPT.get('nopre0') else [], first=0, last=len(REDITEMS) - 30)
    st.stamp()
    if OPT.get('nopre0'):
        for o in pre0:
            emit(k, o)
    for o in pre1:
        emit(k, o)
    k.need('hst')
    sync_arrive(k, 16, ws, 36, 62, 'L_f_s1')
    st.stamp()
    for j in range(4):
        k.I('v_add_f32 %s, %s, %s' % (vr(CSV + j), vr(CSV + j), vr(CSV + 4 + j)))
        k.I('v_add_f32 %s, %s, %s' % (vr(CSV + 8 + j), vr(CSV + 8 + j), vr(CSV + 12 + j)))
    for j in range(4):
        k.I('v_add_f32 %s, %s, %s' % (vr(CSV + j), vr(CSV + j), vr(CSV + 8 + j)))
    for j in range(4):
        k.I('ds_add_f32 v20, %s offset:%d' % (vr(CSV + j), 4 * j))
    bg2 = wd_loads(range(0, NWD0))
    sync_wait(k, 'L_f_s1', 44, 16, ws, 36, bg2)
    st.stamp()

    X = 128
    for t in range(2, 8):
        k.I('v_add_u32 %s, %d, v2' % (vr(20 + t), 4096 * t))
    VOF = [2, 3] + [20 + t for t in range(2, 8)]
    k.I('s_lshl_b32 s45, s23, 15')
    k.I('s_add_u32 s45, s45, 0x%x' % OFF_H)

    def xload(ks):
        return 'buffer_load_dwordx4 %s, %s, %s, s45 offen offset:%d%s' % (vr(X + 4 * ks, 4), vr(VOF[ks // 4]), ws, (ks % 4) * 1024, LSC())
    XD = OPT.get('xd', (14,))[0]
    for ks in range(XD):
        k.I(xload(ks))
    SP = 104
    k.I('v_lshlrev_b32 v21, 3, v4')
    k.I('v_lshlrev_b32 v28, 17, v6')
    k.I('v_add_u32 v21, v21, v28')
    k.I('s_lshl_b32 s46, s23, 8')
    k.I('s_add_u32 s46, s46, 0x%x' % OFF_STAT)
    stl = []
    for t in range(8):
        stl.append('s_add_u32 s47, s46, %d' % (t * 16384))
        stl.append('buffer_load_dwordx2 %s, v21, %s, s47 offen%s' % (vr(SP + 2 * t, 2), ws, LSC()))
    k.I('s_mul_i32 s48, s23, 112')
    k.I('s_mul_i32 s47, s18, 7')
    k.I('s_add_u32 s48, s48, s47')
    k.I('s_lshl_b32 s48, s48, 10')
    k.I('s_add_u32 s48, s48, 0x%x' % OFF_ACT)
    k.I('s_mul_i32 s50, s19, %d' % (2 * 112 * 1024))
    k.I('s_add_u32 s50, s50, s35')
    k.I('s_add_u32 s50, s50, 0x%x' % OFF_ACT)
    k.I('s_and_b32 s26, s16, 1')
    k.I('s_mul_i32 s26, s26, %d' % (112 * 1024))
    k.I('s_add_u32 s51, s50, %d' % (112 * 1024))
    k.I('s_sub_u32 s51, s51, s26')
    k.I('s_add_u32 s50, s50, s26')
    k.I('v_add_u32 v8, 0x10000, v2')
    k.I('v_lshlrev_b32 v10, 4, v6')
    k.I('v_add_u32 v10, %d, v10' % CS_LDS)
    ACCC = [32, 48]
    D, L = 8, 6
    WR = 224
    CSR = 64
    T = 80
    MEAN, RSTD, NMEAN, NA, A2 = 120, 121, 122, 123, 124

    def wread(c, ks):
        slot = c % 4
        return 'ds_read_b128 %s, %s offset:%d' % (ar(WR + (ks % D) * 4, 4), 'v2' if slot < 2 else 'v8', (slot % 2) * 32768 + ks * 1024)

    def epilogue_ops(S, c):
        ops = []
        for q in range(4):
            ops.append('ds_read_b128 %s, v10 offset:%d' % (vr(CSR + 4 * q, 4), c * 128 + q * 32))
        pre = len(ops)
        for i0 in range(0, 8, 2):
            a = []
            for u, i in enumerate((i0, i0 + 1)):
                t = T + u * 4
                a.append([
                    'v_fma_f32 %s, %s, %s, %s' % (vr(t), vr(NMEAN), vr(CSR + i), vr(S + i)),
                    'v_fma_f32 %s, %s, %s, %s' % (vr(t + 1), vr(NMEAN), vr(CSR + 8 + i), vr(S + 8 + i)),
                    'v_mul_f32 %s, %s, %s' % (vr(t + 2), vr(NA), vr(t)),
                    'v_exp_f32 %s, %s' % (vr(t + 2), vr(t + 2)),
                    'v_mul_f32 %s, %s, %s' % (vr(t), vr(t), vr(t + 1)),
                    'v_add_f32 %s, 1.0, %s' % (vr(t + 2), vr(t + 2)),
                    'v_rcp_f32 %s, %s' % (vr(t + 2), vr(t + 2)),
                    'v_mul_f32 %s, %s, %s' % (vr(t), vr(A2), vr(t)),
                    'v_mul_f32 %s, %s, %s' % (vr(T + 8 + i), vr(t), vr(t + 2)),
                ])
            for x, y in zip(a[0], a[1]):
                ops += [x, y]
            ops.append('v_cvt_pk_bf16_f32 %s, %s, %s' % (vr(T + 16 + i0 // 2), vr(T + 8 + i0), vr(T + 8 + i0 + 1)))
        ops.append('s_add_u32 s49, s48, %d' % (c * 1024))
        ops.append(('buffer_store_dwordx4 %s, v2, %s, s49 offen%s' % (vr(T + 16, 4), ws, STP()), 'ast%d' % c))
        return ops, pre

    wd_plan = {}
    rest = list(range(NWD0, 28))
    wts = [1, 1, 1, 1, 3, 3]
    tot = sum(wts); acc_ = 0; pos = 0
    for c, wgt in zip(range(1, 7), wts):
        acc_ += wgt
        upto = len(rest) * acc_ // tot
        wd_plan[c] = rest[pos:upto]; pos = upto

    def refill(c):
        return ['s_add_u32 s43, s33, %d' % (c * 32768), 's_add_u32 s42, s34, %d' % ((c % 4) * 32768)] + dma(43, 42, 'W%d' % c)

    def is_vm(o):
        return isinstance(o, tuple) or o.startswith('buffer_')

    def place(fill, ops, lo, hi):
        groups, cur = [], []
        for o in ops:
            cur.append(o)
            if is_vm(o):
                groups.append(cur); cur = []
        if cur:
            groups.append(cur)
        for i, g in enumerate(groups):
            fill[lo + i * (hi - lo) // len(groups)] += g

    AR, NR, AD = 128, 10, 8

    def act_load(f):
        ks = d_ks(f)
        grp, rem = ks // 8, ks % 8
        ops = ['s_add_u32 s47, s50, %d' % (grp * 8192), 's_add_u32 s52, s51, %d' % (grp * 8192)]
        for r in range(2):
            ops.append('buffer_load_dwordx4 %s, %s, %s, %s offen offset:%d%s' % (
                vr(AR + ((f % NR) * 2 + r) * 4, 4), 'v2' if rem < 4 else 'v3', ws, 's47' if r == 0 else 's52', (rem % 4) * 1024, LSC()))
        return ops
    DACC = [32, 48, 64, 80]

    def d_mfmas(f):
        mm = []
        for n in range(2):
            for r in range(2):
                acc = vr(DACC[n * 2 + r], 16)
                mm.append('v_mfma_f32_32x32x16_bf16 %s, %s, %s, %s' % (
                    acc, ar((f * 2 + n) * 4, 4), vr(AR + ((f % NR) * 2 + r) * 4, 4), acc if f else '0'))
        return mm

    carry = []

    def body(c):
        nonlocal carry
        S_ = ACCC[c & 1]
        fill = [[] for _ in range(32)]
        post = []
        if c == 0:
            for ks in range(XD, 32):
                fill[ks - XD].append(xload(ks))
            for i, o in enumerate(stl):
                fill[20 + i // 4].append(o)
            for t in range(1, 8):
                post.append('v_add_f32 %s, %s, %s' % (vr(SP), vr(SP), vr(SP + 2 * t)))
                post.append('v_add_f32 %s, %s, %s' % (vr(SP + 1), vr(SP + 1), vr(SP + 2 * t + 1)))
            post += xhalf_ops(SP, SP + 2) + xhalf_ops(SP + 1, SP + 2)
            post += ['v_mul_f32 %s, 0x%x, %s' % (vr(MEAN), f2u(1.0 / 512), vr(SP)),
                     'v_mul_f32 %s, 0x%x, %s' % (vr(SP + 1), f2u(1.0 / 512), vr(SP + 1)),
                     'v_fma_f32 %s, -%s, %s, %s' % (vr(SP + 1), vr(MEAN), vr(MEAN), vr(SP + 1)),
                     'v_max_f32 %s, 0, %s' % (vr(SP + 1), vr(SP + 1)),
                     'v_add_f32 %s, 0x%x, %s' % (vr(SP + 1), f2u(1e-5), vr(SP + 1)),
                     'v_rsq_f32 %s, %s' % (vr(RSTD), vr(SP + 1)),
                     'v_sub_f32 %s, 0, %s' % (vr(NMEAN), vr(MEAN)),
                     'v_mul_f32 %s, 0x%x, %s' % (vr(NA), f2u(-LOG2E), vr(RSTD)),
                     'v_mul_f32 %s, %s, %s' % (vr(A2), vr(RSTD), vr(RSTD))]
        else:
            ops, pre = epilogue_ops(ACCC[1 - (c & 1)], c - 1)
            fill[0] = ops[:pre]
            rest = ops[pre:]
            g0, g1 = 3, 26
            for i, o in enumerate(rest):
                fill[g0 + i * (g1 - g0) // len(rest)].append(o)
            vmops = list(carry) + wd_loads(wd_plan[c])
            carry = []
            if vmops:
                place(fill, vmops, 1, 26)
        for ks in range(32):
            TW = OPT.get('tw', (2,))[0]
            if ks % TW == 0:
                k.touch(ar(WR + ((min(31, ks + TW - 1)) % D) * 4, 4))
            k.I('v_mfma_f32_32x32x16_bf16 %s, %s, %s, %s' % (
                vr(S_, 16), ar(WR + (ks % D) * 4, 4), vr(X + 4 * ks, 4), vr(S_, 16) if ks else '0'))
            if ks == 32 - L and c < 6:
                k.need('W%d' % (c + 1))
                k.I('s_barrier')
                if c + 3 <= 6:
                    r = refill(c + 3)
                    for o in r[:2 + 2 + 4]:
                        fill[ks].append(o) if not is_vm(o) else None
                    first4 = [o for o in r[4:8]]
                    for i, o in enumerate(first4):
                        fill[ks + 1 + i].append(o)
                    carry = r[8:]
            if c == 5 and ks == 8:
                k.need('ast0', 'ast1', 'ast2', 'ast3')
                k.I('s_barrier')
                flag_store(k, 16, ws, 28, 63, 'L_f_fa')
            if c == 6 and ks == 27:
                poll_check_spin(k, 'L_f_sa', 16, ws, 28, 57)
                k.I('s_barrier')
            if c == 6 and ks >= 27:
                for o in act_load(ks - 27):
                    k.I(o)
            if ks + L < 32:
                k.I(wread(c, ks + L))
            elif c < 6:
                k.I(wread(c + 1, ks + L - 32))
            for o in fill[ks]:
                if OPT.get('noepi') and isinstance(o, str) and o.startswith('v_') and c > 0: continue
                if OPT.get('novm') and c > 0 and is_vm(o) and not (isinstance(o, tuple) and o[1].startswith('ast')): continue
                emit(k, o)
            if c == 6 and ks == 14:
                poll_issue(k, 16, ws, 28, 57)
        for o in post:
            emit(k, o)

    k.need('W0')
    k.I('s_waitcnt lgkmcnt(0)')
    k.I('s_barrier')
    for n in range(L):
        k.I(wread(0, n))
    body(0)
    st.stamp()
    for c in range(1, 7):
        body(c)
    st.stamp()
    ops, pre = epilogue_ops(ACCC[0], 6)
    for o in ops:
        emit(k, o)
    for o in act_load(5) + act_load(6) + act_load(7):
        k.I(o)
    st.stamp()

    k.need('ast4', 'ast5', 'ast6')
    k.I('s_barrier')
    k.I('s_add_u32 s63, s63, 32768')
    flag_store(k, 16, ws, 28, 63, 'L_f_fb')
    k.I('s_add_u32 s57, s57, 32768')
    for f in range(16):
        merge(k, d_mfmas(f), act_load(f + AD) if f + AD < 16 else [])
        if f == 9:
            poll_issue(k, 16, ws, 28, 57)
    st.stamp()
    poll_check_spin(k, 'L_f_sb', 16, ws, 28, 57)
    k.I('s_barrier')
    for f in range(16, 16 + AD):
        for o in act_load(f):
            k.I(o)
    for f in range(16, 28):
        merge(k, d_mfmas(f), act_load(f + AD) if f + AD < 28 else [])
    st.stamp()
    k.I('s_mul_i32 s38, s16, 12288')
    k.I('v_add_u32 v10, s38, v2')
    for tp in range(1, 4):
        for q in range(4):
            k.I('ds_write_b128 v10, %s offset:%d' % (vr(DACC[tp] + q * 4, 4), (tp - 1) * 4096 + q * 1024))
    for tp in range(1, 4):
        k.I('s_xor_b32 s38, s16, %d' % tp)
        k.I('s_mul_i32 s38, s38, 12288')
        k.I('s_add_u32 s38, s38, %d' % ((tp - 1) * 4096))
        k.I('v_add_u32 %s, s38, v2' % vr(20 + tp))
    O = DACC[0]
    for j in range(8):
        k.I('v_lshlrev_b32 %s, 16, %s' % (vr(96 + 2 * j), vr(HP + j)))
        k.I('v_and_b32 %s, 0xffff0000, %s' % (vr(96 + 2 * j + 1), vr(HP + j)))
    for i in range(16):
        k.I('v_add_f32 %s, %s, %s' % (vr(O + i), vr(O + i), vr(96 + i)))
    k.I('s_waitcnt lgkmcnt(0)')
    k.I('s_barrier')
    for tp in range(1, 4):
        for q in range(4):
            k.I('ds_read_b128 %s, %s offset:%d' % (vr(DACC[tp] + q * 4, 4), vr(20 + tp), q * 1024))
    for i in range(16):
        k.I('v_add_f32 %s, %s, %s' % (vr(O + i), vr(O + i), vr(DACC[1] + i)))
    for i in range(16):
        k.I('v_add_f32 %s, %s, %s' % (vr(DACC[2] + i), vr(DACC[2] + i), vr(DACC[3] + i)))
    for i in range(16):
        k.I('v_add_f32 %s, %s, %s' % (vr(O + i), vr(O + i), vr(DACC[2] + i)))
    P = 96
    for j in range(8):
        k.I('v_cvt_pk_bf16_f32 %s, %s, %s' % (vr(P + j), vr(O + 2 * j), vr(O + 2 * j + 1)))
    for a in (0, 2):
        b = P + 2 * a
        k.I('v_permlane32_swap_b32 %s, %s' % (vr(b), vr(b + 2)))
        k.I('v_permlane32_swap_b32 %s, %s' % (vr(b + 1), vr(b + 3)))
    k.I('v_lshlrev_b32 v8, 10, v4')
    k.I('v_lshlrev_b32 v9, 4, v6')
    k.I('v_add_u32 v8, v8, v9')
    k.I('buffer_store_dwordx4 %s, v8, %s, s32 offen' % (vr(P, 4), sr(OS, 4)))
    k.I('buffer_store_dwordx4 %s, v8, %s, s32 offen offset:32' % (vr(P + 4, 4), sr(OS, 4)))
    st.stamp(); st.stamp(True)
    if OPT.get('xcc'):
        b = st.base + 2 * st.n
        k.I('s_getreg_b32 s%d, hwreg(HW_REG_XCC_ID)' % b)
        k.I('s_getreg_b32 s%d, hwreg(HW_REG_HW_ID)' % (b + 1))
        st.n += 1
    st.flush()
    if OPT.get('dbgt'):
        k.I('s_sub_u32 s96, s96, 512')
        k.I('s_subb_u32 s97, s97, 0')
        k.I('s_mov_b32 s98, 256')
        k.I('s_mov_b32 s99, 0x00020000')
        gen4.dbg_time(k, 96, 90, 11, 16)
    k.label('L_f_end')
    k.I('s_endpgm')
    return k, dict(lds=163840, grid=256, block=256)


if __name__ == '__main__':
    gen1.STAMPS = len(sys.argv) > 2 and sys.argv[2] == 'stamps'
    for o in sys.argv[3:]:
        if '=' in o:
            kk_, vv_ = o.split('=')
            gen1.OPT[kk_] = tuple(int(x) for x in vv_.split(','))
        else:
            gen1.OPT[o] = True
    gens = [('qkv_kernel', gen_a8), ('bcd_kernel', gen_bcd)]
    ks = []
    for label, g in gens:
        kk, cc = g()
        ks.append((label, kk, cc))
        print(label, kk.stats(), kk.maxreg())
    open(sys.argv[1], 'w').write(wrap(ks))
```

```python
import sys
from asmgen import Kernel
import gen1
from gen1 import *
from gen2 import Sched, xhalf_ops
from gen3 import emit, ln_phi_ops


def APOL():
    return ' sc1' if OPT.get('asc1') else (' nt' if OPT.get('ant') else '')


class Multi:
    def __init__(self, parts):
        self.parts = parts
    def finish(self):
        return '\n'.join(p.finish() for p in self.parts)
    def maxreg(self):
        mx = {'v': -1, 'a': -1, 's': -1}
        for p in self.parts:
            m = p.maxreg()
            for t in mx:
                mx[t] = max(mx[t], m[t])
        return mx
    def stats(self):
        return [p.stats() for p in self.parts]


def pair_signal(flag_lds_sgpr, vtmp, vone):
    return ['v_mov_b32 %s, %s' % (vr(vtmp), sr(flag_lds_sgpr)), 'v_mov_b32 %s, 1' % vr(vone),
            'ds_write_b32 %s, %s' % (vr(vtmp), vr(vone))]


def pair_wait(k, name, flag_lds_sgpr, vtmp, vval, stmp):
    k.I('v_mov_b32 %s, %s' % (vr(vtmp), sr(flag_lds_sgpr)))
    k.label(name)
    k.I('ds_read_b32 %s, %s' % (vr(vval), vr(vtmp)))
    k.I('v_readfirstlane_b32 %s, %s' % (sr(stmp), vr(vval)))
    k.I('s_cmp_eq_u32 %s, 0' % sr(stmp))
    k.I('s_cbranch_scc1 %s' % name)


def q_sync(k, name, addr):
    k.I('v_mov_b32 v22, %d' % addr)
    k.I('v_mov_b32 v23, 1')
    k.I('s_mov_b64 exec, 1')
    k.I('ds_add_u32 v22, v23')
    k.I('s_mov_b64 exec, -1')
    k.label(name)
    k.I('ds_read_b32 v23, v22')
    k.I('v_readfirstlane_b32 s79, v23')
    k.I('s_cmp_lt_u32 s79, 4')
    k.I('s_cbranch_scc1 %s' % name)


def gen_a8():
    kp = Kernel('a_pro')
    k = kp
    XS, WQ, WS, PA, PB, DB = 4, 8, 12, 16, 20, 24
    ws = sr(WS, 4)
    k.I('s_cmp_ge_u32 s2, 256')
    k.I('s_cbranch_scc1 L_a_end')
    load_srds(k, [('x', XS), ('wqkv', WQ), ('ws', WS), ('dbg', DB)])
    k.I('s_load_dwordx2 s[40:41], s[0:1], %d' % KA['wo'])
    k.I('s_load_dwordx4 s[44:47], s[0:1], %d' % KA['wg'])
    k.I('s_load_dwordx2 s[42:43], s[0:1], %d' % KA['wd'])
    if gen1.STAMPS:
        k.I('s_memrealtime s[84:85]')
        k.I('s_memtime s[86:87]')
    k.I('v_and_b32 v1, 63, v0')
    k.I('v_lshrrev_b32 v2, 6, v0')
    k.I('v_readfirstlane_b32 s27, v2')
    k.I('s_mov_b32 s39, s27')
    k.I('s_mov_b32 s27, 0x00020000')
    k.I('s_and_b32 s28, s39, 3')
    k.I('s_and_b32 s34, s2, 7')
    k.I('s_lshr_b32 s35, s2, 3')
    k.I('s_and_b32 s32, s34, 3')
    k.I('s_lshl_b32 s32, s32, 3')
    k.I('s_and_b32 s36, s35, 7')
    k.I('s_add_u32 s32, s32, s36')
    k.I('s_lshr_b32 s33, s34, 2')
    k.I('s_lshl_b32 s33, s33, 2')
    k.I('s_lshr_b32 s36, s35, 3')
    k.I('s_add_u32 s33, s33, s36')
    k.I('s_and_b32 s29, s28, 1')
    k.I('s_lshr_b32 s30, s28, 1')
    k.I('s_xor_b32 s31, s29, s30')
    k.I('s_mov_b32 s70, 0x%x' % ONES_BF16)
    k.I('s_mov_b32 s81, 0x%x' % f2u(1e-6))
    if OPT.get('dbgt'):
        k.I('s_memrealtime s[90:91]')
    k.I('s_cmp_ge_u32 s39, 4')
    k.I('s_cbranch_scc1 L_a_q')

    X, WR = 112, 80
    LA = 4
    E = 131072
    E_ST = E
    E_CS = E + 1024
    E_TB = E + 4096
    E_FL = E + 3072
    E_KV = E + 8192
    WSLOT = {('k', 0): 1, ('k', 1): 3, ('k', 2): 5, ('k', 3): 7, ('v', 0): 0, ('v', 1): 1, ('v', 2): 2, ('v', 3): 3,
             ('q', 0): 4, ('q', 1): 5, ('q', 2): 6, ('q', 3): 7}
    XA = 16
    WE, WO_, WE2, WO2 = 12, 13, 14, 15
    MEAN, RSTD, CK, CV, T0 = 2, 3, 4, 5, 6
    LN16 = 7

    def common_setup(k, need_w_addr=True):
        k.I('v_and_b32 v2, 31, v1')
        k.I('s_lshl_b32 s37, s29, 5')
        k.I('v_add_u32 v2, s37, v2')
        k.I('v_lshlrev_b32 v2, 8, v2')
        k.I('v_lshrrev_b32 v3, 5, v1')
        k.I('v_and_b32 v4, 15, v1')
        k.I('v_xor_b32 v4, v3, v4')
        k.I('v_lshlrev_b32 v4, 4, v4')
        k.I('s_lshl_b32 s37, s31, 5')
        k.I('v_xor_b32 v4, s37, v4')
        for s in range(8):
            k.I('v_xor_b32 v5, %d, v4' % (32 * s))
            k.I('v_add_u32 %s, v2, v5' % vr(XA + s))
        k.I('v_bfe_u32 v4, v1, 2, 2')
        k.I('v_lshl_add_u32 v4, v3, 3, v4')
        k.I('v_lshlrev_b32 v4, 7, v4')
        k.I('v_bfe_u32 v5, v1, 4, 1')
        k.I('v_lshlrev_b32 v5, 1, v5')
        k.I('v_bfe_u32 v6, v1, 1, 1')
        k.I('v_add_u32 v5, v5, v6')
        k.I('s_lshl_b32 s37, s30, 2')
        k.I('v_add_u32 v5, s37, v5')
        k.I('v_bfe_u32 v6, v1, 3, 1')
        k.I('v_lshlrev_b32 v6, 2, v6')
        k.I('v_xor_b32 v5, v5, v6')
        k.I('v_lshlrev_b32 v5, 4, v5')
        k.I('v_and_b32 v6, 1, v1')
        k.I('v_lshlrev_b32 v6, 3, v6')
        k.I('v_add3_u32 v4, v4, v5, v6')
        k.I('s_lshl_b32 s37, s31, 11')
        k.I('v_add_u32 %s, s37, v4' % vr(WE))
        k.I('s_xor_b32 s37, s37, 2048')
        k.I('v_add_u32 %s, s37, v4' % vr(WO_))
        k.I('v_add_u32 %s, 0x10000, %s' % (vr(WE2), vr(WE)))
        k.I('v_add_u32 %s, 0x10000, %s' % (vr(WO2), vr(WO_)))
        k.I('v_bfe_u32 v5, v1, 4, 1')
        k.I('v_and_b32 v6, 1, v1')
        k.I('v_cmp_eq_u32 vcc, v5, v6')
        k.I('v_mov_b32 v5, s70')
        k.I('v_cndmask_b32 v5, 0, v5, vcc')
        for j in range(4):
            k.I('v_accvgpr_write_b32 a%d, v5' % (4 + j))
        k.I('s_lshl_b32 s72, s29, 1')
        k.I('s_add_u32 s73, s72, s30')
        k.I('s_lshl_b32 s73, s73, 8')
        k.I('s_add_u32 s73, s73, %d' % E_ST)
        k.I('s_xor_b32 s74, s73, 256')
        k.I('s_lshl_b32 s75, s30, 1')
        k.I('s_add_u32 s75, s75, s29')
        k.I('s_lshl_b32 s75, s75, 7')
        k.I('s_add_u32 s75, s75, %d' % E_CS)
        k.I('s_xor_b32 s76, s75, 128')
        k.I('s_lshl_b32 s77, s39, 8')
        k.I('s_add_u32 s77, s77, %d' % E_TB)
        k.I('s_lshl_b32 s40, s28, 2')
        k.I('s_add_u32 s40, s40, %d' % E_FL)
        k.I('s_xor_b32 s41, s40, 4')
        k.I('v_and_b32 v0, 31, v1')
        k.I('v_lshlrev_b32 v0, 2, v0')
        k.I('v_and_b32 v26, 16, v1')
        k.I('v_cmp_ne_u32 s[82:83], 0, v26')
        k.I('v_lshlrev_b32 %s, 4, v1' % vr(LN16))

    def xread(n):
        c, s = n // 8, n % 8
        return 'ds_read_b128 %s, %s offset:%d' % (vr(X + 4 * n, 4), vr(XA + s), (c % 2) * 32768)

    def wreads(part, ks):
        c, s = ks // 8, ks % 8
        slot = WSLOT[(part, c)]
        a = ((WE, WO_) if slot < 4 else (WE2, WO2))[s & 1]
        off = (slot % 4) * 16384 + (s & ~1) * 2048
        return ['ds_read_b64_tr_b16 %s, %s offset:%d' % (vr(WR + 4 * s, 2), vr(a), off),
                'ds_read_b64_tr_b16 %s, %s offset:%d' % (vr(WR + 4 * s + 2, 2), vr(a), off + 512)]

    def stats_finish_ops():
        return ['v_lshlrev_b32 v26, 1, v0', 'v_add_u32 v27, s74, v26', 'v_add_u32 v26, s73, v26',
                'ds_read_b64 v[24:25], v26', 'ds_read_b64 v[28:29], v27',
                'v_add_f32 v24, v24, v28', 'v_add_f32 v25, v25, v29',
                'v_mul_f32 %s, 0x%x, v24' % (vr(MEAN), f2u(1.0 / 512)),
                'v_mul_f32 v25, 0x%x, v25' % f2u(1.0 / 512),
                'v_fma_f32 v25, -%s, %s, v25' % (vr(MEAN), vr(MEAN)),
                'v_max_f32 v25, 0, v25', 'v_add_f32 v25, 0x%x, v25' % f2u(1e-5), 'v_rsq_f32 %s, v25' % vr(RSTD)]

    kk = Kernel('a_kv')
    k = kk
    st = Stamper(k, 1, ws, base=88, tmp=40)
    ACK, ACV = 48, 64
    MN, RS = 16, 32
    k.I('s_lshl_b32 s38, s2, 2')
    k.I('s_add_u32 s38, s38, s28')
    k.I('s_mov_b32 s19, 0x00020000')
    k.I('s_mov_b32 s23, 0x00020000')
    if not OPT.get('nocode'):
        k.I('s_getpc_b64 s[34:35]')
        k.label('L_a_pc')
        k.I('s_sub_u32 s34, s34, L_a_pc-qkv_kernel')
        k.I('s_subb_u32 s35, s35, 0')
        k.I('s_lshr_b32 s36, s2, 3')
        k.I('s_lshl_b32 s36, s36, 2')
        k.I('s_add_u32 s36, s36, s28')
        k.I('s_lshl_b32 s36, s36, 10')
        k.I('v_lshlrev_b32 v8, 4, v1')
        k.I('v_add_u32 v8, s36, v8')
        k.I('v_min_u32 v8, L_text_end-qkv_kernel-4, v8')
        k.I('global_load_dword v239, v8, s[34:35]')
    k.I('s_waitcnt lgkmcnt(0)')
    prep_decode(k)
    common_setup(k)
    for j in range(4):
        k.I('v_accvgpr_write_b32 a%d, s70' % j)
    k.I('s_lshl_b32 s37, s33, 2')
    k.I('s_add_u32 s37, s37, s28')
    k.I('s_lshl_b32 s37, s37, 11')
    k.I('s_add_u32 s71, s37, 0x%x' % OFF_KVZ)
    k.I('s_lshl_b32 s78, s33, 2')
    if OPT.get('touch'):
        k.I('s_and_b32 s34, s2, 7')
        k.I('s_lshr_b32 s35, s2, 3')
        k.I('s_and_b32 s36, s34, 3')
        k.I('s_lshl_b32 s36, s36, 19')
        k.I('s_lshl_b32 s37, s35, 14')
        k.I('s_add_u32 s36, s36, s37')
        k.I('s_lshl_b32 s37, s28, 12')
        k.I('s_add_u32 s36, s36, s37')
        k.I('v_lshlrev_b32 v8, 4, v1')
        for t in range(4):
            k.I('buffer_load_dword %s, v8, %s, s36 offen offset:%d' % (vr(220 + t), sr(XS, 4), t * 1024))
        k.I('v_lshrrev_b32 v9, 5, v1')
        k.I('s_movk_i32 s37, 3072')
        k.I('v_mul_lo_u32 v9, v9, s37')
        k.I('v_and_b32 v10, 31, v1')
        k.I('v_lshl_add_u32 v9, v10, 4, v9')
        k.I('s_lshl_b32 s35, s35, 4')
        k.I('s_lshl_b32 s37, s28, 2')
        k.I('s_add_u32 s35, s35, s37')
        k.I('s_mul_i32 s35, s35, 3072')
        k.I('s_lshr_b32 s34, s34, 2')
        k.I('s_lshl_b32 s34, s34, 9')
        k.I('s_add_u32 s35, s35, s34')
        for hh in range(2):
            for p in range(3):
                k.I('s_add_u32 s34, s35, %d' % (hh * 2 * 3072))
                k.I('buffer_load_dword %s, v9, %s, s34 offen offset:%d' % (vr(224 + hh * 3 + p), sr(WQ, 4), p * 1024))
        k.I('v_lshrrev_b32 v10, 3, v1')
        k.I('v_mul_lo_u32 v10, v10, s50')
        k.I('v_and_b32 v9, 7, v1')
        k.I('v_lshl_add_u32 v10, v9, 4, v10')
        k.I('s_lshl_b32 s36, s50, 3')
        k.I('s_mov_b32 s34, s48')
        k.I('s_mov_b32 s35, s49')
        for t in range(4):
            k.I('buffer_load_dword %s, v10, %s, s34 offen' % (vr(230 + t), sr(PA, 4)))
            k.I('buffer_load_dword %s, v10, %s, s35 offen' % (vr(234 + t), sr(PB, 4)))
            k.I('s_add_u32 s34, s34, s36')
            k.I('s_add_u32 s35, s35, s36')
    k.I('v_lshlrev_b32 v8, 2, v1')
    k.I('v_add_u32 v8, %d, v8' % E_FL)
    k.I('v_mov_b32 v9, 0')
    k.I('v_cmp_gt_u32 vcc, 16, v1')
    k.I('s_and_saveexec_b64 s[60:61], vcc')
    k.I('ds_write_b32 v8, v9')
    k.I('s_mov_b64 exec, s[60:61]')
    k.I('s_waitcnt lgkmcnt(0)')
    S = Sched(64)
    GS = [0, 8, 16, 24, 32, 48]
    pre = ['s_barrier']
    for n in range(LA):
        pre += [xread(n)] + wreads('k', n)
    for g in range(1, 6):
        if g == 5 and not OPT.get('oldbar'):
            continue
        S.at(GS[g] - LA - 1, ['s_barrier'])
    if OPT.get('oldbar'):
        S.at(47, ['s_barrier'])
        S.at(62, ['s_barrier'])
    for n in range(64):
        part = 'kv'[n // 32]
        s = n % 8
        m = n + LA
        if m < 64:
            if m == 16:
                S.at(n, ['v_add_u32 %s, 0x10000, %s' % (vr(XA + t), vr(XA + t)) for t in range(8)])
            S.at(n, ([xread(m)] if m < 32 else []) + wreads('kv'[m // 32], m % 32))
        if s % 2 == 0:
            ca = ar(8 + 4 * (n // 32), 4)
            S.at(n, ['v_mfma_f32_16x16x32_bf16 %s, a[4:7], %s, %s' % (ca, vr(WR + 4 * s, 4), '0' if n % 32 == 0 else ca)])

    if not OPT.get('oldbar'):
        S.at(43, ['s_waitcnt lgkmcnt(0)', 's_barrier'])

    def lane_form(dst, a0, tmp):
        return ['v_accvgpr_read_b32 %s, a%d' % (vr(dst), a0), 'v_accvgpr_read_b32 %s, a%d' % (vr(tmp), a0 + 1),
                'v_cndmask_b32 %s, %s, %s, s[82:83]' % (vr(dst), vr(dst), vr(tmp))]
    S.at(31, lane_form(CK, 8, 27) + ['v_add_u32 v26, s75, v0', 'ds_write_b32 v26, %s' % vr(CK), 's_waitcnt lgkmcnt(0)'])
    S.at(33, ['s_barrier', 'v_add_u32 v26, s76, v0', 'ds_read_b32 v30, v26'] + stats_finish_ops() +
         ['v_add_f32 %s, %s, v30' % (vr(CK), vr(CK)),
          'v_add_u32 v26, s77, v0', 'ds_write_b32 v26, %s' % vr(MEAN), 'ds_write_b32 v26, %s offset:128' % vr(RSTD),
          'v_lshrrev_b32 v26, 5, v1', 'v_lshlrev_b32 v26, 4, v26', 'v_add_u32 %s, s77, v26' % vr(T0)])
    rd = []
    for a in range(4):
        rd.append('ds_read_b128 %s, %s offset:%d' % (vr(MN + 4 * a, 4), vr(T0), a * 32))
        rd.append('ds_read_b128 %s, %s offset:%d' % (vr(RS + 4 * a, 4), vr(T0), 128 + a * 32))
    S.at(34, rd)
    ke = []
    for i in range(0, 16, 2):
        ke += ln_phi_ops([ACK + i, ACK + i + 1], [MN + i, MN + i + 1], [CK, CK], [RS + i, RS + i + 1], [8, 9])
        ke.append('v_cvt_pk_bf16_f32 %s, %s, %s' % (vr(ACK + i // 2), vr(ACK + i), vr(ACK + i + 1)))
    S.spread(36, 61, ke)
    if OPT.get('touch2'):
        tp = ['s_lshr_b32 s35, s2, 3', 's_lshl_b32 s35, s35, 4', 's_lshl_b32 s34, s28, 2', 's_add_u32 s35, s35, s34',
              's_mul_i32 s35, s35, 3072', 's_and_b32 s34, s2, 7', 's_lshr_b32 s34, s34, 2', 's_lshl_b32 s34, s34, 9',
              's_add_u32 s35, s35, s34',
              'v_lshrrev_b32 v9, 5, v1', 'v_mul_u32_u24 v9, 0xc00, v9', 'v_and_b32 v8, 31, v1', 'v_lshl_add_u32 v9, v8, 4, v9']
        for hh in range(2):
            tp.append('s_add_u32 s34, s35, %d' % (hh * 2 * 3072))
            tp.append('buffer_load_dword %s, v9, %s, s34 offen offset:2048' % (vr(64 + hh * 2), sr(WQ, 4)))
            tp.append('buffer_load_dword %s, v9, %s, s34 offen' % (vr(65 + hh * 2), sr(WQ, 4)))
        if OPT.get('touch3'):
            tp += ['v_lshrrev_b32 v9, 3, v1', 'v_mul_lo_u32 v9, v9, s50', 'v_and_b32 v8, 7, v1', 'v_lshl_add_u32 v9, v8, 4, v9',
                   's_lshl_b32 s36, s50, 3', 's_mov_b32 s34, s48', 's_mov_b32 s35, s49']
            for t in range(4):
                tp.append('buffer_load_dword %s, v9, %s, s34 offen' % (vr(68 + t), sr(PA, 4)))
                tp.append('buffer_load_dword %s, v9, %s, s35 offen' % (vr(72 + t), sr(PB, 4)))
                tp.append('s_add_u32 s34, s34, s36')
                tp.append('s_add_u32 s35, s35, s36')
        S.spread(OPT.get('tpos', (1,))[0], OPT.get('tpos', (1,))[0] + 14, tp)
    S.at(46 if OPT.get('oldbar') else 42, ['v_mov_b32 v6, 0', 'buffer_load_dword v11, v6, %s, s78 offen sc1' % sr(DB, 4)])
    pd = ['v_lshrrev_b32 v10, 3, v1', 'v_mul_lo_u32 v10, v10, s50', 'v_and_b32 v6, 7, v1', 'v_lshlrev_b32 v6, 4, v6',
          'v_add_u32 v10, v10, v6', 's_lshl_b32 s80, s50, 3', 's_lshl_b32 s79, s28, 13']
    for t in range(8):
        base = 's48' if t < 4 else 's49'
        pd.append('s_add_u32 m0, s79, %d' % (t * 1024))
        pd.append(('buffer_load_dwordx4 v10, %s, %s offen lds' % (sr(PA if t < 4 else PB, 4), base), 'prep'))
        pd.append('s_add_u32 %s, %s, s80' % (base, base))
    S.spread(OPT.get('ppos', (52,))[0], 63, pd)
    for o in pre:
        emit(k, o)
    st.stamp()
    for n in range(64):
        part, ks = n // 32, n % 32
        acc = vr([ACK, ACV][part], 16)
        if n % 2 == 0:
            k.touch(vr(WR + 4 * ((n + 1) % 8), 4))
            if part == 0:
                k.touch(vr(X + 4 * (ks + 1), 4))
        k.I('v_mfma_f32_32x32x16_bf16 %s, %s, %s, %s' % (acc, vr(X + 4 * ks, 4), vr(WR + 4 * (n % 8), 4), acc if ks else '0'))
        for o in S.slots[n]:
            emit(k, o)
        if n in OPT.get('kvat', (31,)):
            st.stamp()
    st.stamp()
    TT = ACK + 8
    PF = X
    PAD = [X + 32 + f for f in range(8)]
    for o in lane_form(CV, 12, TT) + ['v_add_u32 %s, s75, v0' % vr(TT), 'ds_write_b32 %s, %s offset:512' % (vr(TT), vr(CV))] + \
            pair_signal(40, TT + 1, TT + 2):
        emit(k, o)
    p0, p1 = PAD[0], PAD[1]
    for o in ['v_bfe_u32 %s, v1, 2, 2' % vr(p0), 'v_lshrrev_b32 %s, 5, v1' % vr(p1), 'v_lshl_add_u32 %s, %s, 2, %s' % (vr(p0), vr(p1), vr(p0)),
              'v_lshlrev_b32 %s, 7, %s' % (vr(p0), vr(p0)), 'v_and_b32 %s, 3, v1' % vr(p1), 'v_lshl_add_u32 %s, %s, 3, %s' % (vr(p0), vr(p1), vr(p0)),
              'v_bfe_u32 %s, v1, 4, 1' % vr(p1),
              's_cmp_eq_u32 s68, 1', 's_cselect_b32 s79, 12, 5', 's_cselect_b32 s60, 32, 64', 's_cselect_b32 s61, 64, 2048',
              's_cselect_b32 s62, 11, 12', 's_lshl_b32 s62, 1, s62',
              'v_lshlrev_b32 %s, s79, %s' % (vr(p1), vr(p1)), 's_lshl_b32 s80, s28, 13',
              'v_add3_u32 %s, %s, %s, s80' % (vr(p0), vr(p0), vr(p1)),
              'v_add_u32 %s, s60, %s' % (vr(PAD[1]), vr(p0)), 'v_add_u32 %s, s61, %s' % (vr(PAD[2]), vr(p0)),
              'v_add_u32 %s, s61, %s' % (vr(PAD[3]), vr(PAD[1]))]:
        k.I(o)
    for f in range(4):
        k.I('v_add_u32 %s, s62, %s' % (vr(PAD[4 + f]), vr(PAD[f])))
    pair_wait(k, 'L_a_pw0', 41, TT + 1, TT + 2, 79)
    for o in ['v_add_u32 %s, s76, v0' % vr(TT), 'ds_read_b32 %s, %s offset:512' % (vr(TT + 1), vr(TT)),
              'v_add_f32 %s, %s, %s' % (vr(CV), vr(CV), vr(TT + 1))]:
        emit(k, o)
    ve = []
    for i in range(16):
        ve.append('v_fma_f32 %s, -%s, %s, %s' % (vr(ACV + i), vr(MN + i), vr(CV), vr(ACV + i)))
    for i in range(16):
        ve.append('v_mul_f32 %s, %s, %s' % (vr(ACV + i), vr(RS + i), vr(ACV + i)))
    for j in range(8):
        ve.append('v_cvt_pk_bf16_f32 %s, %s, %s' % (vr(ACV + j), vr(ACV + 2 * j), vr(ACV + 2 * j + 1)))
    for o in ve:
        k.I(o)
    DKV, DZ = 16, 32
    k.I('v_mfma_f32_32x32x16_bf16 %s, %s, %s, 0' % (vr(DKV, 16), vr(ACK, 4), vr(ACV, 4)))
    k.I('v_mfma_f32_32x32x16_bf16 %s, %s, a[0:3], 0' % (vr(DZ, 16), vr(ACK, 4)))
    k.I('v_mfma_f32_32x32x16_bf16 %s, %s, %s, %s' % (vr(DKV, 16), vr(ACK + 4, 4), vr(ACV + 4, 4), vr(DKV, 16)))
    k.I('v_mfma_f32_32x32x16_bf16 %s, %s, a[0:3], %s' % (vr(DZ, 16), vr(ACK + 4, 4), vr(DZ, 16)))
    for o in ['v_and_b32 %s, 16, v1' % vr(TT), 'v_lshlrev_b32 %s, 7, %s' % (vr(TT), vr(TT)),
              'v_lshrrev_b32 %s, 5, v1' % vr(TT + 1), 'v_lshlrev_b32 %s, 10, %s' % (vr(TT + 1), vr(TT + 1)),
              's_lshl_b32 s79, s30, 1', 's_add_u32 s79, s79, s29', 's_lshl_b32 s79, s79, 12', 's_add_u32 s79, s79, %d' % E_KV,
              'v_add3_u32 %s, %s, %s, s79' % (vr(TT), vr(TT), vr(TT + 1)),
              'v_and_b32 %s, 15, v1' % vr(TT + 1), 'v_lshl_add_u32 %s, %s, 5, %s' % (vr(TT + 2), vr(TT + 1), vr(TT)),
              's_add_u32 s40, s40, 16', 's_add_u32 s41, s41, 16']:
        emit(k, o)
    for j in range(8):
        k.I('v_cndmask_b32 %s, %s, %s, s[82:83]' % (vr(DKV + j), vr(DKV + j), vr(DKV + 8 + j)))
    for j in range(8):
        k.I('v_cndmask_b32 %s, %s, %s, s[82:83]' % (vr(DZ + j), vr(DZ + j), vr(DZ + 8 + j)))
    for o in ['ds_write_b128 %s, %s' % (vr(TT + 2), vr(DKV, 4)), 'ds_write_b128 %s, %s offset:16' % (vr(TT + 2), vr(DKV + 4, 4)),
              'v_cmp_eq_u32 vcc, 0, %s' % vr(TT + 1), 's_and_saveexec_b64 s[60:61], vcc',
              'ds_write_b128 %s, %s offset:512' % (vr(TT), vr(DZ, 4)), 'ds_write_b128 %s, %s offset:528' % (vr(TT), vr(DZ + 4, 4)),
              's_mov_b64 exec, s[60:61]'] + pair_signal(40, TT + 1, TT + 2) + \
            ['s_lshl_b32 s79, s30, 13', 's_lshl_b32 s80, s29, 11', 's_add_u32 s79, s79, s80', 's_add_u32 s79, s79, %d' % E_KV]:
        emit(k, o)
    k.I('v_readfirstlane_b32 s80, v11')
    k.I('s_cmp_eq_u32 s80, 0')
    k.I('s_cbranch_scc1 L_a_spin')
    k.label('L_a_go')
    pair_wait(k, 'L_a_pw1', 41, TT + 1, TT + 2, 80)
    k.I('v_lshlrev_b32 %s, 2, v1' % vr(TT))
    k.I('v_add_u32 %s, s79, %s' % (vr(TT + 1), vr(TT)))
    for half in range(2):
        for ch in range(3):
            d = 16 + (half * 3 + ch) * 2
            off = half * 1024 + ch * 256
            k.I('ds_read_b32 %s, %s offset:%d' % (vr(d), vr(TT + 1), off))
            k.I('ds_read_b32 %s, %s offset:%d' % (vr(d + 1), vr(TT + 1), off + 4096))
    k.need('prep')
    for f in range(8):
        k.I('ds_read_b64_tr_b16 %s, %s' % (vr(PF + 4 * f, 2), vr(PAD[f])))
        k.I('ds_read_b64_tr_b16 %s, %s offset:1024' % (vr(PF + 4 * f + 2, 2), vr(PAD[f])))
    for half in range(2):
        for ch in range(3):
            d = 16 + (half * 3 + ch) * 2
            k.I('v_add_f32 %s, %s, %s' % (vr(d), vr(d), vr(d + 1)))
    for half in range(2):
        for ch in range(2):
            d = 16 + (half * 3 + ch) * 2
            k.I('buffer_atomic_add_f32 %s, %s, %s, s71 offen offset:%d' % (vr(d), vr(TT), ws, half * 1024 + ch * 256))
    k.I('v_cmp_gt_u32 vcc, 8, v1')
    k.I('s_and_saveexec_b64 s[60:61], vcc')
    for half in range(2):
        d = 16 + (half * 3 + 2) * 2
        k.I('buffer_atomic_add_f32 %s, %s, %s, s71 offen offset:%d' % (vr(d), vr(TT), ws, half * 1024 + 512))
    k.I('s_mov_b64 exec, s[60:61]')
    if len(OPT.get('kvat', (31,))) < 2: st.stamp()
    for f in range(8):
        k.I('buffer_store_dwordx4 %s, %s, %s, %s offen%s' % (vr(PF + 4 * f, 4), vr(LN16), ws, sr(51 + f), APOL()))
        ca = vr(32 + 4 * (f & 3), 4)
        k.I('v_mfma_f32_16x16x32_bf16 %s, a[4:7], %s, %s' % (ca, vr(PF + 4 * f, 4), '0' if f < 4 else ca))
    for c in range(4):
        k.I('v_cndmask_b32 %s, %s, %s, s[82:83]' % (vr(48 + c), vr(32 + 4 * c), vr(33 + 4 * c)))
        k.I('buffer_store_dword %s, v0, %s, s59 offen offset:%d' % (vr(48 + c), ws, c * 128))
    if gen1.STAMPS:
        k.I('s_mov_b32 s88, s88') if False else None
        k.I('v_lshl_add_u32 v4, s39, 6, v1')
        st.tid = 'v4'
        st.stamp(); st.stamp(True)
        flush_stamps(k, st, ws, 1)
    if OPT.get('dbgt'):
        dbg_time(k, 24, 90, 8, 28)
    k.label('L_a_end')
    k.I('s_endpgm')
    k.raw('''L_a_spin:
    s_sleep 2
    v_mov_b32 v6, 0
    buffer_load_dword v11, v6, s[%d:%d], s78 offen sc1
    s_waitcnt vmcnt(0)
    v_readfirstlane_b32 s80, v11
    s_nop 3
    s_cmp_eq_u32 s80, 0
    s_cbranch_scc1 L_a_spin
    s_branch L_a_go
''' % (DB, DB + 3))

    kq = Kernel('a_q')
    k = kq
    k.label('L_a_q')
    stq = Stamper(k, 5, ws, base=88, tmp=40)
    ACQ = 48
    k.I('s_lshl_b32 s34, s28, 12')
    k.I('s_lshl_b32 s35, s32, 16')
    k.I('s_mul_i32 s36, s28, %d' % (32 * 3072))
    k.I('s_lshl_b32 s37, s33, 7')
    k.I('s_add_u32 s36, s36, s37')
    k.I('s_add_u32 s38, s32, s33')
    if OPT.get('norot'):
        k.I('s_mov_b32 s38, 0')
    for c in range(4):
        k.I('s_add_u32 s37, s38, %d' % c)
        k.I('s_and_b32 s37, s37, 3')
        k.I('s_lshl_b32 %s, s37, 8' % sr(60 + c))
        k.I('s_add_u32 %s, %s, s35' % (sr(60 + c), sr(60 + c)))
        k.I('s_mul_i32 %s, s37, %d' % (sr(64 + c), 128 * 3072))
        k.I('s_add_u32 %s, %s, s36' % (sr(64 + c), sr(64 + c)))
    XV = [32, 33, 34, 35]
    WV = [8, 9, 10, 11]
    k.I('v_lshrrev_b32 v2, 4, v1')
    k.I('v_and_b32 v3, 15, v1')
    k.I('s_lshl_b32 s37, s28, 4')
    for j in range(4):
        k.I('v_add_u32 v4, %d, v2' % (4 * j))
        k.I('v_xor_b32 v5, v3, v4')
        k.I('v_lshlrev_b32 v5, 4, v5')
        k.I('v_add_u32 v4, s37, v4')
        k.I('v_lshlrev_b32 v4, 10, v4')
        k.I('v_add_u32 v4, v4, v5')
        k.I('v_subrev_u32 %s, %d, v4' % (vr(XV[j]), j * 1024))
    k.I('v_lshrrev_b32 v4, 3, v1')
    k.I('s_movk_i32 s37, 3072')
    k.I('v_mul_lo_u32 v4, v4, s37')
    k.I('v_and_b32 v5, 1, v2')
    k.I('v_lshlrev_b32 v5, 2, v5')
    k.I('v_and_b32 v6, 7, v1')
    k.I('v_xor_b32 v5, v5, v6')
    k.I('v_lshlrev_b32 v5, 4, v5')
    k.I('v_add_u32 v8, v4, v5')
    for j in range(1, 4):
        k.I('v_add_u32 %s, %d, v8' % (vr(WV[j]), j * (8 * 3072 - 1024)))
    k.I('v_lshlrev_b32 %s, 4, v1' % vr(LN16))
    for j in range(4):
        k.I('v_mov_b32 %s, 0' % vr(40 + j))
    k.I('s_lshl_b32 s37, s33, 2')
    k.I('s_add_u32 s37, s37, s28')
    k.I('s_lshl_b32 s37, s37, 11')
    k.I('s_add_u32 s71, s37, 0x%x' % OFF_KVZ)
    k.I('s_cmp_eq_u32 s32, 0')
    k.I('s_cselect_b32 s37, s71, 0x7fff0000')
    k.I('s_waitcnt lgkmcnt(0)')
    if OPT.get('qpro'): stq.stamp()
    k.I('buffer_store_dwordx4 v[40:43], %s, %s, s37 offen sc1' % (vr(LN16), ws), w=['zero'])
    k.I('buffer_store_dwordx4 v[40:43], %s, %s, s37 offen offset:1024 sc1' % (vr(LN16), ws), w=['zero'])
    k.I('s_lshl_b32 s37, s2, 7')
    k.I('s_lshl_b32 s38, s28, 15')
    k.I('s_add_u32 s37, s37, s38')
    k.I('s_add_u32 s37, s37, 0x%x' % OFF_CNT)
    k.I('s_cmp_lt_u32 s28, 3')
    k.I('s_cselect_b32 s37, s37, 0x7fff0000')
    k.I('v_and_b32 v41, 15, v1')
    k.I('v_lshlrev_b32 v41, 2, v41')
    k.I('buffer_store_dword v40, v41, %s, s37 offen' % ws)

    def dma_x_ops(c, slot):
        ops = ['s_add_u32 m0, s34, %d' % (slot * 16384)]
        for j in range(4):
            ops.append(('buffer_load_dwordx4 %s, %s, %s offen offset:%d lds' % (vr(XV[j]), sr(XS, 4), sr(60 + c), j * 1024), 'X%d' % c))
        return ops
    PARTCOL = {'q': 0, 'k': 1024, 'v': 2048}

    def dma_w_ops(part, c, slot):
        ops = ['s_add_u32 m0, s34, %d' % (slot * 16384), 's_add_u32 s69, %s, %d' % (sr(64 + c), PARTCOL[part])]
        for j in range(4):
            ops.append(('buffer_load_dwordx4 %s, %s, s69 offen offset:%d lds' % (vr(WV[j]), sr(WQ, 4), j * 1024), 'W%s%d' % (part, c)))
        return ops
    def interleave(a, b, ratio=None):
        nv = sum(1 for o in a if isinstance(o, tuple))
        out, ib, seen = [], 0, 0
        for o in a:
            out.append(o)
            if isinstance(o, tuple):
                seen += 1
                upto = len(b) * seen // nv
                out += b[ib:upto]
                ib = upto
        return out + b[ib:]
    grp = lambda c: dma_x_ops(c, 2 * c) + dma_w_ops('k', c, 2 * c + 1)
    for o in grp(0):
        emit(k, o)
    if OPT.get('qpro'): stq.stamp()
    ktmp = Kernel('tmp')
    common_setup(ktmp)
    setup_ops = [it.text for it in ktmp.items]
    for o in interleave(grp(1), setup_ops):
        emit(k, o)
    stq.stamp()
    SQ = 24
    SQ4 = [24, 25, 28, 29]
    for r_ in SQ4:
        k.I('v_mov_b32 %s, 0' % vr(r_))
    nextdma = {0: grp(2), 1: grp(3), 2: dma_w_ops('v', 0, 0) + dma_w_ops('v', 1, 1), 3: dma_w_ops('v', 2, 2) + dma_w_ops('v', 3, 3)}
    for g in range(4):
        if OPT.get('qg') == (g,): stq.stamp()
        k.need(*(['X%d' % g, 'Wk%d' % g] + (['zero'] if g == 0 else [])))
        if OPT.get('qg') == (g,) or (OPT.get('qpro') and g == 0): stq.stamp()
        k.I('s_barrier')
        if OPT.get('qg') == (g,): stq.stamp()
        work = []
        if g == 0:
            work += ['s_or_b32 s38, s32, s28', 's_cmp_eq_u32 s38, 0', 's_cselect_b32 s38, 0, 0x1000',
                     'v_lshlrev_b32 v26, 12, v1', 's_lshl_b32 s78, s33, 2', 'v_add_u32 v26, s78, v26', 'v_mov_b32 v27, 1']
        if g == 2:
            work += ['v_add_u32 %s, 0x10000, %s' % (vr(XA + t), vr(XA + t)) for t in range(8)]
        work += [xread(8 * g + s) for s in range(8)]
        for s in range(0, 8, 2):
            n = 8 * g + s
            work.append('v_mfma_f32_16x16x32_bf16 a[8:11], a[4:7], %s, %s' % (vr(X + 4 * n, 4), '0' if n == 0 else 'a[8:11]'))
            for j in range(4):
                xr = X + 4 * n + j
                work.append('v_dot2c_f32_bf16 %s, %s, %s' % (vr(SQ4[j]), vr(xr), vr(xr)))
        if OPT.get('noqwork'):
            work = [w for w in work if not (w.startswith('v_mfma') or w.startswith('v_dot2c'))]
        if OPT.get('qafter'):
            for o in nextdma[g] + work:
                emit(k, o)
        else:
            for o in interleave(nextdma[g], work):
                emit(k, o)
        if OPT.get('qg') == (g,): stq.stamp()
        if g == 0:
            k.I('buffer_store_dword v27, v26, %s, s38 offen sc1' % sr(DB, 4))
    if not (OPT.get('qpro') or OPT.get('qg')): stq.stamp()
    k.need('Wv0', 'Wv1')
    k.I('s_waitcnt lgkmcnt(0)')
    k.I('s_barrier')
    for o in dma_w_ops('q', 0, 4) + dma_w_ops('q', 1, 5):
        emit(k, o)
    for o in ['v_add_f32 v24, v24, v28', 'v_add_f32 v25, v25, v29', 'v_add_f32 v25, v24, v25'] + xhalf_ops(25, 26) + \
            ['v_accvgpr_read_b32 v24, a8', 'v_accvgpr_read_b32 v27, a9', 'v_cndmask_b32 v24, v24, v27, s[82:83]',
             'v_lshlrev_b32 v26, 1, v0', 'v_add_u32 v26, s73, v26', 'ds_write_b64 v26, v[24:25]', 's_waitcnt lgkmcnt(0)',
             's_barrier'] + stats_finish_ops():
        emit(k, o)
    for o in dma_w_ops('q', 2, 6) + dma_w_ops('q', 3, 7):
        emit(k, o)
    k.need('Wv2', 'Wv3')
    k.I('s_barrier')
    k.need('Wq0', 'Wq1')
    if OPT.get('oldbar'):
        k.I('s_barrier')
    else:
        q_sync(k, 'L_a_qs0', E_FL + 48)
    if not (OPT.get('qpro') or OPT.get('qg')): stq.stamp()
    for n in range(LA):
        for o in wreads('q', n):
            k.I(o)
    for n in range(32):
        if n % 2 == 0:
            k.touch(vr(WR + 4 * ((n + 1) % 8), 4))
        acc = vr(ACQ, 16)
        k.I('v_mfma_f32_32x32x16_bf16 %s, %s, %s, %s' % (acc, vr(WR + 4 * (n % 8), 4), vr(X + 4 * n, 4), acc if n else '0'))
        if n == 16 - LA - 1:
            k.need('Wq2', 'Wq3')
            if OPT.get('oldbar'):
                k.I('s_barrier')
            else:
                q_sync(k, 'L_a_qs1', E_FL + 52)
        if n + LA < 32:
            for o in wreads('q', n + LA):
                k.I(o)
        if n % 2 == 0:
            k.I('v_mfma_f32_16x16x32_bf16 a[12:15], a[4:7], %s, %s' % (vr(WR + 4 * (n % 8), 4), '0' if n == 0 else 'a[12:15]'))
    if not (OPT.get('qpro') or OPT.get('qg')): stq.stamp()
    CSQ = 64
    for o in ['v_accvgpr_read_b32 %s, a12' % vr(CSQ), 'v_accvgpr_read_b32 %s, a13' % vr(CSQ + 1),
              'v_cndmask_b32 %s, %s, %s, s[82:83]' % (vr(CSQ), vr(CSQ), vr(CSQ + 1)),
              'v_add_u32 %s, s75, v0' % vr(CSQ + 1), 'ds_write_b32 %s, %s offset:1024' % (vr(CSQ + 1), vr(CSQ)),
              's_add_u32 s40, s40, 32', 's_add_u32 s41, s41, 32'] + pair_signal(40, CSQ + 1, CSQ + 2) + \
             ['v_lshrrev_b32 v20, 5, v1', 'v_lshlrev_b32 v20, 4, v20', 'v_add_u32 v21, s76, v20', 'v_add_u32 v20, s75, v20']:
        k.I(o)
    pair_wait(k, 'L_a_pw2', 41, CSQ + 1, CSQ + 2, 79)
    CQ, CQ2 = 24, 64
    for a in range(4):
        k.I('ds_read_b128 %s, v20 offset:%d' % (vr(CQ + 4 * a, 4), 1024 + a * 32))
        k.I('ds_read_b128 %s, v21 offset:%d' % (vr(CQ2 + 4 * a, 4), 1024 + a * 32))
    for i in range(16):
        k.I('v_add_f32 %s, %s, %s' % (vr(CQ + i), vr(CQ + i), vr(CQ2 + i)))
    for i in range(0, 16, 2):
        for o in ln_phi_ops([ACQ + i, ACQ + i + 1], [MEAN, MEAN], [CQ + i, CQ + i + 1], [RSTD, RSTD], [22, 23]):
            k.I(o)
        k.I('v_cvt_pk_bf16_f32 %s, %s, %s' % (vr(ACQ + i // 2), vr(ACQ + i), vr(ACQ + i + 1)))
    for o in ['s_lshl_b32 s79, s32, 1', 's_add_u32 s79, s79, s29', 's_lshl_b32 s79, s79, 5', 's_lshl_b32 s80, s33, 2',
              's_add_u32 s79, s79, s80', 's_lshl_b32 s80, s30, 1', 's_add_u32 s79, s79, s80', 's_lshl_b32 s79, s79, 10',
              's_add_u32 s79, s79, 0x%x' % OFF_PQ]:
        k.I(o)
    k.I('buffer_store_dwordx4 %s, %s, %s, s79 offen%s' % (vr(ACQ, 4), vr(LN16), ws, APOL()))
    k.I('buffer_store_dwordx4 %s, %s, %s, s79 offen offset:1024%s' % (vr(ACQ + 4, 4), vr(LN16), ws, APOL()))
    if gen1.STAMPS:
        k.I('v_lshl_add_u32 v4, s39, 6, v1')
        k.I('v_subrev_u32 v4, 256, v4')
        stq.tid = 'v4'
        stq.stamp(); stq.stamp(True)
        flush_stamps(k, stq, ws, 5)
    if OPT.get('dbgt'):
        dbg_time(k, 24, 90, 8, 28)
    k.I('s_endpgm')
    return Multi([kp, kq_first(kk, kq)[0], kq_first(kk, kq)[1]]), dict(lds=131072 + 8192 + 16384, grid=256, block=512)


def dbg_time(k, DB, s_start, slot, s_wave):
    k.I('s_memrealtime s[92:93]')
    k.I('s_waitcnt lgkmcnt(0)')
    k.I('s_not_b32 s94, s%d' % s_start)
    k.I('s_mov_b64 exec, 1')
    k.I('v_mov_b32 v0, 0')
    k.I('v_mov_b32 v2, s94')
    k.I('v_mov_b32 v3, s%d' % s_start)
    k.I('v_mov_b32 v4, s92')
    k.I('buffer_atomic_umax v2, v0, %s, 0 offen offset:%d' % (sr(DB, 4), slot * 4))
    k.I('buffer_atomic_umax v3, v0, %s, 0 offen offset:%d' % (sr(DB, 4), slot * 4 + 4))
    k.I('buffer_atomic_umax v4, v0, %s, 0 offen offset:%d' % (sr(DB, 4), slot * 4 + 8))


def kq_first(kk, kq):
    return kk, kq


def flush_stamps(k, st, ws, kidx):
    k.I('s_waitcnt lgkmcnt(0)')
    k.I('v_cmp_eq_u32 vcc, 0, %s' % st.tid)
    k.I('s_and_saveexec_b64 s[40:41], vcc')
    k.I('s_lshl_b32 s42, s2, 7')
    k.I('s_add_u32 s42, s42, 0x%x' % (OFF_TS + kidx * 256 * 128))
    k.I('v_mov_b32 v0, 0')
    regs = [84, 86] + [st.base + 2 * i for i in range(st.n)]
    for i, r in enumerate(regs):
        k.I('v_mov_b32 v2, s%d' % r)
        k.I('v_mov_b32 v3, s%d' % (r + 1))
        k.I('buffer_store_dwordx2 v[2:3], v0, %s, s42 offen offset:%d' % (ws, 8 * i))
    k.I('s_mov_b64 exec, s[40:41]')


def prep_decode(k):
    k.I('s_cmp_ge_u32 s38, 448')
    k.I('s_cbranch_scc1 L_a_pstd')
    div_const(k, 37, 38, 28, 48)
    k.I('s_mul_i32 s48, s37, 28')
    k.I('s_sub_u32 s69, s38, s48')
    k.I('s_mov_b32 s16, s44')
    k.I('s_mov_b32 s17, s45')
    k.I('s_mov_b32 s18, 0x%x' % SZ['wg'])
    k.I('s_mov_b32 s20, s46')
    k.I('s_mov_b32 s21, s47')
    k.I('s_mov_b32 s22, 0x%x' % SZ['wu'])
    k.I('s_movk_i32 s50, 3584')
    k.I('s_mul_i32 s48, s37, %d' % (32 * 3584))
    k.I('s_lshl_b32 s49, s69, 7')
    k.I('s_add_u32 s48, s48, s49')
    k.I('s_mov_b32 s49, s48')
    k.I('s_lshl_b32 s59, s69, 7')
    k.I('s_lshl_b32 s51, s37, 1')
    k.I('s_add_u32 s59, s59, s51')
    k.I('s_lshl_b32 s59, s59, 10')
    k.I('s_add_u32 s72, s59, 0x%x' % OFF_WGU)
    k.I('s_mov_b32 s73, %d' % (32 * 1024))
    k.I('s_mov_b32 s74, %d' % (64 * 1024))
    k.I('s_mov_b32 s75, 1024')
    k.I('s_mul_i32 s59, s37, %d' % (112 * 128))
    k.I('s_lshl_b32 s69, s69, 9')
    k.I('s_add_u32 s59, s59, s69')
    k.I('s_add_u32 s59, s59, 0x%x' % OFF_CSG)
    k.I('s_mov_b32 s68, 1')
    k.I('s_branch L_a_pgo')
    k.label('L_a_pstd')
    k.I('s_movk_i32 s50, 1024')
    k.I('s_mov_b32 s68, 0')
    k.I('s_mov_b32 s59, 0x7fff0000')
    k.I('s_cmp_ge_u32 s38, 672')
    k.I('s_cbranch_scc1 L_a_pwo')
    k.I('s_sub_u32 s37, s38, 448')
    k.I('s_and_b32 s69, s37, 7')
    k.I('s_lshr_b32 s37, s37, 3')
    k.I('s_mov_b32 s16, s42')
    k.I('s_mov_b32 s17, s43')
    k.I('s_mov_b32 s18, 0x%x' % SZ['wd'])
    k.I('s_mul_i32 s48, s69, 224')
    k.I('s_lshl_b32 s49, s37, 2')
    k.I('s_add_u32 s48, s48, s49')
    k.I('s_lshl_b32 s48, s48, 10')
    k.I('s_add_u32 s72, s48, 0x%x' % OFF_WD)
    k.I('s_mov_b32 s73, %d' % (112 * 1024))
    k.I('s_mov_b32 s74, 1024')
    k.I('s_mov_b32 s75, 2048')
    k.I('s_branch L_a_pstd2')
    k.label('L_a_pwo')
    k.I('s_sub_u32 s37, s38, 672')
    k.I('s_and_b32 s69, s37, 7')
    k.I('s_lshr_b32 s37, s37, 3')
    k.I('s_mov_b32 s16, s40')
    k.I('s_mov_b32 s17, s41')
    k.I('s_mov_b32 s18, 0x%x' % SZ['wo'])
    k.I('s_lshl_b32 s48, s37, 6')
    k.I('s_lshl_b32 s49, s69, 1')
    k.I('s_add_u32 s48, s48, s49')
    k.I('s_lshl_b32 s48, s48, 10')
    k.I('s_add_u32 s72, s48, 0x%x' % OFF_WO)
    k.I('s_cmp_ge_u32 s38, 736')
    k.I('s_cselect_b32 s72, 0x7fff0000, s72')
    k.I('s_cselect_b32 s18, 0, s18')
    k.I('s_mov_b32 s73, 1024')
    k.I('s_mov_b32 s74, %d' % (16 * 1024))
    k.I('s_mov_b32 s75, %d' % (32 * 1024))
    k.label('L_a_pstd2')
    k.I('s_mov_b32 s20, s16')
    k.I('s_mov_b32 s21, s17')
    k.I('s_mov_b32 s22, s18')
    k.I('s_lshl_b32 s48, s37, 16')
    k.I('s_lshl_b32 s49, s69, 7')
    k.I('s_add_u32 s48, s48, s49')
    k.I('s_add_u32 s49, s48, %d' % (32 * 1024))
    k.label('L_a_pgo')
    k.I('s_mov_b32 s51, s72')
    k.I('s_add_u32 s52, s72, s73')
    k.I('s_add_u32 s53, s72, s74')
    k.I('s_add_u32 s54, s52, s74')
    for f in range(4):
        k.I('s_add_u32 %s, %s, s75' % (sr(55 + f), sr(51 + f)))


if __name__ == '__main__':
    n = int(sys.argv[2]) if len(sys.argv) > 2 else 4
    gen1.STAMPS = len(sys.argv) > 3 and sys.argv[3] == 'stamps'
    for o in sys.argv[4:]:
        if '=' in o:
            kk_, vv_ = o.split('=')
            gen1.OPT[kk_] = tuple(int(x) for x in vv_.split(','))
        else:
            gen1.OPT[o] = True
    gens = [('qkv_kernel', gen_a8), ('attn_kernel', gen_k2), ('gateup_kernel', gen_k3), ('down_kernel', gen_k4)]
    ks = []
    for label, g in gens[:n]:
        kk, cc = g()
        ks.append((label, kk, cc))
        print(label, kk.stats(), kk.maxreg())
    open(sys.argv[1], 'w').write(wrap(ks))
```

```python
import sys
from asmgen import Kernel
import gen1
from gen1 import *
from gen2 import Sched, xhalf_ops
from gen3 import emit, ln_phi_ops


def APOL():
    return ' sc1' if OPT.get('asc1') else (' nt' if OPT.get('ant') else '')


class Multi:
    def __init__(self, parts):
        self.parts = parts
    def finish(self):
        return '\n'.join(p.finish() for p in self.parts)
    def maxreg(self):
        mx = {'v': -1, 'a': -1, 's': -1}
        for p in self.parts:
            m = p.maxreg()
            for t in mx:
                mx[t] = max(mx[t], m[t])
        return mx
    def stats(self):
        return [p.stats() for p in self.parts]


def pair_signal(flag_lds_sgpr, vtmp, vone):
    return ['v_mov_b32 %s, %s' % (vr(vtmp), sr(flag_lds_sgpr)), 'v_mov_b32 %s, 1' % vr(vone),
            'ds_write_b32 %s, %s' % (vr(vtmp), vr(vone))]


def pair_wait(k, name, flag_lds_sgpr, vtmp, vval, stmp):
    k.I('v_mov_b32 %s, %s' % (vr(vtmp), sr(flag_lds_sgpr)))
    k.label(name)
    k.I('ds_read_b32 %s, %s' % (vr(vval), vr(vtmp)))
    k.I('v_readfirstlane_b32 %s, %s' % (sr(stmp), vr(vval)))
    k.I('s_cmp_eq_u32 %s, 0' % sr(stmp))
    k.I('s_cbranch_scc1 %s' % name)


def q_sync(k, name, addr):
    k.I('v_mov_b32 v22, %d' % addr)
    k.I('v_mov_b32 v23, 1')
    k.I('s_mov_b64 exec, 1')
    k.I('ds_add_u32 v22, v23')
    k.I('s_mov_b64 exec, -1')
    k.label(name)
    k.I('ds_read_b32 v23, v22')
    k.I('v_readfirstlane_b32 s79, v23')
    k.I('s_cmp_lt_u32 s79, 4')
    k.I('s_cbranch_scc1 %s' % name)


def gen_a8():
    kp = Kernel('a_pro')
    k = kp
    XS, WQ, WS, PA, PB, DB = 4, 8, 12, 16, 20, 24
    ws = sr(WS, 4)
    k.I('s_cmp_ge_u32 s2, 256')
    k.I('s_cbranch_scc1 L_a_end')
    load_srds(k, [('x', XS), ('wqkv', WQ), ('ws', WS), ('dbg', DB)])
    k.I('s_load_dwordx2 s[40:41], s[0:1], %d' % KA['wo'])
    k.I('s_load_dwordx4 s[44:47], s[0:1], %d' % KA['wg'])
    k.I('s_load_dwordx2 s[42:43], s[0:1], %d' % KA['wd'])
    if gen1.STAMPS:
        k.I('s_memrealtime s[84:85]')
        k.I('s_memtime s[86:87]')
    k.I('v_and_b32 v1, 63, v0')
    k.I('v_lshrrev_b32 v2, 6, v0')
    k.I('v_readfirstlane_b32 s27, v2')
    k.I('s_mov_b32 s39, s27')
    k.I('s_mov_b32 s27, 0x00020000')
    k.I('s_and_b32 s28, s39, 3')
    k.I('s_and_b32 s34, s2, 7')
    k.I('s_lshr_b32 s35, s2, 3')
    k.I('s_and_b32 s32, s34, 3')
    k.I('s_lshl_b32 s32, s32, 3')
    k.I('s_and_b32 s36, s35, 7')
    k.I('s_add_u32 s32, s32, s36')
    k.I('s_lshr_b32 s33, s34, 2')
    k.I('s_lshl_b32 s33, s33, 2')
    k.I('s_lshr_b32 s36, s35, 3')
    k.I('s_add_u32 s33, s33, s36')
    k.I('s_and_b32 s29, s28, 1')
    k.I('s_lshr_b32 s30, s28, 1')
    k.I('s_xor_b32 s31, s29, s30')
    k.I('s_mov_b32 s70, 0x%x' % ONES_BF16)
    k.I('s_mov_b32 s81, 0x%x' % f2u(1e-6))
    if OPT.get('dbgt'):
        k.I('s_memrealtime s[90:91]')
    k.I('s_cmp_ge_u32 s39, 4')
    k.I('s_cbranch_scc1 L_a_q')

    X, WR = 112, 80
    LA = 4
    E = 131072
    E_ST = E
    E_CS = E + 1024
    E_TB = E + 4096
    E_FL = E + 3072
    E_KV = E + 8192
    WSLOT = {('k', 0): 1, ('k', 1): 3, ('k', 2): 5, ('k', 3): 7, ('v', 0): 0, ('v', 1): 1, ('v', 2): 2, ('v', 3): 3,
             ('q', 0): 4, ('q', 1): 5, ('q', 2): 6, ('q', 3): 7}
    XA = 16
    WE, WO_, WE2, WO2 = 12, 13, 14, 15
    MEAN, RSTD, CK, CV, T0 = 2, 3, 4, 5, 6
    LN16 = 7

    def common_setup(k, need_w_addr=True):
        k.I('v_and_b32 v2, 31, v1')
        k.I('s_lshl_b32 s37, s29, 5')
        k.I('v_add_u32 v2, s37, v2')
        k.I('v_lshlrev_b32 v2, 8, v2')
        k.I('v_lshrrev_b32 v3, 5, v1')
        k.I('v_and_b32 v4, 15, v1')
        k.I('v_xor_b32 v4, v3, v4')
        k.I('v_lshlrev_b32 v4, 4, v4')
        k.I('s_lshl_b32 s37, s31, 5')
        k.I('v_xor_b32 v4, s37, v4')
        for s in range(8):
            k.I('v_xor_b32 v5, %d, v4' % (32 * s))
            k.I('v_add_u32 %s, v2, v5' % vr(XA + s))
        k.I('v_bfe_u32 v4, v1, 2, 2')
        k.I('v_lshl_add_u32 v4, v3, 3, v4')
        k.I('v_lshlrev_b32 v4, 7, v4')
        k.I('v_bfe_u32 v5, v1, 4, 1')
        k.I('v_lshlrev_b32 v5, 1, v5')
        k.I('v_bfe_u32 v6, v1, 1, 1')
        k.I('v_add_u32 v5, v5, v6')
        k.I('s_lshl_b32 s37, s30, 2')
        k.I('v_add_u32 v5, s37, v5')
        k.I('v_bfe_u32 v6, v1, 3, 1')
        k.I('v_lshlrev_b32 v6, 2, v6')
        k.I('v_xor_b32 v5, v5, v6')
        k.I('v_lshlrev_b32 v5, 4, v5')
        k.I('v_and_b32 v6, 1, v1')
        k.I('v_lshlrev_b32 v6, 3, v6')
        k.I('v_add3_u32 v4, v4, v5, v6')
        k.I('s_lshl_b32 s37, s31, 11')
        k.I('v_add_u32 %s, s37, v4' % vr(WE))
        k.I('s_xor_b32 s37, s37, 2048')
        k.I('v_add_u32 %s, s37, v4' % vr(WO_))
        k.I('v_add_u32 %s, 0x10000, %s' % (vr(WE2), vr(WE)))
        k.I('v_add_u32 %s, 0x10000, %s' % (vr(WO2), vr(WO_)))
        k.I('v_bfe_u32 v5, v1, 4, 1')
        k.I('v_and_b32 v6, 1, v1')
        k.I('v_cmp_eq_u32 vcc, v5, v6')
        k.I('v_mov_b32 v5, s70')
        k.I('v_cndmask_b32 v5, 0, v5, vcc')
        for j in range(4):
            k.I('v_accvgpr_write_b32 a%d, v5' % (4 + j))
        k.I('s_lshl_b32 s72, s29, 1')
        k.I('s_add_u32 s73, s72, s30')
        k.I('s_lshl_b32 s73, s73, 8')
        k.I('s_add_u32 s73, s73, %d' % E_ST)
        k.I('s_xor_b32 s74, s73, 256')
        k.I('s_lshl_b32 s75, s30, 1')
        k.I('s_add_u32 s75, s75, s29')
        k.I('s_lshl_b32 s75, s75, 7')
        k.I('s_add_u32 s75, s75, %d' % E_CS)
        k.I('s_xor_b32 s76, s75, 128')
        k.I('s_lshl_b32 s77, s39, 8')
        k.I('s_add_u32 s77, s77, %d' % E_TB)
        k.I('s_lshl_b32 s40, s28, 2')
        k.I('s_add_u32 s40, s40, %d' % E_FL)
        k.I('s_xor_b32 s41, s40, 4')
        k.I('v_and_b32 v0, 31, v1')
        k.I('v_lshlrev_b32 v0, 2, v0')
        k.I('v_and_b32 v26, 16, v1')
        k.I('v_cmp_ne_u32 s[82:83], 0, v26')
        k.I('v_lshlrev_b32 %s, 4, v1' % vr(LN16))

    def xread(n):
        c, s = n // 8, n % 8
        return 'ds_read_b128 %s, %s offset:%d' % (vr(X + 4 * n, 4), vr(XA + s), (c % 2) * 32768)

    def wreads(part, ks):
        c, s = ks // 8, ks % 8
        slot = WSLOT[(part, c)]
        a = ((WE, WO_) if slot < 4 else (WE2, WO2))[s & 1]
        off = (slot % 4) * 16384 + (s & ~1) * 2048
        return ['ds_read_b64_tr_b16 %s, %s offset:%d' % (vr(WR + 4 * s, 2), vr(a), off),
                'ds_read_b64_tr_b16 %s, %s offset:%d' % (vr(WR + 4 * s + 2, 2), vr(a), off + 512)]

    def stats_finish_ops():
        return ['v_lshlrev_b32 v26, 1, v0', 'v_add_u32 v27, s74, v26', 'v_add_u32 v26, s73, v26',
                'ds_read_b64 v[24:25], v26', 'ds_read_b64 v[28:29], v27',
                'v_add_f32 v24, v24, v28', 'v_add_f32 v25, v25, v29',
                'v_mul_f32 %s, 0x%x, v24' % (vr(MEAN), f2u(1.0 / 512)),
                'v_mul_f32 v25, 0x%x, v25' % f2u(1.0 / 512),
                'v_fma_f32 v25, -%s, %s, v25' % (vr(MEAN), vr(MEAN)),
                'v_max_f32 v25, 0, v25', 'v_add_f32 v25, 0x%x, v25' % f2u(1e-5), 'v_rsq_f32 %s, v25' % vr(RSTD)]

    kk = Kernel('a_kv')
    k = kk
    st = Stamper(k, 1, ws, base=88, tmp=40)
    ACK, ACV = 48, 64
    MN, RS = 16, 32
    k.I('s_lshl_b32 s38, s2, 2')
    k.I('s_add_u32 s38, s38, s28')
    k.I('s_mov_b32 s19, 0x00020000')
    k.I('s_mov_b32 s23, 0x00020000')
    if not OPT.get('nocode'):
        k.I('s_getpc_b64 s[34:35]')
        k.label('L_a_pc')
        k.I('s_sub_u32 s34, s34, L_a_pc-qkv_kernel')
        k.I('s_subb_u32 s35, s35, 0')
        k.I('s_lshr_b32 s36, s2, 3')
        k.I('s_lshl_b32 s36, s36, 2')
        k.I('s_add_u32 s36, s36, s28')
        k.I('s_lshl_b32 s36, s36, 10')
        k.I('v_lshlrev_b32 v8, 4, v1')
        k.I('v_add_u32 v8, s36, v8')
        k.I('v_min_u32 v8, L_text_end-qkv_kernel-4, v8')
        k.I('global_load_dword v239, v8, s[34:35]')
    k.I('s_waitcnt lgkmcnt(0)')
    prep_decode(k)
    common_setup(k)
    for j in range(4):
        k.I('v_accvgpr_write_b32 a%d, s70' % j)
    k.I('s_lshl_b32 s37, s33, 2')
    k.I('s_add_u32 s37, s37, s28')
    k.I('s_lshl_b32 s37, s37, 11')
    k.I('s_add_u32 s71, s37, 0x%x' % OFF_KVZ)
    k.I('s_lshl_b32 s78, s33, 2')
    if OPT.get('touch'):
        k.I('s_and_b32 s34, s2, 7')
        k.I('s_lshr_b32 s35, s2, 3')
        k.I('s_and_b32 s36, s34, 3')
        k.I('s_lshl_b32 s36, s36, 19')
        k.I('s_lshl_b32 s37, s35, 14')
        k.I('s_add_u32 s36, s36, s37')
        k.I('s_lshl_b32 s37, s28, 12')
        k.I('s_add_u32 s36, s36, s37')
        k.I('v_lshlrev_b32 v8, 4, v1')
        for t in range(4):
            k.I('buffer_load_dword %s, v8, %s, s36 offen offset:%d' % (vr(220 + t), sr(XS, 4), t * 1024))
        k.I('v_lshrrev_b32 v9, 5, v1')
        k.I('s_movk_i32 s37, 3072')
        k.I('v_mul_lo_u32 v9, v9, s37')
        k.I('v_and_b32 v10, 31, v1')
        k.I('v_lshl_add_u32 v9, v10, 4, v9')
        k.I('s_lshl_b32 s35, s35, 4')
        k.I('s_lshl_b32 s37, s28, 2')
        k.I('s_add_u32 s35, s35, s37')
        k.I('s_mul_i32 s35, s35, 3072')
        k.I('s_lshr_b32 s34, s34, 2')
        k.I('s_lshl_b32 s34, s34, 9')
        k.I('s_add_u32 s35, s35, s34')
        for hh in range(2):
            for p in range(3):
                k.I('s_add_u32 s34, s35, %d' % (hh * 2 * 3072))
                k.I('buffer_load_dword %s, v9, %s, s34 offen offset:%d' % (vr(224 + hh * 3 + p), sr(WQ, 4), p * 1024))
        k.I('v_lshrrev_b32 v10, 3, v1')
        k.I('v_mul_lo_u32 v10, v10, s50')
        k.I('v_and_b32 v9, 7, v1')
        k.I('v_lshl_add_u32 v10, v9, 4, v10')
        k.I('s_lshl_b32 s36, s50, 3')
        k.I('s_mov_b32 s34, s48')
        k.I('s_mov_b32 s35, s49')
        for t in range(4):
            k.I('buffer_load_dword %s, v10, %s, s34 offen' % (vr(230 + t), sr(PA, 4)))
            k.I('buffer_load_dword %s, v10, %s, s35 offen' % (vr(234 + t), sr(PB, 4)))
            k.I('s_add_u32 s34, s34, s36')
            k.I('s_add_u32 s35, s35, s36')
    k.I('v_lshlrev_b32 v8, 2, v1')
    k.I('v_add_u32 v8, %d, v8' % E_FL)
    k.I('v_mov_b32 v9, 0')
    k.I('v_cmp_gt_u32 vcc, 16, v1')
    k.I('s_and_saveexec_b64 s[60:61], vcc')
    k.I('ds_write_b32 v8, v9')
    k.I('s_mov_b64 exec, s[60:61]')
    k.I('s_waitcnt lgkmcnt(0)')
    S = Sched(64)
    GS = [0, 8, 16, 24, 32, 48]
    pre = ['s_barrier']
    for n in range(LA):
        pre += [xread(n)] + wreads('k', n)
    for g in range(1, 6):
        if g == 5 and not OPT.get('oldbar'):
            continue
        S.at(GS[g] - LA - 1, ['s_barrier'])
    if OPT.get('oldbar'):
        S.at(47, ['s_barrier'])
        S.at(62, ['s_barrier'])
    for n in range(64):
        part = 'kv'[n // 32]
        s = n % 8
        m = n + LA
        if m < 64:
            if m == 16:
                S.at(n, ['v_add_u32 %s, 0x10000, %s' % (vr(XA + t), vr(XA + t)) for t in range(8)])
            S.at(n, ([xread(m)] if m < 32 else []) + wreads('kv'[m // 32], m % 32))
        if s % 2 == 0:
            ca = ar(8 + 4 * (n // 32), 4)
            S.at(n, ['v_mfma_f32_16x16x32_bf16 %s, a[4:7], %s, %s' % (ca, vr(WR + 4 * s, 4), '0' if n % 32 == 0 else ca)])

    if not OPT.get('oldbar'):
        S.at(43, ['s_waitcnt lgkmcnt(0)', 's_barrier'])

    def lane_form(dst, a0, tmp):
        return ['v_accvgpr_read_b32 %s, a%d' % (vr(dst), a0), 'v_accvgpr_read_b32 %s, a%d' % (vr(tmp), a0 + 1),
                'v_cndmask_b32 %s, %s, %s, s[82:83]' % (vr(dst), vr(dst), vr(tmp))]
    S.at(31, lane_form(CK, 8, 27) + ['v_add_u32 v26, s75, v0', 'ds_write_b32 v26, %s' % vr(CK), 's_waitcnt lgkmcnt(0)'])
    S.at(33, ['s_barrier', 'v_add_u32 v26, s76, v0', 'ds_read_b32 v30, v26'] + stats_finish_ops() +
         ['v_add_f32 %s, %s, v30' % (vr(CK), vr(CK)),
          'v_add_u32 v26, s77, v0', 'ds_write_b32 v26, %s' % vr(MEAN), 'ds_write_b32 v26, %s offset:128' % vr(RSTD),
          'v_lshrrev_b32 v26, 5, v1', 'v_lshlrev_b32 v26, 4, v26', 'v_add_u32 %s, s77, v26' % vr(T0)])
    rd = []
    for a in range(4):
        rd.append('ds_read_b128 %s, %s offset:%d' % (vr(MN + 4 * a, 4), vr(T0), a * 32))
        rd.append('ds_read_b128 %s, %s offset:%d' % (vr(RS + 4 * a, 4), vr(T0), 128 + a * 32))
    S.at(34, rd)
    ke = []
    for i in range(0, 16, 2):
        ke += ln_phi_ops([ACK + i, ACK + i + 1], [MN + i, MN + i + 1], [CK, CK], [RS + i, RS + i + 1], [8, 9])
        ke.append('v_cvt_pk_bf16_f32 %s, %s, %s' % (vr(ACK + i // 2), vr(ACK + i), vr(ACK + i + 1)))
    S.spread(36, 61, ke)
    if OPT.get('touch2'):
        tp = ['s_lshr_b32 s35, s2, 3', 's_lshl_b32 s35, s35, 4', 's_lshl_b32 s34, s28, 2', 's_add_u32 s35, s35, s34',
              's_mul_i32 s35, s35, 3072', 's_and_b32 s34, s2, 7', 's_lshr_b32 s34, s34, 2', 's_lshl_b32 s34, s34, 9',
              's_add_u32 s35, s35, s34',
              'v_lshrrev_b32 v9, 5, v1', 'v_mul_u32_u24 v9, 0xc00, v9', 'v_and_b32 v8, 31, v1', 'v_lshl_add_u32 v9, v8, 4, v9']
        for hh in range(2):
            tp.append('s_add_u32 s34, s35, %d' % (hh * 2 * 3072))
            tp.append('buffer_load_dword %s, v9, %s, s34 offen offset:2048' % (vr(64 + hh * 2), sr(WQ, 4)))
            tp.append('buffer_load_dword %s, v9, %s, s34 offen' % (vr(65 + hh * 2), sr(WQ, 4)))
        if OPT.get('touch3'):
            tp += ['v_lshrrev_b32 v9, 3, v1', 'v_mul_lo_u32 v9, v9, s50', 'v_and_b32 v8, 7, v1', 'v_lshl_add_u32 v9, v8, 4, v9',
                   's_lshl_b32 s36, s50, 3', 's_mov_b32 s34, s48', 's_mov_b32 s35, s49']
            for t in range(4):
                tp.append('buffer_load_dword %s, v9, %s, s34 offen' % (vr(68 + t), sr(PA, 4)))
                tp.append('buffer_load_dword %s, v9, %s, s35 offen' % (vr(72 + t), sr(PB, 4)))
                tp.append('s_add_u32 s34, s34, s36')
                tp.append('s_add_u32 s35, s35, s36')
        S.spread(OPT.get('tpos', (1,))[0], OPT.get('tpos', (1,))[0] + 14, tp)
    S.at(46 if OPT.get('oldbar') else 42, ['v_mov_b32 v6, 0', 'buffer_load_dword v11, v6, %s, s78 offen sc1' % sr(DB, 4)])
    pd = ['v_lshrrev_b32 v10, 3, v1', 'v_mul_lo_u32 v10, v10, s50', 'v_and_b32 v6, 7, v1', 'v_lshlrev_b32 v6, 4, v6',
          'v_add_u32 v10, v10, v6', 's_lshl_b32 s80, s50, 3', 's_lshl_b32 s79, s28, 13']
    for t in range(8):
        base = 's48' if t < 4 else 's49'
        pd.append('s_add_u32 m0, s79, %d' % (t * 1024))
        pd.append(('buffer_load_dwordx4 v10, %s, %s offen lds' % (sr(PA if t < 4 else PB, 4), base), 'prep'))
        pd.append('s_add_u32 %s, %s, s80' % (base, base))
    S.spread(OPT.get('ppos', (52,))[0], 63, pd)
    for o in pre:
        emit(k, o)
    st.stamp()
    for n in range(64):
        part, ks = n // 32, n % 32
        acc = vr([ACK, ACV][part], 16)
        if n % 2 == 0:
            k.touch(vr(WR + 4 * ((n + 1) % 8), 4))
            if part == 0:
                k.touch(vr(X + 4 * (ks + 1), 4))
        k.I('v_mfma_f32_32x32x16_bf16 %s, %s, %s, %s' % (acc, vr(X + 4 * ks, 4), vr(WR + 4 * (n % 8), 4), acc if ks else '0'))
        for o in S.slots[n]:
            emit(k, o)
        if n in OPT.get('kvat', (31,)):
            st.stamp()
    st.stamp()
    TT = ACK + 8
    PF = X
    PAD = [X + 32 + f for f in range(8)]
    for o in lane_form(CV, 12, TT) + ['v_add_u32 %s, s75, v0' % vr(TT), 'ds_write_b32 %s, %s offset:512' % (vr(TT), vr(CV))] + \
            pair_signal(40, TT + 1, TT + 2):
        emit(k, o)
    p0, p1 = PAD[0], PAD[1]
    for o in ['v_bfe_u32 %s, v1, 2, 2' % vr(p0), 'v_lshrrev_b32 %s, 5, v1' % vr(p1), 'v_lshl_add_u32 %s, %s, 2, %s' % (vr(p0), vr(p1), vr(p0)),
              'v_lshlrev_b32 %s, 7, %s' % (vr(p0), vr(p0)), 'v_and_b32 %s, 3, v1' % vr(p1), 'v_lshl_add_u32 %s, %s, 3, %s' % (vr(p0), vr(p1), vr(p0)),
              'v_bfe_u32 %s, v1, 4, 1' % vr(p1),
              's_cmp_eq_u32 s68, 1', 's_cselect_b32 s79, 12, 5', 's_cselect_b32 s60, 32, 64', 's_cselect_b32 s61, 64, 2048',
              's_cselect_b32 s62, 11, 12', 's_lshl_b32 s62, 1, s62',
              'v_lshlrev_b32 %s, s79, %s' % (vr(p1), vr(p1)), 's_lshl_b32 s80, s28, 13',
              'v_add3_u32 %s, %s, %s, s80' % (vr(p0), vr(p0), vr(p1)),
              'v_add_u32 %s, s60, %s' % (vr(PAD[1]), vr(p0)), 'v_add_u32 %s, s61, %s' % (vr(PAD[2]), vr(p0)),
              'v_add_u32 %s, s61, %s' % (vr(PAD[3]), vr(PAD[1]))]:
        k.I(o)
    for f in range(4):
        k.I('v_add_u32 %s, s62, %s' % (vr(PAD[4 + f]), vr(PAD[f])))
    pair_wait(k, 'L_a_pw0', 41, TT + 1, TT + 2, 79)
    for o in ['v_add_u32 %s, s76, v0' % vr(TT), 'ds_read_b32 %s, %s offset:512' % (vr(TT + 1), vr(TT)),
              'v_add_f32 %s, %s, %s' % (vr(CV), vr(CV), vr(TT + 1))]:
        emit(k, o)
    ve = []
    for i in range(16):
        ve.append('v_fma_f32 %s, -%s, %s, %s' % (vr(ACV + i), vr(MN + i), vr(CV), vr(ACV + i)))
    for i in range(16):
        ve.append('v_mul_f32 %s, %s, %s' % (vr(ACV + i), vr(RS + i), vr(ACV + i)))
    for j in range(8):
        ve.append('v_cvt_pk_bf16_f32 %s, %s, %s' % (vr(ACV + j), vr(ACV + 2 * j), vr(ACV + 2 * j + 1)))
    for o in ve:
        k.I(o)
    DKV, DZ = 16, 32
    k.I('v_mfma_f32_32x32x16_bf16 %s, %s, %s, 0' % (vr(DKV, 16), vr(ACK, 4), vr(ACV, 4)))
    k.I('v_mfma_f32_32x32x16_bf16 %s, %s, a[0:3], 0' % (vr(DZ, 16), vr(ACK, 4)))
    k.I('v_mfma_f32_32x32x16_bf16 %s, %s, %s, %s' % (vr(DKV, 16), vr(ACK + 4, 4), vr(ACV + 4, 4), vr(DKV, 16)))
    k.I('v_mfma_f32_32x32x16_bf16 %s, %s, a[0:3], %s' % (vr(DZ, 16), vr(ACK + 4, 4), vr(DZ, 16)))
    for o in ['v_and_b32 %s, 16, v1' % vr(TT), 'v_lshlrev_b32 %s, 7, %s' % (vr(TT), vr(TT)),
              'v_lshrrev_b32 %s, 5, v1' % vr(TT + 1), 'v_mul_u32_u24 %s, 272, %s' % (vr(TT + 1), vr(TT + 1)),
              's_lshl_b32 s79, s30, 1', 's_add_u32 s79, s79, s29', 's_lshl_b32 s79, s79, 12', 's_add_u32 s79, s79, %d' % E_KV,
              'v_add3_u32 %s, %s, %s, s79' % (vr(TT), vr(TT), vr(TT + 1)),
              'v_and_b32 %s, 15, v1' % vr(TT + 1), 'v_lshl_add_u32 %s, %s, 4, %s' % (vr(TT + 2), vr(TT + 1), vr(TT)),
              's_add_u32 s40, s40, 16', 's_add_u32 s41, s41, 16']:
        emit(k, o)
    for j in range(8):
        k.I('v_cndmask_b32 %s, %s, %s, s[82:83]' % (vr(DKV + j), vr(DKV + j), vr(DKV + 8 + j)))
    for j in range(8):
        k.I('v_cndmask_b32 %s, %s, %s, s[82:83]' % (vr(DZ + j), vr(DZ + j), vr(DZ + 8 + j)))
    for o in ['ds_write_b128 %s, %s' % (vr(TT + 2), vr(DKV, 4)), 'ds_write_b128 %s, %s offset:544' % (vr(TT + 2), vr(DKV + 4, 4)),
              'v_cmp_eq_u32 vcc, 0, %s' % vr(TT + 1), 's_and_saveexec_b64 s[60:61], vcc',
              'ds_write_b128 %s, %s offset:256' % (vr(TT), vr(DZ, 4)), 'ds_write_b128 %s, %s offset:800' % (vr(TT), vr(DZ + 4, 4)),
              's_mov_b64 exec, s[60:61]'] + pair_signal(40, TT + 1, TT + 2) + \
            ['s_lshl_b32 s79, s30, 13', 's_lshl_b32 s80, s29, 11', 's_add_u32 s79, s79, s80', 's_add_u32 s79, s79, %d' % E_KV]:
        emit(k, o)
    k.I('v_readfirstlane_b32 s80, v11')
    k.I('s_cmp_eq_u32 s80, 0')
    k.I('s_cbranch_scc1 L_a_spin')
    k.label('L_a_go')
    pair_wait(k, 'L_a_pw1', 41, TT + 1, TT + 2, 80)
    k.I('v_lshlrev_b32 %s, 2, v1' % vr(TT))
    k.I('v_add_u32 %s, s79, %s' % (vr(TT + 1), vr(TT)))
    for ch in range(5):
        d = 16 + ch * 2
        k.I('ds_read_b32 %s, %s offset:%d' % (vr(d), vr(TT + 1), ch * 256))
        k.I('ds_read_b32 %s, %s offset:%d' % (vr(d + 1), vr(TT + 1), ch * 256 + 4096))
    k.need('prep')
    for f in range(8):
        k.I('ds_read_b64_tr_b16 %s, %s' % (vr(PF + 4 * f, 2), vr(PAD[f])))
        k.I('ds_read_b64_tr_b16 %s, %s offset:1024' % (vr(PF + 4 * f + 2, 2), vr(PAD[f])))
    for ch in range(5):
        d = 16 + ch * 2
        k.I('v_add_f32 %s, %s, %s' % (vr(d), vr(d), vr(d + 1)))
    for ch in range(4):
        k.I('buffer_atomic_add_f32 %s, %s, %s, s71 offen offset:%d' % (vr(16 + ch * 2), vr(TT), ws, ch * 256))
    k.I('v_cmp_gt_u32 vcc, 16, v1')
    k.I('s_and_saveexec_b64 s[60:61], vcc')
    k.I('buffer_atomic_add_f32 %s, %s, %s, s71 offen offset:1024' % (vr(24), vr(TT), ws))
    k.I('s_mov_b64 exec, s[60:61]')
    if len(OPT.get('kvat', (31,))) < 2: st.stamp()
    for f in range(8):
        k.I('buffer_store_dwordx4 %s, %s, %s, %s offen%s' % (vr(PF + 4 * f, 4), vr(LN16), ws, sr(51 + f), APOL()))
        ca = vr(32 + 4 * (f & 3), 4)
        k.I('v_mfma_f32_16x16x32_bf16 %s, a[4:7], %s, %s' % (ca, vr(PF + 4 * f, 4), '0' if f < 4 else ca))
    for c in range(4):
        k.I('v_cndmask_b32 %s, %s, %s, s[82:83]' % (vr(48 + c), vr(32 + 4 * c), vr(33 + 4 * c)))
        k.I('buffer_store_dword %s, v0, %s, s59 offen offset:%d' % (vr(48 + c), ws, c * 128))
    if gen1.STAMPS:
        k.I('s_mov_b32 s88, s88') if False else None
        k.I('v_lshl_add_u32 v4, s39, 6, v1')
        st.tid = 'v4'
        st.stamp(); st.stamp(True)
        flush_stamps(k, st, ws, 1)
    if OPT.get('dbgt'):
        dbg_time(k, 24, 90, 8, 28)
    k.label('L_a_end')
    k.I('s_endpgm')
    k.raw('''L_a_spin:
    s_sleep 2
    v_mov_b32 v6, 0
    buffer_load_dword v11, v6, s[%d:%d], s78 offen sc1
    s_waitcnt vmcnt(0)
    v_readfirstlane_b32 s80, v11
    s_nop 3
    s_cmp_eq_u32 s80, 0
    s_cbranch_scc1 L_a_spin
    s_branch L_a_go
''' % (DB, DB + 3))

    kq = Kernel('a_q')
    k = kq
    k.label('L_a_q')
    stq = Stamper(k, 5, ws, base=88, tmp=40)
    ACQ = 48
    k.I('s_lshl_b32 s34, s28, 12')
    k.I('s_lshl_b32 s35, s32, 16')
    k.I('s_mul_i32 s36, s28, %d' % (32 * 3072))
    k.I('s_lshl_b32 s37, s33, 7')
    k.I('s_add_u32 s36, s36, s37')
    k.I('s_add_u32 s38, s32, s33')
    if OPT.get('norot'):
        k.I('s_mov_b32 s38, 0')
    for c in range(4):
        k.I('s_add_u32 s37, s38, %d' % c)
        k.I('s_and_b32 s37, s37, 3')
        k.I('s_lshl_b32 %s, s37, 8' % sr(60 + c))
        k.I('s_add_u32 %s, %s, s35' % (sr(60 + c), sr(60 + c)))
        k.I('s_mul_i32 %s, s37, %d' % (sr(64 + c), 128 * 3072))
        k.I('s_add_u32 %s, %s, s36' % (sr(64 + c), sr(64 + c)))
    XV = [32, 33, 34, 35]
    WV = [8, 9, 10, 11]
    k.I('v_lshrrev_b32 v2, 4, v1')
    k.I('v_and_b32 v3, 15, v1')
    k.I('s_lshl_b32 s37, s28, 4')
    for j in range(4):
        k.I('v_add_u32 v4, %d, v2' % (4 * j))
        k.I('v_xor_b32 v5, v3, v4')
        k.I('v_lshlrev_b32 v5, 4, v5')
        k.I('v_add_u32 v4, s37, v4')
        k.I('v_lshlrev_b32 v4, 10, v4')
        k.I('v_add_u32 v4, v4, v5')
        k.I('v_subrev_u32 %s, %d, v4' % (vr(XV[j]), j * 1024))
    k.I('v_lshrrev_b32 v4, 3, v1')
    k.I('s_movk_i32 s37, 3072')
    k.I('v_mul_lo_u32 v4, v4, s37')
    k.I('v_and_b32 v5, 1, v2')
    k.I('v_lshlrev_b32 v5, 2, v5')
    k.I('v_and_b32 v6, 7, v1')
    k.I('v_xor_b32 v5, v5, v6')
    k.I('v_lshlrev_b32 v5, 4, v5')
    k.I('v_add_u32 v8, v4, v5')
    for j in range(1, 4):
        k.I('v_add_u32 %s, %d, v8' % (vr(WV[j]), j * (8 * 3072 - 1024)))
    k.I('v_lshlrev_b32 %s, 4, v1' % vr(LN16))
    for j in range(4):
        k.I('v_mov_b32 %s, 0' % vr(40 + j))
    k.I('s_lshl_b32 s37, s33, 2')
    k.I('s_add_u32 s37, s37, s28')
    k.I('s_lshl_b32 s37, s37, 11')
    k.I('s_add_u32 s71, s37, 0x%x' % OFF_KVZ)
    k.I('s_cmp_eq_u32 s32, 0')
    k.I('s_cselect_b32 s37, s71, 0x7fff0000')
    k.I('s_waitcnt lgkmcnt(0)')
    if OPT.get('qpro'): stq.stamp()
    k.I('buffer_store_dwordx4 v[40:43], %s, %s, s37 offen sc1' % (vr(LN16), ws), w=['zero'])
    k.I('buffer_store_dwordx4 v[40:43], %s, %s, s37 offen offset:1024 sc1' % (vr(LN16), ws), w=['zero'])
    k.I('s_lshl_b32 s37, s2, 7')
    k.I('s_lshl_b32 s38, s28, 15')
    k.I('s_add_u32 s37, s37, s38')
    k.I('s_add_u32 s37, s37, 0x%x' % OFF_CNT)
    k.I('v_and_b32 v41, 15, v1')
    k.I('v_lshlrev_b32 v41, 2, v41')
    k.I('buffer_store_dword v40, v41, %s, s37 offen' % ws)

    def dma_x_ops(c, slot):
        ops = ['s_add_u32 m0, s34, %d' % (slot * 16384)]
        for j in range(4):
            ops.append(('buffer_load_dwordx4 %s, %s, %s offen offset:%d lds' % (vr(XV[j]), sr(XS, 4), sr(60 + c), j * 1024), 'X%d' % c))
        return ops
    PARTCOL = {'q': 0, 'k': 1024, 'v': 2048}

    def dma_w_ops(part, c, slot):
        ops = ['s_add_u32 m0, s34, %d' % (slot * 16384), 's_add_u32 s69, %s, %d' % (sr(64 + c), PARTCOL[part])]
        for j in range(4):
            ops.append(('buffer_load_dwordx4 %s, %s, s69 offen offset:%d lds' % (vr(WV[j]), sr(WQ, 4), j * 1024), 'W%s%d' % (part, c)))
        return ops
    def interleave(a, b, ratio=None):
        nv = sum(1 for o in a if isinstance(o, tuple))
        out, ib, seen = [], 0, 0
        for o in a:
            out.append(o)
            if isinstance(o, tuple):
                seen += 1
                upto = len(b) * seen // nv
                out += b[ib:upto]
                ib = upto
        return out + b[ib:]
    grp = lambda c: dma_x_ops(c, 2 * c) + dma_w_ops('k', c, 2 * c + 1)
    for o in grp(0):
        emit(k, o)
    if OPT.get('qpro'): stq.stamp()
    ktmp = Kernel('tmp')
    common_setup(ktmp)
    setup_ops = [it.text for it in ktmp.items]
    for o in interleave(grp(1), setup_ops):
        emit(k, o)
    stq.stamp()
    SQ = 24
    SQ4 = [24, 25, 28, 29]
    for r_ in SQ4:
        k.I('v_mov_b32 %s, 0' % vr(r_))
    nextdma = {0: grp(2), 1: grp(3), 2: dma_w_ops('v', 0, 0) + dma_w_ops('v', 1, 1), 3: dma_w_ops('v', 2, 2) + dma_w_ops('v', 3, 3)}
    for g in range(4):
        if OPT.get('qg') == (g,): stq.stamp()
        k.need(*(['X%d' % g, 'Wk%d' % g] + (['zero'] if g == 0 else [])))
        if OPT.get('qg') == (g,) or (OPT.get('qpro') and g == 0): stq.stamp()
        k.I('s_barrier')
        if OPT.get('qg') == (g,): stq.stamp()
        work = []
        if g == 0:
            work += ['s_or_b32 s38, s32, s28', 's_cmp_eq_u32 s38, 0', 's_cselect_b32 s38, 0, 0x1000',
                     'v_lshlrev_b32 v26, 12, v1', 's_lshl_b32 s78, s33, 2', 'v_add_u32 v26, s78, v26', 'v_mov_b32 v27, 1']
        if g == 2:
            work += ['v_add_u32 %s, 0x10000, %s' % (vr(XA + t), vr(XA + t)) for t in range(8)]
        work += [xread(8 * g + s) for s in range(8)]
        for s in range(0, 8, 2):
            n = 8 * g + s
            work.append('v_mfma_f32_16x16x32_bf16 a[8:11], a[4:7], %s, %s' % (vr(X + 4 * n, 4), '0' if n == 0 else 'a[8:11]'))
            for j in range(4):
                xr = X + 4 * n + j
                work.append('v_dot2c_f32_bf16 %s, %s, %s' % (vr(SQ4[j]), vr(xr), vr(xr)))
        if OPT.get('noqwork'):
            work = [w for w in work if not (w.startswith('v_mfma') or w.startswith('v_dot2c'))]
        if OPT.get('qafter'):
            for o in nextdma[g] + work:
                emit(k, o)
        else:
            for o in interleave(nextdma[g], work):
                emit(k, o)
        if OPT.get('qg') == (g,): stq.stamp()
        if g == 0:
            k.I('buffer_store_dword v27, v26, %s, s38 offen sc1' % sr(DB, 4))
    if not (OPT.get('qpro') or OPT.get('qg')): stq.stamp()
    k.need('Wv0', 'Wv1')
    k.I('s_waitcnt lgkmcnt(0)')
    k.I('s_barrier')
    for o in dma_w_ops('q', 0, 4) + dma_w_ops('q', 1, 5):
        emit(k, o)
    for o in ['v_add_f32 v24, v24, v28', 'v_add_f32 v25, v25, v29', 'v_add_f32 v25, v24, v25'] + xhalf_ops(25, 26) + \
            ['v_accvgpr_read_b32 v24, a8', 'v_accvgpr_read_b32 v27, a9', 'v_cndmask_b32 v24, v24, v27, s[82:83]',
             'v_lshlrev_b32 v26, 1, v0', 'v_add_u32 v26, s73, v26', 'ds_write_b64 v26, v[24:25]', 's_waitcnt lgkmcnt(0)',
             's_barrier'] + stats_finish_ops():
        emit(k, o)
    for o in dma_w_ops('q', 2, 6) + dma_w_ops('q', 3, 7):
        emit(k, o)
    k.need('Wv2', 'Wv3')
    k.I('s_barrier')
    k.need('Wq0', 'Wq1')
    if OPT.get('oldbar'):
        k.I('s_barrier')
    else:
        q_sync(k, 'L_a_qs0', E_FL + 48)
    if not (OPT.get('qpro') or OPT.get('qg')): stq.stamp()
    for n in range(LA):
        for o in wreads('q', n):
            k.I(o)
    for n in range(32):
        if n % 2 == 0:
            k.touch(vr(WR + 4 * ((n + 1) % 8), 4))
        acc = vr(ACQ, 16)
        k.I('v_mfma_f32_32x32x16_bf16 %s, %s, %s, %s' % (acc, vr(WR + 4 * (n % 8), 4), vr(X + 4 * n, 4), acc if n else '0'))
        if n == 16 - LA - 1:
            k.need('Wq2', 'Wq3')
            if OPT.get('oldbar'):
                k.I('s_barrier')
            else:
                q_sync(k, 'L_a_qs1', E_FL + 52)
        if n + LA < 32:
            for o in wreads('q', n + LA):
                k.I(o)
        if n % 2 == 0:
            k.I('v_mfma_f32_16x16x32_bf16 a[12:15], a[4:7], %s, %s' % (vr(WR + 4 * (n % 8), 4), '0' if n == 0 else 'a[12:15]'))
    if not (OPT.get('qpro') or OPT.get('qg')): stq.stamp()
    CSQ = 64
    for o in ['v_accvgpr_read_b32 %s, a12' % vr(CSQ), 'v_accvgpr_read_b32 %s, a13' % vr(CSQ + 1),
              'v_cndmask_b32 %s, %s, %s, s[82:83]' % (vr(CSQ), vr(CSQ), vr(CSQ + 1)),
              'v_add_u32 %s, s75, v0' % vr(CSQ + 1), 'ds_write_b32 %s, %s offset:1024' % (vr(CSQ + 1), vr(CSQ)),
              's_add_u32 s40, s40, 32', 's_add_u32 s41, s41, 32'] + pair_signal(40, CSQ + 1, CSQ + 2) + \
             ['v_lshrrev_b32 v20, 5, v1', 'v_lshlrev_b32 v20, 4, v20', 'v_add_u32 v21, s76, v20', 'v_add_u32 v20, s75, v20']:
        k.I(o)
    pair_wait(k, 'L_a_pw2', 41, CSQ + 1, CSQ + 2, 79)
    CQ, CQ2 = 24, 64
    for a in range(4):
        k.I('ds_read_b128 %s, v20 offset:%d' % (vr(CQ + 4 * a, 4), 1024 + a * 32))
        k.I('ds_read_b128 %s, v21 offset:%d' % (vr(CQ2 + 4 * a, 4), 1024 + a * 32))
    for i in range(16):
        k.I('v_add_f32 %s, %s, %s' % (vr(CQ + i), vr(CQ + i), vr(CQ2 + i)))
    for i in range(0, 16, 2):
        for o in ln_phi_ops([ACQ + i, ACQ + i + 1], [MEAN, MEAN], [CQ + i, CQ + i + 1], [RSTD, RSTD], [22, 23]):
            k.I(o)
        k.I('v_cvt_pk_bf16_f32 %s, %s, %s' % (vr(ACQ + i // 2), vr(ACQ + i), vr(ACQ + i + 1)))
    for o in ['s_lshl_b32 s79, s32, 1', 's_add_u32 s79, s79, s29', 's_lshl_b32 s79, s79, 5', 's_lshl_b32 s80, s33, 2',
              's_add_u32 s79, s79, s80', 's_lshl_b32 s80, s30, 1', 's_add_u32 s79, s79, s80', 's_lshl_b32 s79, s79, 10',
              's_add_u32 s79, s79, 0x%x' % OFF_PQ]:
        k.I(o)
    k.I('buffer_store_dwordx4 %s, %s, %s, s79 offen%s' % (vr(ACQ, 4), vr(LN16), ws, APOL()))
    k.I('buffer_store_dwordx4 %s, %s, %s, s79 offen offset:1024%s' % (vr(ACQ + 4, 4), vr(LN16), ws, APOL()))
    if gen1.STAMPS:
        k.I('v_lshl_add_u32 v4, s39, 6, v1')
        k.I('v_subrev_u32 v4, 256, v4')
        stq.tid = 'v4'
        stq.stamp(); stq.stamp(True)
        flush_stamps(k, stq, ws, 5)
    if OPT.get('dbgt'):
        dbg_time(k, 24, 90, 8, 28)
    k.I('s_endpgm')
    return Multi([kp, kq_first(kk, kq)[0], kq_first(kk, kq)[1]]), dict(lds=131072 + 8192 + 16384, grid=256, block=512)


def dbg_time(k, DB, s_start, slot, s_wave):
    k.I('s_memrealtime s[92:93]')
    k.I('s_waitcnt lgkmcnt(0)')
    k.I('s_not_b32 s94, s%d' % s_start)
    k.I('s_mov_b64 exec, 1')
    k.I('v_mov_b32 v0, 0')
    k.I('v_mov_b32 v2, s94')
    k.I('v_mov_b32 v3, s%d' % s_start)
    k.I('v_mov_b32 v4, s92')
    k.I('buffer_atomic_umax v2, v0, %s, 0 offen offset:%d' % (sr(DB, 4), slot * 4))
    k.I('buffer_atomic_umax v3, v0, %s, 0 offen offset:%d' % (sr(DB, 4), slot * 4 + 4))
    k.I('buffer_atomic_umax v4, v0, %s, 0 offen offset:%d' % (sr(DB, 4), slot * 4 + 8))


def kq_first(kk, kq):
    return kk, kq


def flush_stamps(k, st, ws, kidx):
    k.I('s_waitcnt lgkmcnt(0)')
    k.I('v_cmp_eq_u32 vcc, 0, %s' % st.tid)
    k.I('s_and_saveexec_b64 s[40:41], vcc')
    k.I('s_lshl_b32 s42, s2, 7')
    k.I('s_add_u32 s42, s42, 0x%x' % (OFF_TS + kidx * 256 * 128))
    k.I('v_mov_b32 v0, 0')
    regs = [84, 86] + [st.base + 2 * i for i in range(st.n)]
    for i, r in enumerate(regs):
        k.I('v_mov_b32 v2, s%d' % r)
        k.I('v_mov_b32 v3, s%d' % (r + 1))
        k.I('buffer_store_dwordx2 v[2:3], v0, %s, s42 offen offset:%d' % (ws, 8 * i))
    k.I('s_mov_b64 exec, s[40:41]')


def prep_decode(k):
    k.I('s_cmp_ge_u32 s38, 448')
    k.I('s_cbranch_scc1 L_a_pstd')
    div_const(k, 37, 38, 28, 48)
    k.I('s_mul_i32 s48, s37, 28')
    k.I('s_sub_u32 s69, s38, s48')
    k.I('s_mov_b32 s16, s44')
    k.I('s_mov_b32 s17, s45')
    k.I('s_mov_b32 s18, 0x%x' % SZ['wg'])
    k.I('s_mov_b32 s20, s46')
    k.I('s_mov_b32 s21, s47')
    k.I('s_mov_b32 s22, 0x%x' % SZ['wu'])
    k.I('s_movk_i32 s50, 3584')
    k.I('s_mul_i32 s48, s37, %d' % (32 * 3584))
    k.I('s_lshl_b32 s49, s69, 7')
    k.I('s_add_u32 s48, s48, s49')
    k.I('s_mov_b32 s49, s48')
    k.I('s_lshl_b32 s59, s69, 7')
    k.I('s_lshl_b32 s51, s37, 1')
    k.I('s_add_u32 s59, s59, s51')
    k.I('s_lshl_b32 s59, s59, 10')
    k.I('s_add_u32 s72, s59, 0x%x' % OFF_WGU)
    k.I('s_mov_b32 s73, %d' % (32 * 1024))
    k.I('s_mov_b32 s74, %d' % (64 * 1024))
    k.I('s_mov_b32 s75, 1024')
    k.I('s_mul_i32 s59, s37, %d' % (112 * 128))
    k.I('s_lshl_b32 s69, s69, 9')
    k.I('s_add_u32 s59, s59, s69')
    k.I('s_add_u32 s59, s59, 0x%x' % OFF_CSG)
    k.I('s_mov_b32 s68, 1')
    k.I('s_branch L_a_pgo')
    k.label('L_a_pstd')
    k.I('s_movk_i32 s50, 1024')
    k.I('s_mov_b32 s68, 0')
    k.I('s_mov_b32 s59, 0x7fff0000')
    k.I('s_cmp_ge_u32 s38, 672')
    k.I('s_cbranch_scc1 L_a_pwo')
    k.I('s_sub_u32 s37, s38, 448')
    k.I('s_and_b32 s69, s37, 7')
    k.I('s_lshr_b32 s37, s37, 3')
    k.I('s_mov_b32 s16, s42')
    k.I('s_mov_b32 s17, s43')
    k.I('s_mov_b32 s18, 0x%x' % SZ['wd'])
    k.I('s_mul_i32 s48, s69, 224')
    k.I('s_lshl_b32 s49, s37, 2')
    k.I('s_add_u32 s48, s48, s49')
    k.I('s_lshl_b32 s48, s48, 10')
    k.I('s_add_u32 s72, s48, 0x%x' % OFF_WD)
    k.I('s_mov_b32 s73, %d' % (112 * 1024))
    k.I('s_mov_b32 s74, 1024')
    k.I('s_mov_b32 s75, 2048')
    k.I('s_branch L_a_pstd2')
    k.label('L_a_pwo')
    k.I('s_sub_u32 s37, s38, 672')
    k.I('s_and_b32 s69, s37, 7')
    k.I('s_lshr_b32 s37, s37, 3')
    k.I('s_mov_b32 s16, s40')
    k.I('s_mov_b32 s17, s41')
    k.I('s_mov_b32 s18, 0x%x' % SZ['wo'])
    k.I('s_lshl_b32 s48, s37, 6')
    k.I('s_lshl_b32 s49, s69, 1')
    k.I('s_add_u32 s48, s48, s49')
    k.I('s_lshl_b32 s48, s48, 10')
    k.I('s_add_u32 s72, s48, 0x%x' % OFF_WO)
    k.I('s_cmp_ge_u32 s38, 736')
    k.I('s_cselect_b32 s72, 0x7fff0000, s72')
    k.I('s_cselect_b32 s18, 0, s18')
    k.I('s_mov_b32 s73, 1024')
    k.I('s_mov_b32 s74, %d' % (16 * 1024))
    k.I('s_mov_b32 s75, %d' % (32 * 1024))
    k.label('L_a_pstd2')
    k.I('s_mov_b32 s20, s16')
    k.I('s_mov_b32 s21, s17')
    k.I('s_mov_b32 s22, s18')
    k.I('s_lshl_b32 s48, s37, 16')
    k.I('s_lshl_b32 s49, s69, 7')
    k.I('s_add_u32 s48, s48, s49')
    k.I('s_add_u32 s49, s48, %d' % (32 * 1024))
    k.label('L_a_pgo')
    k.I('s_mov_b32 s51, s72')
    k.I('s_add_u32 s52, s72, s73')
    k.I('s_add_u32 s53, s72, s74')
    k.I('s_add_u32 s54, s52, s74')
    for f in range(4):
        k.I('s_add_u32 %s, %s, s75' % (sr(55 + f), sr(51 + f)))


if __name__ == '__main__':
    n = int(sys.argv[2]) if len(sys.argv) > 2 else 4
    gen1.STAMPS = len(sys.argv) > 3 and sys.argv[3] == 'stamps'
    for o in sys.argv[4:]:
        if '=' in o:
            kk_, vv_ = o.split('=')
            gen1.OPT[kk_] = tuple(int(x) for x in vv_.split(','))
        else:
            gen1.OPT[o] = True
    gens = [('qkv_kernel', gen_a8), ('attn_kernel', gen_k2), ('gateup_kernel', gen_k3), ('down_kernel', gen_k4)]
    ks = []
    for label, g in gens[:n]:
        kk, cc = g()
        ks.append((label, kk, cc))
        print(label, kk.stats(), kk.maxreg())
    open(sys.argv[1], 'w').write(wrap(ks))
```

```python
import sys
from asmgen import Kernel
import gen1
from gen1 import *
from gen2 import Sched, xhalf_ops
from gen3 import emit
import gen4
from gen4 import gen_a8


def STP():
    return '' if OPT.get('stplain') else ' sc1'


def LSC():
    return '' if OPT.get('ldplain') else ' sc1'


def sync_arrive(k, s_wave, ws, vt, s_arr, name):
    k.I('s_barrier')
    k.raw("""    s_cmp_lg_u32 s%d, 0
    s_cbranch_scc1 %s_noarr
    v_lshlrev_b32 v%d, 7, v1
    v_mov_b32 v%d, 1
    s_mov_b64 exec, 0xffff
    buffer_store_dword v%d, v%d, %s, s%d offen sc1
    s_nop 0
    s_mov_b64 exec, -1
%s_noarr:""" % (s_wave, name, vt, vt + 1, vt + 1, vt, ws, s_arr, name))


def sync_wait(k, name, s_cnt, s_wave, ws, vt, bg, nbatch=4):
    k.raw("""    s_cmp_lg_u32 s%d, 0
    s_cselect_b32 s59, 1, 0
    v_and_b32 v%d, 15, v1
    v_lshlrev_b32 v%d, 2, v%d""" % (s_wave, vt, vt, vt))
    vm = [i for i, o in enumerate(bg) if (isinstance(o, tuple) or o.startswith('buffer_'))]
    per = -(-len(vm) // nbatch)
    cuts = [0] + [vm[min(len(vm) - 1, per * (b + 1) - 1)] + 1 for b in range(nbatch)]
    cuts[-1] = len(bg)
    check = """    v_cmp_eq_u32 vcc, 1, v%d
    s_nop 4
    s_cmp_eq_u64 vcc, exec
    s_cselect_b32 s59, 1, 0""" % (vt + 1)
    for b in range(nbatch):
        batch = bg[cuts[b]:cuts[b + 1]]
        nv = sum(1 for o in batch if (isinstance(o, tuple) or o.startswith('buffer_')))
        k.raw("""    s_cmp_lg_u32 s59, 0
    s_cbranch_scc1 %s_np%d
    buffer_load_dword v%d, v%d, %s, s%d offen sc1
%s_np%d:""" % (name, b, vt + 1, vt, ws, s_cnt, name, b))
        for o in batch:
            emit(k, o)
        k.raw("""    s_cmp_lg_u32 s59, 0
    s_cbranch_scc1 %s_nq%d
    s_waitcnt vmcnt(%d)
%s
%s_nq%d:""" % (name, b, nv, check, name, b))
    k.raw("""    s_mov_b32 s60, 0
%s_spin:
    s_cmp_lg_u32 s59, 0
    s_cbranch_scc1 %s_done
    buffer_load_dword v%d, v%d, %s, s%d offen sc1
    s_waitcnt vmcnt(0)
%s
    s_add_u32 s60, s60, 1
    s_cmp_lt_u32 s60, 0x40000
    s_cbranch_scc1 %s_spin
%s_done:""" % (name, name, vt + 1, vt, ws, s_cnt, check, name, name))
    k.I('s_barrier')


def flag_store(k, s_wave, ws, vt, s_arr, name):
    k.raw("""    s_cmp_lg_u32 s%d, 0
    s_cbranch_scc1 %s_nf
    v_lshlrev_b32 v%d, 7, v1
    v_mov_b32 v%d, 1
    s_mov_b64 exec, 0xffff
    buffer_store_dword v%d, v%d, %s, s%d offen sc1
    s_nop 0
    s_mov_b64 exec, -1
%s_nf:""" % (s_wave, name, vt, vt + 1, vt + 1, vt, ws, s_arr, name))


_pi = [0]


def poll_issue(k, s_wave, ws, vt, s_cnt):
    _pi[0] += 1
    k._poll_mark = len(k.items)
    k.raw("""    s_cmp_lg_u32 s%d, 0
    s_cbranch_scc1 L_f_pi%d
    v_and_b32 v%d, 15, v1
    v_lshlrev_b32 v%d, 2, v%d
    buffer_load_dword v%d, v%d, %s, s%d offen sc1
L_f_pi%d:""" % (s_wave, _pi[0], vt, vt, vt, vt + 1, vt, ws, s_cnt, _pi[0]))


def poll_check_spin(k, name, s_wave, ws, vt, s_cnt):
    from asmgen import Ins
    nyoung = sum(1 for it in k.items[k._poll_mark:] if isinstance(it, Ins) and it.vm)
    k.raw("""    s_cmp_lg_u32 s%d, 0
    s_cbranch_scc1 %s_done
    s_mov_b32 s60, 0
    s_waitcnt vmcnt(%d)
    s_branch %s_tst
%s_chk:
    s_waitcnt vmcnt(0)
%s_tst:
    v_cmp_eq_u32 vcc, 1, v%d
    s_nop 4
    s_cmp_eq_u64 vcc, exec
    s_cbranch_scc1 %s_done
    buffer_load_dword v%d, v%d, %s, s%d offen sc1
    s_add_u32 s60, s60, 1
    s_cmp_lt_u32 s60, 0x40000
    s_cbranch_scc1 %s_chk
    s_waitcnt vmcnt(0)
%s_done:""" % (s_wave, name, min(nyoung, 63), name, name, name, vt + 1, name, vt + 1, vt, ws, s_cnt, name, name))


def merge(k, main, bg, first=0, last=None):
    if last is None:
        last = len(main)
    ib = 0
    for i, o in enumerate(main):
        if isinstance(o, (str, tuple)):
            emit(k, o)
        else:
            k.items.append(o)
        if first <= i < last:
            upto = len(bg) * (i - first + 1) // (last - first)
            while ib < upto:
                emit(k, bg[ib]); ib += 1
    while ib < len(bg):
        emit(k, bg[ib]); ib += 1


def gen_bcd():
    k = Kernel('bcd_kernel')
    WS, XS, OS = 4, 8, 12
    ws = sr(WS, 4)
    k.I('s_cmp_ge_u32 s2, 256')
    k.I('s_cbranch_scc1 L_f_end')
    load_srds(k, [('ws', WS), ('x', XS), ('out', OS)])
    st = Stamper(k, 2, ws, base=72, tmp=68); st.stamp(True); st.stamp()
    if OPT.get('dbgt'):
        k.I('s_memrealtime s[90:91]')
        k.I('s_load_dwordx2 s[96:97], s[0:1], %d' % KA['dbg'])
    k.I('v_and_b32 v1, 63, v0')
    k.I('v_lshrrev_b32 v2, 6, v0')
    k.I('v_readfirstlane_b32 s16, v2')
    k.I('v_lshlrev_b32 v2, 4, v1')
    k.I('v_add_u32 v3, 4096, v2')
    k.I('s_and_b32 s24, s2, 7')
    k.I('s_lshr_b32 s25, s2, 3')
    if not OPT.get('nocode2'):
        k.I('s_getpc_b64 s[64:65]')
        k.label('L_f_pc')
        k.I('s_sub_u32 s64, s64, L_f_pc-bcd_kernel')
        k.I('s_subb_u32 s65, s65, 0')
        k.I('s_lshl_b32 s26, s25, 2')
        k.I('s_add_u32 s26, s26, s16')
        k.I('s_lshl_b32 s26, s26, 9')
        k.I('v_lshlrev_b32 v8, 3, v1')
        k.I('v_add_u32 v8, s26, v8')
        k.I('v_min_u32 v8, L_text_end-bcd_kernel-4, v8')
        k.I('global_load_dword v30, v8, s[64:65]')
    if OPT.get('rowmap'):
        k.I('s_lshl_b32 s17, s24, 1')
        k.I('s_lshr_b32 s26, s25, 4')
        k.I('s_add_u32 s17, s17, s26')
        k.I('s_and_b32 s18, s25, 15')
        k.I('s_lshl_b32 s19, s17, 1')
        k.I('s_lshr_b32 s26, s18, 3')
        k.I('s_add_u32 s19, s19, s26')
        k.I('s_and_b32 s20, s18, 7')
    else:
        k.I('s_and_b32 s17, s24, 1')
        k.I('s_lshl_b32 s17, s17, 3')
        k.I('s_and_b32 s26, s25, 7')
        k.I('s_add_u32 s17, s17, s26')
        k.I('s_lshr_b32 s18, s24, 1')
        k.I('s_lshl_b32 s18, s18, 2')
        k.I('s_lshr_b32 s26, s25, 3')
        k.I('s_add_u32 s18, s18, s26')
        k.I('s_lshl_b32 s19, s24, 2')
        k.I('s_and_b32 s26, s25, 3')
        k.I('s_add_u32 s19, s19, s26')
        k.I('s_lshr_b32 s20, s25, 2')
    k.I('s_lshl_b32 s21, s19, 1')
    k.I('s_and_b32 s26, s16, 1')
    k.I('s_add_u32 s21, s21, s26')
    k.I('s_lshl_b32 s22, s20, 1')
    k.I('s_lshr_b32 s26, s16, 1')
    k.I('s_add_u32 s22, s22, s26')
    k.I('s_lshl_b32 s23, s17, 2')
    k.I('s_add_u32 s23, s23, s16')
    k.I('s_lshl_b32 s27, s16, 3')
    k.I('s_lshl_b32 s28, s19, 6')
    k.I('s_add_u32 s28, s28, s27')
    k.I('s_lshl_b32 s28, s28, 10')
    k.I('s_add_u32 s28, s28, 0x%x' % OFF_PQ)
    k.I('s_and_b32 s26, s16, 1')
    k.I('s_lshl_b32 s26, s26, 15')
    k.I('s_add_u32 s29, s28, 32768')
    k.I('s_sub_u32 s29, s29, s26')
    k.I('s_add_u32 s28, s28, s26')
    k.I('s_lshl_b32 s30, s27, 4')
    k.I('s_lshl_b32 s26, s20, 1')
    k.I('s_add_u32 s30, s30, s26')
    k.I('s_lshl_b32 s30, s30, 10')
    k.I('s_add_u32 s30, s30, 0x%x' % OFF_WO)
    k.I('s_lshr_b32 s26, s16, 1')
    k.I('s_lshl_b32 s26, s26, 10')
    k.I('s_add_u32 s64, s30, 1024')
    k.I('s_sub_u32 s64, s64, s26')
    k.I('s_add_u32 s30, s30, s26')
    k.I('s_lshl_b32 s31, s27, 11')
    k.I('s_add_u32 s31, s31, 0x%x' % OFF_KVZ)
    k.I('v_and_b32 v4, 31, v1')
    k.I('v_min_u32 v5, 16, v4')
    k.I('v_lshrrev_b32 v6, 5, v1')
    k.I('v_mul_u32_u24 v7, 17, v6')
    k.I('v_add_u32 v5, v5, v7')
    k.I('v_lshlrev_b32 v5, 4, v5')
    k.I('s_waitcnt lgkmcnt(0)')

    KV = 128
    A_PQ, A_WO = 96, 160
    ACC = 192
    XR = 56

    def b_loads(t):
        ops = ['s_add_u32 s38, s31, %d' % (t * 2048),
               'buffer_load_dwordx4 %s, v5, %s, s38 offen' % (vr(KV + 8 * t, 4), ws),
               'buffer_load_dwordx4 %s, v5, %s, s38 offen offset:544' % (vr(KV + 8 * t + 4, 4), ws)]
        for r in range(2):
            ops.append('buffer_load_dwordx4 %s, %s, %s, %s offen offset:%d' % (
                ar(A_PQ + (t * 2 + r) * 4, 4), 'v2' if t < 4 else 'v3', ws, 's28' if r == 0 else 's29', (t % 4) * 1024))
        ops.append('s_add_u32 s39, s30, %d' % (t * 16384))
        ops.append('s_add_u32 s65, s64, %d' % (t * 16384))
        for n in range(2):
            ops.append('buffer_load_dwordx4 %s, v2, %s, %s offen' % (ar(A_WO + (t * 2 + n) * 4, 4), ws, 's39' if n == 0 else 's65'))
        return ops
    PD = 3
    for t in range(PD):
        for o in b_loads(t):
            k.I(o)
    k.I('s_lshl_b32 s32, s21, 15')
    k.I('s_lshl_b32 s26, s22, 6')
    k.I('s_add_u32 s32, s32, s26')
    k.I('v_lshlrev_b32 v7, 10, v4')
    k.I('v_lshlrev_b32 v8, 3, v6')
    k.I('v_add_u32 v7, v7, v8')
    k.I('s_mul_i32 s33, s18, %d' % (7 * 32768))
    k.I('s_lshl_b32 s34, s16, 13')
    k.I('s_add_u32 s33, s33, s34')
    k.I('s_add_u32 s33, s33, 0x%x' % OFF_WGU)
    k.I('s_mul_i32 s35, s16, %d' % (28 * 1024))
    k.I('s_mul_i32 s36, s20, %d' % (2 * 112 * 1024))
    k.I('s_add_u32 s36, s36, s35')
    k.I('s_add_u32 s36, s36, 0x%x' % OFF_WD)
    k.I('s_lshr_b32 s26, s16, 1')
    k.I('s_mul_i32 s26, s26, %d' % (112 * 1024))
    k.I('s_add_u32 s37, s36, %d' % (112 * 1024))
    k.I('s_sub_u32 s37, s37, s26')
    k.I('s_add_u32 s36, s36, s26')
    k.I('s_lshl_b32 s44, s17, 4')
    k.I('s_add_u32 s44, s44, s18')
    k.I('s_lshl_b32 s44, s44, 7')
    k.I('s_add_u32 s44, s44, 0x%x' % OFF_CNT)
    k.I('s_and_b32 s26, s19, 1')
    k.I('s_lshl_b32 s26, s26, 3')
    k.I('s_add_u32 s26, s26, s20')
    k.I('s_lshr_b32 s57, s19, 1')
    k.I('s_lshl_b32 s62, s57, 11')
    k.I('s_lshl_b32 s63, s26, 2')
    k.I('s_add_u32 s62, s62, s63')
    k.I('s_add_u32 s62, s62, 0x%x' % OFF_CNT)
    k.I('s_lshl_b32 s57, s57, 4')
    k.I('s_add_u32 s57, s57, s26')
    k.I('s_lshl_b32 s57, s57, 7')
    k.I('s_add_u32 s57, s57, 0x%x' % (OFF_CNT + 32768))
    k.I('s_lshl_b32 s63, s17, 11')
    k.I('s_lshl_b32 s26, s18, 2')
    k.I('s_add_u32 s63, s63, s26')
    k.I('s_add_u32 s63, s63, 0x%x' % (OFF_CNT + 32768))
    CS_LDS = 162816
    k.I('v_mov_b32 v8, 0')
    k.I('v_mov_b32 v9, 0')
    k.I('v_mov_b32 v10, 0')
    k.I('v_mov_b32 v11, 0')
    k.I('v_add_u32 v20, %d, v2' % CS_LDS)
    k.I('ds_write_b128 v20, v[8:11]')
    D1 = [[64, 80], [96, 112]]
    KF = [40, 44]
    OF = [48, 52]
    T = 36

    def stageA(t):
        ops = []
        for j in range(4):
            ops.append('v_cvt_pk_bf16_f32 %s, %s, %s' % (vr(KF[t & 1] + j), vr(KV + 8 * t + 2 * j), vr(KV + 8 * t + 2 * j + 1)))
        for r in range(2):
            ops.append('v_mfma_f32_32x32x16_bf16 %s, %s, %s, 0' % (vr(D1[t & 1][r], 16), vr(KF[t & 1], 4), ar(A_PQ + (t * 2 + r) * 4, 4)))
        return ops

    def stageB(t):
        ops = []
        for r in range(2):
            ops.append('v_add_f32 %s, 0x%x, %s' % (vr(T + r), f2u(1e-6), vr(D1[t & 1][r] + 8)))
        for r in range(2):
            ops.append('v_rcp_f32 %s, %s' % (vr(T + r), vr(T + r)))
        for i in range(8):
            for r in range(2):
                d = D1[t & 1][r]
                ops.append('v_mul_f32 %s, %s, %s' % (vr(d + i), vr(T + r), vr(d + i)))
        for r in range(2):
            d = D1[t & 1][r]
            for j in range(4):
                ops.append('v_cvt_pk_bf16_f32 %s, %s, %s' % (vr(OF[r] + j), vr(d + 2 * j), vr(d + 2 * j + 1)))
        for n in range(2):
            for r in range(2):
                acc = vr(ACC + (n * 2 + r) * 16, 16)
                ops.append('v_mfma_f32_32x32x16_bf16 %s, %s, %s, %s' % (acc, ar(A_WO + (t * 2 + n) * 4, 4), vr(OF[r], 4), acc if t else '0'))
        return ops
    for o in stageA(0):
        k.I(o)
    for t in range(8):
        main = (stageA(t + 1) if t + 1 < 8 else []) + stageB(t)
        bg = b_loads(t + PD) if t + PD < 8 else []
        if t == 5:
            bg = ['buffer_load_dwordx2 %s, v7, %s, s32 offen offset:%d' % (vr(XR + 2 * a, 2), sr(XS, 4), a * 16) for a in range(4)]
        merge(k, main, bg)
    if not OPT.get('bat'): st.stamp()
    RB = 98304
    red = Kernel('red')
    kmain, k = k, red
    k.I('s_mul_i32 s38, s16, 12288')
    k.I('s_add_u32 s38, s38, %d' % RB)
    k.I('v_add_u32 v10, s38, v2')
    for tp in range(1, 4):
        for q in range(4):
            k.I('ds_write_b128 v10, %s offset:%d' % (vr(ACC + tp * 16 + q * 4, 4), (tp - 1) * 4096 + q * 1024))
    H = ACC
    for tp in range(1, 4):
        k.I('s_xor_b32 s38, s16, %d' % tp)
        k.I('s_mul_i32 s38, s38, 12288')
        k.I('s_add_u32 s38, s38, %d' % (RB + (tp - 1) * 4096))
        k.I('v_add_u32 %s, s38, v2' % vr(40 + tp))
    XU = 64
    for a_ in range(4):
        for b_ in range(2):
            src = XR + 2 * a_ + b_
            k.I('v_lshlrev_b32 %s, 16, %s' % (vr(XU + 4 * a_ + 2 * b_), vr(src)))
            k.I('v_and_b32 %s, 0xffff0000, %s' % (vr(XU + 4 * a_ + 2 * b_ + 1), vr(src)))
    for i in range(16):
        k.I('v_add_f32 %s, %s, %s' % (vr(H + i), vr(H + i), vr(XU + i)))
    k.I('s_waitcnt lgkmcnt(0)')
    k.I('s_barrier')
    for tp in range(1, 4):
        for q in range(4):
            k.I('ds_read_b128 %s, %s offset:%d' % (vr(H + tp * 16 + q * 4, 4), vr(40 + tp), q * 1024))
    for i in range(16):
        k.I('v_add_f32 %s, %s, %s' % (vr(H + i), vr(H + i), vr(H + 16 + i)))
    for i in range(16):
        k.I('v_add_f32 %s, %s, %s' % (vr(H + 32 + i), vr(H + 32 + i), vr(H + 48 + i)))
    for i in range(16):
        k.I('v_add_f32 %s, %s, %s' % (vr(H + i), vr(H + i), vr(H + 32 + i)))
    HP = 12
    for j in range(8):
        k.I('v_cvt_pk_bf16_f32 %s, %s, %s' % (vr(HP + j), vr(H + 2 * j), vr(H + 2 * j + 1)))
    k.I('s_lshl_b32 s38, s21, 5')
    k.I('s_lshl_b32 s39, s22, 1')
    k.I('s_add_u32 s38, s38, s39')
    k.I('s_lshl_b32 s38, s38, 10')
    k.I('s_add_u32 s38, s38, 0x%x' % OFF_H)
    k.I('buffer_store_dwordx4 %s, v2, %s, s38 offen%s' % (vr(HP, 4), ws, STP()), w=['hst'])
    k.I('buffer_store_dwordx4 %s, v2, %s, s38 offen offset:1024%s' % (vr(HP + 4, 4), ws, STP()), w=['hst'])
    k.I('v_add_f32 v36, %s, %s' % (vr(H), vr(H + 1)))
    k.I('v_mul_f32 v37, %s, %s' % (vr(H), vr(H)))
    k.I('v_fmac_f32 v37, %s, %s' % (vr(H + 1), vr(H + 1)))
    for i in range(2, 16):
        k.I('v_add_f32 v36, v36, %s' % vr(H + i))
        k.I('v_fmac_f32 v37, %s, %s' % (vr(H + i), vr(H + i)))
    for o in xhalf_ops(36, 38) + xhalf_ops(37, 38):
        k.I(o)
    k.I('s_lshl_b32 s38, s22, 14')
    k.I('s_lshl_b32 s39, s21, 8')
    k.I('s_add_u32 s38, s38, s39')
    k.I('s_add_u32 s38, s38, 0x%x' % OFF_STAT)
    k.I('v_lshlrev_b32 v38, 3, v4')
    k.I('buffer_store_dwordx2 v[36:37], v38, %s, s38 offen%s' % (ws, STP()), w=['hst'])
    k = kmain
    REDITEMS = red.items

    def dma(soff, sm0, name):
        ops = []
        for hf in range(2):
            ops.append('s_add_u32 m0, %s, %d' % (sr(sm0), hf * 4096))
            ops.append('s_add_u32 s40, %s, %d' % (sr(soff), hf * 4096))
            for t in range(4):
                ops.append(('buffer_load_dwordx4 v2, %s, s40 offen offset:%d lds' % (ws, t * 1024), name))
        return ops

    def d_ks(f):
        if f < 12:
            return (f // 3) * 7 + f % 3
        if f < 20:
            return ((f - 12) // 2) * 7 + 3 + (f - 12) % 2
        return ((f - 20) // 2) * 7 + 5 + (f - 20) % 2

    def wd_loads(f_list):
        ops = []
        last = None
        for f in f_list:
            ks = d_ks(f)
            grp, rem = ks // 8, ks % 8
            if grp != last:
                ops.append('s_add_u32 s41, s36, %d' % (grp * 8192))
                ops.append('s_add_u32 s58, s37, %d' % (grp * 8192))
                last = grp
            for n in range(2):
                ops.append('buffer_load_dwordx4 %s, %s, %s, %s offen offset:%d' % (
                    ar((f * 2 + n) * 4, 4), 'v2' if rem < 4 else 'v3', ws, 's41' if n == 0 else 's58', (rem % 4) * 1024))
        return ops
    CSV = 128
    NWD0 = OPT.get('nwd0', (14,))[0]
    pre0 = ['s_mov_b32 s42, s34'] + dma(33, 42, 'W0')
    pre0 += ['s_add_u32 s43, s33, 32768', 's_add_u32 s42, s34, 32768'] + dma(43, 42, 'W1')
    pre1 = ['s_mul_i32 s66, s18, %d' % (7 * 128), 's_mul_i32 s39, s16, %d' % (4 * 112 * 128), 's_add_u32 s66, s66, s39',
            's_add_u32 s66, s66, 0x%x' % OFF_CSG]
    for kg in range(4):
        pre1 += ['s_add_u32 s39, s66, %d' % (kg * 112 * 128), 'buffer_load_dwordx4 %s, v2, %s, s39 offen' % (vr(CSV + 4 * kg, 4), ws)]
    pre1 += ['s_add_u32 s43, s33, 65536', 's_add_u32 s42, s34, 65536'] + dma(43, 42, 'W2')
    merge(k, REDITEMS, pre0 if not OPT.get('nopre0') else [], first=0, last=len(REDITEMS) - 30)
    if not OPT.get('bat'): st.stamp()
    if OPT.get('nopre0'):
        for o in pre0:
            emit(k, o)
    for o in pre1:
        emit(k, o)
    k.need('hst')
    sync_arrive(k, 16, ws, 36, 62, 'L_f_s1')
    if not OPT.get('bat'): st.stamp()
    for j in range(4):
        k.I('v_add_f32 %s, %s, %s' % (vr(CSV + j), vr(CSV + j), vr(CSV + 4 + j)))
        k.I('v_add_f32 %s, %s, %s' % (vr(CSV + 8 + j), vr(CSV + 8 + j), vr(CSV + 12 + j)))
    for j in range(4):
        k.I('v_add_f32 %s, %s, %s' % (vr(CSV + j), vr(CSV + j), vr(CSV + 8 + j)))
    for j in range(4):
        k.I('ds_add_f32 v20, %s offset:%d' % (vr(CSV + j), 4 * j))
    bg2 = wd_loads(range(0, NWD0))
    sync_wait(k, 'L_f_s1', 44, 16, ws, 36, bg2)
    st.stamp()

    X = 128
    for t in range(2, 8):
        k.I('v_add_u32 %s, %d, v2' % (vr(20 + t), 4096 * t))
    VOF = [2, 3] + [20 + t for t in range(2, 8)]
    k.I('s_lshl_b32 s45, s23, 15')
    k.I('s_add_u32 s45, s45, 0x%x' % OFF_H)

    def xload(ks):
        return 'buffer_load_dwordx4 %s, %s, %s, s45 offen offset:%d%s' % (vr(X + 4 * ks, 4), vr(VOF[ks // 4]), ws, (ks % 4) * 1024, LSC())
    XD = OPT.get('xd', (14,))[0]
    for ks in range(XD):
        k.I(xload(ks))
    SP = 104
    k.I('v_lshlrev_b32 v21, 3, v4')
    k.I('v_lshlrev_b32 v28, 17, v6')
    k.I('v_add_u32 v21, v21, v28')
    k.I('s_lshl_b32 s46, s23, 8')
    k.I('s_add_u32 s46, s46, 0x%x' % OFF_STAT)
    stl = []
    for t in range(8):
        stl.append('s_add_u32 s47, s46, %d' % (t * 16384))
        stl.append('buffer_load_dwordx2 %s, v21, %s, s47 offen%s' % (vr(SP + 2 * t, 2), ws, LSC()))
    k.I('s_mul_i32 s48, s23, 112')
    k.I('s_mul_i32 s47, s18, 7')
    k.I('s_add_u32 s48, s48, s47')
    k.I('s_lshl_b32 s48, s48, 10')
    k.I('s_add_u32 s48, s48, 0x%x' % OFF_ACT)
    k.I('s_mul_i32 s50, s19, %d' % (2 * 112 * 1024))
    k.I('s_add_u32 s50, s50, s35')
    k.I('s_add_u32 s50, s50, 0x%x' % OFF_ACT)
    k.I('s_and_b32 s26, s16, 1')
    k.I('s_mul_i32 s26, s26, %d' % (112 * 1024))
    k.I('s_add_u32 s51, s50, %d' % (112 * 1024))
    k.I('s_sub_u32 s51, s51, s26')
    k.I('s_add_u32 s50, s50, s26')
    k.I('v_add_u32 v8, 0x10000, v2')
    k.I('v_lshlrev_b32 v10, 4, v6')
    k.I('v_add_u32 v10, %d, v10' % CS_LDS)
    ACCC = [32, 48]
    D, L = 8, 6
    WR = 224
    CSR = 64
    T = 80
    MEAN, RSTD, NMEAN, NA, A2 = 120, 121, 122, 123, 124

    def wread(c, ks):
        slot = c % 4
        return 'ds_read_b128 %s, %s offset:%d' % (ar(WR + (ks % D) * 4, 4), 'v2' if slot < 2 else 'v8', (slot % 2) * 32768 + ks * 1024)

    def epilogue_ops(S, c):
        ops = []
        for q in range(4):
            ops.append('ds_read_b128 %s, v10 offset:%d' % (vr(CSR + 4 * q, 4), c * 128 + q * 32))
        pre = len(ops)
        for i0 in range(0, 8, 2):
            a = []
            for u, i in enumerate((i0, i0 + 1)):
                t = T + u * 4
                a.append([
                    'v_fma_f32 %s, %s, %s, %s' % (vr(t), vr(NMEAN), vr(CSR + i), vr(S + i)),
                    'v_fma_f32 %s, %s, %s, %s' % (vr(t + 1), vr(NMEAN), vr(CSR + 8 + i), vr(S + 8 + i)),
                    'v_mul_f32 %s, %s, %s' % (vr(t + 2), vr(NA), vr(t)),
                    'v_exp_f32 %s, %s' % (vr(t + 2), vr(t + 2)),
                    'v_mul_f32 %s, %s, %s' % (vr(t), vr(t), vr(t + 1)),
                    'v_add_f32 %s, 1.0, %s' % (vr(t + 2), vr(t + 2)),
                    'v_rcp_f32 %s, %s' % (vr(t + 2), vr(t + 2)),
                    'v_mul_f32 %s, %s, %s' % (vr(t), vr(A2), vr(t)),
                    'v_mul_f32 %s, %s, %s' % (vr(T + 8 + i), vr(t), vr(t + 2)),
                ])
            for x, y in zip(a[0], a[1]):
                ops += [x, y]
            ops.append('v_cvt_pk_bf16_f32 %s, %s, %s' % (vr(T + 16 + i0 // 2), vr(T + 8 + i0), vr(T + 8 + i0 + 1)))
        ops.append('s_add_u32 s49, s48, %d' % (c * 1024))
        ops.append(('buffer_store_dwordx4 %s, v2, %s, s49 offen%s' % (vr(T + 16, 4), ws, STP()), 'ast%d' % c))
        return ops, pre

    wd_plan = {}
    rest = list(range(NWD0, 28))
    wts = list(OPT.get('wts', (1, 1, 1, 2, 2, 0)))
    tot = sum(wts); acc_ = 0; pos = 0
    for c, wgt in zip(range(1, 7), wts):
        acc_ += wgt
        upto = len(rest) * acc_ // tot
        wd_plan[c] = rest[pos:upto]; pos = upto

    def refill(c):
        return ['s_add_u32 s43, s33, %d' % (c * 32768), 's_add_u32 s42, s34, %d' % ((c % 4) * 32768)] + dma(43, 42, 'W%d' % c)

    def is_vm(o):
        return isinstance(o, tuple) or o.startswith('buffer_')

    def place(fill, ops, lo, hi):
        groups, cur = [], []
        for o in ops:
            cur.append(o)
            if is_vm(o):
                groups.append(cur); cur = []
        if cur:
            groups.append(cur)
        for i, g in enumerate(groups):
            fill[lo + i * (hi - lo) // len(groups)] += g

    AR, NR, AD = 128, 10, 8

    def act_load(f):
        ks = d_ks(f)
        grp, rem = ks // 8, ks % 8
        ops = ['s_add_u32 s47, s50, %d' % (grp * 8192), 's_add_u32 s52, s51, %d' % (grp * 8192)]
        for r in range(2):
            ops.append('buffer_load_dwordx4 %s, %s, %s, %s offen offset:%d%s' % (
                vr(AR + ((f % NR) * 2 + r) * 4, 4), 'v2' if rem < 4 else 'v3', ws, 's47' if r == 0 else 's52', (rem % 4) * 1024, LSC()))
        return ops
    DACC = [32, 48, 64, 80]

    def d_mfmas(f):
        mm = []
        for n in range(2):
            for r in range(2):
                acc = vr(DACC[n * 2 + r], 16)
                mm.append('v_mfma_f32_32x32x16_bf16 %s, %s, %s, %s' % (
                    acc, ar((f * 2 + n) * 4, 4), vr(AR + ((f % NR) * 2 + r) * 4, 4), acc if f else '0'))
        return mm

    carry = []

    def body(c):
        nonlocal carry
        S_ = ACCC[c & 1]
        fill = [[] for _ in range(32)]
        post = []
        if c == 0:
            for ks in range(XD, 32):
                fill[ks - XD].append(xload(ks))
            for i, o in enumerate(stl):
                fill[20 + i // 4].append(o)
            for t in range(1, 8):
                post.append('v_add_f32 %s, %s, %s' % (vr(SP), vr(SP), vr(SP + 2 * t)))
                post.append('v_add_f32 %s, %s, %s' % (vr(SP + 1), vr(SP + 1), vr(SP + 2 * t + 1)))
            post += xhalf_ops(SP, SP + 2) + xhalf_ops(SP + 1, SP + 2)
            post += ['v_mul_f32 %s, 0x%x, %s' % (vr(MEAN), f2u(1.0 / 512), vr(SP)),
                     'v_mul_f32 %s, 0x%x, %s' % (vr(SP + 1), f2u(1.0 / 512), vr(SP + 1)),
                     'v_fma_f32 %s, -%s, %s, %s' % (vr(SP + 1), vr(MEAN), vr(MEAN), vr(SP + 1)),
                     'v_max_f32 %s, 0, %s' % (vr(SP + 1), vr(SP + 1)),
                     'v_add_f32 %s, 0x%x, %s' % (vr(SP + 1), f2u(1e-5), vr(SP + 1)),
                     'v_rsq_f32 %s, %s' % (vr(RSTD), vr(SP + 1)),
                     'v_sub_f32 %s, 0, %s' % (vr(NMEAN), vr(MEAN)),
                     'v_mul_f32 %s, 0x%x, %s' % (vr(NA), f2u(-LOG2E), vr(RSTD)),
                     'v_mul_f32 %s, %s, %s' % (vr(A2), vr(RSTD), vr(RSTD))]
        else:
            ops, pre = epilogue_ops(ACCC[1 - (c & 1)], c - 1)
            fill[0] = ops[:pre]
            rest = ops[pre:]
            tailops = rest[-2:]
            rest = rest[:-2]
            vmops = list(carry) + wd_loads(wd_plan[c])
            carry = []
            groups, cur = [], []
            for o in vmops:
                cur.append(o)
                if is_vm(o):
                    groups.append(cur); cur = []
            lo, hi = 1, 27
            vhi = 17 if c >= 5 else hi
            nslots = vhi - lo
            nv = min(len(groups), nslots - (OPT.get('minv', (15,))[0] if c < 5 else 4))
            vslots = sorted(set(lo + (2 * i + 1) * nslots // (2 * nv) for i in range(nv))) if nv else []
            for i, g in enumerate(groups):
                fill[vslots[i * len(vslots) // len(groups)]] += g
            free = [x for x in range(3, hi) if x not in vslots]
            for i, o in enumerate(rest):
                fill[free[i * len(free) // len(rest)]].append(o)
            last = max(free[-1], 26)
            fill[last if last not in vslots else 26] += tailops
        for ks in range(32):
            TW = OPT.get('tw', (2,))[0]
            if ks % TW == 0:
                k.touch(ar(WR + ((min(31, ks + TW - 1)) % D) * 4, 4))
            k.I('v_mfma_f32_32x32x16_bf16 %s, %s, %s, %s' % (
                vr(S_, 16), ar(WR + (ks % D) * 4, 4), vr(X + 4 * ks, 4), vr(S_, 16) if ks else '0'))
            if ks == 32 - L and c < 6:
                k.need('W%d' % (c + 1))
                if c == 4:
                    k.need('ast0', 'ast1', 'ast2')
                k.I('s_barrier')
                if c == 4:
                    flag_store(k, 16, ws, 28, 63, 'L_f_fa')
                if c + 3 <= 6:
                    r = refill(c + 3)
                    for o in r[:2 + 2 + 4]:
                        fill[ks].append(o) if not is_vm(o) else None
                    first4 = [o for o in r[4:8]]
                    for i, o in enumerate(first4):
                        fill[ks + 1 + i].append(o)
                    carry = r[8:]
            if c == 6 and ks == 10:
                k.need('ast3', 'ast4')
                k.I('s_barrier')
                k.I('s_add_u32 s63, s63, 32768')
                flag_store(k, 16, ws, 28, 63, 'L_f_fb')
            if c == 6 and ks == 27:
                poll_check_spin(k, 'L_f_sa', 16, ws, 28, 57)
                k.I('s_barrier')
            if c == 6 and ks >= 27:
                for o in act_load(ks - 27):
                    k.I(o)
            if ks + L < 32:
                k.I(wread(c, ks + L))
            elif c < 6:
                k.I(wread(c + 1, ks + L - 32))
            for o in fill[ks]:
                if OPT.get('noepi') and isinstance(o, str) and o.startswith('v_') and c > 0: continue
                if OPT.get('novm') and c > 0 and is_vm(o) and not (isinstance(o, tuple) and o[1].startswith('ast')): continue
                emit(k, o)
            if c == 6 and ks == 14:
                poll_issue(k, 16, ws, 28, 57)
        for o in post:
            emit(k, o)

    k.need('W0')
    k.I('s_waitcnt lgkmcnt(0)')
    k.I('s_barrier')
    for n in range(L):
        k.I(wread(0, n))
    body(0)
    st.stamp()
    for c in range(1, 7):
        body(c)
        if c in OPT.get('bat', ()): st.stamp()
    st.stamp()
    ops, pre = epilogue_ops(ACCC[0], 6)
    for o in ops:
        emit(k, o)
    for o in act_load(5) + act_load(6) + act_load(7):
        k.I(o)
    st.stamp()

    k.need('ast5', 'ast6')
    k.I('s_barrier')
    k.I('s_add_u32 s63, s63, 32768')
    flag_store(k, 16, ws, 28, 63, 'L_f_fc')
    k.I('s_add_u32 s57, s57, 32768')
    PL = OPT.get('plead', (3,))[0]
    for f in range(28):
        nxt = f + AD
        if nxt in (12, 20):
            poll_check_spin(k, 'L_f_s%d' % nxt, 16, ws, 28, 57)
            k.I('s_barrier')
            k.I('s_add_u32 s57, s57, 32768')
            if nxt == 12: st.stamp()
        merge(k, d_mfmas(f), act_load(nxt) if nxt < 28 else [])
        if nxt + PL in (12, 20) or (f == 0 and 12 - AD - PL <= 0 and False):
            poll_issue(k, 16, ws, 28, 57)
    st.stamp()
    k.I('s_mul_i32 s38, s16, 12288')
    k.I('v_add_u32 v10, s38, v2')
    for tp in range(1, 4):
        for q in range(4):
            k.I('ds_write_b128 v10, %s offset:%d' % (vr(DACC[tp] + q * 4, 4), (tp - 1) * 4096 + q * 1024))
    for tp in range(1, 4):
        k.I('s_xor_b32 s38, s16, %d' % tp)
        k.I('s_mul_i32 s38, s38, 12288')
        k.I('s_add_u32 s38, s38, %d' % ((tp - 1) * 4096))
        k.I('v_add_u32 %s, s38, v2' % vr(20 + tp))
    O = DACC[0]
    for j in range(8):
        k.I('v_lshlrev_b32 %s, 16, %s' % (vr(96 + 2 * j), vr(HP + j)))
        k.I('v_and_b32 %s, 0xffff0000, %s' % (vr(96 + 2 * j + 1), vr(HP + j)))
    for i in range(16):
        k.I('v_add_f32 %s, %s, %s' % (vr(O + i), vr(O + i), vr(96 + i)))
    k.I('s_waitcnt lgkmcnt(0)')
    k.I('s_barrier')
    for tp in range(1, 4):
        for q in range(4):
            k.I('ds_read_b128 %s, %s offset:%d' % (vr(DACC[tp] + q * 4, 4), vr(20 + tp), q * 1024))
    for i in range(16):
        k.I('v_add_f32 %s, %s, %s' % (vr(O + i), vr(O + i), vr(DACC[1] + i)))
    for i in range(16):
        k.I('v_add_f32 %s, %s, %s' % (vr(DACC[2] + i), vr(DACC[2] + i), vr(DACC[3] + i)))
    for i in range(16):
        k.I('v_add_f32 %s, %s, %s' % (vr(O + i), vr(O + i), vr(DACC[2] + i)))
    P = 96
    for j in range(8):
        k.I('v_cvt_pk_bf16_f32 %s, %s, %s' % (vr(P + j), vr(O + 2 * j), vr(O + 2 * j + 1)))
    for a in (0, 2):
        b = P + 2 * a
        k.I('v_permlane32_swap_b32 %s, %s' % (vr(b), vr(b + 2)))
        k.I('v_permlane32_swap_b32 %s, %s' % (vr(b + 1), vr(b + 3)))
    k.I('v_lshlrev_b32 v8, 10, v4')
    k.I('v_lshlrev_b32 v9, 4, v6')
    k.I('v_add_u32 v8, v8, v9')
    k.I('buffer_store_dwordx4 %s, v8, %s, s32 offen' % (vr(P, 4), sr(OS, 4)))
    k.I('buffer_store_dwordx4 %s, v8, %s, s32 offen offset:32' % (vr(P + 4, 4), sr(OS, 4)))
    st.stamp(); st.stamp(True)
    if OPT.get('xcc'):
        b = st.base + 2 * st.n
        k.I('s_getreg_b32 s%d, hwreg(HW_REG_XCC_ID)' % b)
        k.I('s_getreg_b32 s%d, hwreg(HW_REG_HW_ID)' % (b + 1))
        st.n += 1
    st.flush()
    if OPT.get('dbgt'):
        k.I('s_sub_u32 s96, s96, 512')
        k.I('s_subb_u32 s97, s97, 0')
        k.I('s_mov_b32 s98, 256')
        k.I('s_mov_b32 s99, 0x00020000')
        gen4.dbg_time(k, 96, 90, 11, 16)
    k.label('L_f_end')
    k.I('s_endpgm')
    return k, dict(lds=163840, grid=256, block=256)


if __name__ == '__main__':
    gen1.STAMPS = len(sys.argv) > 2 and sys.argv[2] == 'stamps'
    for o in sys.argv[3:]:
        if '=' in o:
            kk_, vv_ = o.split('=')
            gen1.OPT[kk_] = tuple(int(x) for x in vv_.split(','))
        else:
            gen1.OPT[o] = True
    gens = [('qkv_kernel', gen_a8), ('bcd_kernel', gen_bcd)]
    ks = []
    for label, g in gens:
        kk, cc = g()
        ks.append((label, kk, cc))
        print(label, kk.stats(), kk.maxreg())
    open(sys.argv[1], 'w').write(wrap(ks))
```

```python
import sys
from asmgen import Kernel
import gen1
from gen1 import *
from gen2 import Sched, xhalf_ops
from gen3 import emit
import gen4
from gen4 import gen_a8


def STP():
    return '' if OPT.get('stplain') else ' sc1'


def LSC():
    return '' if OPT.get('ldplain') else ' sc1'


def sync_arrive(k, s_wave, ws, vt, s_arr, name):
    k.I('s_barrier')
    k.raw("""    s_cmp_lg_u32 s%d, 0
    s_cbranch_scc1 %s_noarr
    v_lshlrev_b32 v%d, 7, v1
    v_mov_b32 v%d, 1
    s_mov_b64 exec, 0xffff
    buffer_store_dword v%d, v%d, %s, s%d offen sc1
    s_nop 0
    s_mov_b64 exec, -1
%s_noarr:""" % (s_wave, name, vt, vt + 1, vt + 1, vt, ws, s_arr, name))


def sync_wait(k, name, s_cnt, s_wave, ws, vt, bg, nbatch=4):
    k.raw("""    s_cmp_lg_u32 s%d, 0
    s_cselect_b32 s59, 1, 0
    v_and_b32 v%d, 15, v1
    v_lshlrev_b32 v%d, 2, v%d""" % (s_wave, vt, vt, vt))
    vm = [i for i, o in enumerate(bg) if (isinstance(o, tuple) or o.startswith('buffer_'))]
    per = -(-len(vm) // nbatch)
    cuts = [0] + [vm[min(len(vm) - 1, per * (b + 1) - 1)] + 1 for b in range(nbatch)]
    cuts[-1] = len(bg)
    check = """    v_cmp_eq_u32 vcc, 1, v%d
    s_nop 4
    s_cmp_eq_u64 vcc, exec
    s_cselect_b32 s59, 1, 0""" % (vt + 1)
    for b in range(nbatch):
        batch = bg[cuts[b]:cuts[b + 1]]
        nv = sum(1 for o in batch if (isinstance(o, tuple) or o.startswith('buffer_')))
        k.raw("""    s_cmp_lg_u32 s59, 0
    s_cbranch_scc1 %s_np%d
    buffer_load_dword v%d, v%d, %s, s%d offen sc1
%s_np%d:""" % (name, b, vt + 1, vt, ws, s_cnt, name, b))
        for o in batch:
            emit(k, o)
        k.raw("""    s_cmp_lg_u32 s59, 0
    s_cbranch_scc1 %s_nq%d
    s_waitcnt vmcnt(%d)
%s
%s_nq%d:""" % (name, b, nv, check, name, b))
    k.raw("""    s_mov_b32 s60, 0
%s_spin:
    s_cmp_lg_u32 s59, 0
    s_cbranch_scc1 %s_done
    buffer_load_dword v%d, v%d, %s, s%d offen sc1
    s_waitcnt vmcnt(0)
%s
    s_add_u32 s60, s60, 1
    s_cmp_lt_u32 s60, 0x40000
    s_cbranch_scc1 %s_spin
%s_done:""" % (name, name, vt + 1, vt, ws, s_cnt, check, name, name))
    k.I('s_barrier')


def flag_store(k, s_wave, ws, vt, s_arr, name):
    k.raw("""    s_cmp_lg_u32 s%d, 0
    s_cbranch_scc1 %s_nf
    v_lshlrev_b32 v%d, 7, v1
    v_mov_b32 v%d, 1
    s_mov_b64 exec, 0xffff
    buffer_store_dword v%d, v%d, %s, s%d offen sc1
    s_nop 0
    s_mov_b64 exec, -1
%s_nf:""" % (s_wave, name, vt, vt + 1, vt + 1, vt, ws, s_arr, name))


_pi = [0]


def poll_issue(k, s_wave, ws, vt, s_cnt):
    _pi[0] += 1
    k._poll_mark = len(k.items)
    k.raw("""    s_cmp_lg_u32 s%d, 0
    s_cbranch_scc1 L_f_pi%d
    v_and_b32 v%d, 15, v1
    v_lshlrev_b32 v%d, 2, v%d
    buffer_load_dword v%d, v%d, %s, s%d offen sc1
L_f_pi%d:""" % (s_wave, _pi[0], vt, vt, vt, vt + 1, vt, ws, s_cnt, _pi[0]))


def poll_check_spin(k, name, s_wave, ws, vt, s_cnt):
    from asmgen import Ins
    nyoung = sum(1 for it in k.items[k._poll_mark:] if isinstance(it, Ins) and it.vm)
    k.raw("""    s_cmp_lg_u32 s%d, 0
    s_cbranch_scc1 %s_done
    s_mov_b32 s60, 0
    s_waitcnt vmcnt(%d)
    s_branch %s_tst
%s_chk:
    s_waitcnt vmcnt(0)
%s_tst:
    v_cmp_eq_u32 vcc, 1, v%d
    s_nop 4
    s_cmp_eq_u64 vcc, exec
    s_cbranch_scc1 %s_done
    buffer_load_dword v%d, v%d, %s, s%d offen sc1
    s_add_u32 s60, s60, 1
    s_cmp_lt_u32 s60, 0x40000
    s_cbranch_scc1 %s_chk
    s_waitcnt vmcnt(0)
%s_done:""" % (s_wave, name, min(nyoung, 63), name, name, name, vt + 1, name, vt + 1, vt, ws, s_cnt, name, name))


def merge(k, main, bg, first=0, last=None):
    if last is None:
        last = len(main)
    ib = 0
    for i, o in enumerate(main):
        if isinstance(o, (str, tuple)):
            emit(k, o)
        else:
            k.items.append(o)
        if first <= i < last:
            upto = len(bg) * (i - first + 1) // (last - first)
            while ib < upto:
                emit(k, bg[ib]); ib += 1
    while ib < len(bg):
        emit(k, bg[ib]); ib += 1


def gen_bcd():
    k = Kernel('bcd_kernel')
    WS, XS, OS = 4, 8, 12
    ws = sr(WS, 4)
    k.I('s_cmp_ge_u32 s2, 256')
    k.I('s_cbranch_scc1 L_f_end')
    load_srds(k, [('ws', WS), ('x', XS), ('out', OS)])
    st = Stamper(k, 2, ws, base=72, tmp=68); st.stamp(True); st.stamp()
    if OPT.get('dbgt'):
        k.I('s_memrealtime s[90:91]')
        k.I('s_load_dwordx2 s[96:97], s[0:1], %d' % KA['dbg'])
    k.I('v_and_b32 v1, 63, v0')
    k.I('v_lshrrev_b32 v2, 6, v0')
    k.I('v_readfirstlane_b32 s16, v2')
    k.I('v_lshlrev_b32 v2, 4, v1')
    k.I('v_add_u32 v3, 4096, v2')
    k.I('s_and_b32 s24, s2, 7')
    k.I('s_lshr_b32 s25, s2, 3')
    if not OPT.get('nocode2'):
        k.I('s_getpc_b64 s[64:65]')
        k.label('L_f_pc')
        k.I('s_sub_u32 s64, s64, L_f_pc-bcd_kernel')
        k.I('s_subb_u32 s65, s65, 0')
        k.I('s_lshl_b32 s26, s25, 2')
        k.I('s_add_u32 s26, s26, s16')
        k.I('s_lshl_b32 s26, s26, 9')
        k.I('v_lshlrev_b32 v8, 3, v1')
        k.I('v_add_u32 v8, s26, v8')
        k.I('v_min_u32 v8, L_text_end-bcd_kernel-4, v8')
        k.I('global_load_dword v30, v8, s[64:65]')
    if OPT.get('rowmap'):
        k.I('s_lshl_b32 s17, s24, 1')
        k.I('s_lshr_b32 s26, s25, 4')
        k.I('s_add_u32 s17, s17, s26')
        k.I('s_and_b32 s18, s25, 15')
        k.I('s_lshl_b32 s19, s17, 1')
        k.I('s_lshr_b32 s26, s18, 3')
        k.I('s_add_u32 s19, s19, s26')
        k.I('s_and_b32 s20, s18, 7')
    else:
        k.I('s_and_b32 s17, s24, 1')
        k.I('s_lshl_b32 s17, s17, 3')
        k.I('s_and_b32 s26, s25, 7')
        k.I('s_add_u32 s17, s17, s26')
        k.I('s_lshr_b32 s18, s24, 1')
        k.I('s_lshl_b32 s18, s18, 2')
        k.I('s_lshr_b32 s26, s25, 3')
        k.I('s_add_u32 s18, s18, s26')
        k.I('s_lshl_b32 s19, s24, 2')
        k.I('s_and_b32 s26, s25, 3')
        k.I('s_add_u32 s19, s19, s26')
        k.I('s_lshr_b32 s20, s25, 2')
    k.I('s_lshl_b32 s21, s19, 1')
    k.I('s_and_b32 s26, s16, 1')
    k.I('s_add_u32 s21, s21, s26')
    k.I('s_lshl_b32 s22, s20, 1')
    k.I('s_lshr_b32 s26, s16, 1')
    k.I('s_add_u32 s22, s22, s26')
    k.I('s_lshl_b32 s23, s17, 2')
    k.I('s_add_u32 s23, s23, s16')
    k.I('s_lshl_b32 s27, s16, 3')
    k.I('s_lshl_b32 s28, s19, 6')
    k.I('s_add_u32 s28, s28, s27')
    k.I('s_lshl_b32 s28, s28, 10')
    k.I('s_add_u32 s28, s28, 0x%x' % OFF_PQ)
    k.I('s_and_b32 s26, s16, 1')
    k.I('s_lshl_b32 s26, s26, 15')
    k.I('s_add_u32 s29, s28, 32768')
    k.I('s_sub_u32 s29, s29, s26')
    k.I('s_add_u32 s28, s28, s26')
    k.I('s_lshl_b32 s30, s27, 4')
    k.I('s_lshl_b32 s26, s20, 1')
    k.I('s_add_u32 s30, s30, s26')
    k.I('s_lshl_b32 s30, s30, 10')
    k.I('s_add_u32 s30, s30, 0x%x' % OFF_WO)
    k.I('s_lshr_b32 s26, s16, 1')
    k.I('s_lshl_b32 s26, s26, 10')
    k.I('s_add_u32 s64, s30, 1024')
    k.I('s_sub_u32 s64, s64, s26')
    k.I('s_add_u32 s30, s30, s26')
    k.I('s_lshl_b32 s31, s27, 11')
    k.I('s_add_u32 s31, s31, 0x%x' % OFF_KVZ)
    k.I('v_and_b32 v4, 31, v1')
    k.I('v_min_u32 v5, 16, v4')
    k.I('v_lshrrev_b32 v6, 5, v1')
    k.I('v_mul_u32_u24 v7, 17, v6')
    k.I('v_add_u32 v5, v5, v7')
    k.I('v_lshlrev_b32 v5, 4, v5')
    k.I('s_waitcnt lgkmcnt(0)')

    KV = 128
    A_PQ, A_WO = 96, 160
    ACC = 192
    XR = 56

    def b_loads(t):
        ops = ['s_add_u32 s38, s31, %d' % (t * 2048),
               'buffer_load_dwordx4 %s, v5, %s, s38 offen' % (vr(KV + 8 * t, 4), ws),
               'buffer_load_dwordx4 %s, v5, %s, s38 offen offset:544' % (vr(KV + 8 * t + 4, 4), ws)]
        for r in range(2):
            ops.append('buffer_load_dwordx4 %s, %s, %s, %s offen offset:%d' % (
                ar(A_PQ + (t * 2 + r) * 4, 4), 'v2' if t < 4 else 'v3', ws, 's28' if r == 0 else 's29', (t % 4) * 1024))
        ops.append('s_add_u32 s39, s30, %d' % (t * 16384))
        ops.append('s_add_u32 s65, s64, %d' % (t * 16384))
        for n in range(2):
            ops.append('buffer_load_dwordx4 %s, v2, %s, %s offen' % (ar(A_WO + (t * 2 + n) * 4, 4), ws, 's39' if n == 0 else 's65'))
        return ops
    PD = OPT.get('pd', (3,))[0]
    for t in range(PD):
        for o in b_loads(t):
            k.I(o)
    k.I('s_lshl_b32 s32, s21, 15')
    k.I('s_lshl_b32 s26, s22, 6')
    k.I('s_add_u32 s32, s32, s26')
    k.I('v_lshlrev_b32 v7, 10, v4')
    k.I('v_lshlrev_b32 v8, 3, v6')
    k.I('v_add_u32 v7, v7, v8')
    k.I('s_mul_i32 s33, s18, %d' % (7 * 32768))
    k.I('s_lshl_b32 s34, s16, 13')
    k.I('s_add_u32 s33, s33, s34')
    k.I('s_add_u32 s33, s33, 0x%x' % OFF_WGU)
    k.I('s_mul_i32 s35, s16, %d' % (28 * 1024))
    k.I('s_mul_i32 s36, s20, %d' % (2 * 112 * 1024))
    k.I('s_add_u32 s36, s36, s35')
    k.I('s_add_u32 s36, s36, 0x%x' % OFF_WD)
    k.I('s_lshr_b32 s26, s16, 1')
    k.I('s_mul_i32 s26, s26, %d' % (112 * 1024))
    k.I('s_add_u32 s37, s36, %d' % (112 * 1024))
    k.I('s_sub_u32 s37, s37, s26')
    k.I('s_add_u32 s36, s36, s26')
    k.I('s_lshl_b32 s44, s17, 4')
    k.I('s_add_u32 s44, s44, s18')
    k.I('s_lshl_b32 s44, s44, 7')
    k.I('s_add_u32 s44, s44, 0x%x' % OFF_CNT)
    k.I('s_and_b32 s26, s19, 1')
    k.I('s_lshl_b32 s26, s26, 3')
    k.I('s_add_u32 s26, s26, s20')
    k.I('s_lshr_b32 s57, s19, 1')
    k.I('s_lshl_b32 s62, s57, 11')
    k.I('s_lshl_b32 s63, s26, 2')
    k.I('s_add_u32 s62, s62, s63')
    k.I('s_add_u32 s62, s62, 0x%x' % OFF_CNT)
    k.I('s_lshl_b32 s57, s57, 4')
    k.I('s_add_u32 s57, s57, s26')
    k.I('s_lshl_b32 s57, s57, 7')
    k.I('s_add_u32 s57, s57, 0x%x' % (OFF_CNT + 32768))
    k.I('s_lshl_b32 s63, s17, 11')
    k.I('s_lshl_b32 s26, s18, 2')
    k.I('s_add_u32 s63, s63, s26')
    k.I('s_add_u32 s63, s63, 0x%x' % (OFF_CNT + 32768))
    CS_LDS = 162816
    k.I('v_mov_b32 v8, 0')
    k.I('v_mov_b32 v9, 0')
    k.I('v_mov_b32 v10, 0')
    k.I('v_mov_b32 v11, 0')
    k.I('v_add_u32 v20, %d, v2' % CS_LDS)
    k.I('ds_write_b128 v20, v[8:11]')
    D1 = [[64, 80], [96, 112]]
    KF = [40, 44]
    OF = [48, 52]
    T = 36

    def stageA(t):
        ops = []
        for j in range(4):
            ops.append('v_cvt_pk_bf16_f32 %s, %s, %s' % (vr(KF[t & 1] + j), vr(KV + 8 * t + 2 * j), vr(KV + 8 * t + 2 * j + 1)))
        for r in range(2):
            ops.append('v_mfma_f32_32x32x16_bf16 %s, %s, %s, 0' % (vr(D1[t & 1][r], 16), vr(KF[t & 1], 4), ar(A_PQ + (t * 2 + r) * 4, 4)))
        return ops

    def stageB(t):
        ops = []
        for r in range(2):
            ops.append('v_add_f32 %s, 0x%x, %s' % (vr(T + r), f2u(1e-6), vr(D1[t & 1][r] + 8)))
        for r in range(2):
            ops.append('v_rcp_f32 %s, %s' % (vr(T + r), vr(T + r)))
        for i in range(8):
            for r in range(2):
                d = D1[t & 1][r]
                ops.append('v_mul_f32 %s, %s, %s' % (vr(d + i), vr(T + r), vr(d + i)))
        for r in range(2):
            d = D1[t & 1][r]
            for j in range(4):
                ops.append('v_cvt_pk_bf16_f32 %s, %s, %s' % (vr(OF[r] + j), vr(d + 2 * j), vr(d + 2 * j + 1)))
        for n in range(2):
            for r in range(2):
                acc = vr(ACC + (n * 2 + r) * 16, 16)
                ops.append('v_mfma_f32_32x32x16_bf16 %s, %s, %s, %s' % (acc, ar(A_WO + (t * 2 + n) * 4, 4), vr(OF[r], 4), acc if t else '0'))
        return ops
    for o in stageA(0):
        k.I(o)
    for t in range(8):
        main = (stageA(t + 1) if t + 1 < 8 else []) + stageB(t)
        bg = b_loads(t + PD) if t + PD < 8 else []
        if t == 7 - min(PD, 2):
            bg = bg + ['buffer_load_dwordx2 %s, v7, %s, s32 offen offset:%d' % (vr(XR + 2 * a, 2), sr(XS, 4), a * 16) for a in range(4)]
        merge(k, main, bg)
    if not OPT.get('bat'): st.stamp()
    RB = 98304
    red = Kernel('red')
    kmain, k = k, red
    k.I('s_mul_i32 s38, s16, 12288')
    k.I('s_add_u32 s38, s38, %d' % RB)
    k.I('v_add_u32 v10, s38, v2')
    for tp in range(1, 4):
        for q in range(4):
            k.I('ds_write_b128 v10, %s offset:%d' % (vr(ACC + tp * 16 + q * 4, 4), (tp - 1) * 4096 + q * 1024))
    H = ACC
    for tp in range(1, 4):
        k.I('s_xor_b32 s38, s16, %d' % tp)
        k.I('s_mul_i32 s38, s38, 12288')
        k.I('s_add_u32 s38, s38, %d' % (RB + (tp - 1) * 4096))
        k.I('v_add_u32 %s, s38, v2' % vr(40 + tp))
    XU = 64
    for a_ in range(4):
        for b_ in range(2):
            src = XR + 2 * a_ + b_
            k.I('v_lshlrev_b32 %s, 16, %s' % (vr(XU + 4 * a_ + 2 * b_), vr(src)))
            k.I('v_and_b32 %s, 0xffff0000, %s' % (vr(XU + 4 * a_ + 2 * b_ + 1), vr(src)))
    for i in range(16):
        k.I('v_add_f32 %s, %s, %s' % (vr(H + i), vr(H + i), vr(XU + i)))
    k.I('s_waitcnt lgkmcnt(0)')
    k.I('s_barrier')
    for tp in range(1, 4):
        for q in range(4):
            k.I('ds_read_b128 %s, %s offset:%d' % (vr(H + tp * 16 + q * 4, 4), vr(40 + tp), q * 1024))
    for i in range(16):
        k.I('v_add_f32 %s, %s, %s' % (vr(H + i), vr(H + i), vr(H + 16 + i)))
    for i in range(16):
        k.I('v_add_f32 %s, %s, %s' % (vr(H + 32 + i), vr(H + 32 + i), vr(H + 48 + i)))
    for i in range(16):
        k.I('v_add_f32 %s, %s, %s' % (vr(H + i), vr(H + i), vr(H + 32 + i)))
    HP = 12
    for j in range(8):
        k.I('v_cvt_pk_bf16_f32 %s, %s, %s' % (vr(HP + j), vr(H + 2 * j), vr(H + 2 * j + 1)))
    k.I('s_lshl_b32 s38, s21, 5')
    k.I('s_lshl_b32 s39, s22, 1')
    k.I('s_add_u32 s38, s38, s39')
    k.I('s_lshl_b32 s38, s38, 10')
    k.I('s_add_u32 s38, s38, 0x%x' % OFF_H)
    k.I('buffer_store_dwordx4 %s, v2, %s, s38 offen%s' % (vr(HP, 4), ws, STP()), w=['hst'])
    k.I('buffer_store_dwordx4 %s, v2, %s, s38 offen offset:1024%s' % (vr(HP + 4, 4), ws, STP()), w=['hst'])
    k.I('v_add_f32 v36, %s, %s' % (vr(H), vr(H + 1)))
    k.I('v_mul_f32 v37, %s, %s' % (vr(H), vr(H)))
    k.I('v_fmac_f32 v37, %s, %s' % (vr(H + 1), vr(H + 1)))
    for i in range(2, 16):
        k.I('v_add_f32 v36, v36, %s' % vr(H + i))
        k.I('v_fmac_f32 v37, %s, %s' % (vr(H + i), vr(H + i)))
    for o in xhalf_ops(36, 38) + xhalf_ops(37, 38):
        k.I(o)
    k.I('s_lshl_b32 s38, s22, 14')
    k.I('s_lshl_b32 s39, s21, 8')
    k.I('s_add_u32 s38, s38, s39')
    k.I('s_add_u32 s38, s38, 0x%x' % OFF_STAT)
    k.I('v_lshlrev_b32 v38, 3, v4')
    k.I('buffer_store_dwordx2 v[36:37], v38, %s, s38 offen%s' % (ws, STP()), w=['hst'])
    k = kmain
    REDITEMS = red.items

    def dma(soff, sm0, name):
        ops = []
        for hf in range(2):
            ops.append('s_add_u32 m0, %s, %d' % (sr(sm0), hf * 4096))
            ops.append('s_add_u32 s40, %s, %d' % (sr(soff), hf * 4096))
            for t in range(4):
                ops.append(('buffer_load_dwordx4 v2, %s, s40 offen offset:%d lds' % (ws, t * 1024), name))
        return ops

    def d_ks(f):
        if f < 12:
            return (f // 3) * 7 + f % 3
        if f < 20:
            return ((f - 12) // 2) * 7 + 3 + (f - 12) % 2
        return ((f - 20) // 2) * 7 + 5 + (f - 20) % 2

    def wd_loads(f_list):
        ops = []
        last = None
        for f in f_list:
            ks = d_ks(f)
            grp, rem = ks // 8, ks % 8
            if grp != last:
                ops.append('s_add_u32 s41, s36, %d' % (grp * 8192))
                ops.append('s_add_u32 s58, s37, %d' % (grp * 8192))
                last = grp
            for n in range(2):
                ops.append('buffer_load_dwordx4 %s, %s, %s, %s offen offset:%d' % (
                    ar((f * 2 + n) * 4, 4), 'v2' if rem < 4 else 'v3', ws, 's41' if n == 0 else 's58', (rem % 4) * 1024))
        return ops
    CSV = 128
    NWD0 = OPT.get('nwd0', (14,))[0]
    pre0 = ['s_mov_b32 s42, s34'] + dma(33, 42, 'W0')
    pre0 += ['s_add_u32 s43, s33, 32768', 's_add_u32 s42, s34, 32768'] + dma(43, 42, 'W1')
    pre1 = ['s_mul_i32 s66, s18, %d' % (7 * 128), 's_mul_i32 s39, s16, %d' % (4 * 112 * 128), 's_add_u32 s66, s66, s39',
            's_add_u32 s66, s66, 0x%x' % OFF_CSG]
    for kg in range(4):
        pre1 += ['s_add_u32 s39, s66, %d' % (kg * 112 * 128), 'buffer_load_dwordx4 %s, v2, %s, s39 offen' % (vr(CSV + 4 * kg, 4), ws)]
    pre1 += ['s_add_u32 s43, s33, 65536', 's_add_u32 s42, s34, 65536'] + dma(43, 42, 'W2')
    merge(k, REDITEMS, pre0 if not OPT.get('nopre0') else [], first=0, last=len(REDITEMS) - 30)
    if not OPT.get('bat'): st.stamp()
    if OPT.get('nopre0'):
        for o in pre0:
            emit(k, o)
    for o in pre1:
        emit(k, o)
    k.need('hst')
    sync_arrive(k, 16, ws, 36, 62, 'L_f_s1')
    if not OPT.get('bat'): st.stamp()
    for j in range(4):
        k.I('v_add_f32 %s, %s, %s' % (vr(CSV + j), vr(CSV + j), vr(CSV + 4 + j)))
        k.I('v_add_f32 %s, %s, %s' % (vr(CSV + 8 + j), vr(CSV + 8 + j), vr(CSV + 12 + j)))
    for j in range(4):
        k.I('v_add_f32 %s, %s, %s' % (vr(CSV + j), vr(CSV + j), vr(CSV + 8 + j)))
    for j in range(4):
        k.I('ds_add_f32 v20, %s offset:%d' % (vr(CSV + j), 4 * j))
    bg2 = wd_loads(range(0, NWD0))
    sync_wait(k, 'L_f_s1', 44, 16, ws, 36, bg2)
    st.stamp()

    X = 128
    for t in range(2, 8):
        k.I('v_add_u32 %s, %d, v2' % (vr(20 + t), 4096 * t))
    VOF = [2, 3] + [20 + t for t in range(2, 8)]
    k.I('s_lshl_b32 s45, s23, 15')
    k.I('s_add_u32 s45, s45, 0x%x' % OFF_H)

    def xload(ks):
        return 'buffer_load_dwordx4 %s, %s, %s, s45 offen offset:%d%s' % (vr(X + 4 * ks, 4), vr(VOF[ks // 4]), ws, (ks % 4) * 1024, LSC())
    XD = OPT.get('xd', (14,))[0]
    for ks in range(XD):
        k.I(xload(ks))
    SP = 104
    k.I('v_lshlrev_b32 v21, 3, v4')
    k.I('v_lshlrev_b32 v28, 17, v6')
    k.I('v_add_u32 v21, v21, v28')
    k.I('s_lshl_b32 s46, s23, 8')
    k.I('s_add_u32 s46, s46, 0x%x' % OFF_STAT)
    stl = []
    for t in range(8):
        stl.append('s_add_u32 s47, s46, %d' % (t * 16384))
        stl.append('buffer_load_dwordx2 %s, v21, %s, s47 offen%s' % (vr(SP + 2 * t, 2), ws, LSC()))
    k.I('s_mul_i32 s48, s23, 112')
    k.I('s_mul_i32 s47, s18, 7')
    k.I('s_add_u32 s48, s48, s47')
    k.I('s_lshl_b32 s48, s48, 10')
    k.I('s_add_u32 s48, s48, 0x%x' % OFF_ACT)
    k.I('s_mul_i32 s50, s19, %d' % (2 * 112 * 1024))
    k.I('s_add_u32 s50, s50, s35')
    k.I('s_add_u32 s50, s50, 0x%x' % OFF_ACT)
    k.I('s_and_b32 s26, s16, 1')
    k.I('s_mul_i32 s26, s26, %d' % (112 * 1024))
    k.I('s_add_u32 s51, s50, %d' % (112 * 1024))
    k.I('s_sub_u32 s51, s51, s26')
    k.I('s_add_u32 s50, s50, s26')
    k.I('v_add_u32 v8, 0x10000, v2')
    k.I('v_lshlrev_b32 v10, 4, v6')
    k.I('v_add_u32 v10, %d, v10' % CS_LDS)
    ACCC = [32, 48]
    D, L = 8, 6
    WR = 224
    CSR = 64
    T = 80
    MEAN, RSTD, NMEAN, NA, A2 = 120, 121, 122, 123, 124

    def wread(c, ks):
        slot = c % 4
        return 'ds_read_b128 %s, %s offset:%d' % (ar(WR + (ks % D) * 4, 4), 'v2' if slot < 2 else 'v8', (slot % 2) * 32768 + ks * 1024)

    def epilogue_ops(S, c):
        ops = []
        for q in range(4):
            ops.append('ds_read_b128 %s, v10 offset:%d' % (vr(CSR + 4 * q, 4), c * 128 + q * 32))
        pre = len(ops)
        for i0 in range(0, 8, 2):
            a = []
            for u, i in enumerate((i0, i0 + 1)):
                t = T + u * 4
                a.append([
                    'v_fma_f32 %s, %s, %s, %s' % (vr(t), vr(NMEAN), vr(CSR + i), vr(S + i)),
                    'v_fma_f32 %s, %s, %s, %s' % (vr(t + 1), vr(NMEAN), vr(CSR + 8 + i), vr(S + 8 + i)),
                    'v_mul_f32 %s, %s, %s' % (vr(t + 2), vr(NA), vr(t)),
                    'v_exp_f32 %s, %s' % (vr(t + 2), vr(t + 2)),
                    'v_mul_f32 %s, %s, %s' % (vr(t), vr(t), vr(t + 1)),
                    'v_add_f32 %s, 1.0, %s' % (vr(t + 2), vr(t + 2)),
                    'v_rcp_f32 %s, %s' % (vr(t + 2), vr(t + 2)),
                    'v_mul_f32 %s, %s, %s' % (vr(t), vr(A2), vr(t)),
                    'v_mul_f32 %s, %s, %s' % (vr(T + 8 + i), vr(t), vr(t + 2)),
                ])
            for x, y in zip(a[0], a[1]):
                ops += [x, y]
            ops.append('v_cvt_pk_bf16_f32 %s, %s, %s' % (vr(T + 16 + i0 // 2), vr(T + 8 + i0), vr(T + 8 + i0 + 1)))
        ops.append('s_add_u32 s49, s48, %d' % (c * 1024))
        ops.append(('buffer_store_dwordx4 %s, v2, %s, s49 offen%s' % (vr(T + 16, 4), ws, STP()), 'ast%d' % c))
        return ops, pre

    wd_plan = {}
    rest = list(range(NWD0, 28))
    wts = list(OPT.get('wts', (1, 1, 1, 2, 2, 0)))
    tot = sum(wts); acc_ = 0; pos = 0
    for c, wgt in zip(range(1, 7), wts):
        acc_ += wgt
        upto = len(rest) * acc_ // tot
        wd_plan[c] = rest[pos:upto]; pos = upto

    def refill(c):
        return ['s_add_u32 s43, s33, %d' % (c * 32768), 's_add_u32 s42, s34, %d' % ((c % 4) * 32768)] + dma(43, 42, 'W%d' % c)

    def is_vm(o):
        return isinstance(o, tuple) or o.startswith('buffer_')

    def place(fill, ops, lo, hi):
        groups, cur = [], []
        for o in ops:
            cur.append(o)
            if is_vm(o):
                groups.append(cur); cur = []
        if cur:
            groups.append(cur)
        for i, g in enumerate(groups):
            fill[lo + i * (hi - lo) // len(groups)] += g

    AD = OPT.get('ad', (8,))[0]
    AR, NR = 128, AD + 2

    def act_load(f):
        ks = d_ks(f)
        grp, rem = ks // 8, ks % 8
        ops = ['s_add_u32 s47, s50, %d' % (grp * 8192), 's_add_u32 s52, s51, %d' % (grp * 8192)]
        for r in range(2):
            ops.append('buffer_load_dwordx4 %s, %s, %s, %s offen offset:%d%s' % (
                vr(AR + ((f % NR) * 2 + r) * 4, 4), 'v2' if rem < 4 else 'v3', ws, 's47' if r == 0 else 's52', (rem % 4) * 1024, LSC()))
        return ops
    DACC = [32, 48, 64, 80]

    def d_mfmas(f):
        mm = []
        for n in range(2):
            for r in range(2):
                acc = vr(DACC[n * 2 + r], 16)
                mm.append('v_mfma_f32_32x32x16_bf16 %s, %s, %s, %s' % (
                    acc, ar((f * 2 + n) * 4, 4), vr(AR + ((f % NR) * 2 + r) * 4, 4), acc if f else '0'))
        return mm

    carry = []

    def body(c):
        nonlocal carry
        S_ = ACCC[c & 1]
        fill = [[] for _ in range(32)]
        post = []
        if c == 0:
            for ks in range(XD, 32):
                fill[ks - XD].append(xload(ks))
            for i, o in enumerate(stl):
                fill[20 + i // 4].append(o)
            for t in range(1, 8):
                post.append('v_add_f32 %s, %s, %s' % (vr(SP), vr(SP), vr(SP + 2 * t)))
                post.append('v_add_f32 %s, %s, %s' % (vr(SP + 1), vr(SP + 1), vr(SP + 2 * t + 1)))
            post += xhalf_ops(SP, SP + 2) + xhalf_ops(SP + 1, SP + 2)
            post += ['v_mul_f32 %s, 0x%x, %s' % (vr(MEAN), f2u(1.0 / 512), vr(SP)),
                     'v_mul_f32 %s, 0x%x, %s' % (vr(SP + 1), f2u(1.0 / 512), vr(SP + 1)),
                     'v_fma_f32 %s, -%s, %s, %s' % (vr(SP + 1), vr(MEAN), vr(MEAN), vr(SP + 1)),
                     'v_max_f32 %s, 0, %s' % (vr(SP + 1), vr(SP + 1)),
                     'v_add_f32 %s, 0x%x, %s' % (vr(SP + 1), f2u(1e-5), vr(SP + 1)),
                     'v_rsq_f32 %s, %s' % (vr(RSTD), vr(SP + 1)),
                     'v_sub_f32 %s, 0, %s' % (vr(NMEAN), vr(MEAN)),
                     'v_mul_f32 %s, 0x%x, %s' % (vr(NA), f2u(-LOG2E), vr(RSTD)),
                     'v_mul_f32 %s, %s, %s' % (vr(A2), vr(RSTD), vr(RSTD))]
        else:
            ops, pre = epilogue_ops(ACCC[1 - (c & 1)], c - 1)
            fill[0] = ops[:pre]
            rest = ops[pre:]
            tailops = rest[-2:]
            rest = rest[:-2]
            vmops = list(carry) + wd_loads(wd_plan[c])
            carry = []
            groups, cur = [], []
            for o in vmops:
                cur.append(o)
                if is_vm(o):
                    groups.append(cur); cur = []
            lo, hi = 1, 27
            vhi = 17 if c >= 5 else hi
            nslots = vhi - lo
            nv = min(len(groups), nslots - (OPT.get('minv', (15,))[0] if c < 5 else 4))
            vslots = sorted(set(lo + (2 * i + 1) * nslots // (2 * nv) for i in range(nv))) if nv else []
            for i, g in enumerate(groups):
                fill[vslots[i * len(vslots) // len(groups)]] += g
            free = [x for x in range(3, hi) if x not in vslots]
            for i, o in enumerate(rest):
                fill[free[i * len(free) // len(rest)]].append(o)
            last = max(free[-1], 26)
            fill[last if last not in vslots else 26] += tailops
        for ks in range(32):
            TW = OPT.get('tw', (2,))[0]
            if ks % TW == 0:
                k.touch(ar(WR + ((min(31, ks + TW - 1)) % D) * 4, 4))
            k.I('v_mfma_f32_32x32x16_bf16 %s, %s, %s, %s' % (
                vr(S_, 16), ar(WR + (ks % D) * 4, 4), vr(X + 4 * ks, 4), vr(S_, 16) if ks else '0'))
            if ks == 32 - L and c < 6:
                k.need('W%d' % (c + 1))
                if c == 4:
                    k.need('ast0', 'ast1', 'ast2')
                k.I('s_barrier')
                if c == 4:
                    flag_store(k, 16, ws, 28, 63, 'L_f_fa')
                if c + 3 <= 6:
                    r = refill(c + 3)
                    for o in r[:2 + 2 + 4]:
                        fill[ks].append(o) if not is_vm(o) else None
                    first4 = [o for o in r[4:8]]
                    for i, o in enumerate(first4):
                        fill[ks + 1 + i].append(o)
                    carry = r[8:]
            if c == 6 and ks == 10:
                k.need('ast3', 'ast4')
                k.I('s_barrier')
                k.I('s_add_u32 s63, s63, 32768')
                flag_store(k, 16, ws, 28, 63, 'L_f_fb')
            if c == 6 and ks == 27:
                poll_check_spin(k, 'L_f_sa', 16, ws, 28, 57)
                k.I('s_barrier')
            if c == 6 and ks >= 27:
                for o in act_load(ks - 27):
                    k.I(o)
            if ks + L < 32:
                k.I(wread(c, ks + L))
            elif c < 6:
                k.I(wread(c + 1, ks + L - 32))
            for o in fill[ks]:
                if OPT.get('noepi') and isinstance(o, str) and o.startswith('v_') and c > 0: continue
                if OPT.get('novm') and c > 0 and is_vm(o) and not (isinstance(o, tuple) and o[1].startswith('ast')): continue
                emit(k, o)
            if c == 6 and ks == 14:
                poll_issue(k, 16, ws, 28, 57)
        for o in post:
            emit(k, o)

    k.need('W0')
    k.I('s_waitcnt lgkmcnt(0)')
    k.I('s_barrier')
    for n in range(L):
        k.I(wread(0, n))
    body(0)
    st.stamp()
    for c in range(1, 7):
        body(c)
        if c in OPT.get('bat', ()): st.stamp()
    st.stamp()
    ops, pre = epilogue_ops(ACCC[0], 6)
    for o in ops:
        emit(k, o)
    for o in act_load(5) + act_load(6) + act_load(7):
        k.I(o)
    st.stamp()

    k.need('ast5', 'ast6')
    k.I('s_barrier')
    k.I('s_add_u32 s63, s63, 32768')
    flag_store(k, 16, ws, 28, 63, 'L_f_fc')
    k.I('s_add_u32 s57, s57, 32768')
    PL = OPT.get('plead', (3,))[0]
    for f in range(28):
        nxt = f + AD
        if nxt in (12, 20):
            poll_check_spin(k, 'L_f_s%d' % nxt, 16, ws, 28, 57)
            k.I('s_barrier')
            k.I('s_add_u32 s57, s57, 32768')
            if nxt == 12: st.stamp()
        merge(k, d_mfmas(f), act_load(nxt) if nxt < 28 else [])
        if nxt + PL in (12, 20) or (f == 0 and 12 - AD - PL <= 0 and False):
            poll_issue(k, 16, ws, 28, 57)
    st.stamp()
    k.I('s_mul_i32 s38, s16, 12288')
    k.I('v_add_u32 v10, s38, v2')
    for tp in range(1, 4):
        for q in range(4):
            k.I('ds_write_b128 v10, %s offset:%d' % (vr(DACC[tp] + q * 4, 4), (tp - 1) * 4096 + q * 1024))
    for tp in range(1, 4):
        k.I('s_xor_b32 s38, s16, %d' % tp)
        k.I('s_mul_i32 s38, s38, 12288')
        k.I('s_add_u32 s38, s38, %d' % ((tp - 1) * 4096))
        k.I('v_add_u32 %s, s38, v2' % vr(20 + tp))
    O = DACC[0]
    for j in range(8):
        k.I('v_lshlrev_b32 %s, 16, %s' % (vr(96 + 2 * j), vr(HP + j)))
        k.I('v_and_b32 %s, 0xffff0000, %s' % (vr(96 + 2 * j + 1), vr(HP + j)))
    for i in range(16):
        k.I('v_add_f32 %s, %s, %s' % (vr(O + i), vr(O + i), vr(96 + i)))
    k.I('s_waitcnt lgkmcnt(0)')
    k.I('s_barrier')
    for tp in range(1, 4):
        for q in range(4):
            k.I('ds_read_b128 %s, %s offset:%d' % (vr(DACC[tp] + q * 4, 4), vr(20 + tp), q * 1024))
    for i in range(16):
        k.I('v_add_f32 %s, %s, %s' % (vr(O + i), vr(O + i), vr(DACC[1] + i)))
    for i in range(16):
        k.I('v_add_f32 %s, %s, %s' % (vr(DACC[2] + i), vr(DACC[2] + i), vr(DACC[3] + i)))
    for i in range(16):
        k.I('v_add_f32 %s, %s, %s' % (vr(O + i), vr(O + i), vr(DACC[2] + i)))
    P = 96
    for j in range(8):
        k.I('v_cvt_pk_bf16_f32 %s, %s, %s' % (vr(P + j), vr(O + 2 * j), vr(O + 2 * j + 1)))
    for a in (0, 2):
        b = P + 2 * a
        k.I('v_permlane32_swap_b32 %s, %s' % (vr(b), vr(b + 2)))
        k.I('v_permlane32_swap_b32 %s, %s' % (vr(b + 1), vr(b + 3)))
    k.I('v_lshlrev_b32 v8, 10, v4')
    k.I('v_lshlrev_b32 v9, 4, v6')
    k.I('v_add_u32 v8, v8, v9')
    opol = ' sc1' if OPT.get('osc1') else (' nt' if OPT.get('ont') else '')
    k.I('buffer_store_dwordx4 %s, v8, %s, s32 offen%s' % (vr(P, 4), sr(OS, 4), opol))
    k.I('buffer_store_dwordx4 %s, v8, %s, s32 offen offset:32%s' % (vr(P + 4, 4), sr(OS, 4), opol))
    st.stamp(); st.stamp(True)
    if OPT.get('xcc'):
        b = st.base + 2 * st.n
        k.I('s_getreg_b32 s%d, hwreg(HW_REG_XCC_ID)' % b)
        k.I('s_getreg_b32 s%d, hwreg(HW_REG_HW_ID)' % (b + 1))
        st.n += 1
    st.flush()
    if OPT.get('dbgt'):
        k.I('s_sub_u32 s96, s96, 512')
        k.I('s_subb_u32 s97, s97, 0')
        k.I('s_mov_b32 s98, 256')
        k.I('s_mov_b32 s99, 0x00020000')
        gen4.dbg_time(k, 96, 90, 11, 16)
    k.label('L_f_end')
    k.I('s_endpgm')
    return k, dict(lds=163840, grid=256, block=256)


if __name__ == '__main__':
    gen1.STAMPS = len(sys.argv) > 2 and sys.argv[2] == 'stamps'
    for o in sys.argv[3:]:
        if '=' in o:
            kk_, vv_ = o.split('=')
            gen1.OPT[kk_] = tuple(int(x) for x in vv_.split(','))
        else:
            gen1.OPT[o] = True
    gens = [('qkv_kernel', gen_a8), ('bcd_kernel', gen_bcd)]
    ks = []
    for label, g in gens:
        kk, cc = g()
        ks.append((label, kk, cc))
        print(label, kk.stats(), kk.maxreg())
    open(sys.argv[1], 'w').write(wrap(ks))
```

```python
import sys
from asmgen import Kernel
import gen1
from gen1 import *
from gen2 import Sched, xhalf_ops
from gen3 import emit, ln_phi_ops


def APOL():
    return ' sc1' if OPT.get('asc1') else (' nt' if OPT.get('ant') else '')


class Multi:
    def __init__(self, parts):
        self.parts = parts
    def finish(self):
        return '\n'.join(p.finish() for p in self.parts)
    def maxreg(self):
        mx = {'v': -1, 'a': -1, 's': -1}
        for p in self.parts:
            m = p.maxreg()
            for t in mx:
                mx[t] = max(mx[t], m[t])
        return mx
    def stats(self):
        return [p.stats() for p in self.parts]


def pair_signal(flag_lds_sgpr, vtmp, vone):
    return ['v_mov_b32 %s, %s' % (vr(vtmp), sr(flag_lds_sgpr)), 'v_mov_b32 %s, 1' % vr(vone),
            'ds_write_b32 %s, %s' % (vr(vtmp), vr(vone))]


def pair_wait(k, name, flag_lds_sgpr, vtmp, vval, stmp):
    k.I('v_mov_b32 %s, %s' % (vr(vtmp), sr(flag_lds_sgpr)))
    k.label(name)
    k.I('ds_read_b32 %s, %s' % (vr(vval), vr(vtmp)))
    k.I('v_readfirstlane_b32 %s, %s' % (sr(stmp), vr(vval)))
    k.I('s_cmp_eq_u32 %s, 0' % sr(stmp))
    k.I('s_cbranch_scc1 %s' % name)


def q_sync(k, name, addr):
    k.I('v_mov_b32 v22, %d' % addr)
    k.I('v_mov_b32 v23, 1')
    k.I('s_mov_b64 exec, 1')
    k.I('ds_add_u32 v22, v23')
    k.I('s_mov_b64 exec, -1')
    k.label(name)
    k.I('ds_read_b32 v23, v22')
    k.I('v_readfirstlane_b32 s79, v23')
    k.I('s_cmp_lt_u32 s79, 4')
    k.I('s_cbranch_scc1 %s' % name)


def gen_a8():
    kp = Kernel('a_pro')
    k = kp
    XS, WQ, WS, PA, PB, DB = 4, 8, 12, 16, 20, 24
    ws = sr(WS, 4)
    k.I('s_cmp_ge_u32 s2, 256')
    k.I('s_cbranch_scc1 L_a_end')
    load_srds(k, [('x', XS), ('wqkv', WQ), ('ws', WS), ('dbg', DB)])
    k.I('s_load_dwordx2 s[40:41], s[0:1], %d' % KA['wo'])
    k.I('s_load_dwordx4 s[44:47], s[0:1], %d' % KA['wg'])
    k.I('s_load_dwordx2 s[42:43], s[0:1], %d' % KA['wd'])
    if gen1.STAMPS:
        k.I('s_memrealtime s[84:85]')
        k.I('s_memtime s[86:87]')
    k.I('v_and_b32 v1, 63, v0')
    k.I('v_lshrrev_b32 v2, 6, v0')
    k.I('v_readfirstlane_b32 s27, v2')
    k.I('s_mov_b32 s39, s27')
    k.I('s_mov_b32 s27, 0x00020000')
    k.I('s_and_b32 s28, s39, 3')
    k.I('s_and_b32 s34, s2, 7')
    k.I('s_lshr_b32 s35, s2, 3')
    k.I('s_and_b32 s32, s34, 3')
    k.I('s_lshl_b32 s32, s32, 3')
    k.I('s_and_b32 s36, s35, 7')
    k.I('s_add_u32 s32, s32, s36')
    k.I('s_lshr_b32 s33, s34, 2')
    k.I('s_lshl_b32 s33, s33, 2')
    k.I('s_lshr_b32 s36, s35, 3')
    k.I('s_add_u32 s33, s33, s36')
    k.I('s_and_b32 s29, s28, 1')
    k.I('s_lshr_b32 s30, s28, 1')
    k.I('s_xor_b32 s31, s29, s30')
    k.I('s_mov_b32 s70, 0x%x' % ONES_BF16)
    k.I('s_mov_b32 s81, 0x%x' % f2u(1e-6))
    if OPT.get('dbgt'):
        k.I('s_memrealtime s[90:91]')
    k.I('s_cmp_ge_u32 s39, 4')
    k.I('s_cbranch_scc1 L_a_q')

    X, WR = 112, 80
    LA = 4
    E = 131072
    E_ST = E
    E_CS = E + 1024
    E_TB = E + 4096
    E_FL = E + 3072
    E_KV = E + 8192
    WSLOT = {('k', 0): 1, ('k', 1): 3, ('k', 2): 5, ('k', 3): 7, ('v', 0): 0, ('v', 1): 1, ('v', 2): 2, ('v', 3): 3,
             ('q', 0): 4, ('q', 1): 5, ('q', 2): 6, ('q', 3): 7}
    XA = 16
    WE, WO_, WE2, WO2 = 12, 13, 14, 15
    MEAN, RSTD, CK, CV, T0 = 2, 3, 4, 5, 6
    LN16 = 7

    def common_setup(k, need_w_addr=True):
        k.I('v_and_b32 v2, 31, v1')
        k.I('s_lshl_b32 s37, s29, 5')
        k.I('v_add_u32 v2, s37, v2')
        k.I('v_lshlrev_b32 v2, 8, v2')
        k.I('v_lshrrev_b32 v3, 5, v1')
        k.I('v_and_b32 v4, 15, v1')
        k.I('v_xor_b32 v4, v3, v4')
        k.I('v_lshlrev_b32 v4, 4, v4')
        k.I('s_lshl_b32 s37, s31, 5')
        k.I('v_xor_b32 v4, s37, v4')
        for s in range(8):
            k.I('v_xor_b32 v5, %d, v4' % (32 * s))
            k.I('v_add_u32 %s, v2, v5' % vr(XA + s))
        k.I('v_bfe_u32 v4, v1, 2, 2')
        k.I('v_lshl_add_u32 v4, v3, 3, v4')
        k.I('v_lshlrev_b32 v4, 7, v4')
        k.I('v_bfe_u32 v5, v1, 4, 1')
        k.I('v_lshlrev_b32 v5, 1, v5')
        k.I('v_bfe_u32 v6, v1, 1, 1')
        k.I('v_add_u32 v5, v5, v6')
        k.I('s_lshl_b32 s37, s30, 2')
        k.I('v_add_u32 v5, s37, v5')
        k.I('v_bfe_u32 v6, v1, 3, 1')
        k.I('v_lshlrev_b32 v6, 2, v6')
        k.I('v_xor_b32 v5, v5, v6')
        k.I('v_lshlrev_b32 v5, 4, v5')
        k.I('v_and_b32 v6, 1, v1')
        k.I('v_lshlrev_b32 v6, 3, v6')
        k.I('v_add3_u32 v4, v4, v5, v6')
        k.I('s_lshl_b32 s37, s31, 11')
        k.I('v_add_u32 %s, s37, v4' % vr(WE))
        k.I('s_xor_b32 s37, s37, 2048')
        k.I('v_add_u32 %s, s37, v4' % vr(WO_))
        k.I('v_add_u32 %s, 0x10000, %s' % (vr(WE2), vr(WE)))
        k.I('v_add_u32 %s, 0x10000, %s' % (vr(WO2), vr(WO_)))
        k.I('v_bfe_u32 v5, v1, 4, 1')
        k.I('v_and_b32 v6, 1, v1')
        k.I('v_cmp_eq_u32 vcc, v5, v6')
        k.I('v_mov_b32 v5, s70')
        k.I('v_cndmask_b32 v5, 0, v5, vcc')
        for j in range(4):
            k.I('v_accvgpr_write_b32 a%d, v5' % (4 + j))
        k.I('s_lshl_b32 s72, s29, 1')
        k.I('s_add_u32 s73, s72, s30')
        k.I('s_lshl_b32 s73, s73, 8')
        k.I('s_add_u32 s73, s73, %d' % E_ST)
        k.I('s_xor_b32 s74, s73, 256')
        k.I('s_lshl_b32 s75, s30, 1')
        k.I('s_add_u32 s75, s75, s29')
        k.I('s_lshl_b32 s75, s75, 7')
        k.I('s_add_u32 s75, s75, %d' % E_CS)
        k.I('s_xor_b32 s76, s75, 128')
        k.I('s_lshl_b32 s77, s39, 8')
        k.I('s_add_u32 s77, s77, %d' % E_TB)
        k.I('s_lshl_b32 s40, s28, 2')
        k.I('s_add_u32 s40, s40, %d' % E_FL)
        k.I('s_xor_b32 s41, s40, 4')
        k.I('v_and_b32 v0, 31, v1')
        k.I('v_lshlrev_b32 v0, 2, v0')
        k.I('v_and_b32 v26, 16, v1')
        k.I('v_cmp_ne_u32 s[82:83], 0, v26')
        k.I('v_lshlrev_b32 %s, 4, v1' % vr(LN16))

    def xread(n):
        c, s = n // 8, n % 8
        return 'ds_read_b128 %s, %s offset:%d' % (vr(X + 4 * n, 4), vr(XA + s), (c % 2) * 32768)

    def wreads(part, ks):
        c, s = ks // 8, ks % 8
        slot = WSLOT[(part, c)]
        a = ((WE, WO_) if slot < 4 else (WE2, WO2))[s & 1]
        off = (slot % 4) * 16384 + (s & ~1) * 2048
        return ['ds_read_b64_tr_b16 %s, %s offset:%d' % (vr(WR + 4 * s, 2), vr(a), off),
                'ds_read_b64_tr_b16 %s, %s offset:%d' % (vr(WR + 4 * s + 2, 2), vr(a), off + 512)]

    def stats_finish_ops():
        return ['v_lshlrev_b32 v26, 1, v0', 'v_add_u32 v27, s74, v26', 'v_add_u32 v26, s73, v26',
                'ds_read_b64 v[24:25], v26', 'ds_read_b64 v[28:29], v27',
                'v_add_f32 v24, v24, v28', 'v_add_f32 v25, v25, v29',
                'v_mul_f32 %s, 0x%x, v24' % (vr(MEAN), f2u(1.0 / 512)),
                'v_mul_f32 v25, 0x%x, v25' % f2u(1.0 / 512),
                'v_fma_f32 v25, -%s, %s, v25' % (vr(MEAN), vr(MEAN)),
                'v_max_f32 v25, 0, v25', 'v_add_f32 v25, 0x%x, v25' % f2u(1e-5), 'v_rsq_f32 %s, v25' % vr(RSTD)]

    kk = Kernel('a_kv')
    k = kk
    st = Stamper(k, 1, ws, base=88, tmp=40)
    ACK, ACV = 48, 64
    MN, RS = 16, 32
    k.I('s_lshl_b32 s38, s2, 2')
    k.I('s_add_u32 s38, s38, s28')
    k.I('s_mov_b32 s19, 0x00020000')
    k.I('s_mov_b32 s23, 0x00020000')
    if not OPT.get('nocode'):
        k.I('s_getpc_b64 s[34:35]')
        k.label('L_a_pc')
        k.I('s_sub_u32 s34, s34, L_a_pc-qkv_kernel')
        k.I('s_subb_u32 s35, s35, 0')
        k.I('s_lshr_b32 s36, s2, 3')
        k.I('s_lshl_b32 s36, s36, 2')
        k.I('s_add_u32 s36, s36, s28')
        k.I('s_lshl_b32 s36, s36, 10')
        k.I('v_lshlrev_b32 v8, 4, v1')
        k.I('v_add_u32 v8, s36, v8')
        k.I('v_min_u32 v8, L_text_end-qkv_kernel-4, v8')
        k.I('global_load_dword v239, v8, s[34:35]')
    k.I('s_waitcnt lgkmcnt(0)')
    prep_decode(k)
    common_setup(k)
    for j in range(4):
        k.I('v_accvgpr_write_b32 a%d, s70' % j)
    k.I('s_lshl_b32 s37, s33, 2')
    k.I('s_add_u32 s37, s37, s28')
    k.I('s_lshl_b32 s37, s37, 11')
    k.I('s_add_u32 s71, s37, 0x%x' % OFF_KVZ)
    k.I('s_lshl_b32 s78, s33, 2')
    if OPT.get('touch'):
        k.I('s_and_b32 s34, s2, 7')
        k.I('s_lshr_b32 s35, s2, 3')
        k.I('s_and_b32 s36, s34, 3')
        k.I('s_lshl_b32 s36, s36, 19')
        k.I('s_lshl_b32 s37, s35, 14')
        k.I('s_add_u32 s36, s36, s37')
        k.I('s_lshl_b32 s37, s28, 12')
        k.I('s_add_u32 s36, s36, s37')
        k.I('v_lshlrev_b32 v8, 4, v1')
        for t in range(4):
            k.I('buffer_load_dword %s, v8, %s, s36 offen offset:%d' % (vr(220 + t), sr(XS, 4), t * 1024))
        k.I('v_lshrrev_b32 v9, 5, v1')
        k.I('s_movk_i32 s37, 3072')
        k.I('v_mul_lo_u32 v9, v9, s37')
        k.I('v_and_b32 v10, 31, v1')
        k.I('v_lshl_add_u32 v9, v10, 4, v9')
        k.I('s_lshl_b32 s35, s35, 4')
        k.I('s_lshl_b32 s37, s28, 2')
        k.I('s_add_u32 s35, s35, s37')
        k.I('s_mul_i32 s35, s35, 3072')
        k.I('s_lshr_b32 s34, s34, 2')
        k.I('s_lshl_b32 s34, s34, 9')
        k.I('s_add_u32 s35, s35, s34')
        for hh in range(2):
            for p in range(3):
                k.I('s_add_u32 s34, s35, %d' % (hh * 2 * 3072))
                k.I('buffer_load_dword %s, v9, %s, s34 offen offset:%d' % (vr(224 + hh * 3 + p), sr(WQ, 4), p * 1024))
        k.I('v_lshrrev_b32 v10, 3, v1')
        k.I('v_mul_lo_u32 v10, v10, s50')
        k.I('v_and_b32 v9, 7, v1')
        k.I('v_lshl_add_u32 v10, v9, 4, v10')
        k.I('s_lshl_b32 s36, s50, 3')
        k.I('s_mov_b32 s34, s48')
        k.I('s_mov_b32 s35, s49')
        for t in range(4):
            k.I('buffer_load_dword %s, v10, %s, s34 offen' % (vr(230 + t), sr(PA, 4)))
            k.I('buffer_load_dword %s, v10, %s, s35 offen' % (vr(234 + t), sr(PB, 4)))
            k.I('s_add_u32 s34, s34, s36')
            k.I('s_add_u32 s35, s35, s36')
    k.I('v_lshlrev_b32 v8, 2, v1')
    k.I('v_add_u32 v8, %d, v8' % E_FL)
    k.I('v_mov_b32 v9, 0')
    k.I('v_cmp_gt_u32 vcc, 16, v1')
    k.I('s_and_saveexec_b64 s[60:61], vcc')
    k.I('ds_write_b32 v8, v9')
    k.I('s_mov_b64 exec, s[60:61]')
    k.I('s_waitcnt lgkmcnt(0)')
    S = Sched(64)
    GS = [0, 8, 16, 24, 32, 48]
    pre = ['s_barrier']
    for n in range(LA):
        pre += [xread(n)] + wreads('k', n)
    for g in range(1, 6):
        if g == 5 and not OPT.get('oldbar'):
            continue
        S.at(GS[g] - LA - 1, ['s_barrier'])
    if OPT.get('oldbar'):
        S.at(47, ['s_barrier'])
        S.at(62, ['s_barrier'])
    for n in range(64):
        part = 'kv'[n // 32]
        s = n % 8
        m = n + LA
        if m < 64:
            if m == 16:
                S.at(n, ['v_add_u32 %s, 0x10000, %s' % (vr(XA + t), vr(XA + t)) for t in range(8)])
            S.at(n, ([xread(m)] if m < 32 else []) + wreads('kv'[m // 32], m % 32))
        if s % 2 == 0:
            ca = ar(8 + 4 * (n // 32), 4)
            S.at(n, ['v_mfma_f32_16x16x32_bf16 %s, a[4:7], %s, %s' % (ca, vr(WR + 4 * s, 4), '0' if n % 32 == 0 else ca)])

    if not OPT.get('oldbar'):
        S.at(43, ['s_waitcnt lgkmcnt(0)', 's_barrier'])

    def lane_form(dst, a0, tmp):
        return ['v_accvgpr_read_b32 %s, a%d' % (vr(dst), a0), 'v_accvgpr_read_b32 %s, a%d' % (vr(tmp), a0 + 1),
                'v_cndmask_b32 %s, %s, %s, s[82:83]' % (vr(dst), vr(dst), vr(tmp))]
    S.at(31, lane_form(CK, 8, 27) + ['v_add_u32 v26, s75, v0', 'ds_write_b32 v26, %s' % vr(CK), 's_waitcnt lgkmcnt(0)'])
    S.at(33, ['s_barrier', 'v_add_u32 v26, s76, v0', 'ds_read_b32 v30, v26'] + stats_finish_ops() +
         ['v_add_f32 %s, %s, v30' % (vr(CK), vr(CK)),
          'v_add_u32 v26, s77, v0', 'ds_write_b32 v26, %s' % vr(MEAN), 'ds_write_b32 v26, %s offset:128' % vr(RSTD),
          'v_lshrrev_b32 v26, 5, v1', 'v_lshlrev_b32 v26, 4, v26', 'v_add_u32 %s, s77, v26' % vr(T0)])
    rd = []
    for a in range(4):
        rd.append('ds_read_b128 %s, %s offset:%d' % (vr(MN + 4 * a, 4), vr(T0), a * 32))
        rd.append('ds_read_b128 %s, %s offset:%d' % (vr(RS + 4 * a, 4), vr(T0), 128 + a * 32))
    S.at(34, rd)
    ke = []
    for i in range(0, 16, 2):
        ke += ln_phi_ops([ACK + i, ACK + i + 1], [MN + i, MN + i + 1], [CK, CK], [RS + i, RS + i + 1], [8, 9])
        ke.append('v_cvt_pk_bf16_f32 %s, %s, %s' % (vr(ACK + i // 2), vr(ACK + i), vr(ACK + i + 1)))
    S.spread(36, 61, ke)
    if OPT.get('touch2'):
        tp = ['s_lshr_b32 s35, s2, 3', 's_lshl_b32 s35, s35, 4', 's_lshl_b32 s34, s28, 2', 's_add_u32 s35, s35, s34',
              's_mul_i32 s35, s35, 3072', 's_and_b32 s34, s2, 7', 's_lshr_b32 s34, s34, 2', 's_lshl_b32 s34, s34, 9',
              's_add_u32 s35, s35, s34',
              'v_lshrrev_b32 v9, 5, v1', 'v_mul_u32_u24 v9, 0xc00, v9', 'v_and_b32 v8, 31, v1', 'v_lshl_add_u32 v9, v8, 4, v9']
        for hh in range(2):
            tp.append('s_add_u32 s34, s35, %d' % (hh * 2 * 3072))
            tp.append('buffer_load_dword %s, v9, %s, s34 offen offset:2048' % (vr(64 + hh * 2), sr(WQ, 4)))
            tp.append('buffer_load_dword %s, v9, %s, s34 offen' % (vr(65 + hh * 2), sr(WQ, 4)))
        if OPT.get('touch3'):
            tp += ['v_lshrrev_b32 v9, 3, v1', 'v_mul_lo_u32 v9, v9, s50', 'v_and_b32 v8, 7, v1', 'v_lshl_add_u32 v9, v8, 4, v9',
                   's_lshl_b32 s36, s50, 3', 's_mov_b32 s34, s48', 's_mov_b32 s35, s49']
            for t in range(4):
                tp.append('buffer_load_dword %s, v9, %s, s34 offen' % (vr(68 + t), sr(PA, 4)))
                tp.append('buffer_load_dword %s, v9, %s, s35 offen' % (vr(72 + t), sr(PB, 4)))
                tp.append('s_add_u32 s34, s34, s36')
                tp.append('s_add_u32 s35, s35, s36')
        S.spread(OPT.get('tpos', (1,))[0], OPT.get('tpos', (1,))[0] + 14, tp)
    S.at(46 if OPT.get('oldbar') else 42, ['v_mov_b32 v6, 0', 'buffer_load_dword v11, v6, %s, s78 offen sc1' % sr(DB, 4)])
    pd = ['v_lshrrev_b32 v10, 3, v1', 'v_mul_lo_u32 v10, v10, s50', 'v_and_b32 v6, 7, v1', 'v_lshlrev_b32 v6, 4, v6',
          'v_add_u32 v10, v10, v6', 's_lshl_b32 s80, s50, 3', 's_lshl_b32 s79, s28, 13']
    for t in range(8):
        base = 's48' if t < 4 else 's49'
        pd.append('s_add_u32 m0, s79, %d' % (t * 1024))
        pd.append(('buffer_load_dwordx4 v10, %s, %s offen lds' % (sr(PA if t < 4 else PB, 4), base), 'prep'))
        pd.append('s_add_u32 %s, %s, s80' % (base, base))
    S.spread(OPT.get('ppos', (52,))[0], 63, pd)
    for o in pre:
        emit(k, o)
    st.stamp()
    for n in range(64):
        part, ks = n // 32, n % 32
        acc = vr([ACK, ACV][part], 16)
        if n % 2 == 0:
            k.touch(vr(WR + 4 * ((n + 1) % 8), 4))
            if part == 0:
                k.touch(vr(X + 4 * (ks + 1), 4))
        k.I('v_mfma_f32_32x32x16_bf16 %s, %s, %s, %s' % (acc, vr(X + 4 * ks, 4), vr(WR + 4 * (n % 8), 4), acc if ks else '0'))
        for o in S.slots[n]:
            emit(k, o)
        if n in OPT.get('kvat', (31,)):
            st.stamp()
    st.stamp()
    TT = ACK + 8
    PF = X
    PAD = [X + 32 + f for f in range(8)]
    for o in lane_form(CV, 12, TT) + ['v_add_u32 %s, s75, v0' % vr(TT), 'ds_write_b32 %s, %s offset:512' % (vr(TT), vr(CV))] + \
            pair_signal(40, TT + 1, TT + 2):
        emit(k, o)
    p0, p1 = PAD[0], PAD[1]
    for o in ['v_bfe_u32 %s, v1, 2, 2' % vr(p0), 'v_lshrrev_b32 %s, 5, v1' % vr(p1), 'v_lshl_add_u32 %s, %s, 2, %s' % (vr(p0), vr(p1), vr(p0)),
              'v_lshlrev_b32 %s, 7, %s' % (vr(p0), vr(p0)), 'v_and_b32 %s, 3, v1' % vr(p1), 'v_lshl_add_u32 %s, %s, 3, %s' % (vr(p0), vr(p1), vr(p0)),
              'v_bfe_u32 %s, v1, 4, 1' % vr(p1),
              's_cmp_eq_u32 s68, 1', 's_cselect_b32 s79, 12, 5', 's_cselect_b32 s60, 32, 64', 's_cselect_b32 s61, 64, 2048',
              's_cselect_b32 s62, 11, 12', 's_lshl_b32 s62, 1, s62',
              'v_lshlrev_b32 %s, s79, %s' % (vr(p1), vr(p1)), 's_lshl_b32 s80, s28, 13',
              'v_add3_u32 %s, %s, %s, s80' % (vr(p0), vr(p0), vr(p1)),
              'v_add_u32 %s, s60, %s' % (vr(PAD[1]), vr(p0)), 'v_add_u32 %s, s61, %s' % (vr(PAD[2]), vr(p0)),
              'v_add_u32 %s, s61, %s' % (vr(PAD[3]), vr(PAD[1]))]:
        k.I(o)
    for f in range(4):
        k.I('v_add_u32 %s, s62, %s' % (vr(PAD[4 + f]), vr(PAD[f])))
    pair_wait(k, 'L_a_pw0', 41, TT + 1, TT + 2, 79)
    for o in ['v_add_u32 %s, s76, v0' % vr(TT), 'ds_read_b32 %s, %s offset:512' % (vr(TT + 1), vr(TT)),
              'v_add_f32 %s, %s, %s' % (vr(CV), vr(CV), vr(TT + 1))]:
        emit(k, o)
    ve = []
    for i in range(16):
        ve.append('v_fma_f32 %s, -%s, %s, %s' % (vr(ACV + i), vr(MN + i), vr(CV), vr(ACV + i)))
    for i in range(16):
        ve.append('v_mul_f32 %s, %s, %s' % (vr(ACV + i), vr(RS + i), vr(ACV + i)))
    for j in range(8):
        ve.append('v_cvt_pk_bf16_f32 %s, %s, %s' % (vr(ACV + j), vr(ACV + 2 * j), vr(ACV + 2 * j + 1)))
    for o in ve:
        k.I(o)
    DKV, DZ = 16, 32
    k.I('v_mfma_f32_32x32x16_bf16 %s, %s, %s, 0' % (vr(DKV, 16), vr(ACK, 4), vr(ACV, 4)))
    k.I('v_mfma_f32_32x32x16_bf16 %s, %s, a[0:3], 0' % (vr(DZ, 16), vr(ACK, 4)))
    k.I('v_mfma_f32_32x32x16_bf16 %s, %s, %s, %s' % (vr(DKV, 16), vr(ACK + 4, 4), vr(ACV + 4, 4), vr(DKV, 16)))
    k.I('v_mfma_f32_32x32x16_bf16 %s, %s, a[0:3], %s' % (vr(DZ, 16), vr(ACK + 4, 4), vr(DZ, 16)))
    for o in ['v_and_b32 %s, 16, v1' % vr(TT), 'v_lshlrev_b32 %s, 7, %s' % (vr(TT), vr(TT)),
              'v_lshrrev_b32 %s, 5, v1' % vr(TT + 1), 'v_mul_u32_u24 %s, 272, %s' % (vr(TT + 1), vr(TT + 1)),
              's_lshl_b32 s79, s30, 1', 's_add_u32 s79, s79, s29', 's_lshl_b32 s79, s79, 12', 's_add_u32 s79, s79, %d' % E_KV,
              'v_add3_u32 %s, %s, %s, s79' % (vr(TT), vr(TT), vr(TT + 1)),
              'v_and_b32 %s, 15, v1' % vr(TT + 1), 'v_lshl_add_u32 %s, %s, 4, %s' % (vr(TT + 2), vr(TT + 1), vr(TT)),
              's_add_u32 s40, s40, 16', 's_add_u32 s41, s41, 16']:
        emit(k, o)
    for j in range(8):
        k.I('v_cndmask_b32 %s, %s, %s, s[82:83]' % (vr(DKV + j), vr(DKV + j), vr(DKV + 8 + j)))
    for j in range(8):
        k.I('v_cndmask_b32 %s, %s, %s, s[82:83]' % (vr(DZ + j), vr(DZ + j), vr(DZ + 8 + j)))
    for o in ['ds_write_b128 %s, %s' % (vr(TT + 2), vr(DKV, 4)), 'ds_write_b128 %s, %s offset:544' % (vr(TT + 2), vr(DKV + 4, 4)),
              'v_cmp_eq_u32 vcc, 0, %s' % vr(TT + 1), 's_and_saveexec_b64 s[60:61], vcc',
              'ds_write_b128 %s, %s offset:256' % (vr(TT), vr(DZ, 4)), 'ds_write_b128 %s, %s offset:800' % (vr(TT), vr(DZ + 4, 4)),
              's_mov_b64 exec, s[60:61]'] + pair_signal(40, TT + 1, TT + 2) + \
            ['s_lshl_b32 s79, s30, 13', 's_lshl_b32 s80, s29, 11', 's_add_u32 s79, s79, s80', 's_add_u32 s79, s79, %d' % E_KV]:
        emit(k, o)
    k.I('v_readfirstlane_b32 s80, v11')
    k.I('s_cmp_eq_u32 s80, 0')
    k.I('s_cbranch_scc1 L_a_spin')
    k.label('L_a_go')
    pair_wait(k, 'L_a_pw1', 41, TT + 1, TT + 2, 80)
    k.I('v_lshlrev_b32 %s, 2, v1' % vr(TT))
    k.I('v_add_u32 %s, s79, %s' % (vr(TT + 1), vr(TT)))
    for ch in range(5):
        d = 16 + ch * 2
        k.I('ds_read_b32 %s, %s offset:%d' % (vr(d), vr(TT + 1), ch * 256))
        k.I('ds_read_b32 %s, %s offset:%d' % (vr(d + 1), vr(TT + 1), ch * 256 + 4096))
    k.need('prep')
    for f in range(8):
        k.I('ds_read_b64_tr_b16 %s, %s' % (vr(PF + 4 * f, 2), vr(PAD[f])))
        k.I('ds_read_b64_tr_b16 %s, %s offset:1024' % (vr(PF + 4 * f + 2, 2), vr(PAD[f])))
    for ch in range(5):
        d = 16 + ch * 2
        k.I('v_add_f32 %s, %s, %s' % (vr(d), vr(d), vr(d + 1)))
    for ch in range(4):
        k.I('buffer_atomic_add_f32 %s, %s, %s, s71 offen offset:%d' % (vr(16 + ch * 2), vr(TT), ws, ch * 256))
    k.I('v_cmp_gt_u32 vcc, 16, v1')
    k.I('s_and_saveexec_b64 s[60:61], vcc')
    k.I('buffer_atomic_add_f32 %s, %s, %s, s71 offen offset:1024' % (vr(24), vr(TT), ws))
    k.I('s_mov_b64 exec, s[60:61]')
    if len(OPT.get('kvat', (31,))) < 2: st.stamp()
    for f in range(8):
        k.I('buffer_store_dwordx4 %s, %s, %s, %s offen%s' % (vr(PF + 4 * f, 4), vr(LN16), ws, sr(51 + f), APOL()))
        ca = vr(32 + 4 * (f & 3), 4)
        k.I('v_mfma_f32_16x16x32_bf16 %s, a[4:7], %s, %s' % (ca, vr(PF + 4 * f, 4), '0' if f < 4 else ca))
    for c in range(4):
        k.I('v_cndmask_b32 %s, %s, %s, s[82:83]' % (vr(48 + c), vr(32 + 4 * c), vr(33 + 4 * c)))
        k.I('buffer_store_dword %s, v0, %s, s59 offen offset:%d' % (vr(48 + c), ws, c * 128))
    if gen1.STAMPS:
        k.I('s_mov_b32 s88, s88') if False else None
        k.I('v_lshl_add_u32 v4, s39, 6, v1')
        st.tid = 'v4'
        st.stamp(); st.stamp(True)
        flush_stamps(k, st, ws, 1)
    if OPT.get('dbgt'):
        dbg_time(k, 24, 90, 8, 28)
    k.label('L_a_end')
    k.I('s_endpgm')
    k.raw('''L_a_spin:
    s_mov_b32 s84, 0
L_a_spin2:
    s_sleep 2
    v_mov_b32 v6, 0
    buffer_load_dword v11, v6, s[%d:%d], s78 offen sc1
    s_waitcnt vmcnt(0)
    v_readfirstlane_b32 s80, v11
    s_add_u32 s84, s84, 1
    s_cmp_ge_u32 s84, 0x100000
    s_cbranch_scc1 L_a_go
    s_cmp_eq_u32 s80, 0
    s_cbranch_scc1 L_a_spin2
    s_branch L_a_go
''' % (DB, DB + 3))

    kq = Kernel('a_q')
    k = kq
    k.label('L_a_q')
    stq = Stamper(k, 5, ws, base=88, tmp=40)
    ACQ = 48
    k.I('s_lshl_b32 s34, s28, 12')
    k.I('s_lshl_b32 s35, s32, 16')
    k.I('s_mul_i32 s36, s28, %d' % (32 * 3072))
    k.I('s_lshl_b32 s37, s33, 7')
    k.I('s_add_u32 s36, s36, s37')
    k.I('s_add_u32 s38, s32, s33')
    if OPT.get('norot'):
        k.I('s_mov_b32 s38, 0')
    for c in range(4):
        k.I('s_add_u32 s37, s38, %d' % c)
        k.I('s_and_b32 s37, s37, 3')
        k.I('s_lshl_b32 %s, s37, 8' % sr(60 + c))
        k.I('s_add_u32 %s, %s, s35' % (sr(60 + c), sr(60 + c)))
        k.I('s_mul_i32 %s, s37, %d' % (sr(64 + c), 128 * 3072))
        k.I('s_add_u32 %s, %s, s36' % (sr(64 + c), sr(64 + c)))
    XV = [32, 33, 34, 35]
    WV = [8, 9, 10, 11]
    k.I('v_lshrrev_b32 v2, 4, v1')
    k.I('v_and_b32 v3, 15, v1')
    k.I('s_lshl_b32 s37, s28, 4')
    for j in range(4):
        k.I('v_add_u32 v4, %d, v2' % (4 * j))
        k.I('v_xor_b32 v5, v3, v4')
        k.I('v_lshlrev_b32 v5, 4, v5')
        k.I('v_add_u32 v4, s37, v4')
        k.I('v_lshlrev_b32 v4, 10, v4')
        k.I('v_add_u32 v4, v4, v5')
        k.I('v_subrev_u32 %s, %d, v4' % (vr(XV[j]), j * 1024))
    k.I('v_lshrrev_b32 v4, 3, v1')
    k.I('s_movk_i32 s37, 3072')
    k.I('v_mul_lo_u32 v4, v4, s37')
    k.I('v_and_b32 v5, 1, v2')
    k.I('v_lshlrev_b32 v5, 2, v5')
    k.I('v_and_b32 v6, 7, v1')
    k.I('v_xor_b32 v5, v5, v6')
    k.I('v_lshlrev_b32 v5, 4, v5')
    k.I('v_add_u32 v8, v4, v5')
    for j in range(1, 4):
        k.I('v_add_u32 %s, %d, v8' % (vr(WV[j]), j * (8 * 3072 - 1024)))
    k.I('v_lshlrev_b32 %s, 4, v1' % vr(LN16))
    for j in range(4):
        k.I('v_mov_b32 %s, 0' % vr(40 + j))
    k.I('s_lshl_b32 s37, s33, 2')
    k.I('s_add_u32 s37, s37, s28')
    k.I('s_lshl_b32 s37, s37, 11')
    k.I('s_add_u32 s71, s37, 0x%x' % OFF_KVZ)
    k.I('s_cmp_eq_u32 s32, 0')
    k.I('s_cselect_b32 s37, s71, 0x7fff0000')
    k.I('s_waitcnt lgkmcnt(0)')
    if OPT.get('qpro'): stq.stamp()
    k.I('buffer_store_dwordx4 v[40:43], %s, %s, s37 offen sc1' % (vr(LN16), ws), w=['zero'])
    k.I('buffer_store_dwordx4 v[40:43], %s, %s, s37 offen offset:1024 sc1' % (vr(LN16), ws), w=['zero'])
    k.I('s_lshl_b32 s37, s2, 7')
    k.I('s_lshl_b32 s38, s28, 15')
    k.I('s_add_u32 s37, s37, s38')
    k.I('s_add_u32 s37, s37, 0x%x' % OFF_CNT)
    k.I('v_and_b32 v41, 15, v1')
    k.I('v_lshlrev_b32 v41, 2, v41')
    k.I('buffer_store_dword v40, v41, %s, s37 offen' % ws)

    def dma_x_ops(c, slot):
        ops = ['s_add_u32 m0, s34, %d' % (slot * 16384)]
        for j in range(4):
            ops.append(('buffer_load_dwordx4 %s, %s, %s offen offset:%d lds' % (vr(XV[j]), sr(XS, 4), sr(60 + c), j * 1024), 'X%d' % c))
        return ops
    PARTCOL = {'q': 0, 'k': 1024, 'v': 2048}

    def dma_w_ops(part, c, slot):
        ops = ['s_add_u32 m0, s34, %d' % (slot * 16384), 's_add_u32 s69, %s, %d' % (sr(64 + c), PARTCOL[part])]
        for j in range(4):
            ops.append(('buffer_load_dwordx4 %s, %s, s69 offen offset:%d lds' % (vr(WV[j]), sr(WQ, 4), j * 1024), 'W%s%d' % (part, c)))
        return ops
    def interleave(a, b, ratio=None):
        nv = sum(1 for o in a if isinstance(o, tuple))
        out, ib, seen = [], 0, 0
        for o in a:
            out.append(o)
            if isinstance(o, tuple):
                seen += 1
                upto = len(b) * seen // nv
                out += b[ib:upto]
                ib = upto
        return out + b[ib:]
    grp = lambda c: dma_x_ops(c, 2 * c) + dma_w_ops('k', c, 2 * c + 1)
    for o in grp(0):
        emit(k, o)
    if OPT.get('qpro'): stq.stamp()
    ktmp = Kernel('tmp')
    common_setup(ktmp)
    setup_ops = [it.text for it in ktmp.items]
    for o in interleave(grp(1), setup_ops):
        emit(k, o)
    stq.stamp()
    SQ = 24
    SQ4 = [24, 25, 28, 29]
    for r_ in SQ4:
        k.I('v_mov_b32 %s, 0' % vr(r_))
    nextdma = {0: grp(2), 1: grp(3), 2: dma_w_ops('v', 0, 0) + dma_w_ops('v', 1, 1), 3: dma_w_ops('v', 2, 2) + dma_w_ops('v', 3, 3)}
    for g in range(4):
        if OPT.get('qg') == (g,): stq.stamp()
        k.need(*(['X%d' % g, 'Wk%d' % g] + (['zero'] if g == 0 else [])))
        if OPT.get('qg') == (g,) or (OPT.get('qpro') and g == 0): stq.stamp()
        k.I('s_barrier')
        if OPT.get('qg') == (g,): stq.stamp()
        work = []
        if g == 0:
            work += ['s_or_b32 s38, s32, s28', 's_cmp_eq_u32 s38, 0', 's_cselect_b32 s38, 0, 0x1000',
                     'v_lshlrev_b32 v26, 12, v1', 's_lshl_b32 s78, s33, 2', 'v_add_u32 v26, s78, v26', 'v_mov_b32 v27, 1']
        if g == 2:
            work += ['v_add_u32 %s, 0x10000, %s' % (vr(XA + t), vr(XA + t)) for t in range(8)]
        work += [xread(8 * g + s) for s in range(8)]
        for s in range(0, 8, 2):
            n = 8 * g + s
            work.append('v_mfma_f32_16x16x32_bf16 a[8:11], a[4:7], %s, %s' % (vr(X + 4 * n, 4), '0' if n == 0 else 'a[8:11]'))
            for j in range(4):
                xr = X + 4 * n + j
                work.append('v_dot2c_f32_bf16 %s, %s, %s' % (vr(SQ4[j]), vr(xr), vr(xr)))
        if OPT.get('noqwork'):
            work = [w for w in work if not (w.startswith('v_mfma') or w.startswith('v_dot2c'))]
        if OPT.get('qafter'):
            for o in nextdma[g] + work:
                emit(k, o)
        else:
            for o in interleave(nextdma[g], work):
                emit(k, o)
        if OPT.get('qg') == (g,): stq.stamp()
        if g == 0:
            k.I('buffer_store_dword v27, v26, %s, s38 offen sc1' % sr(DB, 4))
    if not (OPT.get('qpro') or OPT.get('qg')): stq.stamp()
    k.need('Wv0', 'Wv1')
    k.I('s_waitcnt lgkmcnt(0)')
    k.I('s_barrier')
    for o in dma_w_ops('q', 0, 4) + dma_w_ops('q', 1, 5):
        emit(k, o)
    for o in ['v_add_f32 v24, v24, v28', 'v_add_f32 v25, v25, v29', 'v_add_f32 v25, v24, v25'] + xhalf_ops(25, 26) + \
            ['v_accvgpr_read_b32 v24, a8', 'v_accvgpr_read_b32 v27, a9', 'v_cndmask_b32 v24, v24, v27, s[82:83]',
             'v_lshlrev_b32 v26, 1, v0', 'v_add_u32 v26, s73, v26', 'ds_write_b64 v26, v[24:25]', 's_waitcnt lgkmcnt(0)',
             's_barrier'] + stats_finish_ops():
        emit(k, o)
    for o in dma_w_ops('q', 2, 6) + dma_w_ops('q', 3, 7):
        emit(k, o)
    k.need('Wv2', 'Wv3')
    k.I('s_barrier')
    k.need('Wq0', 'Wq1')
    if OPT.get('oldbar'):
        k.I('s_barrier')
    else:
        q_sync(k, 'L_a_qs0', E_FL + 48)
    if not (OPT.get('qpro') or OPT.get('qg')): stq.stamp()
    for n in range(LA):
        for o in wreads('q', n):
            k.I(o)
    for n in range(32):
        if n % 2 == 0:
            k.touch(vr(WR + 4 * ((n + 1) % 8), 4))
        acc = vr(ACQ, 16)
        k.I('v_mfma_f32_32x32x16_bf16 %s, %s, %s, %s' % (acc, vr(WR + 4 * (n % 8), 4), vr(X + 4 * n, 4), acc if n else '0'))
        if n == 16 - LA - 1:
            k.need('Wq2', 'Wq3')
            if OPT.get('oldbar'):
                k.I('s_barrier')
            else:
                q_sync(k, 'L_a_qs1', E_FL + 52)
        if n + LA < 32:
            for o in wreads('q', n + LA):
                k.I(o)
        if n % 2 == 0:
            k.I('v_mfma_f32_16x16x32_bf16 a[12:15], a[4:7], %s, %s' % (vr(WR + 4 * (n % 8), 4), '0' if n == 0 else 'a[12:15]'))
    if not (OPT.get('qpro') or OPT.get('qg')): stq.stamp()
    CSQ = 64
    for o in ['v_accvgpr_read_b32 %s, a12' % vr(CSQ), 'v_accvgpr_read_b32 %s, a13' % vr(CSQ + 1),
              'v_cndmask_b32 %s, %s, %s, s[82:83]' % (vr(CSQ), vr(CSQ), vr(CSQ + 1)),
              'v_add_u32 %s, s75, v0' % vr(CSQ + 1), 'ds_write_b32 %s, %s offset:1024' % (vr(CSQ + 1), vr(CSQ)),
              's_add_u32 s40, s40, 32', 's_add_u32 s41, s41, 32'] + pair_signal(40, CSQ + 1, CSQ + 2) + \
             ['v_lshrrev_b32 v20, 5, v1', 'v_lshlrev_b32 v20, 4, v20', 'v_add_u32 v21, s76, v20', 'v_add_u32 v20, s75, v20']:
        k.I(o)
    pair_wait(k, 'L_a_pw2', 41, CSQ + 1, CSQ + 2, 79)
    CQ, CQ2 = 24, 64
    for a in range(4):
        k.I('ds_read_b128 %s, v20 offset:%d' % (vr(CQ + 4 * a, 4), 1024 + a * 32))
        k.I('ds_read_b128 %s, v21 offset:%d' % (vr(CQ2 + 4 * a, 4), 1024 + a * 32))
    for i in range(16):
        k.I('v_add_f32 %s, %s, %s' % (vr(CQ + i), vr(CQ + i), vr(CQ2 + i)))
    for i in range(0, 16, 2):
        for o in ln_phi_ops([ACQ + i, ACQ + i + 1], [MEAN, MEAN], [CQ + i, CQ + i + 1], [RSTD, RSTD], [22, 23]):
            k.I(o)
        k.I('v_cvt_pk_bf16_f32 %s, %s, %s' % (vr(ACQ + i // 2), vr(ACQ + i), vr(ACQ + i + 1)))
    for o in ['s_lshl_b32 s79, s32, 1', 's_add_u32 s79, s79, s29', 's_lshl_b32 s79, s79, 5', 's_lshl_b32 s80, s33, 2',
              's_add_u32 s79, s79, s80', 's_lshl_b32 s80, s30, 1', 's_add_u32 s79, s79, s80', 's_lshl_b32 s79, s79, 10',
              's_add_u32 s79, s79, 0x%x' % OFF_PQ]:
        k.I(o)
    k.I('buffer_store_dwordx4 %s, %s, %s, s79 offen%s' % (vr(ACQ, 4), vr(LN16), ws, APOL()))
    k.I('buffer_store_dwordx4 %s, %s, %s, s79 offen offset:1024%s' % (vr(ACQ + 4, 4), vr(LN16), ws, APOL()))
    if gen1.STAMPS:
        k.I('v_lshl_add_u32 v4, s39, 6, v1')
        k.I('v_subrev_u32 v4, 256, v4')
        stq.tid = 'v4'
        stq.stamp(); stq.stamp(True)
        flush_stamps(k, stq, ws, 5)
    if OPT.get('dbgt'):
        dbg_time(k, 24, 90, 8, 28)
    k.I('s_endpgm')
    return Multi([kp, kq_first(kk, kq)[0], kq_first(kk, kq)[1]]), dict(lds=131072 + 8192 + 16384, grid=256, block=512)


def dbg_time(k, DB, s_start, slot, s_wave):
    k.I('s_memrealtime s[92:93]')
    k.I('s_waitcnt lgkmcnt(0)')
    k.I('s_not_b32 s94, s%d' % s_start)
    k.I('s_mov_b64 exec, 1')
    k.I('v_mov_b32 v0, 0')
    k.I('v_mov_b32 v2, s94')
    k.I('v_mov_b32 v3, s%d' % s_start)
    k.I('v_mov_b32 v4, s92')
    k.I('buffer_atomic_umax v2, v0, %s, 0 offen offset:%d' % (sr(DB, 4), slot * 4))
    k.I('buffer_atomic_umax v3, v0, %s, 0 offen offset:%d' % (sr(DB, 4), slot * 4 + 4))
    k.I('buffer_atomic_umax v4, v0, %s, 0 offen offset:%d' % (sr(DB, 4), slot * 4 + 8))


def kq_first(kk, kq):
    return kk, kq


def flush_stamps(k, st, ws, kidx):
    k.I('s_waitcnt lgkmcnt(0)')
    k.I('v_cmp_eq_u32 vcc, 0, %s' % st.tid)
    k.I('s_and_saveexec_b64 s[40:41], vcc')
    k.I('s_lshl_b32 s42, s2, 7')
    k.I('s_add_u32 s42, s42, 0x%x' % (OFF_TS + kidx * 256 * 128))
    k.I('v_mov_b32 v0, 0')
    regs = [84, 86] + [st.base + 2 * i for i in range(st.n)]
    for i, r in enumerate(regs):
        k.I('v_mov_b32 v2, s%d' % r)
        k.I('v_mov_b32 v3, s%d' % (r + 1))
        k.I('buffer_store_dwordx2 v[2:3], v0, %s, s42 offen offset:%d' % (ws, 8 * i))
    k.I('s_mov_b64 exec, s[40:41]')


def prep_decode(k):
    k.I('s_cmp_ge_u32 s38, 448')
    k.I('s_cbranch_scc1 L_a_pstd')
    div_const(k, 37, 38, 28, 48)
    k.I('s_mul_i32 s48, s37, 28')
    k.I('s_sub_u32 s69, s38, s48')
    k.I('s_mov_b32 s16, s44')
    k.I('s_mov_b32 s17, s45')
    k.I('s_mov_b32 s18, 0x%x' % SZ['wg'])
    k.I('s_mov_b32 s20, s46')
    k.I('s_mov_b32 s21, s47')
    k.I('s_mov_b32 s22, 0x%x' % SZ['wu'])
    k.I('s_movk_i32 s50, 3584')
    k.I('s_mul_i32 s48, s37, %d' % (32 * 3584))
    k.I('s_lshl_b32 s49, s69, 7')
    k.I('s_add_u32 s48, s48, s49')
    k.I('s_mov_b32 s49, s48')
    k.I('s_lshl_b32 s59, s69, 7')
    k.I('s_lshl_b32 s51, s37, 1')
    k.I('s_add_u32 s59, s59, s51')
    k.I('s_lshl_b32 s59, s59, 10')
    k.I('s_add_u32 s72, s59, 0x%x' % OFF_WGU)
    k.I('s_mov_b32 s73, %d' % (32 * 1024))
    k.I('s_mov_b32 s74, %d' % (64 * 1024))
    k.I('s_mov_b32 s75, 1024')
    k.I('s_mul_i32 s59, s37, %d' % (112 * 128))
    k.I('s_lshl_b32 s69, s69, 9')
    k.I('s_add_u32 s59, s59, s69')
    k.I('s_add_u32 s59, s59, 0x%x' % OFF_CSG)
    k.I('s_mov_b32 s68, 1')
    k.I('s_branch L_a_pgo')
    k.label('L_a_pstd')
    k.I('s_movk_i32 s50, 1024')
    k.I('s_mov_b32 s68, 0')
    k.I('s_mov_b32 s59, 0x7fff0000')
    k.I('s_cmp_ge_u32 s38, 672')
    k.I('s_cbranch_scc1 L_a_pwo')
    k.I('s_sub_u32 s37, s38, 448')
    k.I('s_and_b32 s69, s37, 7')
    k.I('s_lshr_b32 s37, s37, 3')
    k.I('s_mov_b32 s16, s42')
    k.I('s_mov_b32 s17, s43')
    k.I('s_mov_b32 s18, 0x%x' % SZ['wd'])
    k.I('s_mul_i32 s48, s69, 224')
    k.I('s_lshl_b32 s49, s37, 2')
    k.I('s_add_u32 s48, s48, s49')
    k.I('s_lshl_b32 s48, s48, 10')
    k.I('s_add_u32 s72, s48, 0x%x' % OFF_WD)
    k.I('s_mov_b32 s73, %d' % (112 * 1024))
    k.I('s_mov_b32 s74, 1024')
    k.I('s_mov_b32 s75, 2048')
    k.I('s_branch L_a_pstd2')
    k.label('L_a_pwo')
    k.I('s_sub_u32 s37, s38, 672')
    k.I('s_and_b32 s69, s37, 7')
    k.I('s_lshr_b32 s37, s37, 3')
    k.I('s_mov_b32 s16, s40')
    k.I('s_mov_b32 s17, s41')
    k.I('s_mov_b32 s18, 0x%x' % SZ['wo'])
    k.I('s_lshl_b32 s48, s37, 6')
    k.I('s_lshl_b32 s49, s69, 1')
    k.I('s_add_u32 s48, s48, s49')
    k.I('s_lshl_b32 s48, s48, 10')
    k.I('s_add_u32 s72, s48, 0x%x' % OFF_WO)
    k.I('s_cmp_ge_u32 s38, 736')
    k.I('s_cselect_b32 s72, 0x7fff0000, s72')
    k.I('s_cselect_b32 s18, 0, s18')
    k.I('s_mov_b32 s73, 1024')
    k.I('s_mov_b32 s74, %d' % (16 * 1024))
    k.I('s_mov_b32 s75, %d' % (32 * 1024))
    k.label('L_a_pstd2')
    k.I('s_mov_b32 s20, s16')
    k.I('s_mov_b32 s21, s17')
    k.I('s_mov_b32 s22, s18')
    k.I('s_lshl_b32 s48, s37, 16')
    k.I('s_lshl_b32 s49, s69, 7')
    k.I('s_add_u32 s48, s48, s49')
    k.I('s_add_u32 s49, s48, %d' % (32 * 1024))
    k.label('L_a_pgo')
    k.I('s_mov_b32 s51, s72')
    k.I('s_add_u32 s52, s72, s73')
    k.I('s_add_u32 s53, s72, s74')
    k.I('s_add_u32 s54, s52, s74')
    for f in range(4):
        k.I('s_add_u32 %s, %s, s75' % (sr(55 + f), sr(51 + f)))


if __name__ == '__main__':
    n = int(sys.argv[2]) if len(sys.argv) > 2 else 4
    gen1.STAMPS = len(sys.argv) > 3 and sys.argv[3] == 'stamps'
    for o in sys.argv[4:]:
        if '=' in o:
            kk_, vv_ = o.split('=')
            gen1.OPT[kk_] = tuple(int(x) for x in vv_.split(','))
        else:
            gen1.OPT[o] = True
    gens = [('qkv_kernel', gen_a8), ('attn_kernel', gen_k2), ('gateup_kernel', gen_k3), ('down_kernel', gen_k4)]
    ks = []
    for label, g in gens[:n]:
        kk, cc = g()
        ks.append((label, kk, cc))
        print(label, kk.stats(), kk.maxreg())
    open(sys.argv[1], 'w').write(wrap(ks))
```

```python
import sys
from asmgen import Kernel
import gen1
from gen1 import *
from gen2 import Sched, xhalf_ops
from gen3 import emit
import gen4
from gen4 import gen_a8


def STP():
    return '' if OPT.get('stplain') else ' sc1'


def LSC():
    return '' if OPT.get('ldplain') else ' sc1'


def sync_arrive(k, s_wave, ws, vt, s_arr, name):
    k.I('s_barrier')
    k.raw("""    s_cmp_lg_u32 s%d, 0
    s_cbranch_scc1 %s_noarr
    v_lshlrev_b32 v%d, 7, v1
    v_mov_b32 v%d, 1
    s_mov_b64 exec, 0xffff
    buffer_store_dword v%d, v%d, %s, s%d offen sc1
    s_nop 0
    s_mov_b64 exec, -1
%s_noarr:""" % (s_wave, name, vt, vt + 1, vt + 1, vt, ws, s_arr, name))


def sync_wait(k, name, s_cnt, s_wave, ws, vt, bg, nbatch=4):
    k.raw("""    s_cmp_lg_u32 s%d, 0
    s_cselect_b32 s59, 1, 0
    v_and_b32 v%d, 15, v1
    v_lshlrev_b32 v%d, 2, v%d""" % (s_wave, vt, vt, vt))
    vm = [i for i, o in enumerate(bg) if (isinstance(o, tuple) or o.startswith('buffer_'))]
    per = -(-len(vm) // nbatch)
    cuts = [0] + [vm[min(len(vm) - 1, per * (b + 1) - 1)] + 1 for b in range(nbatch)]
    cuts[-1] = len(bg)
    check = """    v_cmp_eq_u32 vcc, 1, v%d
    s_nop 4
    s_cmp_eq_u64 vcc, exec
    s_cselect_b32 s59, 1, 0""" % (vt + 1)
    for b in range(nbatch):
        batch = bg[cuts[b]:cuts[b + 1]]
        nv = sum(1 for o in batch if (isinstance(o, tuple) or o.startswith('buffer_')))
        k.raw("""    s_cmp_lg_u32 s59, 0
    s_cbranch_scc1 %s_np%d
    buffer_load_dword v%d, v%d, %s, s%d offen sc1
%s_np%d:""" % (name, b, vt + 1, vt, ws, s_cnt, name, b))
        for o in batch:
            emit(k, o)
        k.raw("""    s_cmp_lg_u32 s59, 0
    s_cbranch_scc1 %s_nq%d
    s_waitcnt vmcnt(%d)
%s
%s_nq%d:""" % (name, b, nv, check, name, b))
    k.raw("""    s_mov_b32 s60, 0
%s_spin:
    s_cmp_lg_u32 s59, 0
    s_cbranch_scc1 %s_done
    buffer_load_dword v%d, v%d, %s, s%d offen sc1
    s_waitcnt vmcnt(0)
%s
    s_add_u32 s60, s60, 1
    s_cmp_lt_u32 s60, 0x40000
    s_cbranch_scc1 %s_spin
%s_done:""" % (name, name, vt + 1, vt, ws, s_cnt, check, name, name))
    k.I('s_barrier')


def flag_store(k, s_wave, ws, vt, s_arr, name):
    k.raw("""    s_cmp_lg_u32 s%d, 0
    s_cbranch_scc1 %s_nf
    v_lshlrev_b32 v%d, 7, v1
    v_mov_b32 v%d, 1
    s_mov_b64 exec, 0xffff
    buffer_store_dword v%d, v%d, %s, s%d offen sc1
    s_nop 0
    s_mov_b64 exec, -1
%s_nf:""" % (s_wave, name, vt, vt + 1, vt + 1, vt, ws, s_arr, name))


_pi = [0]


def poll_issue(k, s_wave, ws, vt, s_cnt):
    _pi[0] += 1
    k._poll_mark = len(k.items)
    k.raw("""    s_cmp_lg_u32 s%d, 0
    s_cbranch_scc1 L_f_pi%d
    v_and_b32 v%d, 15, v1
    v_lshlrev_b32 v%d, 2, v%d
    buffer_load_dword v%d, v%d, %s, s%d offen sc1
L_f_pi%d:""" % (s_wave, _pi[0], vt, vt, vt, vt + 1, vt, ws, s_cnt, _pi[0]))


def poll_check_spin(k, name, s_wave, ws, vt, s_cnt):
    from asmgen import Ins
    nyoung = sum(1 for it in k.items[k._poll_mark:] if isinstance(it, Ins) and it.vm)
    k.raw("""    s_cmp_lg_u32 s%d, 0
    s_cbranch_scc1 %s_done
    s_mov_b32 s60, 0
    s_waitcnt vmcnt(%d)
    s_branch %s_tst
%s_chk:
    s_waitcnt vmcnt(0)
%s_tst:
    v_cmp_eq_u32 vcc, 1, v%d
    s_nop 4
    s_cmp_eq_u64 vcc, exec
    s_cbranch_scc1 %s_done
    buffer_load_dword v%d, v%d, %s, s%d offen sc1
    s_add_u32 s60, s60, 1
    s_cmp_lt_u32 s60, 0x40000
    s_cbranch_scc1 %s_chk
    s_waitcnt vmcnt(0)
%s_done:""" % (s_wave, name, min(nyoung, 63), name, name, name, vt + 1, name, vt + 1, vt, ws, s_cnt, name, name))


def merge(k, main, bg, first=0, last=None):
    if last is None:
        last = len(main)
    ib = 0
    for i, o in enumerate(main):
        if isinstance(o, (str, tuple)):
            emit(k, o)
        else:
            k.items.append(o)
        if first <= i < last:
            upto = len(bg) * (i - first + 1) // (last - first)
            while ib < upto:
                emit(k, bg[ib]); ib += 1
    while ib < len(bg):
        emit(k, bg[ib]); ib += 1


def gen_bcd():
    k = Kernel('bcd_kernel')
    WS, XS, OS = 4, 8, 12
    ws = sr(WS, 4)
    k.I('s_cmp_ge_u32 s2, 256')
    k.I('s_cbranch_scc1 L_f_end')
    load_srds(k, [('ws', WS), ('x', XS), ('out', OS)])
    st = Stamper(k, 2, ws, base=86, tmp=66); st.stamp(True); st.stamp()
    if OPT.get('dbgt'):
        k.I('s_memrealtime s[90:91]')
        k.I('s_load_dwordx2 s[96:97], s[0:1], %d' % KA['dbg'])
    k.I('v_and_b32 v1, 63, v0')
    k.I('v_lshrrev_b32 v2, 6, v0')
    k.I('v_readfirstlane_b32 s16, v2')
    k.I('v_lshlrev_b32 v2, 4, v1')
    k.I('v_add_u32 v3, 4096, v2')
    k.I('s_and_b32 s24, s2, 7')
    k.I('s_lshr_b32 s25, s2, 3')
    if not OPT.get('nocode2'):
        k.I('s_getpc_b64 s[64:65]')
        k.label('L_f_pc')
        k.I('s_sub_u32 s64, s64, L_f_pc-bcd_kernel')
        k.I('s_subb_u32 s65, s65, 0')
        k.I('s_lshl_b32 s26, s25, 2')
        k.I('s_add_u32 s26, s26, s16')
        k.I('s_lshl_b32 s26, s26, 9')
        k.I('v_lshlrev_b32 v8, 3, v1')
        k.I('v_add_u32 v8, s26, v8')
        k.I('v_min_u32 v8, L_text_end-bcd_kernel-4, v8')
        k.I('global_load_dword v30, v8, s[64:65]')
    if OPT.get('rowmap'):
        k.I('s_lshl_b32 s17, s24, 1')
        k.I('s_lshr_b32 s26, s25, 4')
        k.I('s_add_u32 s17, s17, s26')
        k.I('s_and_b32 s18, s25, 15')
        k.I('s_lshl_b32 s19, s17, 1')
        k.I('s_lshr_b32 s26, s18, 3')
        k.I('s_add_u32 s19, s19, s26')
        k.I('s_and_b32 s20, s18, 7')
    else:
        k.I('s_and_b32 s17, s24, 1')
        k.I('s_lshl_b32 s17, s17, 3')
        k.I('s_and_b32 s26, s25, 7')
        k.I('s_add_u32 s17, s17, s26')
        k.I('s_lshr_b32 s18, s24, 1')
        k.I('s_lshl_b32 s18, s18, 2')
        k.I('s_lshr_b32 s26, s25, 3')
        k.I('s_add_u32 s18, s18, s26')
        k.I('s_lshl_b32 s19, s24, 2')
        k.I('s_and_b32 s26, s25, 3')
        k.I('s_add_u32 s19, s19, s26')
        k.I('s_lshr_b32 s20, s25, 2')
    k.I('s_lshl_b32 s21, s19, 1')
    k.I('s_and_b32 s26, s16, 1')
    k.I('s_add_u32 s21, s21, s26')
    k.I('s_lshl_b32 s22, s20, 1')
    k.I('s_lshr_b32 s26, s16, 1')
    k.I('s_add_u32 s22, s22, s26')
    k.I('s_lshl_b32 s23, s17, 2')
    k.I('s_add_u32 s23, s23, s16')
    k.I('s_lshl_b32 s27, s16, 3')
    k.I('s_lshl_b32 s28, s19, 6')
    k.I('s_add_u32 s28, s28, s27')
    k.I('s_lshl_b32 s28, s28, 10')
    k.I('s_add_u32 s28, s28, 0x%x' % OFF_PQ)
    k.I('s_and_b32 s26, s16, 1')
    k.I('s_lshl_b32 s26, s26, 15')
    k.I('s_add_u32 s29, s28, 32768')
    k.I('s_sub_u32 s29, s29, s26')
    k.I('s_add_u32 s28, s28, s26')
    k.I('s_lshl_b32 s30, s27, 4')
    k.I('s_lshl_b32 s26, s20, 1')
    k.I('s_add_u32 s30, s30, s26')
    k.I('s_lshl_b32 s30, s30, 10')
    k.I('s_add_u32 s30, s30, 0x%x' % OFF_WO)
    k.I('s_lshr_b32 s26, s16, 1')
    k.I('s_lshl_b32 s26, s26, 10')
    k.I('s_add_u32 s64, s30, 1024')
    k.I('s_sub_u32 s64, s64, s26')
    k.I('s_add_u32 s30, s30, s26')
    k.I('s_lshl_b32 s31, s27, 11')
    k.I('s_add_u32 s31, s31, 0x%x' % OFF_KVZ)
    k.I('v_and_b32 v4, 31, v1')
    k.I('v_min_u32 v5, 16, v4')
    k.I('v_lshrrev_b32 v6, 5, v1')
    k.I('v_mul_u32_u24 v7, 17, v6')
    k.I('v_add_u32 v5, v5, v7')
    k.I('v_lshlrev_b32 v5, 4, v5')
    k.I('s_waitcnt lgkmcnt(0)')

    KV = 128
    A_PQ, A_WO = 96, 160
    ACC = 192
    XR = 56

    def b_loads(t):
        ops = ['s_add_u32 s38, s31, %d' % (t * 2048),
               'buffer_load_dwordx4 %s, v5, %s, s38 offen' % (vr(KV + 8 * t, 4), ws),
               'buffer_load_dwordx4 %s, v5, %s, s38 offen offset:544' % (vr(KV + 8 * t + 4, 4), ws)]
        for r in range(2):
            ops.append('buffer_load_dwordx4 %s, %s, %s, %s offen offset:%d' % (
                ar(A_PQ + (t * 2 + r) * 4, 4), 'v2' if t < 4 else 'v3', ws, 's28' if r == 0 else 's29', (t % 4) * 1024))
        ops.append('s_add_u32 s39, s30, %d' % (t * 16384))
        ops.append('s_add_u32 s65, s64, %d' % (t * 16384))
        for n in range(2):
            ops.append('buffer_load_dwordx4 %s, v2, %s, %s offen' % (ar(A_WO + (t * 2 + n) * 4, 4), ws, 's39' if n == 0 else 's65'))
        return ops
    PD = OPT.get('pd', (3,))[0]
    for t in range(PD):
        for o in b_loads(t):
            k.I(o)
    k.I('s_lshl_b32 s32, s21, 15')
    k.I('s_lshl_b32 s26, s22, 6')
    k.I('s_add_u32 s32, s32, s26')
    k.I('v_lshlrev_b32 v7, 10, v4')
    k.I('v_lshlrev_b32 v8, 3, v6')
    k.I('v_add_u32 v7, v7, v8')
    k.I('s_mul_i32 s33, s18, %d' % (7 * 32768))
    k.I('s_lshl_b32 s34, s16, 13')
    k.I('s_add_u32 s33, s33, s34')
    k.I('s_add_u32 s33, s33, 0x%x' % OFF_WGU)
    k.I('s_mul_i32 s35, s16, %d' % (28 * 1024))
    k.I('s_mul_i32 s36, s20, %d' % (2 * 112 * 1024))
    k.I('s_add_u32 s36, s36, s35')
    k.I('s_add_u32 s36, s36, 0x%x' % OFF_WD)
    k.I('s_lshr_b32 s26, s16, 1')
    k.I('s_mul_i32 s26, s26, %d' % (112 * 1024))
    k.I('s_add_u32 s37, s36, %d' % (112 * 1024))
    k.I('s_sub_u32 s37, s37, s26')
    k.I('s_add_u32 s36, s36, s26')
    k.I('s_mul_i32 s50, s19, %d' % (2 * 112 * 1024))
    k.I('s_add_u32 s50, s50, s35')
    k.I('s_add_u32 s50, s50, 0x%x' % OFF_ACT)
    k.I('s_and_b32 s26, s16, 1')
    k.I('s_mul_i32 s26, s26, %d' % (112 * 1024))
    k.I('s_add_u32 s51, s50, %d' % (112 * 1024))
    k.I('s_sub_u32 s51, s51, s26')
    k.I('s_add_u32 s50, s50, s26')
    for q in range(4):
        if OPT.get('drot'):
            k.I('s_add_u32 s26, s20, %d' % q)
            k.I('s_and_b32 s26, s26, 3')
            k.I('s_mul_i32 s26, s26, 7168')
        else:
            k.I('s_mov_b32 s26, %d' % (q * 7168))
        k.I('s_add_u32 %s, s36, s26' % sr(70 + q))
        k.I('s_add_u32 %s, s37, s26' % sr(74 + q))
        k.I('s_add_u32 %s, s50, s26' % sr(78 + q))
        k.I('s_add_u32 %s, s51, s26' % sr(82 + q))
    k.I('s_lshl_b32 s44, s17, 4')
    k.I('s_add_u32 s44, s44, s18')
    k.I('s_lshl_b32 s44, s44, 7')
    k.I('s_add_u32 s44, s44, 0x%x' % OFF_CNT)
    k.I('s_and_b32 s26, s19, 1')
    k.I('s_lshl_b32 s26, s26, 3')
    k.I('s_add_u32 s26, s26, s20')
    k.I('s_lshr_b32 s57, s19, 1')
    k.I('s_lshl_b32 s62, s57, 11')
    k.I('s_lshl_b32 s63, s26, 2')
    k.I('s_add_u32 s62, s62, s63')
    k.I('s_add_u32 s62, s62, 0x%x' % OFF_CNT)
    k.I('s_lshl_b32 s57, s57, 4')
    k.I('s_add_u32 s57, s57, s26')
    k.I('s_lshl_b32 s57, s57, 7')
    k.I('s_add_u32 s57, s57, 0x%x' % (OFF_CNT + 32768))
    k.I('s_lshl_b32 s63, s17, 11')
    k.I('s_lshl_b32 s26, s18, 2')
    k.I('s_add_u32 s63, s63, s26')
    k.I('s_add_u32 s63, s63, 0x%x' % (OFF_CNT + 32768))
    CS_LDS = 162816
    k.I('v_mov_b32 v8, 0')
    k.I('v_mov_b32 v9, 0')
    k.I('v_mov_b32 v10, 0')
    k.I('v_mov_b32 v11, 0')
    k.I('v_add_u32 v20, %d, v2' % CS_LDS)
    k.I('ds_write_b128 v20, v[8:11]')
    D1 = [[64, 80], [96, 112]]
    KF = [40, 44]
    OF = [48, 52]
    T = 36

    def stageA(t):
        ops = []
        for j in range(4):
            ops.append('v_cvt_pk_bf16_f32 %s, %s, %s' % (vr(KF[t & 1] + j), vr(KV + 8 * t + 2 * j), vr(KV + 8 * t + 2 * j + 1)))
        for r in range(2):
            ops.append('v_mfma_f32_32x32x16_bf16 %s, %s, %s, 0' % (vr(D1[t & 1][r], 16), vr(KF[t & 1], 4), ar(A_PQ + (t * 2 + r) * 4, 4)))
        return ops

    def stageB(t):
        ops = []
        for r in range(2):
            ops.append('v_add_f32 %s, 0x%x, %s' % (vr(T + r), f2u(1e-6), vr(D1[t & 1][r] + 8)))
        for r in range(2):
            ops.append('v_rcp_f32 %s, %s' % (vr(T + r), vr(T + r)))
        for i in range(8):
            for r in range(2):
                d = D1[t & 1][r]
                ops.append('v_mul_f32 %s, %s, %s' % (vr(d + i), vr(T + r), vr(d + i)))
        for r in range(2):
            d = D1[t & 1][r]
            for j in range(4):
                ops.append('v_cvt_pk_bf16_f32 %s, %s, %s' % (vr(OF[r] + j), vr(d + 2 * j), vr(d + 2 * j + 1)))
        for n in range(2):
            for r in range(2):
                acc = vr(ACC + (n * 2 + r) * 16, 16)
                ops.append('v_mfma_f32_32x32x16_bf16 %s, %s, %s, %s' % (acc, ar(A_WO + (t * 2 + n) * 4, 4), vr(OF[r], 4), acc if t else '0'))
        return ops
    for o in stageA(0):
        k.I(o)
    for t in range(8):
        main = (stageA(t + 1) if t + 1 < 8 else []) + stageB(t)
        bg = b_loads(t + PD) if t + PD < 8 else []
        if t == 7 - min(PD, 2):
            bg = bg + ['buffer_load_dwordx2 %s, v7, %s, s32 offen offset:%d' % (vr(XR + 2 * a, 2), sr(XS, 4), a * 16) for a in range(4)]
        merge(k, main, bg)
    RB = 98304
    red = Kernel('red')
    kmain, k = k, red
    k.I('s_mul_i32 s38, s16, 12288')
    k.I('s_add_u32 s38, s38, %d' % RB)
    k.I('v_add_u32 v10, s38, v2')
    for tp in range(1, 4):
        for q in range(4):
            k.I('ds_write_b128 v10, %s offset:%d' % (vr(ACC + tp * 16 + q * 4, 4), (tp - 1) * 4096 + q * 1024))
    H = ACC
    for tp in range(1, 4):
        k.I('s_xor_b32 s38, s16, %d' % tp)
        k.I('s_mul_i32 s38, s38, 12288')
        k.I('s_add_u32 s38, s38, %d' % (RB + (tp - 1) * 4096))
        k.I('v_add_u32 %s, s38, v2' % vr(40 + tp))
    XU = 64
    for a_ in range(4):
        for b_ in range(2):
            src = XR + 2 * a_ + b_
            k.I('v_lshlrev_b32 %s, 16, %s' % (vr(XU + 4 * a_ + 2 * b_), vr(src)))
            k.I('v_and_b32 %s, 0xffff0000, %s' % (vr(XU + 4 * a_ + 2 * b_ + 1), vr(src)))
    for i in range(16):
        k.I('v_add_f32 %s, %s, %s' % (vr(H + i), vr(H + i), vr(XU + i)))
    k.I('s_waitcnt lgkmcnt(0)')
    k.I('s_barrier')
    for tp in range(1, 4):
        for q in range(4):
            k.I('ds_read_b128 %s, %s offset:%d' % (vr(H + tp * 16 + q * 4, 4), vr(40 + tp), q * 1024))
    for i in range(16):
        k.I('v_add_f32 %s, %s, %s' % (vr(H + i), vr(H + i), vr(H + 16 + i)))
    for i in range(16):
        k.I('v_add_f32 %s, %s, %s' % (vr(H + 32 + i), vr(H + 32 + i), vr(H + 48 + i)))
    for i in range(16):
        k.I('v_add_f32 %s, %s, %s' % (vr(H + i), vr(H + i), vr(H + 32 + i)))
    HP = 12
    for j in range(8):
        k.I('v_cvt_pk_bf16_f32 %s, %s, %s' % (vr(HP + j), vr(H + 2 * j), vr(H + 2 * j + 1)))
    k.I('s_lshl_b32 s38, s21, 5')
    k.I('s_lshl_b32 s39, s22, 1')
    k.I('s_add_u32 s38, s38, s39')
    k.I('s_lshl_b32 s38, s38, 10')
    k.I('s_add_u32 s38, s38, 0x%x' % OFF_H)
    k.I('buffer_store_dwordx4 %s, v2, %s, s38 offen%s' % (vr(HP, 4), ws, STP()), w=['hst'])
    k.I('buffer_store_dwordx4 %s, v2, %s, s38 offen offset:1024%s' % (vr(HP + 4, 4), ws, STP()), w=['hst'])
    k.I('v_add_f32 v36, %s, %s' % (vr(H), vr(H + 1)))
    k.I('v_mul_f32 v37, %s, %s' % (vr(H), vr(H)))
    k.I('v_fmac_f32 v37, %s, %s' % (vr(H + 1), vr(H + 1)))
    for i in range(2, 16):
        k.I('v_add_f32 v36, v36, %s' % vr(H + i))
        k.I('v_fmac_f32 v37, %s, %s' % (vr(H + i), vr(H + i)))
    for o in xhalf_ops(36, 38) + xhalf_ops(37, 38):
        k.I(o)
    k.I('s_lshl_b32 s38, s22, 14')
    k.I('s_lshl_b32 s39, s21, 8')
    k.I('s_add_u32 s38, s38, s39')
    k.I('s_add_u32 s38, s38, 0x%x' % OFF_STAT)
    k.I('v_lshlrev_b32 v38, 3, v4')
    k.I('buffer_store_dwordx2 v[36:37], v38, %s, s38 offen%s' % (ws, STP()), w=['hst'])
    k = kmain
    REDITEMS = red.items

    def dma(soff, sm0, name):
        ops = []
        for hf in range(2):
            ops.append('s_add_u32 m0, %s, %d' % (sr(sm0), hf * 4096))
            ops.append('s_add_u32 s40, %s, %d' % (sr(soff), hf * 4096))
            for t in range(4):
                ops.append(('buffer_load_dwordx4 v2, %s, s40 offen offset:%d lds' % (ws, t * 1024), name))
        return ops

    def d_ks(f):
        if f < 12:
            return (f // 3) * 7 + f % 3
        if f < 20:
            return ((f - 12) // 2) * 7 + 3 + (f - 12) % 2
        return ((f - 20) // 2) * 7 + 5 + (f - 20) % 2

    def d_qc(f):
        ks = d_ks(f)
        return ks // 7, ks % 7

    def wd_loads(f_list):
        ops = []
        for f in f_list:
            q, c = d_qc(f)
            for n in range(2):
                ops.append('buffer_load_dwordx4 %s, %s, %s, %s offen offset:%d' % (
                    ar((f * 2 + n) * 4, 4), 'v2' if c < 4 else 'v3', ws, sr(70 + 4 * n + q), (c % 4) * 1024))
        return ops
    CSV = 128
    NWD0 = OPT.get('nwd0', (14,))[0]
    pre0 = ['s_mov_b32 s42, s34'] + dma(33, 42, 'W0')
    pre0 += ['s_add_u32 s43, s33, 32768', 's_add_u32 s42, s34, 32768'] + dma(43, 42, 'W1')
    pre1 = ['s_mul_i32 s66, s18, %d' % (7 * 128), 's_mul_i32 s39, s16, %d' % (4 * 112 * 128), 's_add_u32 s66, s66, s39',
            's_add_u32 s66, s66, 0x%x' % OFF_CSG]
    for kg in range(4):
        pre1 += ['s_add_u32 s39, s66, %d' % (kg * 112 * 128), 'buffer_load_dwordx4 %s, v2, %s, s39 offen' % (vr(CSV + 4 * kg, 4), ws)]
    pre1 += ['s_add_u32 s43, s33, 65536', 's_add_u32 s42, s34, 65536'] + dma(43, 42, 'W2')
    merge(k, REDITEMS, pre0 if not OPT.get('nopre0') else [], first=0, last=len(REDITEMS) - 30)
    if OPT.get('nopre0'):
        for o in pre0:
            emit(k, o)
    for o in pre1:
        emit(k, o)
    k.need('hst')
    sync_arrive(k, 16, ws, 36, 62, 'L_f_s1')
    for j in range(4):
        k.I('v_add_f32 %s, %s, %s' % (vr(CSV + j), vr(CSV + j), vr(CSV + 4 + j)))
        k.I('v_add_f32 %s, %s, %s' % (vr(CSV + 8 + j), vr(CSV + 8 + j), vr(CSV + 12 + j)))
    for j in range(4):
        k.I('v_add_f32 %s, %s, %s' % (vr(CSV + j), vr(CSV + j), vr(CSV + 8 + j)))
    for j in range(4):
        k.I('ds_add_f32 v20, %s offset:%d' % (vr(CSV + j), 4 * j))
    bg2 = wd_loads(range(0, NWD0))
    sync_wait(k, 'L_f_s1', 44, 16, ws, 36, bg2)
    st.stamp()

    X = 128
    for t in range(2, 8):
        k.I('v_add_u32 %s, %d, v2' % (vr(20 + t), 4096 * t))
    VOF = [2, 3] + [20 + t for t in range(2, 8)]
    k.I('s_lshl_b32 s45, s23, 15')
    k.I('s_add_u32 s45, s45, 0x%x' % OFF_H)

    def xload(ks):
        return 'buffer_load_dwordx4 %s, %s, %s, s45 offen offset:%d%s' % (vr(X + 4 * ks, 4), vr(VOF[ks // 4]), ws, (ks % 4) * 1024, LSC())
    XD = OPT.get('xd', (14,))[0]
    for ks in range(XD):
        k.I(xload(ks))
    SP = 104
    k.I('v_lshlrev_b32 v21, 3, v4')
    k.I('v_lshlrev_b32 v28, 17, v6')
    k.I('v_add_u32 v21, v21, v28')
    k.I('s_lshl_b32 s46, s23, 8')
    k.I('s_add_u32 s46, s46, 0x%x' % OFF_STAT)
    stl = []
    for t in range(8):
        stl.append('s_add_u32 s47, s46, %d' % (t * 16384))
        stl.append('buffer_load_dwordx2 %s, v21, %s, s47 offen%s' % (vr(SP + 2 * t, 2), ws, LSC()))
    k.I('s_mul_i32 s48, s23, 112')
    k.I('s_mul_i32 s47, s18, 7')
    k.I('s_add_u32 s48, s48, s47')
    k.I('s_lshl_b32 s48, s48, 10')
    k.I('s_add_u32 s48, s48, 0x%x' % OFF_ACT)
    k.I('v_add_u32 v8, 0x10000, v2')
    k.I('v_lshlrev_b32 v10, 4, v6')
    k.I('v_add_u32 v10, %d, v10' % CS_LDS)
    ACCC = [32, 48]
    D, L = 8, 6
    WR = 224
    CSR = 64
    T = 80
    MEAN, RSTD, NMEAN, NA, A2 = 120, 121, 122, 123, 124

    def wread(c, ks):
        slot = c % 4
        return 'ds_read_b128 %s, %s offset:%d' % (ar(WR + (ks % D) * 4, 4), 'v2' if slot < 2 else 'v8', (slot % 2) * 32768 + ks * 1024)

    def epilogue_ops(S, c):
        ops = []
        for q in range(4):
            ops.append('ds_read_b128 %s, v10 offset:%d' % (vr(CSR + 4 * q, 4), c * 128 + q * 32))
        pre = len(ops)
        for i0 in range(0, 8, 2):
            a = []
            for u, i in enumerate((i0, i0 + 1)):
                t = T + u * 4
                a.append([
                    'v_fma_f32 %s, %s, %s, %s' % (vr(t), vr(NMEAN), vr(CSR + i), vr(S + i)),
                    'v_fma_f32 %s, %s, %s, %s' % (vr(t + 1), vr(NMEAN), vr(CSR + 8 + i), vr(S + 8 + i)),
                    'v_mul_f32 %s, %s, %s' % (vr(t + 2), vr(NA), vr(t)),
                    'v_exp_f32 %s, %s' % (vr(t + 2), vr(t + 2)),
                    'v_mul_f32 %s, %s, %s' % (vr(t), vr(t), vr(t + 1)),
                    'v_add_f32 %s, 1.0, %s' % (vr(t + 2), vr(t + 2)),
                    'v_rcp_f32 %s, %s' % (vr(t + 2), vr(t + 2)),
                    'v_mul_f32 %s, %s, %s' % (vr(t), vr(A2), vr(t)),
                    'v_mul_f32 %s, %s, %s' % (vr(T + 8 + i), vr(t), vr(t + 2)),
                ])
            for x, y in zip(a[0], a[1]):
                ops += [x, y]
            ops.append('v_cvt_pk_bf16_f32 %s, %s, %s' % (vr(T + 16 + i0 // 2), vr(T + 8 + i0), vr(T + 8 + i0 + 1)))
        ops.append('s_add_u32 s49, s48, %d' % (c * 1024))
        ops.append(('buffer_store_dwordx4 %s, v2, %s, s49 offen%s' % (vr(T + 16, 4), ws, STP()), 'ast%d' % c))
        return ops, pre

    wd_plan = {}
    rest = list(range(NWD0, 28))
    wts = list(OPT.get('wts', (1, 1, 1, 2, 2, 0)))
    tot = sum(wts); acc_ = 0; pos = 0
    for c, wgt in zip(range(1, 7), wts):
        acc_ += wgt
        upto = len(rest) * acc_ // tot
        wd_plan[c] = rest[pos:upto]; pos = upto

    def refill(c):
        return ['s_add_u32 s43, s33, %d' % (c * 32768), 's_add_u32 s42, s34, %d' % ((c % 4) * 32768)] + dma(43, 42, 'W%d' % c)

    def is_vm(o):
        return isinstance(o, tuple) or o.startswith('buffer_')

    def place(fill, ops, lo, hi):
        groups, cur = [], []
        for o in ops:
            cur.append(o)
            if is_vm(o):
                groups.append(cur); cur = []
        if cur:
            groups.append(cur)
        for i, g in enumerate(groups):
            fill[lo + i * (hi - lo) // len(groups)] += g

    AD = OPT.get('ad', (8,))[0]
    AR, NR = 128, AD + 2

    def act_load(f):
        q, c = d_qc(f)
        ops = []
        for r in range(2):
            ops.append('buffer_load_dwordx4 %s, %s, %s, %s offen offset:%d%s' % (
                vr(AR + ((f % NR) * 2 + r) * 4, 4), 'v2' if c < 4 else 'v3', ws, sr(78 + 4 * r + q), (c % 4) * 1024, LSC()))
        return ops
    DACC = [32, 48, 64, 80]

    def d_mfmas(f):
        mm = []
        for n in range(2):
            for r in range(2):
                acc = vr(DACC[n * 2 + r], 16)
                mm.append('v_mfma_f32_32x32x16_bf16 %s, %s, %s, %s' % (
                    acc, ar((f * 2 + n) * 4, 4), vr(AR + ((f % NR) * 2 + r) * 4, 4), acc if f else '0'))
        return mm

    carry = []

    def body(c):
        nonlocal carry
        S_ = ACCC[c & 1]
        fill = [[] for _ in range(32)]
        post = []
        if c == 0:
            for ks in range(XD, 32):
                fill[ks - XD].append(xload(ks))
            for i, o in enumerate(stl):
                fill[20 + i // 4].append(o)
            for t in range(1, 8):
                post.append('v_add_f32 %s, %s, %s' % (vr(SP), vr(SP), vr(SP + 2 * t)))
                post.append('v_add_f32 %s, %s, %s' % (vr(SP + 1), vr(SP + 1), vr(SP + 2 * t + 1)))
            post += xhalf_ops(SP, SP + 2) + xhalf_ops(SP + 1, SP + 2)
            post += ['v_mul_f32 %s, 0x%x, %s' % (vr(MEAN), f2u(1.0 / 512), vr(SP)),
                     'v_mul_f32 %s, 0x%x, %s' % (vr(SP + 1), f2u(1.0 / 512), vr(SP + 1)),
                     'v_fma_f32 %s, -%s, %s, %s' % (vr(SP + 1), vr(MEAN), vr(MEAN), vr(SP + 1)),
                     'v_max_f32 %s, 0, %s' % (vr(SP + 1), vr(SP + 1)),
                     'v_add_f32 %s, 0x%x, %s' % (vr(SP + 1), f2u(1e-5), vr(SP + 1)),
                     'v_rsq_f32 %s, %s' % (vr(RSTD), vr(SP + 1)),
                     'v_sub_f32 %s, 0, %s' % (vr(NMEAN), vr(MEAN)),
                     'v_mul_f32 %s, 0x%x, %s' % (vr(NA), f2u(-LOG2E), vr(RSTD)),
                     'v_mul_f32 %s, %s, %s' % (vr(A2), vr(RSTD), vr(RSTD))]
        else:
            ops, pre = epilogue_ops(ACCC[1 - (c & 1)], c - 1)
            fill[0] = ops[:pre]
            rest = ops[pre:]
            tailops = rest[-2:]
            rest = rest[:-2]
            vmops = list(carry) + wd_loads(wd_plan[c])
            carry = []
            groups, cur = [], []
            for o in vmops:
                cur.append(o)
                if is_vm(o):
                    groups.append(cur); cur = []
            lo, hi = 1, 27
            vhi = 17 if c >= 5 else hi
            nslots = vhi - lo
            nv = min(len(groups), nslots - (OPT.get('minv', (15,))[0] if c < 5 else 4))
            vslots = sorted(set(lo + (2 * i + 1) * nslots // (2 * nv) for i in range(nv))) if nv else []
            for i, g in enumerate(groups):
                fill[vslots[i * len(vslots) // len(groups)]] += g
            free = [x for x in range(3, hi) if x not in vslots]
            for i, o in enumerate(rest):
                fill[free[i * len(free) // len(rest)]].append(o)
            last = max(free[-1], 26)
            fill[last if last not in vslots else 26] += tailops
        for ks in range(32):
            TW = OPT.get('tw', (2,))[0]
            if ks % TW == 0:
                k.touch(ar(WR + ((min(31, ks + TW - 1)) % D) * 4, 4))
            k.I('v_mfma_f32_32x32x16_bf16 %s, %s, %s, %s' % (
                vr(S_, 16), ar(WR + (ks % D) * 4, 4), vr(X + 4 * ks, 4), vr(S_, 16) if ks else '0'))
            if ks == 32 - L and c < 6:
                k.need('W%d' % (c + 1))
                if c == 4:
                    k.need('ast0', 'ast1', 'ast2')
                k.I('s_barrier')
                if c == 4:
                    flag_store(k, 16, ws, 28, 63, 'L_f_fa')
                if c + 3 <= 6:
                    r = refill(c + 3)
                    for o in r[:2 + 2 + 4]:
                        fill[ks].append(o) if not is_vm(o) else None
                    first4 = [o for o in r[4:8]]
                    for i, o in enumerate(first4):
                        fill[ks + 1 + i].append(o)
                    carry = r[8:]
            if c == 6 and ks == 10:
                k.need('ast3', 'ast4')
                k.I('s_barrier')
                k.I('s_add_u32 s63, s63, 32768')
                flag_store(k, 16, ws, 28, 63, 'L_f_fb')
            if c == 6 and ks == 27:
                poll_check_spin(k, 'L_f_sa', 16, ws, 28, 57)
                k.I('s_barrier')
            if c == 6 and ks >= 27:
                for o in act_load(ks - 27):
                    k.I(o)
            if ks + L < 32:
                k.I(wread(c, ks + L))
            elif c < 6:
                k.I(wread(c + 1, ks + L - 32))
            for o in fill[ks]:
                if OPT.get('noepi') and isinstance(o, str) and o.startswith('v_') and c > 0: continue
                if OPT.get('novm') and c > 0 and is_vm(o) and not (isinstance(o, tuple) and o[1].startswith('ast')): continue
                emit(k, o)
            if c == 6 and ks == 14:
                poll_issue(k, 16, ws, 28, 57)
        for o in post:
            emit(k, o)

    k.need('W0')
    k.I('s_waitcnt lgkmcnt(0)')
    k.I('s_barrier')
    for n in range(L):
        k.I(wread(0, n))
    body(0)
    st.stamp()
    for c in range(1, 7):
        body(c)
        if c in OPT.get('bat', ()): st.stamp()
    st.stamp()
    ops, pre = epilogue_ops(ACCC[0], 6)
    for o in ops:
        emit(k, o)
    for o in act_load(5) + act_load(6) + act_load(7):
        k.I(o)

    k.need('ast5', 'ast6')
    k.I('s_barrier')
    k.I('s_add_u32 s63, s63, 32768')
    flag_store(k, 16, ws, 28, 63, 'L_f_fc')
    k.I('s_add_u32 s57, s57, 32768')
    PL = OPT.get('plead', (3,))[0]
    for f in range(28):
        nxt = f + AD
        if nxt in (12, 20):
            poll_check_spin(k, 'L_f_s%d' % nxt, 16, ws, 28, 57)
            k.I('s_barrier')
            k.I('s_add_u32 s57, s57, 32768')
        merge(k, d_mfmas(f), act_load(nxt) if nxt < 28 else [])
        if nxt + PL in (12, 20) or (f == 0 and 12 - AD - PL <= 0 and False):
            poll_issue(k, 16, ws, 28, 57)
    st.stamp()
    k.I('s_mul_i32 s38, s16, 12288')
    k.I('v_add_u32 v10, s38, v2')
    for tp in range(1, 4):
        for q in range(4):
            k.I('ds_write_b128 v10, %s offset:%d' % (vr(DACC[tp] + q * 4, 4), (tp - 1) * 4096 + q * 1024))
    for tp in range(1, 4):
        k.I('s_xor_b32 s38, s16, %d' % tp)
        k.I('s_mul_i32 s38, s38, 12288')
        k.I('s_add_u32 s38, s38, %d' % ((tp - 1) * 4096))
        k.I('v_add_u32 %s, s38, v2' % vr(20 + tp))
    O = DACC[0]
    for j in range(8):
        k.I('v_lshlrev_b32 %s, 16, %s' % (vr(96 + 2 * j), vr(HP + j)))
        k.I('v_and_b32 %s, 0xffff0000, %s' % (vr(96 + 2 * j + 1), vr(HP + j)))
    for i in range(16):
        k.I('v_add_f32 %s, %s, %s' % (vr(O + i), vr(O + i), vr(96 + i)))
    k.I('s_waitcnt lgkmcnt(0)')
    k.I('s_barrier')
    for tp in range(1, 4):
        for q in range(4):
            k.I('ds_read_b128 %s, %s offset:%d' % (vr(DACC[tp] + q * 4, 4), vr(20 + tp), q * 1024))
    for i in range(16):
        k.I('v_add_f32 %s, %s, %s' % (vr(O + i), vr(O + i), vr(DACC[1] + i)))
    for i in range(16):
        k.I('v_add_f32 %s, %s, %s' % (vr(DACC[2] + i), vr(DACC[2] + i), vr(DACC[3] + i)))
    for i in range(16):
        k.I('v_add_f32 %s, %s, %s' % (vr(O + i), vr(O + i), vr(DACC[2] + i)))
    P = 96
    for j in range(8):
        k.I('v_cvt_pk_bf16_f32 %s, %s, %s' % (vr(P + j), vr(O + 2 * j), vr(O + 2 * j + 1)))
    for a in (0, 2):
        b = P + 2 * a
        k.I('v_permlane32_swap_b32 %s, %s' % (vr(b), vr(b + 2)))
        k.I('v_permlane32_swap_b32 %s, %s' % (vr(b + 1), vr(b + 3)))
    k.I('v_lshlrev_b32 v8, 10, v4')
    k.I('v_lshlrev_b32 v9, 4, v6')
    k.I('v_add_u32 v8, v8, v9')
    opol = ' sc1' if OPT.get('osc1') else (' nt' if OPT.get('ont') else '')
    k.I('buffer_store_dwordx4 %s, v8, %s, s32 offen%s' % (vr(P, 4), sr(OS, 4), opol))
    k.I('buffer_store_dwordx4 %s, v8, %s, s32 offen offset:32%s' % (vr(P + 4, 4), sr(OS, 4), opol))
    st.stamp(); st.stamp(True)
    if OPT.get('xcc'):
        b = st.base + 2 * st.n
        k.I('s_getreg_b32 s%d, hwreg(HW_REG_XCC_ID)' % b)
        k.I('s_getreg_b32 s%d, hwreg(HW_REG_HW_ID)' % (b + 1))
        st.n += 1
    st.flush()
    if OPT.get('dbgt'):
        k.I('s_sub_u32 s96, s96, 512')
        k.I('s_subb_u32 s97, s97, 0')
        k.I('s_mov_b32 s98, 256')
        k.I('s_mov_b32 s99, 0x00020000')
        gen4.dbg_time(k, 96, 90, 11, 16)
    k.label('L_f_end')
    k.I('s_endpgm')
    return k, dict(lds=163840, grid=256, block=256)


if __name__ == '__main__':
    gen1.STAMPS = len(sys.argv) > 2 and sys.argv[2] == 'stamps'
    for o in sys.argv[3:]:
        if '=' in o:
            kk_, vv_ = o.split('=')
            gen1.OPT[kk_] = tuple(int(x) for x in vv_.split(','))
        else:
            gen1.OPT[o] = True
    gens = [('qkv_kernel', gen_a8), ('bcd_kernel', gen_bcd)]
    ks = []
    for label, g in gens:
        kk, cc = g()
        ks.append((label, kk, cc))
        print(label, kk.stats(), kk.maxreg())
    open(sys.argv[1], 'w').write(wrap(ks))
```

```python
import sys
from asmgen import Kernel
import gen1
from gen1 import *
from gen2 import Sched, xhalf_ops
from gen3 import emit, ln_phi_ops


def APOL():
    return ' sc1' if OPT.get('asc1') else (' nt' if OPT.get('ant') else '')


class Multi:
    def __init__(self, parts):
        self.parts = parts
    def finish(self):
        return '\n'.join(p.finish() for p in self.parts)
    def maxreg(self):
        mx = {'v': -1, 'a': -1, 's': -1}
        for p in self.parts:
            m = p.maxreg()
            for t in mx:
                mx[t] = max(mx[t], m[t])
        return mx
    def stats(self):
        return [p.stats() for p in self.parts]


def pair_signal(flag_lds_sgpr, vtmp, vone):
    return ['v_mov_b32 %s, %s' % (vr(vtmp), sr(flag_lds_sgpr)), 'v_mov_b32 %s, 1' % vr(vone),
            'ds_write_b32 %s, %s' % (vr(vtmp), vr(vone))]


def pair_wait(k, name, flag_lds_sgpr, vtmp, vval, stmp):
    k.I('v_mov_b32 %s, %s' % (vr(vtmp), sr(flag_lds_sgpr)))
    k.label(name)
    k.I('ds_read_b32 %s, %s' % (vr(vval), vr(vtmp)))
    k.I('v_readfirstlane_b32 %s, %s' % (sr(stmp), vr(vval)))
    k.I('s_cmp_eq_u32 %s, 0' % sr(stmp))
    k.I('s_cbranch_scc1 %s' % name)


def q_sync(k, name, addr):
    k.I('v_mov_b32 v22, %d' % addr)
    k.I('v_mov_b32 v23, 1')
    k.I('s_mov_b64 exec, 1')
    k.I('ds_add_u32 v22, v23')
    k.I('s_mov_b64 exec, -1')
    k.label(name)
    k.I('ds_read_b32 v23, v22')
    k.I('v_readfirstlane_b32 s79, v23')
    k.I('s_cmp_lt_u32 s79, 4')
    k.I('s_cbranch_scc1 %s' % name)


def gen_a8():
    kp = Kernel('a_pro')
    k = kp
    XS, WQ, WS, PA, PB, DB = 4, 8, 12, 16, 20, 24
    ws = sr(WS, 4)
    k.I('s_cmp_ge_u32 s2, 256')
    k.I('s_cbranch_scc1 L_a_end')
    load_srds(k, [('x', XS), ('wqkv', WQ), ('ws', WS), ('dbg', DB)])
    k.I('s_load_dwordx2 s[40:41], s[0:1], %d' % KA['wo'])
    k.I('s_load_dwordx4 s[44:47], s[0:1], %d' % KA['wg'])
    k.I('s_load_dwordx2 s[42:43], s[0:1], %d' % KA['wd'])
    if gen1.STAMPS:
        k.I('s_memrealtime s[84:85]')
        k.I('s_memtime s[86:87]')
    k.I('v_and_b32 v1, 63, v0')
    k.I('v_lshrrev_b32 v2, 6, v0')
    k.I('v_readfirstlane_b32 s27, v2')
    k.I('s_mov_b32 s39, s27')
    k.I('s_mov_b32 s27, 0x00020000')
    k.I('s_and_b32 s28, s39, 3')
    k.I('s_and_b32 s34, s2, 7')
    k.I('s_lshr_b32 s35, s2, 3')
    k.I('s_and_b32 s32, s34, 3')
    k.I('s_lshl_b32 s32, s32, 3')
    k.I('s_and_b32 s36, s35, 7')
    k.I('s_add_u32 s32, s32, s36')
    k.I('s_lshr_b32 s33, s34, 2')
    k.I('s_lshl_b32 s33, s33, 2')
    k.I('s_lshr_b32 s36, s35, 3')
    k.I('s_add_u32 s33, s33, s36')
    k.I('s_and_b32 s29, s28, 1')
    k.I('s_lshr_b32 s30, s28, 1')
    k.I('s_xor_b32 s31, s29, s30')
    k.I('s_mov_b32 s70, 0x%x' % ONES_BF16)
    k.I('s_mov_b32 s81, 0x%x' % f2u(1e-6))
    if OPT.get('dbgt'):
        k.I('s_memrealtime s[90:91]')
    k.I('s_cmp_ge_u32 s39, 4')
    k.I('s_cbranch_scc1 L_a_q')

    X, WR = 112, 80
    LA = 4
    E = 131072
    E_ST = E
    E_CS = E + 1024
    E_TB = E + 4096
    E_FL = E + 3072
    E_KV = E + 8192
    WSLOT = {('k', 0): 1, ('k', 1): 3, ('k', 2): 5, ('k', 3): 7, ('v', 0): 0, ('v', 1): 1, ('v', 2): 2, ('v', 3): 3,
             ('q', 0): 4, ('q', 1): 5, ('q', 2): 6, ('q', 3): 7}
    XA = 16
    WE, WO_, WE2, WO2 = 12, 13, 14, 15
    MEAN, RSTD, CK, CV, T0 = 2, 3, 4, 5, 6
    LN16 = 7

    def common_setup(k, need_w_addr=True):
        k.I('v_and_b32 v2, 31, v1')
        k.I('s_lshl_b32 s37, s29, 5')
        k.I('v_add_u32 v2, s37, v2')
        k.I('v_lshlrev_b32 v2, 8, v2')
        k.I('v_lshrrev_b32 v3, 5, v1')
        k.I('v_and_b32 v4, 15, v1')
        k.I('v_xor_b32 v4, v3, v4')
        k.I('v_lshlrev_b32 v4, 4, v4')
        k.I('s_lshl_b32 s37, s31, 5')
        k.I('v_xor_b32 v4, s37, v4')
        for s in range(8):
            k.I('v_xor_b32 v5, %d, v4' % (32 * s))
            k.I('v_add_u32 %s, v2, v5' % vr(XA + s))
        k.I('v_bfe_u32 v4, v1, 2, 2')
        k.I('v_lshl_add_u32 v4, v3, 3, v4')
        k.I('v_lshlrev_b32 v4, 7, v4')
        k.I('v_bfe_u32 v5, v1, 4, 1')
        k.I('v_lshlrev_b32 v5, 1, v5')
        k.I('v_bfe_u32 v6, v1, 1, 1')
        k.I('v_add_u32 v5, v5, v6')
        k.I('s_lshl_b32 s37, s30, 2')
        k.I('v_add_u32 v5, s37, v5')
        k.I('v_bfe_u32 v6, v1, 3, 1')
        k.I('v_lshlrev_b32 v6, 2, v6')
        k.I('v_xor_b32 v5, v5, v6')
        k.I('v_lshlrev_b32 v5, 4, v5')
        k.I('v_and_b32 v6, 1, v1')
        k.I('v_lshlrev_b32 v6, 3, v6')
        k.I('v_add3_u32 v4, v4, v5, v6')
        k.I('s_lshl_b32 s37, s31, 11')
        k.I('v_add_u32 %s, s37, v4' % vr(WE))
        k.I('s_xor_b32 s37, s37, 2048')
        k.I('v_add_u32 %s, s37, v4' % vr(WO_))
        k.I('v_add_u32 %s, 0x10000, %s' % (vr(WE2), vr(WE)))
        k.I('v_add_u32 %s, 0x10000, %s' % (vr(WO2), vr(WO_)))
        k.I('v_bfe_u32 v5, v1, 4, 1')
        k.I('v_and_b32 v6, 1, v1')
        k.I('v_cmp_eq_u32 vcc, v5, v6')
        k.I('v_mov_b32 v5, s70')
        k.I('v_cndmask_b32 v5, 0, v5, vcc')
        for j in range(4):
            k.I('v_accvgpr_write_b32 a%d, v5' % (4 + j))
        k.I('s_lshl_b32 s72, s29, 1')
        k.I('s_add_u32 s73, s72, s30')
        k.I('s_lshl_b32 s73, s73, 8')
        k.I('s_add_u32 s73, s73, %d' % E_ST)
        k.I('s_xor_b32 s74, s73, 256')
        k.I('s_lshl_b32 s75, s30, 1')
        k.I('s_add_u32 s75, s75, s29')
        k.I('s_lshl_b32 s75, s75, 7')
        k.I('s_add_u32 s75, s75, %d' % E_CS)
        k.I('s_xor_b32 s76, s75, 128')
        k.I('s_lshl_b32 s77, s39, 8')
        k.I('s_add_u32 s77, s77, %d' % E_TB)
        k.I('s_lshl_b32 s40, s28, 2')
        k.I('s_add_u32 s40, s40, %d' % E_FL)
        k.I('s_xor_b32 s41, s40, 4')
        k.I('v_and_b32 v0, 31, v1')
        k.I('v_lshlrev_b32 v0, 2, v0')
        k.I('v_and_b32 v26, 16, v1')
        k.I('v_cmp_ne_u32 s[82:83], 0, v26')
        k.I('v_lshlrev_b32 %s, 4, v1' % vr(LN16))

    def xread(n):
        c, s = n // 8, n % 8
        return 'ds_read_b128 %s, %s offset:%d' % (vr(X + 4 * n, 4), vr(XA + s), (c % 2) * 32768)

    def wreads(part, ks):
        c, s = ks // 8, ks % 8
        slot = WSLOT[(part, c)]
        a = ((WE, WO_) if slot < 4 else (WE2, WO2))[s & 1]
        off = (slot % 4) * 16384 + (s & ~1) * 2048
        return ['ds_read_b64_tr_b16 %s, %s offset:%d' % (vr(WR + 4 * s, 2), vr(a), off),
                'ds_read_b64_tr_b16 %s, %s offset:%d' % (vr(WR + 4 * s + 2, 2), vr(a), off + 512)]

    def stats_finish_ops():
        return ['v_lshlrev_b32 v26, 1, v0', 'v_add_u32 v27, s74, v26', 'v_add_u32 v26, s73, v26',
                'ds_read_b64 v[24:25], v26', 'ds_read_b64 v[28:29], v27',
                'v_add_f32 v24, v24, v28', 'v_add_f32 v25, v25, v29',
                'v_mul_f32 %s, 0x%x, v24' % (vr(MEAN), f2u(1.0 / 512)),
                'v_mul_f32 v25, 0x%x, v25' % f2u(1.0 / 512),
                'v_fma_f32 v25, -%s, %s, v25' % (vr(MEAN), vr(MEAN)),
                'v_max_f32 v25, 0, v25', 'v_add_f32 v25, 0x%x, v25' % f2u(1e-5), 'v_rsq_f32 %s, v25' % vr(RSTD)]

    kk = Kernel('a_kv')
    k = kk
    st = Stamper(k, 1, ws, base=88, tmp=40)
    ACK, ACV = 48, 64
    MN, RS = 16, 32
    k.I('s_lshl_b32 s38, s2, 2')
    k.I('s_add_u32 s38, s38, s28')
    k.I('s_mov_b32 s19, 0x00020000')
    k.I('s_mov_b32 s23, 0x00020000')
    if not OPT.get('nocode'):
        k.I('s_getpc_b64 s[34:35]')
        k.label('L_a_pc')
        k.I('s_sub_u32 s34, s34, L_a_pc-qkv_kernel')
        k.I('s_subb_u32 s35, s35, 0')
        k.I('s_lshr_b32 s36, s2, 3')
        k.I('s_lshl_b32 s36, s36, 2')
        k.I('s_add_u32 s36, s36, s28')
        k.I('s_lshl_b32 s36, s36, 10')
        k.I('v_lshlrev_b32 v8, 4, v1')
        k.I('v_add_u32 v8, s36, v8')
        k.I('v_min_u32 v8, L_text_end-qkv_kernel-4, v8')
        k.I('global_load_dword v239, v8, s[34:35]')
    k.I('s_waitcnt lgkmcnt(0)')
    prep_decode(k)
    common_setup(k)
    for j in range(4):
        k.I('v_accvgpr_write_b32 a%d, s70' % j)
    k.I('s_lshl_b32 s37, s33, 2')
    k.I('s_add_u32 s37, s37, s28')
    k.I('s_lshl_b32 s37, s37, 11')
    k.I('s_add_u32 s71, s37, 0x%x' % OFF_KVZ)
    k.I('s_lshl_b32 s78, s33, 2')
    if OPT.get('touch'):
        k.I('s_and_b32 s34, s2, 7')
        k.I('s_lshr_b32 s35, s2, 3')
        k.I('s_and_b32 s36, s34, 3')
        k.I('s_lshl_b32 s36, s36, 19')
        k.I('s_lshl_b32 s37, s35, 14')
        k.I('s_add_u32 s36, s36, s37')
        k.I('s_lshl_b32 s37, s28, 12')
        k.I('s_add_u32 s36, s36, s37')
        k.I('v_lshlrev_b32 v8, 4, v1')
        for t in range(4):
            k.I('buffer_load_dword %s, v8, %s, s36 offen offset:%d' % (vr(220 + t), sr(XS, 4), t * 1024))
        k.I('v_lshrrev_b32 v9, 5, v1')
        k.I('s_movk_i32 s37, 3072')
        k.I('v_mul_lo_u32 v9, v9, s37')
        k.I('v_and_b32 v10, 31, v1')
        k.I('v_lshl_add_u32 v9, v10, 4, v9')
        k.I('s_lshl_b32 s35, s35, 4')
        k.I('s_lshl_b32 s37, s28, 2')
        k.I('s_add_u32 s35, s35, s37')
        k.I('s_mul_i32 s35, s35, 3072')
        k.I('s_lshr_b32 s34, s34, 2')
        k.I('s_lshl_b32 s34, s34, 9')
        k.I('s_add_u32 s35, s35, s34')
        for hh in range(2):
            for p in range(3):
                k.I('s_add_u32 s34, s35, %d' % (hh * 2 * 3072))
                k.I('buffer_load_dword %s, v9, %s, s34 offen offset:%d' % (vr(224 + hh * 3 + p), sr(WQ, 4), p * 1024))
        k.I('v_lshrrev_b32 v10, 3, v1')
        k.I('v_mul_lo_u32 v10, v10, s50')
        k.I('v_and_b32 v9, 7, v1')
        k.I('v_lshl_add_u32 v10, v9, 4, v10')
        k.I('s_lshl_b32 s36, s50, 3')
        k.I('s_mov_b32 s34, s48')
        k.I('s_mov_b32 s35, s49')
        for t in range(4):
            k.I('buffer_load_dword %s, v10, %s, s34 offen' % (vr(230 + t), sr(PA, 4)))
            k.I('buffer_load_dword %s, v10, %s, s35 offen' % (vr(234 + t), sr(PB, 4)))
            k.I('s_add_u32 s34, s34, s36')
            k.I('s_add_u32 s35, s35, s36')
    k.I('v_lshlrev_b32 v8, 2, v1')
    k.I('v_add_u32 v8, %d, v8' % E_FL)
    k.I('v_mov_b32 v9, 0')
    k.I('v_cmp_gt_u32 vcc, 32, v1')
    k.I('s_and_saveexec_b64 s[60:61], vcc')
    k.I('ds_write_b32 v8, v9')
    k.I('s_mov_b64 exec, s[60:61]')
    k.I('s_waitcnt lgkmcnt(0)')
    S = Sched(64)
    GS = [0, 8, 16, 24, 32, 48]
    pre = ['s_barrier']
    for n in range(LA):
        pre += [xread(n)] + wreads('k', n)
    for g in range(1, 6):
        if g == 5 and not OPT.get('oldbar'):
            continue
        S.at(GS[g] - LA - 1, ['s_barrier'])
    if OPT.get('oldbar'):
        S.at(47, ['s_barrier'])
        S.at(62, ['s_barrier'])
    for n in range(64):
        part = 'kv'[n // 32]
        s = n % 8
        m = n + LA
        if m < 64:
            if m == 16:
                S.at(n, ['v_add_u32 %s, 0x10000, %s' % (vr(XA + t), vr(XA + t)) for t in range(8)])
            S.at(n, ([xread(m)] if m < 32 else []) + wreads('kv'[m // 32], m % 32))
        if s % 2 == 0:
            ca = ar(8 + 4 * (n // 32), 4)
            S.at(n, ['v_mfma_f32_16x16x32_bf16 %s, a[4:7], %s, %s' % (ca, vr(WR + 4 * s, 4), '0' if n % 32 == 0 else ca)])

    if not OPT.get('oldbar'):
        S.at(43, ['s_waitcnt lgkmcnt(0)', 's_barrier'])

    def lane_form(dst, a0, tmp):
        return ['v_accvgpr_read_b32 %s, a%d' % (vr(dst), a0), 'v_accvgpr_read_b32 %s, a%d' % (vr(tmp), a0 + 1),
                'v_cndmask_b32 %s, %s, %s, s[82:83]' % (vr(dst), vr(dst), vr(tmp))]
    KOFF = bool(OPT.get('koff'))
    if KOFF:
        S.at(31, lane_form(CK, 8, 27) + ['v_add_u32 v26, s75, v0', 'ds_write_b32 v26, %s' % vr(CK),
                                         's_lshl_b32 s79, s28, 12', 's_add_u32 s79, s79, %d' % E_KV, 'v_add_u32 v27, s79, %s' % vr(LN16)])
        S.at(33, ['ds_write_b128 v27, %s offset:%d' % (vr(ACK + 4 * q, 4), q * 1024) for q in range(4)] + ['s_waitcnt lgkmcnt(0)'])
        S.at(33, ['s_barrier'] + stats_finish_ops() +
             ['v_add_u32 v26, s77, v0', 'ds_write_b32 v26, %s' % vr(MEAN), 'ds_write_b32 v26, %s offset:128' % vr(RSTD),
              'v_lshrrev_b32 v26, 5, v1', 'v_lshlrev_b32 v26, 4, v26', 'v_add_u32 %s, s77, v26' % vr(T0)])
    else:
        S.at(31, lane_form(CK, 8, 27) + ['v_add_u32 v26, s75, v0', 'ds_write_b32 v26, %s' % vr(CK), 's_waitcnt lgkmcnt(0)'])
        S.at(33, ['s_barrier', 'v_add_u32 v26, s76, v0', 'ds_read_b32 v30, v26'] + stats_finish_ops() +
             ['v_add_f32 %s, %s, v30' % (vr(CK), vr(CK)),
              'v_add_u32 v26, s77, v0', 'ds_write_b32 v26, %s' % vr(MEAN), 'ds_write_b32 v26, %s offset:128' % vr(RSTD),
              'v_lshrrev_b32 v26, 5, v1', 'v_lshlrev_b32 v26, 4, v26', 'v_add_u32 %s, s77, v26' % vr(T0)])
    rd = []
    for a in range(4):
        rd.append('ds_read_b128 %s, %s offset:%d' % (vr(MN + 4 * a, 4), vr(T0), a * 32))
        rd.append('ds_read_b128 %s, %s offset:%d' % (vr(RS + 4 * a, 4), vr(T0), 128 + a * 32))
    S.at(34, rd)
    if not KOFF:
        ke = []
        for i in range(0, 16, 2):
            ke += ln_phi_ops([ACK + i, ACK + i + 1], [MN + i, MN + i + 1], [CK, CK], [RS + i, RS + i + 1], [8, 9])
            ke.append('v_cvt_pk_bf16_f32 %s, %s, %s' % (vr(ACK + i // 2), vr(ACK + i), vr(ACK + i + 1)))
        S.spread(36, 61, ke)
    if OPT.get('touch2'):
        tp = ['s_lshr_b32 s35, s2, 3', 's_lshl_b32 s35, s35, 4', 's_lshl_b32 s34, s28, 2', 's_add_u32 s35, s35, s34',
              's_mul_i32 s35, s35, 3072', 's_and_b32 s34, s2, 7', 's_lshr_b32 s34, s34, 2', 's_lshl_b32 s34, s34, 9',
              's_add_u32 s35, s35, s34',
              'v_lshrrev_b32 v9, 5, v1', 'v_mul_u32_u24 v9, 0xc00, v9', 'v_and_b32 v8, 31, v1', 'v_lshl_add_u32 v9, v8, 4, v9']
        for hh in range(2):
            tp.append('s_add_u32 s34, s35, %d' % (hh * 2 * 3072))
            tp.append('buffer_load_dword %s, v9, %s, s34 offen offset:2048' % (vr(64 + hh * 2), sr(WQ, 4)))
            tp.append('buffer_load_dword %s, v9, %s, s34 offen' % (vr(65 + hh * 2), sr(WQ, 4)))
        if OPT.get('touch3'):
            tp += ['v_lshrrev_b32 v9, 3, v1', 'v_mul_lo_u32 v9, v9, s50', 'v_and_b32 v8, 7, v1', 'v_lshl_add_u32 v9, v8, 4, v9',
                   's_lshl_b32 s36, s50, 3', 's_mov_b32 s34, s48', 's_mov_b32 s35, s49']
            for t in range(4):
                tp.append('buffer_load_dword %s, v9, %s, s34 offen' % (vr(68 + t), sr(PA, 4)))
                tp.append('buffer_load_dword %s, v9, %s, s35 offen' % (vr(72 + t), sr(PB, 4)))
                tp.append('s_add_u32 s34, s34, s36')
                tp.append('s_add_u32 s35, s35, s36')
        S.spread(OPT.get('tpos', (1,))[0], OPT.get('tpos', (1,))[0] + 14, tp)
    S.at(46 if OPT.get('oldbar') else 42, ['v_mov_b32 v6, 0', 'buffer_load_dword v11, v6, %s, s78 offen sc1' % sr(DB, 4)])
    pd = ['v_lshrrev_b32 v10, 3, v1', 'v_mul_lo_u32 v10, v10, s50', 'v_and_b32 v6, 7, v1', 'v_lshlrev_b32 v6, 4, v6',
          'v_add_u32 v10, v10, v6', 's_lshl_b32 s80, s50, 3', 's_lshl_b32 s79, s28, 13']
    for t in range(8):
        base = 's48' if t < 4 else 's49'
        pd.append('s_add_u32 m0, s79, %d' % (t * 1024))
        pd.append(('buffer_load_dwordx4 v10, %s, %s offen lds' % (sr(PA if t < 4 else PB, 4), base), 'prep'))
        pd.append('s_add_u32 %s, %s, s80' % (base, base))
    S.spread(OPT.get('ppos', (52,))[0], 63, pd)
    for o in pre:
        emit(k, o)
    st.stamp()
    for n in range(64):
        part, ks = n // 32, n % 32
        acc = vr([ACK, ACV][part], 16)
        if n % 2 == 0:
            k.touch(vr(WR + 4 * ((n + 1) % 8), 4))
            if part == 0:
                k.touch(vr(X + 4 * (ks + 1), 4))
        k.I('v_mfma_f32_32x32x16_bf16 %s, %s, %s, %s' % (acc, vr(X + 4 * ks, 4), vr(WR + 4 * (n % 8), 4), acc if ks else '0'))
        for o in S.slots[n]:
            emit(k, o)
        if n in OPT.get('kvat', (31,)):
            st.stamp()
    st.stamp()
    TT = ACK + 8
    PF = X
    PAD = [X + 32 + f for f in range(8)]
    for o in lane_form(CV, 12, TT) + ['v_add_u32 %s, s75, v0' % vr(TT), 'ds_write_b32 %s, %s offset:512' % (vr(TT), vr(CV))] + \
            pair_signal(40, TT + 1, TT + 2):
        emit(k, o)
    p0, p1 = PAD[0], PAD[1]
    for o in ['v_bfe_u32 %s, v1, 2, 2' % vr(p0), 'v_lshrrev_b32 %s, 5, v1' % vr(p1), 'v_lshl_add_u32 %s, %s, 2, %s' % (vr(p0), vr(p1), vr(p0)),
              'v_lshlrev_b32 %s, 7, %s' % (vr(p0), vr(p0)), 'v_and_b32 %s, 3, v1' % vr(p1), 'v_lshl_add_u32 %s, %s, 3, %s' % (vr(p0), vr(p1), vr(p0)),
              'v_bfe_u32 %s, v1, 4, 1' % vr(p1),
              's_cmp_eq_u32 s68, 1', 's_cselect_b32 s79, 12, 5', 's_cselect_b32 s60, 32, 64', 's_cselect_b32 s61, 64, 2048',
              's_cselect_b32 s62, 11, 12', 's_lshl_b32 s62, 1, s62',
              'v_lshlrev_b32 %s, s79, %s' % (vr(p1), vr(p1)), 's_lshl_b32 s80, s28, 13',
              'v_add3_u32 %s, %s, %s, s80' % (vr(p0), vr(p0), vr(p1)),
              'v_add_u32 %s, s60, %s' % (vr(PAD[1]), vr(p0)), 'v_add_u32 %s, s61, %s' % (vr(PAD[2]), vr(p0)),
              'v_add_u32 %s, s61, %s' % (vr(PAD[3]), vr(PAD[1]))]:
        k.I(o)
    for f in range(4):
        k.I('v_add_u32 %s, s62, %s' % (vr(PAD[4 + f]), vr(PAD[f])))
    pair_wait(k, 'L_a_pw0', 41, TT + 1, TT + 2, 79)
    for o in ['v_add_u32 %s, s76, v0' % vr(TT), 'ds_read_b32 %s, %s offset:512' % (vr(TT + 1), vr(TT)),
              'v_add_f32 %s, %s, %s' % (vr(CV), vr(CV), vr(TT + 1))]:
        emit(k, o)
    ve = []
    for i in range(16):
        ve.append('v_fma_f32 %s, -%s, %s, %s' % (vr(ACV + i), vr(MN + i), vr(CV), vr(ACV + i)))
    for i in range(16):
        ve.append('v_mul_f32 %s, %s, %s' % (vr(ACV + i), vr(RS + i), vr(ACV + i)))
    for j in range(8):
        ve.append('v_cvt_pk_bf16_f32 %s, %s, %s' % (vr(ACV + j), vr(ACV + 2 * j), vr(ACV + 2 * j + 1)))
    for o in ve:
        k.I(o)
    DKV, DZ = 16, 32
    if KOFF:
        k.I('s_lshl_b32 s79, s28, 2')
        k.I('s_add_u32 s79, s79, %d' % (E_FL + 64))
        pair_wait(k, 'L_a_pwk', 79, TT + 1, TT + 2, 80)
        k.I('s_lshl_b32 s79, s28, 12')
        k.I('s_add_u32 s79, s79, %d' % E_KV)
        k.I('v_add_u32 %s, s79, %s' % (vr(TT + 1), vr(LN16)))
        k.I('ds_read_b128 %s, %s' % (vr(ACK, 4), vr(TT + 1)))
        k.I('ds_read_b128 %s, %s offset:1024' % (vr(ACK + 4, 4), vr(TT + 1)))
    k.I('v_mfma_f32_32x32x16_bf16 %s, %s, %s, 0' % (vr(DKV, 16), vr(ACK, 4), vr(ACV, 4)))
    k.I('v_mfma_f32_32x32x16_bf16 %s, %s, a[0:3], 0' % (vr(DZ, 16), vr(ACK, 4)))
    k.I('v_mfma_f32_32x32x16_bf16 %s, %s, %s, %s' % (vr(DKV, 16), vr(ACK + 4, 4), vr(ACV + 4, 4), vr(DKV, 16)))
    k.I('v_mfma_f32_32x32x16_bf16 %s, %s, a[0:3], %s' % (vr(DZ, 16), vr(ACK + 4, 4), vr(DZ, 16)))
    for o in ['v_and_b32 %s, 16, v1' % vr(TT), 'v_lshlrev_b32 %s, 7, %s' % (vr(TT), vr(TT)),
              'v_lshrrev_b32 %s, 5, v1' % vr(TT + 1), 'v_mul_u32_u24 %s, 272, %s' % (vr(TT + 1), vr(TT + 1)),
              's_lshl_b32 s79, s30, 1', 's_add_u32 s79, s79, s29', 's_lshl_b32 s79, s79, 12', 's_add_u32 s79, s79, %d' % E_KV,
              'v_add3_u32 %s, %s, %s, s79' % (vr(TT), vr(TT), vr(TT + 1)),
              'v_and_b32 %s, 15, v1' % vr(TT + 1), 'v_lshl_add_u32 %s, %s, 4, %s' % (vr(TT + 2), vr(TT + 1), vr(TT)),
              's_add_u32 s40, s40, 16', 's_add_u32 s41, s41, 16']:
        emit(k, o)
    for j in range(8):
        k.I('v_cndmask_b32 %s, %s, %s, s[82:83]' % (vr(DKV + j), vr(DKV + j), vr(DKV + 8 + j)))
    for j in range(8):
        k.I('v_cndmask_b32 %s, %s, %s, s[82:83]' % (vr(DZ + j), vr(DZ + j), vr(DZ + 8 + j)))
    for o in ['ds_write_b128 %s, %s' % (vr(TT + 2), vr(DKV, 4)), 'ds_write_b128 %s, %s offset:544' % (vr(TT + 2), vr(DKV + 4, 4)),
              'v_cmp_eq_u32 vcc, 0, %s' % vr(TT + 1), 's_and_saveexec_b64 s[60:61], vcc',
              'ds_write_b128 %s, %s offset:256' % (vr(TT), vr(DZ, 4)), 'ds_write_b128 %s, %s offset:800' % (vr(TT), vr(DZ + 4, 4)),
              's_mov_b64 exec, s[60:61]'] + pair_signal(40, TT + 1, TT + 2) + \
            ['s_lshl_b32 s79, s30, 13', 's_lshl_b32 s80, s29, 11', 's_add_u32 s79, s79, s80', 's_add_u32 s79, s79, %d' % E_KV]:
        emit(k, o)
    k.I('v_readfirstlane_b32 s80, v11')
    k.I('s_cmp_eq_u32 s80, 0')
    k.I('s_cbranch_scc1 L_a_spin')
    k.label('L_a_go')
    pair_wait(k, 'L_a_pw1', 41, TT + 1, TT + 2, 80)
    k.I('v_lshlrev_b32 %s, 2, v1' % vr(TT))
    k.I('v_add_u32 %s, s79, %s' % (vr(TT + 1), vr(TT)))
    for ch in range(5):
        d = 16 + ch * 2
        k.I('ds_read_b32 %s, %s offset:%d' % (vr(d), vr(TT + 1), ch * 256))
        k.I('ds_read_b32 %s, %s offset:%d' % (vr(d + 1), vr(TT + 1), ch * 256 + 4096))
    k.need('prep')
    for f in range(8):
        k.I('ds_read_b64_tr_b16 %s, %s' % (vr(PF + 4 * f, 2), vr(PAD[f])))
        k.I('ds_read_b64_tr_b16 %s, %s offset:1024' % (vr(PF + 4 * f + 2, 2), vr(PAD[f])))
    for ch in range(5):
        d = 16 + ch * 2
        k.I('v_add_f32 %s, %s, %s' % (vr(d), vr(d), vr(d + 1)))
    for ch in range(4):
        k.I('buffer_atomic_add_f32 %s, %s, %s, s71 offen offset:%d' % (vr(16 + ch * 2), vr(TT), ws, ch * 256))
    k.I('v_cmp_gt_u32 vcc, 16, v1')
    k.I('s_and_saveexec_b64 s[60:61], vcc')
    k.I('buffer_atomic_add_f32 %s, %s, %s, s71 offen offset:1024' % (vr(24), vr(TT), ws))
    k.I('s_mov_b64 exec, s[60:61]')
    if len(OPT.get('kvat', (31,))) < 2: st.stamp()
    for f in range(8):
        k.I('buffer_store_dwordx4 %s, %s, %s, %s offen%s' % (vr(PF + 4 * f, 4), vr(LN16), ws, sr(51 + f), APOL()))
        ca = vr(32 + 4 * (f & 3), 4)
        k.I('v_mfma_f32_16x16x32_bf16 %s, a[4:7], %s, %s' % (ca, vr(PF + 4 * f, 4), '0' if f < 4 else ca))
    for c in range(4):
        k.I('v_cndmask_b32 %s, %s, %s, s[82:83]' % (vr(48 + c), vr(32 + 4 * c), vr(33 + 4 * c)))
        k.I('buffer_store_dword %s, v0, %s, s59 offen offset:%d' % (vr(48 + c), ws, c * 128))
    if gen1.STAMPS:
        k.I('s_mov_b32 s88, s88') if False else None
        k.I('v_lshl_add_u32 v4, s39, 6, v1')
        st.tid = 'v4'
        st.stamp(); st.stamp(True)
        flush_stamps(k, st, ws, 1)
    if OPT.get('dbgt'):
        dbg_time(k, 24, 90, 8, 28)
    k.label('L_a_end')
    k.I('s_endpgm')
    k.raw('''L_a_spin:
    s_mov_b32 s84, 0
L_a_spin2:
    s_sleep 2
    v_mov_b32 v6, 0
    buffer_load_dword v11, v6, s[%d:%d], s78 offen sc1
    s_waitcnt vmcnt(0)
    v_readfirstlane_b32 s80, v11
    s_add_u32 s84, s84, 1
    s_cmp_ge_u32 s84, 0x100000
    s_cbranch_scc1 L_a_go
    s_cmp_eq_u32 s80, 0
    s_cbranch_scc1 L_a_spin2
    s_branch L_a_go
''' % (DB, DB + 3))

    kq = Kernel('a_q')
    k = kq
    k.label('L_a_q')
    stq = Stamper(k, 5, ws, base=88, tmp=40)
    ACQ = 48
    k.I('s_lshl_b32 s34, s28, 12')
    k.I('s_lshl_b32 s35, s32, 16')
    k.I('s_mul_i32 s36, s28, %d' % (32 * 3072))
    k.I('s_lshl_b32 s37, s33, 7')
    k.I('s_add_u32 s36, s36, s37')
    k.I('s_add_u32 s38, s32, s33')
    if OPT.get('norot'):
        k.I('s_mov_b32 s38, 0')
    for c in range(4):
        k.I('s_add_u32 s37, s38, %d' % c)
        k.I('s_and_b32 s37, s37, 3')
        k.I('s_lshl_b32 %s, s37, 8' % sr(60 + c))
        k.I('s_add_u32 %s, %s, s35' % (sr(60 + c), sr(60 + c)))
        k.I('s_mul_i32 %s, s37, %d' % (sr(64 + c), 128 * 3072))
        k.I('s_add_u32 %s, %s, s36' % (sr(64 + c), sr(64 + c)))
    XV = [32, 33, 34, 35]
    WV = [8, 9, 10, 11]
    k.I('v_lshrrev_b32 v2, 4, v1')
    k.I('v_and_b32 v3, 15, v1')
    k.I('s_lshl_b32 s37, s28, 4')
    for j in range(4):
        k.I('v_add_u32 v4, %d, v2' % (4 * j))
        k.I('v_xor_b32 v5, v3, v4')
        k.I('v_lshlrev_b32 v5, 4, v5')
        k.I('v_add_u32 v4, s37, v4')
        k.I('v_lshlrev_b32 v4, 10, v4')
        k.I('v_add_u32 v4, v4, v5')
        k.I('v_subrev_u32 %s, %d, v4' % (vr(XV[j]), j * 1024))
    k.I('v_lshrrev_b32 v4, 3, v1')
    k.I('s_movk_i32 s37, 3072')
    k.I('v_mul_lo_u32 v4, v4, s37')
    k.I('v_and_b32 v5, 1, v2')
    k.I('v_lshlrev_b32 v5, 2, v5')
    k.I('v_and_b32 v6, 7, v1')
    k.I('v_xor_b32 v5, v5, v6')
    k.I('v_lshlrev_b32 v5, 4, v5')
    k.I('v_add_u32 v8, v4, v5')
    for j in range(1, 4):
        k.I('v_add_u32 %s, %d, v8' % (vr(WV[j]), j * (8 * 3072 - 1024)))
    k.I('v_lshlrev_b32 %s, 4, v1' % vr(LN16))
    for j in range(4):
        k.I('v_mov_b32 %s, 0' % vr(40 + j))
    k.I('s_lshl_b32 s37, s33, 2')
    k.I('s_add_u32 s37, s37, s28')
    k.I('s_lshl_b32 s37, s37, 11')
    k.I('s_add_u32 s71, s37, 0x%x' % OFF_KVZ)
    k.I('s_cmp_eq_u32 s32, 0')
    k.I('s_cselect_b32 s37, s71, 0x7fff0000')
    k.I('s_waitcnt lgkmcnt(0)')
    if OPT.get('qpro'): stq.stamp()
    k.I('buffer_store_dwordx4 v[40:43], %s, %s, s37 offen sc1' % (vr(LN16), ws), w=['zero'])
    k.I('buffer_store_dwordx4 v[40:43], %s, %s, s37 offen offset:1024 sc1' % (vr(LN16), ws), w=['zero'])
    k.I('s_lshl_b32 s37, s2, 7')
    k.I('s_lshl_b32 s38, s28, 15')
    k.I('s_add_u32 s37, s37, s38')
    k.I('s_add_u32 s37, s37, 0x%x' % OFF_CNT)
    k.I('v_and_b32 v41, 15, v1')
    k.I('v_lshlrev_b32 v41, 2, v41')
    k.I('buffer_store_dword v40, v41, %s, s37 offen' % ws)

    def dma_x_ops(c, slot):
        ops = ['s_add_u32 m0, s34, %d' % (slot * 16384)]
        for j in range(4):
            ops.append(('buffer_load_dwordx4 %s, %s, %s offen offset:%d lds' % (vr(XV[j]), sr(XS, 4), sr(60 + c), j * 1024), 'X%d' % c))
        return ops
    PARTCOL = {'q': 0, 'k': 1024, 'v': 2048}

    def dma_w_ops(part, c, slot):
        ops = ['s_add_u32 m0, s34, %d' % (slot * 16384), 's_add_u32 s69, %s, %d' % (sr(64 + c), PARTCOL[part])]
        for j in range(4):
            ops.append(('buffer_load_dwordx4 %s, %s, s69 offen offset:%d lds' % (vr(WV[j]), sr(WQ, 4), j * 1024), 'W%s%d' % (part, c)))
        return ops
    def interleave(a, b, ratio=None):
        nv = sum(1 for o in a if isinstance(o, tuple))
        out, ib, seen = [], 0, 0
        for o in a:
            out.append(o)
            if isinstance(o, tuple):
                seen += 1
                upto = len(b) * seen // nv
                out += b[ib:upto]
                ib = upto
        return out + b[ib:]
    grp = lambda c: dma_x_ops(c, 2 * c) + dma_w_ops('k', c, 2 * c + 1)
    for o in grp(0):
        emit(k, o)
    if OPT.get('qpro'): stq.stamp()
    ktmp = Kernel('tmp')
    common_setup(ktmp)
    setup_ops = [it.text for it in ktmp.items]
    for o in interleave(grp(1), setup_ops):
        emit(k, o)
    stq.stamp()
    SQ = 24
    SQ4 = [24, 25, 28, 29]
    for r_ in SQ4:
        k.I('v_mov_b32 %s, 0' % vr(r_))
    nextdma = {0: grp(2), 1: grp(3), 2: dma_w_ops('v', 0, 0) + dma_w_ops('v', 1, 1), 3: dma_w_ops('v', 2, 2) + dma_w_ops('v', 3, 3)}
    for g in range(4):
        if OPT.get('qg') == (g,): stq.stamp()
        k.need(*(['X%d' % g, 'Wk%d' % g] + (['zero'] if g == 0 else [])))
        if OPT.get('qg') == (g,) or (OPT.get('qpro') and g == 0): stq.stamp()
        k.I('s_barrier')
        if OPT.get('qg') == (g,): stq.stamp()
        work = []
        if g == 0:
            work += ['s_or_b32 s38, s32, s28', 's_cmp_eq_u32 s38, 0', 's_cselect_b32 s38, 0, 0x1000',
                     'v_lshlrev_b32 v26, 12, v1', 's_lshl_b32 s78, s33, 2', 'v_add_u32 v26, s78, v26', 'v_mov_b32 v27, 1']
        if g == 2:
            work += ['v_add_u32 %s, 0x10000, %s' % (vr(XA + t), vr(XA + t)) for t in range(8)]
        work += [xread(8 * g + s) for s in range(8)]
        for s in range(0, 8, 2):
            n = 8 * g + s
            work.append('v_mfma_f32_16x16x32_bf16 a[8:11], a[4:7], %s, %s' % (vr(X + 4 * n, 4), '0' if n == 0 else 'a[8:11]'))
            for j in range(4):
                xr = X + 4 * n + j
                work.append('v_dot2c_f32_bf16 %s, %s, %s' % (vr(SQ4[j]), vr(xr), vr(xr)))
        if OPT.get('noqwork'):
            work = [w for w in work if not (w.startswith('v_mfma') or w.startswith('v_dot2c'))]
        if OPT.get('qafter'):
            for o in nextdma[g] + work:
                emit(k, o)
        else:
            for o in interleave(nextdma[g], work):
                emit(k, o)
        if OPT.get('qg') == (g,): stq.stamp()
        if g == 0:
            k.I('buffer_store_dword v27, v26, %s, s38 offen sc1' % sr(DB, 4))
    if not (OPT.get('qpro') or OPT.get('qg')): stq.stamp()
    k.need('Wv0', 'Wv1')
    k.I('s_waitcnt lgkmcnt(0)')
    k.I('s_barrier')
    for o in dma_w_ops('q', 0, 4) + dma_w_ops('q', 1, 5):
        emit(k, o)
    for o in ['v_add_f32 v24, v24, v28', 'v_add_f32 v25, v25, v29', 'v_add_f32 v25, v24, v25'] + xhalf_ops(25, 26) + \
            ['v_accvgpr_read_b32 v24, a8', 'v_accvgpr_read_b32 v27, a9', 'v_cndmask_b32 v24, v24, v27, s[82:83]',
             'v_lshlrev_b32 v26, 1, v0', 'v_add_u32 v26, s73, v26', 'ds_write_b64 v26, v[24:25]', 's_waitcnt lgkmcnt(0)',
             's_barrier'] + stats_finish_ops():
        emit(k, o)
    for o in dma_w_ops('q', 2, 6) + dma_w_ops('q', 3, 7):
        emit(k, o)
    k.need('Wv2', 'Wv3')
    k.I('s_barrier')
    if OPT.get('koff'):
        KA_, MNq, RSq = 48, 64, 80
        for o in ['v_add_u32 v26, s77, v0', 'ds_write_b32 v26, %s' % vr(MEAN), 'ds_write_b32 v26, %s offset:128' % vr(RSTD),
                  'v_lshrrev_b32 v26, 5, v1', 'v_lshlrev_b32 v26, 4, v26', 'v_add_u32 v26, s77, v26',
                  'v_add_u32 v27, s75, v0', 'v_add_u32 v28, s76, v0', 'ds_read_b32 %s, v27' % vr(CK), 'ds_read_b32 v30, v28',
                  's_lshl_b32 s79, s28, 12', 's_add_u32 s79, s79, %d' % E_KV, 'v_add_u32 v27, s79, %s' % vr(LN16)]:
            k.I(o)
        for q in range(4):
            k.I('ds_read_b128 %s, v27 offset:%d' % (vr(KA_ + 4 * q, 4), q * 1024))
        for a in range(4):
            k.I('ds_read_b128 %s, v26 offset:%d' % (vr(MNq + 4 * a, 4), a * 32))
            k.I('ds_read_b128 %s, v26 offset:%d' % (vr(RSq + 4 * a, 4), 128 + a * 32))
        k.I('v_add_f32 %s, %s, v30' % (vr(CK), vr(CK)))
        for i in range(0, 16, 2):
            for o in ln_phi_ops([KA_ + i, KA_ + i + 1], [MNq + i, MNq + i + 1], [CK, CK], [RSq + i, RSq + i + 1], [28, 29]):
                k.I(o)
            k.I('v_cvt_pk_bf16_f32 %s, %s, %s' % (vr(KA_ + i // 2), vr(KA_ + i), vr(KA_ + i + 1)))
        k.I('ds_write_b128 v27, %s' % vr(KA_, 4))
        k.I('ds_write_b128 v27, %s offset:1024' % vr(KA_ + 4, 4))
        k.I('s_lshl_b32 s79, s28, 2')
        k.I('s_add_u32 s79, s79, %d' % (E_FL + 64))
        for o in pair_signal(79, 26, 28):
            k.I(o)
    k.need('Wq0', 'Wq1')
    if OPT.get('oldbar'):
        k.I('s_barrier')
    else:
        q_sync(k, 'L_a_qs0', E_FL + 48)
    if not (OPT.get('qpro') or OPT.get('qg')): stq.stamp()
    for n in range(LA):
        for o in wreads('q', n):
            k.I(o)
    for n in range(32):
        if n % 2 == 0:
            k.touch(vr(WR + 4 * ((n + 1) % 8), 4))
        acc = vr(ACQ, 16)
        k.I('v_mfma_f32_32x32x16_bf16 %s, %s, %s, %s' % (acc, vr(WR + 4 * (n % 8), 4), vr(X + 4 * n, 4), acc if n else '0'))
        if n == 16 - LA - 1:
            k.need('Wq2', 'Wq3')
            if OPT.get('oldbar'):
                k.I('s_barrier')
            else:
                q_sync(k, 'L_a_qs1', E_FL + 52)
        if n + LA < 32:
            for o in wreads('q', n + LA):
                k.I(o)
        if n % 2 == 0:
            k.I('v_mfma_f32_16x16x32_bf16 a[12:15], a[4:7], %s, %s' % (vr(WR + 4 * (n % 8), 4), '0' if n == 0 else 'a[12:15]'))
    if not (OPT.get('qpro') or OPT.get('qg')): stq.stamp()
    CSQ = 64
    for o in ['v_accvgpr_read_b32 %s, a12' % vr(CSQ), 'v_accvgpr_read_b32 %s, a13' % vr(CSQ + 1),
              'v_cndmask_b32 %s, %s, %s, s[82:83]' % (vr(CSQ), vr(CSQ), vr(CSQ + 1)),
              'v_add_u32 %s, s75, v0' % vr(CSQ + 1), 'ds_write_b32 %s, %s offset:1024' % (vr(CSQ + 1), vr(CSQ)),
              's_add_u32 s40, s40, 32', 's_add_u32 s41, s41, 32'] + pair_signal(40, CSQ + 1, CSQ + 2) + \
             ['v_lshrrev_b32 v20, 5, v1', 'v_lshlrev_b32 v20, 4, v20', 'v_add_u32 v21, s76, v20', 'v_add_u32 v20, s75, v20']:
        k.I(o)
    pair_wait(k, 'L_a_pw2', 41, CSQ + 1, CSQ + 2, 79)
    CQ, CQ2 = 24, 64
    for a in range(4):
        k.I('ds_read_b128 %s, v20 offset:%d' % (vr(CQ + 4 * a, 4), 1024 + a * 32))
        k.I('ds_read_b128 %s, v21 offset:%d' % (vr(CQ2 + 4 * a, 4), 1024 + a * 32))
    for i in range(16):
        k.I('v_add_f32 %s, %s, %s' % (vr(CQ + i), vr(CQ + i), vr(CQ2 + i)))
    for i in range(0, 16, 2):
        for o in ln_phi_ops([ACQ + i, ACQ + i + 1], [MEAN, MEAN], [CQ + i, CQ + i + 1], [RSTD, RSTD], [22, 23]):
            k.I(o)
        k.I('v_cvt_pk_bf16_f32 %s, %s, %s' % (vr(ACQ + i // 2), vr(ACQ + i), vr(ACQ + i + 1)))
    for o in ['s_lshl_b32 s79, s32, 1', 's_add_u32 s79, s79, s29', 's_lshl_b32 s79, s79, 5', 's_lshl_b32 s80, s33, 2',
              's_add_u32 s79, s79, s80', 's_lshl_b32 s80, s30, 1', 's_add_u32 s79, s79, s80', 's_lshl_b32 s79, s79, 10',
              's_add_u32 s79, s79, 0x%x' % OFF_PQ]:
        k.I(o)
    k.I('buffer_store_dwordx4 %s, %s, %s, s79 offen%s' % (vr(ACQ, 4), vr(LN16), ws, APOL()))
    k.I('buffer_store_dwordx4 %s, %s, %s, s79 offen offset:1024%s' % (vr(ACQ + 4, 4), vr(LN16), ws, APOL()))
    if gen1.STAMPS:
        k.I('v_lshl_add_u32 v4, s39, 6, v1')
        k.I('v_subrev_u32 v4, 256, v4')
        stq.tid = 'v4'
        stq.stamp(); stq.stamp(True)
        flush_stamps(k, stq, ws, 5)
    if OPT.get('dbgt'):
        dbg_time(k, 24, 90, 8, 28)
    k.I('s_endpgm')
    return Multi([kp, kq_first(kk, kq)[0], kq_first(kk, kq)[1]]), dict(lds=131072 + 8192 + 16384, grid=256, block=512)


def dbg_time(k, DB, s_start, slot, s_wave):
    k.I('s_memrealtime s[92:93]')
    k.I('s_waitcnt lgkmcnt(0)')
    k.I('s_not_b32 s94, s%d' % s_start)
    k.I('s_mov_b64 exec, 1')
    k.I('v_mov_b32 v0, 0')
    k.I('v_mov_b32 v2, s94')
    k.I('v_mov_b32 v3, s%d' % s_start)
    k.I('v_mov_b32 v4, s92')
    k.I('buffer_atomic_umax v2, v0, %s, 0 offen offset:%d' % (sr(DB, 4), slot * 4))
    k.I('buffer_atomic_umax v3, v0, %s, 0 offen offset:%d' % (sr(DB, 4), slot * 4 + 4))
    k.I('buffer_atomic_umax v4, v0, %s, 0 offen offset:%d' % (sr(DB, 4), slot * 4 + 8))


def kq_first(kk, kq):
    return kk, kq


def flush_stamps(k, st, ws, kidx):
    k.I('s_waitcnt lgkmcnt(0)')
    k.I('v_cmp_eq_u32 vcc, 0, %s' % st.tid)
    k.I('s_and_saveexec_b64 s[40:41], vcc')
    k.I('s_lshl_b32 s42, s2, 7')
    k.I('s_add_u32 s42, s42, 0x%x' % (OFF_TS + kidx * 256 * 128))
    k.I('v_mov_b32 v0, 0')
    regs = [84, 86] + [st.base + 2 * i for i in range(st.n)]
    for i, r in enumerate(regs):
        k.I('v_mov_b32 v2, s%d' % r)
        k.I('v_mov_b32 v3, s%d' % (r + 1))
        k.I('buffer_store_dwordx2 v[2:3], v0, %s, s42 offen offset:%d' % (ws, 8 * i))
    k.I('s_mov_b64 exec, s[40:41]')


def prep_decode(k):
    k.I('s_cmp_ge_u32 s38, 448')
    k.I('s_cbranch_scc1 L_a_pstd')
    div_const(k, 37, 38, 28, 48)
    k.I('s_mul_i32 s48, s37, 28')
    k.I('s_sub_u32 s69, s38, s48')
    k.I('s_mov_b32 s16, s44')
    k.I('s_mov_b32 s17, s45')
    k.I('s_mov_b32 s18, 0x%x' % SZ['wg'])
    k.I('s_mov_b32 s20, s46')
    k.I('s_mov_b32 s21, s47')
    k.I('s_mov_b32 s22, 0x%x' % SZ['wu'])
    k.I('s_movk_i32 s50, 3584')
    k.I('s_mul_i32 s48, s37, %d' % (32 * 3584))
    k.I('s_lshl_b32 s49, s69, 7')
    k.I('s_add_u32 s48, s48, s49')
    k.I('s_mov_b32 s49, s48')
    k.I('s_lshl_b32 s59, s69, 7')
    k.I('s_lshl_b32 s51, s37, 1')
    k.I('s_add_u32 s59, s59, s51')
    k.I('s_lshl_b32 s59, s59, 10')
    k.I('s_add_u32 s72, s59, 0x%x' % OFF_WGU)
    k.I('s_mov_b32 s73, %d' % (32 * 1024))
    k.I('s_mov_b32 s74, %d' % (64 * 1024))
    k.I('s_mov_b32 s75, 1024')
    k.I('s_mul_i32 s59, s37, %d' % (112 * 128))
    k.I('s_lshl_b32 s69, s69, 9')
    k.I('s_add_u32 s59, s59, s69')
    k.I('s_add_u32 s59, s59, 0x%x' % OFF_CSG)
    k.I('s_mov_b32 s68, 1')
    k.I('s_branch L_a_pgo')
    k.label('L_a_pstd')
    k.I('s_movk_i32 s50, 1024')
    k.I('s_mov_b32 s68, 0')
    k.I('s_mov_b32 s59, 0x7fff0000')
    k.I('s_cmp_ge_u32 s38, 672')
    k.I('s_cbranch_scc1 L_a_pwo')
    k.I('s_sub_u32 s37, s38, 448')
    k.I('s_and_b32 s69, s37, 7')
    k.I('s_lshr_b32 s37, s37, 3')
    k.I('s_mov_b32 s16, s42')
    k.I('s_mov_b32 s17, s43')
    k.I('s_mov_b32 s18, 0x%x' % SZ['wd'])
    k.I('s_mul_i32 s48, s69, 224')
    k.I('s_lshl_b32 s49, s37, 2')
    k.I('s_add_u32 s48, s48, s49')
    k.I('s_lshl_b32 s48, s48, 10')
    k.I('s_add_u32 s72, s48, 0x%x' % OFF_WD)
    k.I('s_mov_b32 s73, %d' % (112 * 1024))
    k.I('s_mov_b32 s74, 1024')
    k.I('s_mov_b32 s75, 2048')
    k.I('s_branch L_a_pstd2')
    k.label('L_a_pwo')
    k.I('s_sub_u32 s37, s38, 672')
    k.I('s_and_b32 s69, s37, 7')
    k.I('s_lshr_b32 s37, s37, 3')
    k.I('s_mov_b32 s16, s40')
    k.I('s_mov_b32 s17, s41')
    k.I('s_mov_b32 s18, 0x%x' % SZ['wo'])
    k.I('s_lshl_b32 s48, s37, 6')
    k.I('s_lshl_b32 s49, s69, 1')
    k.I('s_add_u32 s48, s48, s49')
    k.I('s_lshl_b32 s48, s48, 10')
    k.I('s_add_u32 s72, s48, 0x%x' % OFF_WO)
    k.I('s_cmp_ge_u32 s38, 736')
    k.I('s_cselect_b32 s72, 0x7fff0000, s72')
    k.I('s_cselect_b32 s18, 0, s18')
    k.I('s_mov_b32 s73, 1024')
    k.I('s_mov_b32 s74, %d' % (16 * 1024))
    k.I('s_mov_b32 s75, %d' % (32 * 1024))
    k.label('L_a_pstd2')
    k.I('s_mov_b32 s20, s16')
    k.I('s_mov_b32 s21, s17')
    k.I('s_mov_b32 s22, s18')
    k.I('s_lshl_b32 s48, s37, 16')
    k.I('s_lshl_b32 s49, s69, 7')
    k.I('s_add_u32 s48, s48, s49')
    k.I('s_add_u32 s49, s48, %d' % (32 * 1024))
    k.label('L_a_pgo')
    k.I('s_mov_b32 s51, s72')
    k.I('s_add_u32 s52, s72, s73')
    k.I('s_add_u32 s53, s72, s74')
    k.I('s_add_u32 s54, s52, s74')
    for f in range(4):
        k.I('s_add_u32 %s, %s, s75' % (sr(55 + f), sr(51 + f)))


if __name__ == '__main__':
    n = int(sys.argv[2]) if len(sys.argv) > 2 else 4
    gen1.STAMPS = len(sys.argv) > 3 and sys.argv[3] == 'stamps'
    for o in sys.argv[4:]:
        if '=' in o:
            kk_, vv_ = o.split('=')
            gen1.OPT[kk_] = tuple(int(x) for x in vv_.split(','))
        else:
            gen1.OPT[o] = True
    gens = [('qkv_kernel', gen_a8), ('attn_kernel', gen_k2), ('gateup_kernel', gen_k3), ('down_kernel', gen_k4)]
    ks = []
    for label, g in gens[:n]:
        kk, cc = g()
        ks.append((label, kk, cc))
        print(label, kk.stats(), kk.maxreg())
    open(sys.argv[1], 'w').write(wrap(ks))
```

```python
import sys
from asmgen import Kernel
import gen1
from gen1 import *
from gen2 import Sched, xhalf_ops
from gen3 import emit
import gen4
from gen4 import gen_a8


def STP():
    return '' if OPT.get('stplain') else ' sc1'


def LSC():
    return '' if OPT.get('ldplain') else ' sc1'


def sync_arrive(k, s_wave, ws, vt, s_arr, name):
    k.I('s_barrier')
    k.raw("""    s_cmp_lg_u32 s%d, 0
    s_cbranch_scc1 %s_noarr
    v_lshlrev_b32 v%d, 7, v1
    v_mov_b32 v%d, 1
    s_mov_b64 exec, 0xffff
    buffer_store_dword v%d, v%d, %s, s%d offen sc1
    s_nop 0
    s_mov_b64 exec, -1
%s_noarr:""" % (s_wave, name, vt, vt + 1, vt + 1, vt, ws, s_arr, name))


def sync_wait(k, name, s_cnt, s_wave, ws, vt, bg, nbatch=4):
    k.raw("""    s_cmp_lg_u32 s%d, 0
    s_cselect_b32 s59, 1, 0
    v_and_b32 v%d, 15, v1
    v_lshlrev_b32 v%d, 2, v%d""" % (s_wave, vt, vt, vt))
    vm = [i for i, o in enumerate(bg) if (isinstance(o, tuple) or o.startswith('buffer_'))]
    per = -(-len(vm) // nbatch)
    cuts = [0] + [vm[min(len(vm) - 1, per * (b + 1) - 1)] + 1 for b in range(nbatch)]
    cuts[-1] = len(bg)
    check = """    v_cmp_eq_u32 vcc, 1, v%d
    s_nop 4
    s_cmp_eq_u64 vcc, exec
    s_cselect_b32 s59, 1, 0""" % (vt + 1)
    for b in range(nbatch):
        batch = bg[cuts[b]:cuts[b + 1]]
        nv = sum(1 for o in batch if (isinstance(o, tuple) or o.startswith('buffer_')))
        k.raw("""    s_cmp_lg_u32 s59, 0
    s_cbranch_scc1 %s_np%d
    buffer_load_dword v%d, v%d, %s, s%d offen sc1
%s_np%d:""" % (name, b, vt + 1, vt, ws, s_cnt, name, b))
        for o in batch:
            emit(k, o)
        k.raw("""    s_cmp_lg_u32 s59, 0
    s_cbranch_scc1 %s_nq%d
    s_waitcnt vmcnt(%d)
%s
%s_nq%d:""" % (name, b, nv, check, name, b))
    k.raw("""    s_mov_b32 s60, 0
%s_spin:
    s_cmp_lg_u32 s59, 0
    s_cbranch_scc1 %s_done
    buffer_load_dword v%d, v%d, %s, s%d offen sc1
    s_waitcnt vmcnt(0)
%s
    s_add_u32 s60, s60, 1
    s_cmp_lt_u32 s60, 0x40000
    s_cbranch_scc1 %s_spin
%s_done:""" % (name, name, vt + 1, vt, ws, s_cnt, check, name, name))
    k.I('s_barrier')


def flag_store(k, s_wave, ws, vt, s_arr, name):
    k.raw("""    s_cmp_lg_u32 s%d, 0
    s_cbranch_scc1 %s_nf
    v_lshlrev_b32 v%d, 7, v1
    v_mov_b32 v%d, 1
    s_mov_b64 exec, 0xffff
    buffer_store_dword v%d, v%d, %s, s%d offen sc1
    s_nop 0
    s_mov_b64 exec, -1
%s_nf:""" % (s_wave, name, vt, vt + 1, vt + 1, vt, ws, s_arr, name))


_pi = [0]


def poll_issue(k, s_wave, ws, vt, s_cnt):
    _pi[0] += 1
    k._poll_mark = len(k.items)
    k.raw("""    s_cmp_lg_u32 s%d, 0
    s_cbranch_scc1 L_f_pi%d
    v_and_b32 v%d, 15, v1
    v_lshlrev_b32 v%d, 2, v%d
    buffer_load_dword v%d, v%d, %s, s%d offen sc1
L_f_pi%d:""" % (s_wave, _pi[0], vt, vt, vt, vt + 1, vt, ws, s_cnt, _pi[0]))


def poll_check_spin(k, name, s_wave, ws, vt, s_cnt):
    from asmgen import Ins
    nyoung = sum(1 for it in k.items[k._poll_mark:] if isinstance(it, Ins) and it.vm)
    k.raw("""    s_cmp_lg_u32 s%d, 0
    s_cbranch_scc1 %s_done
    s_mov_b32 s60, 0
    s_waitcnt vmcnt(%d)
    s_branch %s_tst
%s_chk:
    s_waitcnt vmcnt(0)
%s_tst:
    v_cmp_eq_u32 vcc, 1, v%d
    s_nop 4
    s_cmp_eq_u64 vcc, exec
    s_cbranch_scc1 %s_done
    buffer_load_dword v%d, v%d, %s, s%d offen sc1
    s_add_u32 s60, s60, 1
    s_cmp_lt_u32 s60, 0x40000
    s_cbranch_scc1 %s_chk
    s_waitcnt vmcnt(0)
%s_done:""" % (s_wave, name, min(nyoung, 63), name, name, name, vt + 1, name, vt + 1, vt, ws, s_cnt, name, name))


def merge(k, main, bg, first=0, last=None):
    if last is None:
        last = len(main)
    ib = 0
    for i, o in enumerate(main):
        if isinstance(o, (str, tuple)):
            emit(k, o)
        else:
            k.items.append(o)
        if first <= i < last:
            upto = len(bg) * (i - first + 1) // (last - first)
            while ib < upto:
                emit(k, bg[ib]); ib += 1
    while ib < len(bg):
        emit(k, bg[ib]); ib += 1


def gen_bcd():
    k = Kernel('bcd_kernel')
    WS, XS, OS = 4, 8, 12
    ws = sr(WS, 4)
    k.I('s_cmp_ge_u32 s2, 256')
    k.I('s_cbranch_scc1 L_f_end')
    load_srds(k, [('ws', WS), ('x', XS), ('out', OS)])
    st = Stamper(k, 2, ws, base=86, tmp=66); st.stamp(True); st.stamp()
    if OPT.get('dbgt'):
        k.I('s_memrealtime s[90:91]')
        k.I('s_load_dwordx2 s[96:97], s[0:1], %d' % KA['dbg'])
    k.I('v_and_b32 v1, 63, v0')
    k.I('v_lshrrev_b32 v2, 6, v0')
    k.I('v_readfirstlane_b32 s16, v2')
    k.I('v_lshlrev_b32 v2, 4, v1')
    k.I('v_add_u32 v3, 4096, v2')
    k.I('s_and_b32 s24, s2, 7')
    k.I('s_lshr_b32 s25, s2, 3')
    if not OPT.get('nocode2'):
        k.I('s_getpc_b64 s[64:65]')
        k.label('L_f_pc')
        k.I('s_sub_u32 s64, s64, L_f_pc-bcd_kernel')
        k.I('s_subb_u32 s65, s65, 0')
        k.I('s_lshl_b32 s26, s25, 2')
        k.I('s_add_u32 s26, s26, s16')
        k.I('s_lshl_b32 s26, s26, 9')
        k.I('v_lshlrev_b32 v8, 3, v1')
        k.I('v_add_u32 v8, s26, v8')
        k.I('v_min_u32 v8, L_text_end-bcd_kernel-4, v8')
        k.I('global_load_dword v30, v8, s[64:65]')
    if OPT.get('rowmap'):
        k.I('s_lshl_b32 s17, s24, 1')
        k.I('s_lshr_b32 s26, s25, 4')
        k.I('s_add_u32 s17, s17, s26')
        k.I('s_and_b32 s18, s25, 15')
        k.I('s_lshl_b32 s19, s17, 1')
        k.I('s_lshr_b32 s26, s18, 3')
        k.I('s_add_u32 s19, s19, s26')
        k.I('s_and_b32 s20, s18, 7')
    else:
        k.I('s_and_b32 s17, s24, 1')
        k.I('s_lshl_b32 s17, s17, 3')
        k.I('s_and_b32 s26, s25, 7')
        k.I('s_add_u32 s17, s17, s26')
        k.I('s_lshr_b32 s18, s24, 1')
        k.I('s_lshl_b32 s18, s18, 2')
        k.I('s_lshr_b32 s26, s25, 3')
        k.I('s_add_u32 s18, s18, s26')
        k.I('s_lshl_b32 s19, s24, 2')
        k.I('s_and_b32 s26, s25, 3')
        k.I('s_add_u32 s19, s19, s26')
        k.I('s_lshr_b32 s20, s25, 2')
    k.I('s_lshl_b32 s21, s19, 1')
    k.I('s_and_b32 s26, s16, 1')
    k.I('s_add_u32 s21, s21, s26')
    k.I('s_lshl_b32 s22, s20, 1')
    k.I('s_lshr_b32 s26, s16, 1')
    k.I('s_add_u32 s22, s22, s26')
    k.I('s_lshl_b32 s23, s17, 2')
    k.I('s_add_u32 s23, s23, s16')
    k.I('s_lshl_b32 s27, s16, 3')
    k.I('s_lshl_b32 s28, s19, 6')
    k.I('s_add_u32 s28, s28, s27')
    k.I('s_lshl_b32 s28, s28, 10')
    k.I('s_add_u32 s28, s28, 0x%x' % OFF_PQ)
    k.I('s_and_b32 s26, s16, 1')
    k.I('s_lshl_b32 s26, s26, 15')
    k.I('s_add_u32 s29, s28, 32768')
    k.I('s_sub_u32 s29, s29, s26')
    k.I('s_add_u32 s28, s28, s26')
    k.I('s_lshl_b32 s30, s27, 4')
    k.I('s_lshl_b32 s26, s20, 1')
    k.I('s_add_u32 s30, s30, s26')
    k.I('s_lshl_b32 s30, s30, 10')
    k.I('s_add_u32 s30, s30, 0x%x' % OFF_WO)
    k.I('s_lshr_b32 s26, s16, 1')
    k.I('s_lshl_b32 s26, s26, 10')
    k.I('s_add_u32 s64, s30, 1024')
    k.I('s_sub_u32 s64, s64, s26')
    k.I('s_add_u32 s30, s30, s26')
    k.I('s_lshl_b32 s31, s27, 11')
    k.I('s_add_u32 s31, s31, 0x%x' % OFF_KVZ)
    k.I('v_and_b32 v4, 31, v1')
    k.I('v_min_u32 v5, 16, v4')
    k.I('v_lshrrev_b32 v6, 5, v1')
    k.I('v_mul_u32_u24 v7, 17, v6')
    k.I('v_add_u32 v5, v5, v7')
    k.I('v_lshlrev_b32 v5, 4, v5')
    k.I('s_waitcnt lgkmcnt(0)')

    KV = 128
    A_PQ, A_WO = 96, 160
    ACC = 192
    XR = 56

    def b_loads(t):
        ops = ['s_add_u32 s38, s31, %d' % (t * 2048),
               'buffer_load_dwordx4 %s, v5, %s, s38 offen' % (vr(KV + 8 * t, 4), ws),
               'buffer_load_dwordx4 %s, v5, %s, s38 offen offset:544' % (vr(KV + 8 * t + 4, 4), ws)]
        for r in range(2):
            ops.append('buffer_load_dwordx4 %s, %s, %s, %s offen offset:%d' % (
                ar(A_PQ + (t * 2 + r) * 4, 4), 'v2' if t < 4 else 'v3', ws, 's28' if r == 0 else 's29', (t % 4) * 1024))
        ops.append('s_add_u32 s39, s30, %d' % (t * 16384))
        ops.append('s_add_u32 s65, s64, %d' % (t * 16384))
        for n in range(2):
            ops.append('buffer_load_dwordx4 %s, v2, %s, %s offen' % (ar(A_WO + (t * 2 + n) * 4, 4), ws, 's39' if n == 0 else 's65'))
        return ops
    PD = OPT.get('pd', (3,))[0]
    for t in range(PD):
        for o in b_loads(t):
            k.I(o)
    k.I('s_lshl_b32 s32, s21, 15')
    k.I('s_lshl_b32 s26, s22, 6')
    k.I('s_add_u32 s32, s32, s26')
    k.I('v_lshlrev_b32 v7, 10, v4')
    k.I('v_lshlrev_b32 v8, 3, v6')
    k.I('v_add_u32 v7, v7, v8')
    k.I('s_mul_i32 s33, s18, %d' % (7 * 32768))
    k.I('s_lshl_b32 s34, s16, 13')
    k.I('s_add_u32 s33, s33, s34')
    k.I('s_add_u32 s33, s33, 0x%x' % OFF_WGU)
    k.I('s_mul_i32 s35, s16, %d' % (28 * 1024))
    k.I('s_mul_i32 s36, s20, %d' % (2 * 112 * 1024))
    k.I('s_add_u32 s36, s36, s35')
    k.I('s_add_u32 s36, s36, 0x%x' % OFF_WD)
    k.I('s_lshr_b32 s26, s16, 1')
    k.I('s_mul_i32 s26, s26, %d' % (112 * 1024))
    k.I('s_add_u32 s37, s36, %d' % (112 * 1024))
    k.I('s_sub_u32 s37, s37, s26')
    k.I('s_add_u32 s36, s36, s26')
    k.I('s_mul_i32 s50, s19, %d' % (2 * 112 * 1024))
    k.I('s_add_u32 s50, s50, s35')
    k.I('s_add_u32 s50, s50, 0x%x' % OFF_ACT)
    k.I('s_and_b32 s26, s16, 1')
    k.I('s_mul_i32 s26, s26, %d' % (112 * 1024))
    k.I('s_add_u32 s51, s50, %d' % (112 * 1024))
    k.I('s_sub_u32 s51, s51, s26')
    k.I('s_add_u32 s50, s50, s26')
    for q in range(4):
        if OPT.get('drot'):
            k.I('s_add_u32 s26, s20, %d' % q)
            k.I('s_and_b32 s26, s26, 3')
            k.I('s_mul_i32 s26, s26, 7168')
        else:
            k.I('s_mov_b32 s26, %d' % (q * 7168))
        k.I('s_add_u32 %s, s36, s26' % sr(70 + q))
        k.I('s_add_u32 %s, s37, s26' % sr(74 + q))
        k.I('s_add_u32 %s, s50, s26' % sr(78 + q))
        k.I('s_add_u32 %s, s51, s26' % sr(82 + q))
    k.I('s_lshl_b32 s44, s17, 4')
    k.I('s_add_u32 s44, s44, s18')
    k.I('s_lshl_b32 s44, s44, 7')
    k.I('s_add_u32 s44, s44, 0x%x' % OFF_CNT)
    k.I('s_and_b32 s26, s19, 1')
    k.I('s_lshl_b32 s26, s26, 3')
    k.I('s_add_u32 s26, s26, s20')
    k.I('s_lshr_b32 s57, s19, 1')
    k.I('s_lshl_b32 s62, s57, 11')
    k.I('s_lshl_b32 s63, s26, 2')
    k.I('s_add_u32 s62, s62, s63')
    k.I('s_add_u32 s62, s62, 0x%x' % OFF_CNT)
    k.I('s_lshl_b32 s57, s57, 4')
    k.I('s_add_u32 s57, s57, s26')
    k.I('s_lshl_b32 s57, s57, 7')
    k.I('s_add_u32 s57, s57, 0x%x' % (OFF_CNT + 32768))
    k.I('s_lshl_b32 s63, s17, 11')
    k.I('s_lshl_b32 s26, s18, 2')
    k.I('s_add_u32 s63, s63, s26')
    k.I('s_add_u32 s63, s63, 0x%x' % (OFF_CNT + 32768))
    CS_LDS = 162816
    D1 = [[64, 80], [96, 112]]
    KF = [40, 44]
    OF = [48, 52]
    T = 36

    def stageA(t):
        ops = []
        for j in range(4):
            ops.append('v_cvt_pk_bf16_f32 %s, %s, %s' % (vr(KF[t & 1] + j), vr(KV + 8 * t + 2 * j), vr(KV + 8 * t + 2 * j + 1)))
        for r in range(2):
            ops.append('v_mfma_f32_32x32x16_bf16 %s, %s, %s, 0' % (vr(D1[t & 1][r], 16), vr(KF[t & 1], 4), ar(A_PQ + (t * 2 + r) * 4, 4)))
        return ops

    def stageB(t):
        ops = []
        for r in range(2):
            ops.append('v_add_f32 %s, 0x%x, %s' % (vr(T + r), f2u(1e-6), vr(D1[t & 1][r] + 8)))
        for r in range(2):
            ops.append('v_rcp_f32 %s, %s' % (vr(T + r), vr(T + r)))
        for i in range(8):
            for r in range(2):
                d = D1[t & 1][r]
                ops.append('v_mul_f32 %s, %s, %s' % (vr(d + i), vr(T + r), vr(d + i)))
        for r in range(2):
            d = D1[t & 1][r]
            for j in range(4):
                ops.append('v_cvt_pk_bf16_f32 %s, %s, %s' % (vr(OF[r] + j), vr(d + 2 * j), vr(d + 2 * j + 1)))
        for n in range(2):
            for r in range(2):
                acc = vr(ACC + (n * 2 + r) * 16, 16)
                ops.append('v_mfma_f32_32x32x16_bf16 %s, %s, %s, %s' % (acc, ar(A_WO + (t * 2 + n) * 4, 4), vr(OF[r], 4), acc if t else '0'))
        return ops
    for o in stageA(0):
        k.I(o)
    for t in range(8):
        main = (stageA(t + 1) if t + 1 < 8 else []) + stageB(t)
        bg = b_loads(t + PD) if t + PD < 8 else []
        if t == 7 - min(PD, 2):
            bg = bg + ['buffer_load_dwordx2 %s, v7, %s, s32 offen offset:%d' % (vr(XR + 2 * a, 2), sr(XS, 4), a * 16) for a in range(4)]
        merge(k, main, bg)
    RB = 98304
    red = Kernel('red')
    kmain, k = k, red
    k.I('s_mul_i32 s38, s16, 12288')
    k.I('s_add_u32 s38, s38, %d' % RB)
    k.I('v_add_u32 v10, s38, v2')
    for tp in range(1, 4):
        for q in range(4):
            k.I('ds_write_b128 v10, %s offset:%d' % (vr(ACC + tp * 16 + q * 4, 4), (tp - 1) * 4096 + q * 1024))
    H = ACC
    for tp in range(1, 4):
        k.I('s_xor_b32 s38, s16, %d' % tp)
        k.I('s_mul_i32 s38, s38, 12288')
        k.I('s_add_u32 s38, s38, %d' % (RB + (tp - 1) * 4096))
        k.I('v_add_u32 %s, s38, v2' % vr(40 + tp))
    XU = 64
    for a_ in range(4):
        for b_ in range(2):
            src = XR + 2 * a_ + b_
            k.I('v_lshlrev_b32 %s, 16, %s' % (vr(XU + 4 * a_ + 2 * b_), vr(src)))
            k.I('v_and_b32 %s, 0xffff0000, %s' % (vr(XU + 4 * a_ + 2 * b_ + 1), vr(src)))
    for i in range(16):
        k.I('v_add_f32 %s, %s, %s' % (vr(H + i), vr(H + i), vr(XU + i)))
    k.I('s_waitcnt lgkmcnt(0)')
    k.I('s_barrier')
    for tp in range(1, 4):
        for q in range(4):
            k.I('ds_read_b128 %s, %s offset:%d' % (vr(H + tp * 16 + q * 4, 4), vr(40 + tp), q * 1024))
    for i in range(16):
        k.I('v_add_f32 %s, %s, %s' % (vr(H + i), vr(H + i), vr(H + 16 + i)))
    for i in range(16):
        k.I('v_add_f32 %s, %s, %s' % (vr(H + 32 + i), vr(H + 32 + i), vr(H + 48 + i)))
    for i in range(16):
        k.I('v_add_f32 %s, %s, %s' % (vr(H + i), vr(H + i), vr(H + 32 + i)))
    HP = 12
    for j in range(8):
        k.I('v_cvt_pk_bf16_f32 %s, %s, %s' % (vr(HP + j), vr(H + 2 * j), vr(H + 2 * j + 1)))
    k.I('s_lshl_b32 s38, s21, 5')
    k.I('s_lshl_b32 s39, s22, 1')
    k.I('s_add_u32 s38, s38, s39')
    k.I('s_lshl_b32 s38, s38, 10')
    k.I('s_add_u32 s38, s38, 0x%x' % OFF_H)
    k.I('buffer_store_dwordx4 %s, v2, %s, s38 offen%s' % (vr(HP, 4), ws, STP()), w=['hst'])
    k.I('buffer_store_dwordx4 %s, v2, %s, s38 offen offset:1024%s' % (vr(HP + 4, 4), ws, STP()), w=['hst'])
    k.I('v_add_f32 v36, %s, %s' % (vr(H), vr(H + 1)))
    k.I('v_mul_f32 v37, %s, %s' % (vr(H), vr(H)))
    k.I('v_fmac_f32 v37, %s, %s' % (vr(H + 1), vr(H + 1)))
    for i in range(2, 16):
        k.I('v_add_f32 v36, v36, %s' % vr(H + i))
        k.I('v_fmac_f32 v37, %s, %s' % (vr(H + i), vr(H + i)))
    for o in xhalf_ops(36, 38) + xhalf_ops(37, 38):
        k.I(o)
    k.I('s_lshl_b32 s38, s22, 14')
    k.I('s_lshl_b32 s39, s21, 8')
    k.I('s_add_u32 s38, s38, s39')
    k.I('s_add_u32 s38, s38, 0x%x' % OFF_STAT)
    k.I('v_lshlrev_b32 v38, 3, v4')
    k.I('buffer_store_dwordx2 v[36:37], v38, %s, s38 offen%s' % (ws, STP()), w=['hst'])
    k = kmain
    REDITEMS = red.items

    def dma(soff, sm0, name):
        ops = []
        for hf in range(2):
            ops.append('s_add_u32 m0, %s, %d' % (sr(sm0), hf * 4096))
            ops.append('s_add_u32 s40, %s, %d' % (sr(soff), hf * 4096))
            for t in range(4):
                ops.append(('buffer_load_dwordx4 v2, %s, s40 offen offset:%d lds' % (ws, t * 1024), name))
        return ops

    def d_ks(f):
        if f < 12:
            return (f // 3) * 7 + f % 3
        if f < 20:
            return ((f - 12) // 2) * 7 + 3 + (f - 12) % 2
        return ((f - 20) // 2) * 7 + 5 + (f - 20) % 2

    def d_qc(f):
        ks = d_ks(f)
        return ks // 7, ks % 7

    def wd_loads(f_list):
        ops = []
        for f in f_list:
            q, c = d_qc(f)
            for n in range(2):
                ops.append('buffer_load_dwordx4 %s, %s, %s, %s offen offset:%d' % (
                    ar((f * 2 + n) * 4, 4), 'v2' if c < 4 else 'v3', ws, sr(70 + 4 * n + q), (c % 4) * 1024))
        return ops
    CSV = 64
    NWD0 = OPT.get('nwd0', (14,))[0]
    pre0 = ['s_mov_b32 s42, s34'] + dma(33, 42, 'W0')
    pre0 += ['s_add_u32 s43, s33, 32768', 's_add_u32 s42, s34, 32768'] + dma(43, 42, 'W1')
    pre1 = ['s_mul_i32 s66, s18, %d' % (7 * 128), 's_mul_i32 s39, s16, %d' % (4 * 112 * 128), 's_add_u32 s66, s66, s39',
            's_add_u32 s66, s66, 0x%x' % OFF_CSG]
    for kg in range(4):
        pre1 += ['s_add_u32 s39, s66, %d' % (kg * 112 * 128), 'buffer_load_dwordx4 %s, v2, %s, s39 offen' % (vr(CSV + 4 * kg, 4), ws)]
    pre1 += ['s_add_u32 s43, s33, 65536', 's_add_u32 s42, s34, 65536'] + dma(43, 42, 'W2')
    merge(k, REDITEMS, pre0 if not OPT.get('nopre0') else [], first=0, last=len(REDITEMS) - 30)
    if OPT.get('nopre0'):
        for o in pre0:
            emit(k, o)
    if OPT.get('oldorder'):
        for o in pre1:
            emit(k, o)
    k.need('hst')
    sync_arrive(k, 16, ws, 36, 62, 'L_f_s1')
    csa = []
    for j in range(4):
        csa.append('v_add_f32 %s, %s, %s' % (vr(CSV + j), vr(CSV + j), vr(CSV + 4 + j)))
        csa.append('v_add_f32 %s, %s, %s' % (vr(CSV + 8 + j), vr(CSV + 8 + j), vr(CSV + 12 + j)))
    for j in range(4):
        csa.append('v_add_f32 %s, %s, %s' % (vr(CSV + j), vr(CSV + j), vr(CSV + 8 + j)))
    CS_P = 147456
    csa.append('s_lshl_b32 s39, s16, 10')
    csa.append('s_add_u32 s39, s39, %d' % CS_P)
    csa.append('v_add_u32 v20, s39, v2')
    csa.append('ds_write_b128 v20, %s' % vr(CSV, 4))
    csa.append('s_waitcnt lgkmcnt(0)')
    wl = wd_loads(range(0, NWD0))
    bg2 = (csa + wl) if OPT.get('oldorder') else (pre1 + wl[:4] + csa + wl[4:])
    sync_wait(k, 'L_f_s1', 44, 16, ws, 36, bg2)
    st.stamp()

    X = 128
    for t in range(2, 8):
        k.I('v_add_u32 %s, %d, v2' % (vr(20 + t), 4096 * t))
    VOF = [2, 3] + [20 + t for t in range(2, 8)]
    k.I('s_lshl_b32 s45, s23, 15')
    k.I('s_add_u32 s45, s45, 0x%x' % OFF_H)

    def xload(ks):
        return 'buffer_load_dwordx4 %s, %s, %s, s45 offen offset:%d%s' % (vr(X + 4 * ks, 4), vr(VOF[ks // 4]), ws, (ks % 4) * 1024, LSC())
    XD = OPT.get('xd', (14,))[0]
    CS_EARLY_MARK = len(k.items)
    for ks in range(XD):
        k.I(xload(ks))
    k.I('v_lshlrev_b32 v20, 2, v0')
    k.I('v_add_u32 v21, %d, v20' % CS_P)
    for j in range(4):
        k.I('ds_read_b32 %s, v21 offset:%d' % (vr(CSV + j), j * 1024))
    k.I('v_add_u32 v20, %d, v20' % CS_LDS)
    k.I('v_add_f32 %s, %s, %s' % (vr(CSV), vr(CSV), vr(CSV + 1)))
    k.I('v_add_f32 %s, %s, %s' % (vr(CSV + 2), vr(CSV + 2), vr(CSV + 3)))
    k.I('v_add_f32 %s, %s, %s' % (vr(CSV), vr(CSV), vr(CSV + 2)))
    k.I('ds_write_b32 v20, %s' % vr(CSV))
    SP = 104
    k.I('v_lshlrev_b32 v21, 3, v4')
    k.I('v_lshlrev_b32 v28, 17, v6')
    k.I('v_add_u32 v21, v21, v28')
    k.I('s_lshl_b32 s46, s23, 8')
    k.I('s_add_u32 s46, s46, 0x%x' % OFF_STAT)
    stl = []
    for t in range(8):
        stl.append('s_add_u32 s47, s46, %d' % (t * 16384))
        stl.append('buffer_load_dwordx2 %s, v21, %s, s47 offen%s' % (vr(SP + 2 * t, 2), ws, LSC()))
    k.I('s_mul_i32 s48, s23, 112')
    k.I('s_mul_i32 s47, s18, 7')
    k.I('s_add_u32 s48, s48, s47')
    k.I('s_lshl_b32 s48, s48, 10')
    k.I('s_add_u32 s48, s48, 0x%x' % OFF_ACT)
    k.I('v_add_u32 v8, 0x10000, v2')
    k.I('v_lshlrev_b32 v10, 4, v6')
    k.I('v_add_u32 v10, %d, v10' % CS_LDS)
    ACCC = [32, 48]
    D, L = 8, OPT.get('la', (6,))[0]
    WR = 224
    CSR = 64
    T = 80
    MEAN, RSTD, NMEAN, NA, A2 = 120, 121, 122, 123, 124

    def wread(c, ks):
        slot = c % 4
        return 'ds_read_b128 %s, %s offset:%d' % (ar(WR + (ks % D) * 4, 4), 'v2' if slot < 2 else 'v8', (slot % 2) * 32768 + ks * 1024)

    def epilogue_ops(S, c):
        ops = []
        for q in range(4):
            ops.append('ds_read_b128 %s, v10 offset:%d' % (vr(CSR + 4 * q, 4), c * 128 + q * 32))
        pre = len(ops)
        for i0 in range(0, 8, 2):
            a = []
            for u, i in enumerate((i0, i0 + 1)):
                t = T + u * 4
                a.append([
                    'v_fma_f32 %s, %s, %s, %s' % (vr(t), vr(NMEAN), vr(CSR + i), vr(S + i)),
                    'v_fma_f32 %s, %s, %s, %s' % (vr(t + 1), vr(NMEAN), vr(CSR + 8 + i), vr(S + 8 + i)),
                    'v_mul_f32 %s, %s, %s' % (vr(t + 2), vr(NA), vr(t)),
                    'v_exp_f32 %s, %s' % (vr(t + 2), vr(t + 2)),
                    'v_mul_f32 %s, %s, %s' % (vr(t), vr(t), vr(t + 1)),
                    'v_add_f32 %s, 1.0, %s' % (vr(t + 2), vr(t + 2)),
                    'v_rcp_f32 %s, %s' % (vr(t + 2), vr(t + 2)),
                    'v_mul_f32 %s, %s, %s' % (vr(t), vr(A2), vr(t)),
                    'v_mul_f32 %s, %s, %s' % (vr(T + 8 + i), vr(t), vr(t + 2)),
                ])
            for x, y in zip(a[0], a[1]):
                ops += [x, y]
            ops.append('v_cvt_pk_bf16_f32 %s, %s, %s' % (vr(T + 16 + i0 // 2), vr(T + 8 + i0), vr(T + 8 + i0 + 1)))
        ops.append('s_add_u32 s49, s48, %d' % (c * 1024))
        ops.append(('buffer_store_dwordx4 %s, v2, %s, s49 offen%s' % (vr(T + 16, 4), ws, STP()), 'ast%d' % c))
        return ops, pre

    wd_plan = {}
    rest = list(range(NWD0, 28))
    wts = list(OPT.get('wts', (1, 1, 1, 2, 2, 0)))
    tot = sum(wts); acc_ = 0; pos = 0
    for c, wgt in zip(range(1, 7), wts):
        acc_ += wgt
        upto = len(rest) * acc_ // tot
        wd_plan[c] = rest[pos:upto]; pos = upto

    def refill(c):
        return ['s_add_u32 s43, s33, %d' % (c * 32768), 's_add_u32 s42, s34, %d' % ((c % 4) * 32768)] + dma(43, 42, 'W%d' % c)

    def is_vm(o):
        return isinstance(o, tuple) or o.startswith('buffer_')

    def place(fill, ops, lo, hi):
        groups, cur = [], []
        for o in ops:
            cur.append(o)
            if is_vm(o):
                groups.append(cur); cur = []
        if cur:
            groups.append(cur)
        for i, g in enumerate(groups):
            fill[lo + i * (hi - lo) // len(groups)] += g

    AD = OPT.get('ad', (8,))[0]
    AR, NR = 128, AD + 2

    def act_load(f):
        q, c = d_qc(f)
        ops = []
        for r in range(2):
            ops.append('buffer_load_dwordx4 %s, %s, %s, %s offen offset:%d%s' % (
                vr(AR + ((f % NR) * 2 + r) * 4, 4), 'v2' if c < 4 else 'v3', ws, sr(78 + 4 * r + q), (c % 4) * 1024, LSC()))
        return ops
    DACC = [32, 48, 64, 80]

    def d_mfmas(f):
        mm = []
        for n in range(2):
            for r in range(2):
                acc = vr(DACC[n * 2 + r], 16)
                mm.append('v_mfma_f32_32x32x16_bf16 %s, %s, %s, %s' % (
                    acc, ar((f * 2 + n) * 4, 4), vr(AR + ((f % NR) * 2 + r) * 4, 4), acc if f else '0'))
        return mm

    carry = []

    def body(c):
        nonlocal carry
        S_ = ACCC[c & 1]
        fill = [[] for _ in range(32)]
        post = []
        if c == 0:
            for ks in range(XD, 32):
                fill[ks - XD].append(xload(ks))
            for i, o in enumerate(stl):
                fill[20 + i // 4].append(o)
            for t in range(1, 8):
                post.append('v_add_f32 %s, %s, %s' % (vr(SP), vr(SP), vr(SP + 2 * t)))
                post.append('v_add_f32 %s, %s, %s' % (vr(SP + 1), vr(SP + 1), vr(SP + 2 * t + 1)))
            post += xhalf_ops(SP, SP + 2) + xhalf_ops(SP + 1, SP + 2)
            post += ['v_mul_f32 %s, 0x%x, %s' % (vr(MEAN), f2u(1.0 / 512), vr(SP)),
                     'v_mul_f32 %s, 0x%x, %s' % (vr(SP + 1), f2u(1.0 / 512), vr(SP + 1)),
                     'v_fma_f32 %s, -%s, %s, %s' % (vr(SP + 1), vr(MEAN), vr(MEAN), vr(SP + 1)),
                     'v_max_f32 %s, 0, %s' % (vr(SP + 1), vr(SP + 1)),
                     'v_add_f32 %s, 0x%x, %s' % (vr(SP + 1), f2u(1e-5), vr(SP + 1)),
                     'v_rsq_f32 %s, %s' % (vr(RSTD), vr(SP + 1)),
                     'v_sub_f32 %s, 0, %s' % (vr(NMEAN), vr(MEAN)),
                     'v_mul_f32 %s, 0x%x, %s' % (vr(NA), f2u(-LOG2E), vr(RSTD)),
                     'v_mul_f32 %s, %s, %s' % (vr(A2), vr(RSTD), vr(RSTD))]
        else:
            ops, pre = epilogue_ops(ACCC[1 - (c & 1)], c - 1)
            fill[0] = ops[:pre]
            rest = ops[pre:]
            tailops = rest[-2:]
            rest = rest[:-2]
            vmops = list(carry) + wd_loads(wd_plan[c])
            carry = []
            groups, cur = [], []
            for o in vmops:
                cur.append(o)
                if is_vm(o):
                    groups.append(cur); cur = []
            lo, hi = 1, 27
            vhi = 17 if c >= 5 else hi
            nslots = vhi - lo
            nv = min(len(groups), nslots - (OPT.get('minv', (15,))[0] if c < 5 else 4))
            vslots = sorted(set(lo + (2 * i + 1) * nslots // (2 * nv) for i in range(nv))) if nv else []
            for i, g in enumerate(groups):
                fill[vslots[i * len(vslots) // len(groups)]] += g
            free = [x for x in range(3, hi) if x not in vslots]
            for i, o in enumerate(rest):
                fill[free[i * len(free) // len(rest)]].append(o)
            last = max(free[-1], 26)
            fill[last if last not in vslots else 26] += tailops
        for ks in range(32):
            TW = OPT.get('tw', (2,))[0]
            if ks % TW == 0:
                k.touch(ar(WR + ((min(31, ks + TW - 1)) % D) * 4, 4))
            k.I('v_mfma_f32_32x32x16_bf16 %s, %s, %s, %s' % (
                vr(S_, 16), ar(WR + (ks % D) * 4, 4), vr(X + 4 * ks, 4), vr(S_, 16) if ks else '0'))
            if ks == 32 - L and c < 6:
                k.need('W%d' % (c + 1))
                if c == 4:
                    k.need('ast0', 'ast1', 'ast2')
                k.I('s_barrier')
                if c == 4:
                    flag_store(k, 16, ws, 28, 63, 'L_f_fa')
                if c + 3 <= 6:
                    r = refill(c + 3)
                    for o in r[:2 + 2 + 4]:
                        fill[ks].append(o) if not is_vm(o) else None
                    first4 = [o for o in r[4:8]]
                    for i, o in enumerate(first4):
                        fill[ks + 1 + i].append(o)
                    carry = r[8:]
            if c == 6 and ks == 10:
                k.need('ast3', 'ast4')
                k.I('s_barrier')
                k.I('s_add_u32 s63, s63, 32768')
                flag_store(k, 16, ws, 28, 63, 'L_f_fb')
            if c == 6 and ks == 27:
                poll_check_spin(k, 'L_f_sa', 16, ws, 28, 57)
                k.I('s_barrier')
            if c == 6 and ks >= 27:
                for o in act_load(ks - 27):
                    k.I(o)
            if ks + L < 32:
                k.I(wread(c, ks + L))
            elif c < 6:
                k.I(wread(c + 1, ks + L - 32))
            for o in fill[ks]:
                if OPT.get('noepi') and isinstance(o, str) and o.startswith('v_') and c > 0: continue
                if OPT.get('novm') and c > 0 and is_vm(o) and not (isinstance(o, tuple) and o[1].startswith('ast')): continue
                emit(k, o)
            if c == 6 and ks == 14:
                poll_issue(k, 16, ws, 28, 57)
        for o in post:
            emit(k, o)

    k.need('W0')
    k.I('s_waitcnt lgkmcnt(0)')
    k.I('s_barrier')
    for n in range(L):
        k.I(wread(0, n))
    body(0)
    st.stamp()
    for c in range(1, 7):
        body(c)
        if c in OPT.get('bat', ()): st.stamp()
    st.stamp()
    ops, pre = epilogue_ops(ACCC[0], 6)
    for o in ops:
        emit(k, o)
    if OPT.get('oldorder'):
        for o in act_load(5) + act_load(6) + act_load(7):
            k.I(o)

    k.need('ast5', 'ast6')
    k.I('s_barrier')
    k.I('s_add_u32 s63, s63, 32768')
    flag_store(k, 16, ws, 28, 63, 'L_f_fc')
    if not OPT.get('oldorder'):
        for o in act_load(5) + act_load(6) + act_load(7):
            k.I(o)
    k.I('s_add_u32 s57, s57, 32768')
    PL = OPT.get('plead', (3,))[0]
    for f in range(28):
        nxt = f + AD
        if nxt in (12, 20):
            poll_check_spin(k, 'L_f_s%d' % nxt, 16, ws, 28, 57)
            k.I('s_barrier')
            k.I('s_add_u32 s57, s57, 32768')
        merge(k, d_mfmas(f), act_load(nxt) if nxt < 28 else [])
        if nxt + PL in (12, 20) or (f == 0 and 12 - AD - PL <= 0 and False):
            poll_issue(k, 16, ws, 28, 57)
    st.stamp()
    k.I('s_mul_i32 s38, s16, 12288')
    k.I('v_add_u32 v10, s38, v2')
    for tp in range(1, 4):
        for q in range(4):
            k.I('ds_write_b128 v10, %s offset:%d' % (vr(DACC[tp] + q * 4, 4), (tp - 1) * 4096 + q * 1024))
    for tp in range(1, 4):
        k.I('s_xor_b32 s38, s16, %d' % tp)
        k.I('s_mul_i32 s38, s38, 12288')
        k.I('s_add_u32 s38, s38, %d' % ((tp - 1) * 4096))
        k.I('v_add_u32 %s, s38, v2' % vr(20 + tp))
    O = DACC[0]
    for j in range(8):
        k.I('v_lshlrev_b32 %s, 16, %s' % (vr(96 + 2 * j), vr(HP + j)))
        k.I('v_and_b32 %s, 0xffff0000, %s' % (vr(96 + 2 * j + 1), vr(HP + j)))
    for i in range(16):
        k.I('v_add_f32 %s, %s, %s' % (vr(O + i), vr(O + i), vr(96 + i)))
    k.I('s_waitcnt lgkmcnt(0)')
    k.I('s_barrier')
    for tp in range(1, 4):
        for q in range(4):
            k.I('ds_read_b128 %s, %s offset:%d' % (vr(DACC[tp] + q * 4, 4), vr(20 + tp), q * 1024))
    for i in range(16):
        k.I('v_add_f32 %s, %s, %s' % (vr(O + i), vr(O + i), vr(DACC[1] + i)))
    for i in range(16):
        k.I('v_add_f32 %s, %s, %s' % (vr(DACC[2] + i), vr(DACC[2] + i), vr(DACC[3] + i)))
    for i in range(16):
        k.I('v_add_f32 %s, %s, %s' % (vr(O + i), vr(O + i), vr(DACC[2] + i)))
    P = 96
    for j in range(8):
        k.I('v_cvt_pk_bf16_f32 %s, %s, %s' % (vr(P + j), vr(O + 2 * j), vr(O + 2 * j + 1)))
    for a in (0, 2):
        b = P + 2 * a
        k.I('v_permlane32_swap_b32 %s, %s' % (vr(b), vr(b + 2)))
        k.I('v_permlane32_swap_b32 %s, %s' % (vr(b + 1), vr(b + 3)))
    k.I('v_lshlrev_b32 v8, 10, v4')
    k.I('v_lshlrev_b32 v9, 4, v6')
    k.I('v_add_u32 v8, v8, v9')
    opol = ' sc1' if OPT.get('osc1') else (' nt' if OPT.get('ont') else '')
    k.I('buffer_store_dwordx4 %s, v8, %s, s32 offen%s' % (vr(P, 4), sr(OS, 4), opol))
    k.I('buffer_store_dwordx4 %s, v8, %s, s32 offen offset:32%s' % (vr(P + 4, 4), sr(OS, 4), opol))
    st.stamp(); st.stamp(True)
    if OPT.get('xcc'):
        b = st.base + 2 * st.n
        k.I('s_getreg_b32 s%d, hwreg(HW_REG_XCC_ID)' % b)
        k.I('s_getreg_b32 s%d, hwreg(HW_REG_HW_ID)' % (b + 1))
        st.n += 1
    st.flush()
    if OPT.get('dbgt'):
        k.I('s_sub_u32 s96, s96, 512')
        k.I('s_subb_u32 s97, s97, 0')
        k.I('s_mov_b32 s98, 256')
        k.I('s_mov_b32 s99, 0x00020000')
        gen4.dbg_time(k, 96, 90, 11, 16)
    k.label('L_f_end')
    k.I('s_endpgm')
    return k, dict(lds=163840, grid=256, block=256)


if __name__ == '__main__':
    gen1.STAMPS = len(sys.argv) > 2 and sys.argv[2] == 'stamps'
    for o in sys.argv[3:]:
        if '=' in o:
            kk_, vv_ = o.split('=')
            gen1.OPT[kk_] = tuple(int(x) for x in vv_.split(','))
        else:
            gen1.OPT[o] = True
    gens = [('qkv_kernel', gen_a8), ('bcd_kernel', gen_bcd)]
    ks = []
    for label, g in gens:
        kk, cc = g()
        ks.append((label, kk, cc))
        print(label, kk.stats(), kk.maxreg())
    open(sys.argv[1], 'w').write(wrap(ks))
```

```python
import sys
from asmgen import Kernel
import gen1
from gen1 import *
from gen2 import Sched, xhalf_ops
from gen3 import emit, ln_phi_ops


def APOL():
    return ' sc1' if OPT.get('asc1') else (' nt' if OPT.get('ant') else '')


class Multi:
    def __init__(self, parts):
        self.parts = parts
    def finish(self):
        return '\n'.join(p.finish() for p in self.parts)
    def maxreg(self):
        mx = {'v': -1, 'a': -1, 's': -1}
        for p in self.parts:
            m = p.maxreg()
            for t in mx:
                mx[t] = max(mx[t], m[t])
        return mx
    def stats(self):
        return [p.stats() for p in self.parts]


def pair_signal(flag_lds_sgpr, vtmp, vone):
    return ['v_mov_b32 %s, %s' % (vr(vtmp), sr(flag_lds_sgpr)), 'v_mov_b32 %s, 1' % vr(vone),
            'ds_write_b32 %s, %s' % (vr(vtmp), vr(vone))]


def pair_wait(k, name, flag_lds_sgpr, vtmp, vval, stmp):
    k.I('v_mov_b32 %s, %s' % (vr(vtmp), sr(flag_lds_sgpr)))
    k.label(name)
    k.I('ds_read_b32 %s, %s' % (vr(vval), vr(vtmp)))
    k.I('v_readfirstlane_b32 %s, %s' % (sr(stmp), vr(vval)))
    k.I('s_cmp_eq_u32 %s, 0' % sr(stmp))
    k.I('s_cbranch_scc1 %s' % name)


def q_sync(k, name, addr):
    k.I('v_mov_b32 v22, %d' % addr)
    k.I('v_mov_b32 v23, 1')
    k.I('s_mov_b64 exec, 1')
    k.I('ds_add_u32 v22, v23')
    k.I('s_mov_b64 exec, -1')
    k.label(name)
    k.I('ds_read_b32 v23, v22')
    k.I('v_readfirstlane_b32 s79, v23')
    k.I('s_cmp_lt_u32 s79, 4')
    k.I('s_cbranch_scc1 %s' % name)


def gen_a8():
    kp = Kernel('a_pro')
    k = kp
    XS, WQ, WS, PA, PB, DB = 4, 8, 12, 16, 20, 24
    ws = sr(WS, 4)
    k.I('s_cmp_ge_u32 s2, 256')
    k.I('s_cbranch_scc1 L_a_end')
    load_srds(k, [('x', XS), ('wqkv', WQ), ('ws', WS), ('dbg', DB)])
    k.I('s_load_dwordx2 s[40:41], s[0:1], %d' % KA['wo'])
    k.I('s_load_dwordx4 s[44:47], s[0:1], %d' % KA['wg'])
    k.I('s_load_dwordx2 s[42:43], s[0:1], %d' % KA['wd'])
    if gen1.STAMPS:
        k.I('s_memrealtime s[84:85]')
        k.I('s_memtime s[86:87]')
    k.I('v_and_b32 v1, 63, v0')
    k.I('v_lshrrev_b32 v2, 6, v0')
    k.I('v_readfirstlane_b32 s27, v2')
    k.I('s_mov_b32 s39, s27')
    k.I('s_mov_b32 s27, 0x00020000')
    k.I('s_and_b32 s28, s39, 3')
    k.I('s_and_b32 s34, s2, 7')
    k.I('s_lshr_b32 s35, s2, 3')
    k.I('s_and_b32 s32, s34, 3')
    k.I('s_lshl_b32 s32, s32, 3')
    k.I('s_and_b32 s36, s35, 7')
    k.I('s_add_u32 s32, s32, s36')
    k.I('s_lshr_b32 s33, s34, 2')
    k.I('s_lshl_b32 s33, s33, 2')
    k.I('s_lshr_b32 s36, s35, 3')
    k.I('s_add_u32 s33, s33, s36')
    k.I('s_and_b32 s29, s28, 1')
    k.I('s_lshr_b32 s30, s28, 1')
    k.I('s_xor_b32 s31, s29, s30')
    k.I('s_mov_b32 s70, 0x%x' % ONES_BF16)
    k.I('s_mov_b32 s81, 0x%x' % f2u(1e-6))
    if OPT.get('dbgt'):
        k.I('s_memrealtime s[90:91]')
    k.I('s_cmp_ge_u32 s39, 4')
    k.I('s_cbranch_scc1 L_a_q')

    X, WR = 112, 80
    LA = 4
    E = 131072
    E_ST = E
    E_CS = E + 1024
    E_TB = E + 4096
    E_FL = E + 3072
    E_KV = E + 8192
    WSLOT = {('k', 0): 1, ('k', 1): 3, ('k', 2): 5, ('k', 3): 7, ('v', 0): 0, ('v', 1): 1, ('v', 2): 2, ('v', 3): 3,
             ('q', 0): 4, ('q', 1): 5, ('q', 2): 6, ('q', 3): 7}
    XA = 16
    WE, WO_, WE2, WO2 = 12, 13, 14, 15
    MEAN, RSTD, CK, CV, T0 = 2, 3, 4, 5, 6
    LN16 = 7

    def common_setup(k, need_w_addr=True):
        k.I('v_and_b32 v2, 31, v1')
        k.I('s_lshl_b32 s37, s29, 5')
        k.I('v_add_u32 v2, s37, v2')
        k.I('v_lshlrev_b32 v2, 8, v2')
        k.I('v_lshrrev_b32 v3, 5, v1')
        k.I('v_and_b32 v4, 15, v1')
        k.I('v_xor_b32 v4, v3, v4')
        k.I('v_lshlrev_b32 v4, 4, v4')
        k.I('s_lshl_b32 s37, s31, 5')
        k.I('v_xor_b32 v4, s37, v4')
        for s in range(8):
            k.I('v_xor_b32 v5, %d, v4' % (32 * s))
            k.I('v_add_u32 %s, v2, v5' % vr(XA + s))
        k.I('v_bfe_u32 v4, v1, 2, 2')
        k.I('v_lshl_add_u32 v4, v3, 3, v4')
        k.I('v_lshlrev_b32 v4, 7, v4')
        k.I('v_bfe_u32 v5, v1, 4, 1')
        k.I('v_lshlrev_b32 v5, 1, v5')
        k.I('v_bfe_u32 v6, v1, 1, 1')
        k.I('v_add_u32 v5, v5, v6')
        k.I('s_lshl_b32 s37, s30, 2')
        k.I('v_add_u32 v5, s37, v5')
        k.I('v_bfe_u32 v6, v1, 3, 1')
        k.I('v_lshlrev_b32 v6, 2, v6')
        k.I('v_xor_b32 v5, v5, v6')
        k.I('v_lshlrev_b32 v5, 4, v5')
        k.I('v_and_b32 v6, 1, v1')
        k.I('v_lshlrev_b32 v6, 3, v6')
        k.I('v_add3_u32 v4, v4, v5, v6')
        k.I('s_lshl_b32 s37, s31, 11')
        k.I('v_add_u32 %s, s37, v4' % vr(WE))
        k.I('s_xor_b32 s37, s37, 2048')
        k.I('v_add_u32 %s, s37, v4' % vr(WO_))
        k.I('v_add_u32 %s, 0x10000, %s' % (vr(WE2), vr(WE)))
        k.I('v_add_u32 %s, 0x10000, %s' % (vr(WO2), vr(WO_)))
        k.I('v_bfe_u32 v5, v1, 4, 1')
        k.I('v_and_b32 v6, 1, v1')
        k.I('v_cmp_eq_u32 vcc, v5, v6')
        k.I('v_mov_b32 v5, s70')
        k.I('v_cndmask_b32 v5, 0, v5, vcc')
        for j in range(4):
            k.I('v_accvgpr_write_b32 a%d, v5' % (4 + j))
        k.I('s_lshl_b32 s72, s29, 1')
        k.I('s_add_u32 s73, s72, s30')
        k.I('s_lshl_b32 s73, s73, 8')
        k.I('s_add_u32 s73, s73, %d' % E_ST)
        k.I('s_xor_b32 s74, s73, 256')
        k.I('s_lshl_b32 s75, s30, 1')
        k.I('s_add_u32 s75, s75, s29')
        k.I('s_lshl_b32 s75, s75, 7')
        k.I('s_add_u32 s75, s75, %d' % E_CS)
        k.I('s_xor_b32 s76, s75, 128')
        k.I('s_lshl_b32 s77, s39, 8')
        k.I('s_add_u32 s77, s77, %d' % E_TB)
        k.I('s_lshl_b32 s40, s28, 2')
        k.I('s_add_u32 s40, s40, %d' % E_FL)
        k.I('s_xor_b32 s41, s40, 4')
        k.I('v_and_b32 v0, 31, v1')
        k.I('v_lshlrev_b32 v0, 2, v0')
        k.I('v_and_b32 v26, 16, v1')
        k.I('v_cmp_ne_u32 s[82:83], 0, v26')
        k.I('v_lshlrev_b32 %s, 4, v1' % vr(LN16))

    def xread(n):
        c, s = n // 8, n % 8
        return 'ds_read_b128 %s, %s offset:%d' % (vr(X + 4 * n, 4), vr(XA + s), (c % 2) * 32768)

    def wreads(part, ks):
        c, s = ks // 8, ks % 8
        slot = WSLOT[(part, c)]
        a = ((WE, WO_) if slot < 4 else (WE2, WO2))[s & 1]
        off = (slot % 4) * 16384 + (s & ~1) * 2048
        return ['ds_read_b64_tr_b16 %s, %s offset:%d' % (vr(WR + 4 * s, 2), vr(a), off),
                'ds_read_b64_tr_b16 %s, %s offset:%d' % (vr(WR + 4 * s + 2, 2), vr(a), off + 512)]

    def stats_finish_ops():
        return ['v_lshlrev_b32 v26, 1, v0', 'v_add_u32 v27, s74, v26', 'v_add_u32 v26, s73, v26',
                'ds_read_b64 v[24:25], v26', 'ds_read_b64 v[28:29], v27',
                'v_add_f32 v24, v24, v28', 'v_add_f32 v25, v25, v29',
                'v_mul_f32 %s, 0x%x, v24' % (vr(MEAN), f2u(1.0 / 512)),
                'v_mul_f32 v25, 0x%x, v25' % f2u(1.0 / 512),
                'v_fma_f32 v25, -%s, %s, v25' % (vr(MEAN), vr(MEAN)),
                'v_max_f32 v25, 0, v25', 'v_add_f32 v25, 0x%x, v25' % f2u(1e-5), 'v_rsq_f32 %s, v25' % vr(RSTD)]

    kk = Kernel('a_kv')
    k = kk
    st = Stamper(k, 1, ws, base=88, tmp=40)
    ACK, ACV = 48, 64
    MN, RS = 16, 32
    k.I('s_lshl_b32 s38, s2, 2')
    k.I('s_add_u32 s38, s38, s28')
    k.I('s_mov_b32 s19, 0x00020000')
    k.I('s_mov_b32 s23, 0x00020000')
    if not OPT.get('nocode'):
        k.I('s_getpc_b64 s[34:35]')
        k.label('L_a_pc')
        k.I('s_sub_u32 s34, s34, L_a_pc-qkv_kernel')
        k.I('s_subb_u32 s35, s35, 0')
        k.I('s_lshr_b32 s36, s2, 3')
        k.I('s_lshl_b32 s36, s36, 2')
        k.I('s_add_u32 s36, s36, s28')
        k.I('s_lshl_b32 s36, s36, 10')
        k.I('v_lshlrev_b32 v8, 4, v1')
        k.I('v_add_u32 v8, s36, v8')
        k.I('v_min_u32 v8, L_text_end-qkv_kernel-4, v8')
        k.I('global_load_dword v239, v8, s[34:35]')
    k.I('s_waitcnt lgkmcnt(0)')
    prep_decode(k)
    common_setup(k)
    for j in range(4):
        k.I('v_accvgpr_write_b32 a%d, s70' % j)
    k.I('s_lshl_b32 s37, s33, 2')
    k.I('s_add_u32 s37, s37, s28')
    k.I('s_lshl_b32 s37, s37, 11')
    k.I('s_add_u32 s71, s37, 0x%x' % OFF_KVZ)
    k.I('s_lshl_b32 s78, s33, 2')
    if OPT.get('touch'):
        k.I('s_and_b32 s34, s2, 7')
        k.I('s_lshr_b32 s35, s2, 3')
        k.I('s_and_b32 s36, s34, 3')
        k.I('s_lshl_b32 s36, s36, 19')
        k.I('s_lshl_b32 s37, s35, 14')
        k.I('s_add_u32 s36, s36, s37')
        k.I('s_lshl_b32 s37, s28, 12')
        k.I('s_add_u32 s36, s36, s37')
        k.I('v_lshlrev_b32 v8, 4, v1')
        for t in range(4):
            k.I('buffer_load_dword %s, v8, %s, s36 offen offset:%d' % (vr(220 + t), sr(XS, 4), t * 1024))
        k.I('v_lshrrev_b32 v9, 5, v1')
        k.I('s_movk_i32 s37, 3072')
        k.I('v_mul_lo_u32 v9, v9, s37')
        k.I('v_and_b32 v10, 31, v1')
        k.I('v_lshl_add_u32 v9, v10, 4, v9')
        k.I('s_lshl_b32 s35, s35, 4')
        k.I('s_lshl_b32 s37, s28, 2')
        k.I('s_add_u32 s35, s35, s37')
        k.I('s_mul_i32 s35, s35, 3072')
        k.I('s_lshr_b32 s34, s34, 2')
        k.I('s_lshl_b32 s34, s34, 9')
        k.I('s_add_u32 s35, s35, s34')
        for hh in range(2):
            for p in range(3):
                k.I('s_add_u32 s34, s35, %d' % (hh * 2 * 3072))
                k.I('buffer_load_dword %s, v9, %s, s34 offen offset:%d' % (vr(224 + hh * 3 + p), sr(WQ, 4), p * 1024))
        k.I('v_lshrrev_b32 v10, 3, v1')
        k.I('v_mul_lo_u32 v10, v10, s50')
        k.I('v_and_b32 v9, 7, v1')
        k.I('v_lshl_add_u32 v10, v9, 4, v10')
        k.I('s_lshl_b32 s36, s50, 3')
        k.I('s_mov_b32 s34, s48')
        k.I('s_mov_b32 s35, s49')
        for t in range(4):
            k.I('buffer_load_dword %s, v10, %s, s34 offen' % (vr(230 + t), sr(PA, 4)))
            k.I('buffer_load_dword %s, v10, %s, s35 offen' % (vr(234 + t), sr(PB, 4)))
            k.I('s_add_u32 s34, s34, s36')
            k.I('s_add_u32 s35, s35, s36')
    if OPT.get('tlb'):
        k.I('s_lshr_b32 s34, s2, 3')
        k.I('s_lshl_b32 s34, s34, 2')
        k.I('s_add_u32 s34, s34, s28')
        k.I('s_lshl_b32 s34, s34, 17')
        k.I('s_add_u32 s34, s34, 0x%x' % OFF_PQ)
        k.I('v_mov_b32 v8, 0')
        k.I('buffer_load_dword v238, v8, %s, s34 offen' % ws)
    k.I('v_lshlrev_b32 v8, 2, v1')
    k.I('v_add_u32 v8, %d, v8' % E_FL)
    k.I('v_mov_b32 v9, 0')
    k.I('v_cmp_gt_u32 vcc, 32, v1')
    k.I('s_and_saveexec_b64 s[60:61], vcc')
    k.I('ds_write_b32 v8, v9')
    k.I('s_mov_b64 exec, s[60:61]')
    k.I('s_waitcnt lgkmcnt(0)')
    S = Sched(64)
    GS = [0, 8, 16, 24, 32, 48]
    pre = ['s_barrier']
    for n in range(LA):
        pre += [xread(n)] + wreads('k', n)
    for g in range(1, 6):
        if g == 5 and not OPT.get('oldbar'):
            continue
        S.at(GS[g] - LA - 1, ['s_barrier'])
    if OPT.get('oldbar'):
        S.at(47, ['s_barrier'])
        S.at(62, ['s_barrier'])
    for n in range(64):
        part = 'kv'[n // 32]
        s = n % 8
        m = n + LA
        if m < 64:
            if m == 16:
                S.at(n, ['v_add_u32 %s, 0x10000, %s' % (vr(XA + t), vr(XA + t)) for t in range(8)])
            S.at(n, ([xread(m)] if m < 32 else []) + wreads('kv'[m // 32], m % 32))
        if s % 2 == 0:
            ca = ar(8 + 4 * (n // 32), 4)
            S.at(n, ['v_mfma_f32_16x16x32_bf16 %s, a[4:7], %s, %s' % (ca, vr(WR + 4 * s, 4), '0' if n % 32 == 0 else ca)])

    if not OPT.get('oldbar'):
        S.at(43, ['s_waitcnt lgkmcnt(0)', 's_barrier'])

    def lane_form(dst, a0, tmp):
        return ['v_accvgpr_read_b32 %s, a%d' % (vr(dst), a0), 'v_accvgpr_read_b32 %s, a%d' % (vr(tmp), a0 + 1),
                'v_cndmask_b32 %s, %s, %s, s[82:83]' % (vr(dst), vr(dst), vr(tmp))]
    KOFF = bool(OPT.get('koff'))
    if KOFF:
        S.at(31, lane_form(CK, 8, 27) + ['v_add_u32 v26, s75, v0', 'ds_write_b32 v26, %s' % vr(CK),
                                         's_lshl_b32 s79, s28, 12', 's_add_u32 s79, s79, %d' % E_KV, 'v_add_u32 v27, s79, %s' % vr(LN16)])
        S.at(33, ['ds_write_b128 v27, %s offset:%d' % (vr(ACK + 4 * q, 4), q * 1024) for q in range(4)] + ['s_waitcnt lgkmcnt(0)'])
        S.at(33, ['s_barrier'] + stats_finish_ops() +
             ['v_add_u32 v26, s77, v0', 'ds_write_b32 v26, %s' % vr(MEAN), 'ds_write_b32 v26, %s offset:128' % vr(RSTD),
              'v_lshrrev_b32 v26, 5, v1', 'v_lshlrev_b32 v26, 4, v26', 'v_add_u32 %s, s77, v26' % vr(T0)])
    else:
        S.at(31, lane_form(CK, 8, 27) + ['v_add_u32 v26, s75, v0', 'ds_write_b32 v26, %s' % vr(CK), 's_waitcnt lgkmcnt(0)'])
        S.at(33, ['s_barrier', 'v_add_u32 v26, s76, v0', 'ds_read_b32 v30, v26'] + stats_finish_ops() +
             ['v_add_f32 %s, %s, v30' % (vr(CK), vr(CK)),
              'v_add_u32 v26, s77, v0', 'ds_write_b32 v26, %s' % vr(MEAN), 'ds_write_b32 v26, %s offset:128' % vr(RSTD),
              'v_lshrrev_b32 v26, 5, v1', 'v_lshlrev_b32 v26, 4, v26', 'v_add_u32 %s, s77, v26' % vr(T0)])
    rd = []
    for a in range(4):
        rd.append('ds_read_b128 %s, %s offset:%d' % (vr(MN + 4 * a, 4), vr(T0), a * 32))
        rd.append('ds_read_b128 %s, %s offset:%d' % (vr(RS + 4 * a, 4), vr(T0), 128 + a * 32))
    S.at(34, rd)
    if not KOFF:
        ke = []
        for i in range(0, 16, 2):
            ke += ln_phi_ops([ACK + i, ACK + i + 1], [MN + i, MN + i + 1], [CK, CK], [RS + i, RS + i + 1], [8, 9])
            ke.append('v_cvt_pk_bf16_f32 %s, %s, %s' % (vr(ACK + i // 2), vr(ACK + i), vr(ACK + i + 1)))
        S.spread(36, 61, ke)
    if OPT.get('touch2'):
        tp = ['s_lshr_b32 s35, s2, 3', 's_lshl_b32 s35, s35, 4', 's_lshl_b32 s34, s28, 2', 's_add_u32 s35, s35, s34',
              's_mul_i32 s35, s35, 3072', 's_and_b32 s34, s2, 7', 's_lshr_b32 s34, s34, 2', 's_lshl_b32 s34, s34, 9',
              's_add_u32 s35, s35, s34',
              'v_lshrrev_b32 v9, 5, v1', 'v_mul_u32_u24 v9, 0xc00, v9', 'v_and_b32 v8, 31, v1', 'v_lshl_add_u32 v9, v8, 4, v9']
        for hh in range(2):
            tp.append('s_add_u32 s34, s35, %d' % (hh * 2 * 3072))
            tp.append('buffer_load_dword %s, v9, %s, s34 offen offset:2048' % (vr(64 + hh * 2), sr(WQ, 4)))
            tp.append('buffer_load_dword %s, v9, %s, s34 offen' % (vr(65 + hh * 2), sr(WQ, 4)))
        if OPT.get('touch3'):
            tp += ['v_lshrrev_b32 v9, 3, v1', 'v_mul_lo_u32 v9, v9, s50', 'v_and_b32 v8, 7, v1', 'v_lshl_add_u32 v9, v8, 4, v9',
                   's_lshl_b32 s36, s50, 3', 's_mov_b32 s34, s48', 's_mov_b32 s35, s49']
            for t in range(4):
                tp.append('buffer_load_dword %s, v9, %s, s34 offen' % (vr(68 + t), sr(PA, 4)))
                tp.append('buffer_load_dword %s, v9, %s, s35 offen' % (vr(72 + t), sr(PB, 4)))
                tp.append('s_add_u32 s34, s34, s36')
                tp.append('s_add_u32 s35, s35, s36')
        S.spread(OPT.get('tpos', (1,))[0], OPT.get('tpos', (1,))[0] + 14, tp)
    S.at(46 if OPT.get('oldbar') else 42, ['v_mov_b32 v6, 0', 'buffer_load_dword v11, v6, %s, s78 offen sc1' % sr(DB, 4)])
    pd = ['v_lshrrev_b32 v10, 3, v1', 'v_mul_lo_u32 v10, v10, s50', 'v_and_b32 v6, 7, v1', 'v_lshlrev_b32 v6, 4, v6',
          'v_add_u32 v10, v10, v6', 's_lshl_b32 s80, s50, 3', 's_lshl_b32 s79, s28, 13']
    for t in range(8):
        base = 's48' if t < 4 else 's49'
        pd.append('s_add_u32 m0, s79, %d' % (t * 1024))
        pd.append(('buffer_load_dwordx4 v10, %s, %s offen lds' % (sr(PA if t < 4 else PB, 4), base), 'prep'))
        pd.append('s_add_u32 %s, %s, s80' % (base, base))
    S.spread(OPT.get('ppos', (52,))[0], 63, pd)
    for o in pre:
        emit(k, o)
    st.stamp()
    for n in range(64):
        part, ks = n // 32, n % 32
        acc = vr([ACK, ACV][part], 16)
        if n % 2 == 0:
            k.touch(vr(WR + 4 * ((n + 1) % 8), 4))
            if part == 0:
                k.touch(vr(X + 4 * (ks + 1), 4))
        k.I('v_mfma_f32_32x32x16_bf16 %s, %s, %s, %s' % (acc, vr(X + 4 * ks, 4), vr(WR + 4 * (n % 8), 4), acc if ks else '0'))
        for o in S.slots[n]:
            emit(k, o)
        if n in OPT.get('kvat', (31,)):
            st.stamp()
    st.stamp()
    TT = ACK + 8
    PF = X
    PAD = [X + 32 + f for f in range(8)]
    for o in lane_form(CV, 12, TT) + ['v_add_u32 %s, s75, v0' % vr(TT), 'ds_write_b32 %s, %s offset:512' % (vr(TT), vr(CV))] + \
            pair_signal(40, TT + 1, TT + 2):
        emit(k, o)
    p0, p1 = PAD[0], PAD[1]
    for o in ['v_bfe_u32 %s, v1, 2, 2' % vr(p0), 'v_lshrrev_b32 %s, 5, v1' % vr(p1), 'v_lshl_add_u32 %s, %s, 2, %s' % (vr(p0), vr(p1), vr(p0)),
              'v_lshlrev_b32 %s, 7, %s' % (vr(p0), vr(p0)), 'v_and_b32 %s, 3, v1' % vr(p1), 'v_lshl_add_u32 %s, %s, 3, %s' % (vr(p0), vr(p1), vr(p0)),
              'v_bfe_u32 %s, v1, 4, 1' % vr(p1),
              's_cmp_eq_u32 s68, 1', 's_cselect_b32 s79, 12, 5', 's_cselect_b32 s60, 32, 64', 's_cselect_b32 s61, 64, 2048',
              's_cselect_b32 s62, 11, 12', 's_lshl_b32 s62, 1, s62',
              'v_lshlrev_b32 %s, s79, %s' % (vr(p1), vr(p1)), 's_lshl_b32 s80, s28, 13',
              'v_add3_u32 %s, %s, %s, s80' % (vr(p0), vr(p0), vr(p1)),
              'v_add_u32 %s, s60, %s' % (vr(PAD[1]), vr(p0)), 'v_add_u32 %s, s61, %s' % (vr(PAD[2]), vr(p0)),
              'v_add_u32 %s, s61, %s' % (vr(PAD[3]), vr(PAD[1]))]:
        k.I(o)
    for f in range(4):
        k.I('v_add_u32 %s, s62, %s' % (vr(PAD[4 + f]), vr(PAD[f])))
    pair_wait(k, 'L_a_pw0', 41, TT + 1, TT + 2, 79)
    for o in ['v_add_u32 %s, s76, v0' % vr(TT), 'ds_read_b32 %s, %s offset:512' % (vr(TT + 1), vr(TT)),
              'v_add_f32 %s, %s, %s' % (vr(CV), vr(CV), vr(TT + 1))]:
        emit(k, o)
    ve = []
    for i in range(16):
        ve.append('v_fma_f32 %s, -%s, %s, %s' % (vr(ACV + i), vr(MN + i), vr(CV), vr(ACV + i)))
    for i in range(16):
        ve.append('v_mul_f32 %s, %s, %s' % (vr(ACV + i), vr(RS + i), vr(ACV + i)))
    for j in range(8):
        ve.append('v_cvt_pk_bf16_f32 %s, %s, %s' % (vr(ACV + j), vr(ACV + 2 * j), vr(ACV + 2 * j + 1)))
    for o in ve:
        k.I(o)
    DKV, DZ = 16, 32
    if KOFF:
        k.I('s_lshl_b32 s79, s28, 2')
        k.I('s_add_u32 s79, s79, %d' % (E_FL + 64))
        pair_wait(k, 'L_a_pwk', 79, TT + 1, TT + 2, 80)
        k.I('s_lshl_b32 s79, s28, 12')
        k.I('s_add_u32 s79, s79, %d' % E_KV)
        k.I('v_add_u32 %s, s79, %s' % (vr(TT + 1), vr(LN16)))
        k.I('ds_read_b128 %s, %s' % (vr(ACK, 4), vr(TT + 1)))
        k.I('ds_read_b128 %s, %s offset:1024' % (vr(ACK + 4, 4), vr(TT + 1)))
    k.I('v_mfma_f32_32x32x16_bf16 %s, %s, %s, 0' % (vr(DKV, 16), vr(ACK, 4), vr(ACV, 4)))
    k.I('v_mfma_f32_32x32x16_bf16 %s, %s, a[0:3], 0' % (vr(DZ, 16), vr(ACK, 4)))
    k.I('v_mfma_f32_32x32x16_bf16 %s, %s, %s, %s' % (vr(DKV, 16), vr(ACK + 4, 4), vr(ACV + 4, 4), vr(DKV, 16)))
    k.I('v_mfma_f32_32x32x16_bf16 %s, %s, a[0:3], %s' % (vr(DZ, 16), vr(ACK + 4, 4), vr(DZ, 16)))
    for o in ['v_and_b32 %s, 16, v1' % vr(TT), 'v_lshlrev_b32 %s, 7, %s' % (vr(TT), vr(TT)),
              'v_lshrrev_b32 %s, 5, v1' % vr(TT + 1), 'v_mul_u32_u24 %s, 272, %s' % (vr(TT + 1), vr(TT + 1)),
              's_lshl_b32 s79, s30, 1', 's_add_u32 s79, s79, s29', 's_lshl_b32 s79, s79, 12', 's_add_u32 s79, s79, %d' % E_KV,
              'v_add3_u32 %s, %s, %s, s79' % (vr(TT), vr(TT), vr(TT + 1)),
              'v_and_b32 %s, 15, v1' % vr(TT + 1), 'v_lshl_add_u32 %s, %s, 4, %s' % (vr(TT + 2), vr(TT + 1), vr(TT)),
              's_add_u32 s40, s40, 16', 's_add_u32 s41, s41, 16']:
        emit(k, o)
    for j in range(8):
        k.I('v_cndmask_b32 %s, %s, %s, s[82:83]' % (vr(DKV + j), vr(DKV + j), vr(DKV + 8 + j)))
    for j in range(8):
        k.I('v_cndmask_b32 %s, %s, %s, s[82:83]' % (vr(DZ + j), vr(DZ + j), vr(DZ + 8 + j)))
    for o in ['ds_write_b128 %s, %s' % (vr(TT + 2), vr(DKV, 4)), 'ds_write_b128 %s, %s offset:544' % (vr(TT + 2), vr(DKV + 4, 4)),
              'v_cmp_eq_u32 vcc, 0, %s' % vr(TT + 1), 's_and_saveexec_b64 s[60:61], vcc',
              'ds_write_b128 %s, %s offset:256' % (vr(TT), vr(DZ, 4)), 'ds_write_b128 %s, %s offset:800' % (vr(TT), vr(DZ + 4, 4)),
              's_mov_b64 exec, s[60:61]'] + pair_signal(40, TT + 1, TT + 2) + \
            ['s_lshl_b32 s79, s30, 13', 's_lshl_b32 s80, s29, 11', 's_add_u32 s79, s79, s80', 's_add_u32 s79, s79, %d' % E_KV]:
        emit(k, o)
    k.I('v_readfirstlane_b32 s80, v11')
    k.I('s_cmp_eq_u32 s80, 0')
    k.I('s_cbranch_scc1 L_a_spin')
    k.label('L_a_go')
    pair_wait(k, 'L_a_pw1', 41, TT + 1, TT + 2, 80)
    k.I('v_lshlrev_b32 %s, 2, v1' % vr(TT))
    k.I('v_add_u32 %s, s79, %s' % (vr(TT + 1), vr(TT)))
    for ch in range(5):
        d = 16 + ch * 2
        k.I('ds_read_b32 %s, %s offset:%d' % (vr(d), vr(TT + 1), ch * 256))
        k.I('ds_read_b32 %s, %s offset:%d' % (vr(d + 1), vr(TT + 1), ch * 256 + 4096))
    k.need('prep')
    for f in range(8):
        k.I('ds_read_b64_tr_b16 %s, %s' % (vr(PF + 4 * f, 2), vr(PAD[f])))
        k.I('ds_read_b64_tr_b16 %s, %s offset:1024' % (vr(PF + 4 * f + 2, 2), vr(PAD[f])))
    for ch in range(5):
        d = 16 + ch * 2
        k.I('v_add_f32 %s, %s, %s' % (vr(d), vr(d), vr(d + 1)))
    for ch in range(4):
        k.I('buffer_atomic_add_f32 %s, %s, %s, s71 offen offset:%d' % (vr(16 + ch * 2), vr(TT), ws, ch * 256))
    k.I('v_cmp_gt_u32 vcc, 16, v1')
    k.I('s_and_saveexec_b64 s[60:61], vcc')
    k.I('buffer_atomic_add_f32 %s, %s, %s, s71 offen offset:1024' % (vr(24), vr(TT), ws))
    k.I('s_mov_b64 exec, s[60:61]')
    if len(OPT.get('kvat', (31,))) < 2: st.stamp()
    for f in range(8):
        k.I('buffer_store_dwordx4 %s, %s, %s, %s offen%s' % (vr(PF + 4 * f, 4), vr(LN16), ws, sr(51 + f), APOL()))
        ca = vr(32 + 4 * (f & 3), 4)
        k.I('v_mfma_f32_16x16x32_bf16 %s, a[4:7], %s, %s' % (ca, vr(PF + 4 * f, 4), '0' if f < 4 else ca))
    for c in range(4):
        k.I('v_cndmask_b32 %s, %s, %s, s[82:83]' % (vr(48 + c), vr(32 + 4 * c), vr(33 + 4 * c)))
        k.I('buffer_store_dword %s, v0, %s, s59 offen offset:%d' % (vr(48 + c), ws, c * 128))
    if gen1.STAMPS:
        k.I('s_mov_b32 s88, s88') if False else None
        k.I('v_lshl_add_u32 v4, s39, 6, v1')
        st.tid = 'v4'
        st.stamp(); st.stamp(True)
        flush_stamps(k, st, ws, 1)
    if OPT.get('dbgt'):
        dbg_time(k, 24, 90, 8, 28)
    k.label('L_a_end')
    k.I('s_endpgm')
    k.raw('''L_a_spin:
    s_mov_b32 s84, 0
L_a_spin2:
    s_sleep 2
    v_mov_b32 v6, 0
    buffer_load_dword v11, v6, s[%d:%d], s78 offen sc1
    s_waitcnt vmcnt(0)
    v_readfirstlane_b32 s80, v11
    s_add_u32 s84, s84, 1
    s_cmp_ge_u32 s84, 0x100000
    s_cbranch_scc1 L_a_go
    s_cmp_eq_u32 s80, 0
    s_cbranch_scc1 L_a_spin2
    s_branch L_a_go
''' % (DB, DB + 3))

    kq = Kernel('a_q')
    k = kq
    k.label('L_a_q')
    stq = Stamper(k, 5, ws, base=88, tmp=40)
    ACQ = 48
    k.I('s_lshl_b32 s34, s28, 12')
    k.I('s_lshl_b32 s35, s32, 16')
    k.I('s_mul_i32 s36, s28, %d' % (32 * 3072))
    k.I('s_lshl_b32 s37, s33, 7')
    k.I('s_add_u32 s36, s36, s37')
    k.I('s_add_u32 s38, s32, s33')
    if OPT.get('norot'):
        k.I('s_mov_b32 s38, 0')
    for c in range(4):
        k.I('s_add_u32 s37, s38, %d' % c)
        k.I('s_and_b32 s37, s37, 3')
        k.I('s_lshl_b32 %s, s37, 8' % sr(60 + c))
        k.I('s_add_u32 %s, %s, s35' % (sr(60 + c), sr(60 + c)))
        k.I('s_mul_i32 %s, s37, %d' % (sr(64 + c), 128 * 3072))
        k.I('s_add_u32 %s, %s, s36' % (sr(64 + c), sr(64 + c)))
    XV = [32, 33, 34, 35]
    WV = [8, 9, 10, 11]
    k.I('v_lshrrev_b32 v2, 4, v1')
    k.I('v_and_b32 v3, 15, v1')
    k.I('s_lshl_b32 s37, s28, 4')
    for j in range(4):
        k.I('v_add_u32 v4, %d, v2' % (4 * j))
        k.I('v_xor_b32 v5, v3, v4')
        k.I('v_lshlrev_b32 v5, 4, v5')
        k.I('v_add_u32 v4, s37, v4')
        k.I('v_lshlrev_b32 v4, 10, v4')
        k.I('v_add_u32 v4, v4, v5')
        k.I('v_subrev_u32 %s, %d, v4' % (vr(XV[j]), j * 1024))
    k.I('v_lshrrev_b32 v4, 3, v1')
    k.I('s_movk_i32 s37, 3072')
    k.I('v_mul_lo_u32 v4, v4, s37')
    k.I('v_and_b32 v5, 1, v2')
    k.I('v_lshlrev_b32 v5, 2, v5')
    k.I('v_and_b32 v6, 7, v1')
    k.I('v_xor_b32 v5, v5, v6')
    k.I('v_lshlrev_b32 v5, 4, v5')
    k.I('v_add_u32 v8, v4, v5')
    for j in range(1, 4):
        k.I('v_add_u32 %s, %d, v8' % (vr(WV[j]), j * (8 * 3072 - 1024)))
    k.I('v_lshlrev_b32 %s, 4, v1' % vr(LN16))
    for j in range(4):
        k.I('v_mov_b32 %s, 0' % vr(40 + j))
    k.I('s_lshl_b32 s37, s33, 2')
    k.I('s_add_u32 s37, s37, s28')
    k.I('s_lshl_b32 s37, s37, 11')
    k.I('s_add_u32 s71, s37, 0x%x' % OFF_KVZ)
    k.I('s_cmp_eq_u32 s32, 0')
    k.I('s_cselect_b32 s37, s71, 0x7fff0000')
    k.I('s_waitcnt lgkmcnt(0)')
    if OPT.get('qpro'): stq.stamp()
    k.I('buffer_store_dwordx4 v[40:43], %s, %s, s37 offen sc1' % (vr(LN16), ws), w=['zero'])
    k.I('buffer_store_dwordx4 v[40:43], %s, %s, s37 offen offset:1024 sc1' % (vr(LN16), ws), w=['zero'])
    k.I('s_lshl_b32 s37, s2, 7')
    k.I('s_lshl_b32 s38, s28, 15')
    k.I('s_add_u32 s37, s37, s38')
    k.I('s_add_u32 s37, s37, 0x%x' % OFF_CNT)
    k.I('v_and_b32 v41, 15, v1')
    k.I('v_lshlrev_b32 v41, 2, v41')
    k.I('buffer_store_dword v40, v41, %s, s37 offen' % ws)

    def dma_x_ops(c, slot):
        ops = ['s_add_u32 m0, s34, %d' % (slot * 16384)]
        for j in range(4):
            ops.append(('buffer_load_dwordx4 %s, %s, %s offen offset:%d lds' % (vr(XV[j]), sr(XS, 4), sr(60 + c), j * 1024), 'X%d' % c))
        return ops
    PARTCOL = {'q': 0, 'k': 1024, 'v': 2048}

    def dma_w_ops(part, c, slot):
        ops = ['s_add_u32 m0, s34, %d' % (slot * 16384), 's_add_u32 s69, %s, %d' % (sr(64 + c), PARTCOL[part])]
        for j in range(4):
            ops.append(('buffer_load_dwordx4 %s, %s, s69 offen offset:%d lds' % (vr(WV[j]), sr(WQ, 4), j * 1024), 'W%s%d' % (part, c)))
        return ops
    def interleave(a, b, ratio=None):
        nv = sum(1 for o in a if isinstance(o, tuple))
        out, ib, seen = [], 0, 0
        for o in a:
            out.append(o)
            if isinstance(o, tuple):
                seen += 1
                upto = len(b) * seen // nv
                out += b[ib:upto]
                ib = upto
        return out + b[ib:]
    grp = lambda c: dma_x_ops(c, 2 * c) + dma_w_ops('k', c, 2 * c + 1)
    for o in grp(0):
        emit(k, o)
    if OPT.get('qpro'): stq.stamp()
    ktmp = Kernel('tmp')
    common_setup(ktmp)
    setup_ops = [it.text for it in ktmp.items]
    for o in interleave(grp(1), setup_ops):
        emit(k, o)
    stq.stamp()
    SQ = 24
    SQ4 = [24, 25, 28, 29]
    for r_ in SQ4:
        k.I('v_mov_b32 %s, 0' % vr(r_))
    nextdma = {0: grp(2), 1: grp(3), 2: dma_w_ops('v', 0, 0) + dma_w_ops('v', 1, 1), 3: dma_w_ops('v', 2, 2) + dma_w_ops('v', 3, 3)}
    for g in range(4):
        if OPT.get('qg') == (g,): stq.stamp()
        k.need(*(['X%d' % g, 'Wk%d' % g] + (['zero'] if g == 0 else [])))
        if OPT.get('qg') == (g,) or (OPT.get('qpro') and g == 0): stq.stamp()
        k.I('s_barrier')
        if OPT.get('qg') == (g,): stq.stamp()
        work = []
        if g == 0:
            work += ['s_or_b32 s38, s32, s28', 's_cmp_eq_u32 s38, 0', 's_cselect_b32 s38, 0, 0x1000',
                     'v_lshlrev_b32 v26, 12, v1', 's_lshl_b32 s78, s33, 2', 'v_add_u32 v26, s78, v26', 'v_mov_b32 v27, 1']
        if g == 2:
            work += ['v_add_u32 %s, 0x10000, %s' % (vr(XA + t), vr(XA + t)) for t in range(8)]
        work += [xread(8 * g + s) for s in range(8)]
        for s in range(0, 8, 2):
            n = 8 * g + s
            work.append('v_mfma_f32_16x16x32_bf16 a[8:11], a[4:7], %s, %s' % (vr(X + 4 * n, 4), '0' if n == 0 else 'a[8:11]'))
            for j in range(4):
                xr = X + 4 * n + j
                work.append('v_dot2c_f32_bf16 %s, %s, %s' % (vr(SQ4[j]), vr(xr), vr(xr)))
        if OPT.get('noqwork'):
            work = [w for w in work if not (w.startswith('v_mfma') or w.startswith('v_dot2c'))]
        if OPT.get('qafter'):
            for o in nextdma[g] + work:
                emit(k, o)
        else:
            for o in interleave(nextdma[g], work):
                emit(k, o)
        if OPT.get('qg') == (g,): stq.stamp()
        if g == 0:
            k.I('buffer_store_dword v27, v26, %s, s38 offen sc1' % sr(DB, 4))
    if not (OPT.get('qpro') or OPT.get('qg')): stq.stamp()
    k.need('Wv0', 'Wv1')
    k.I('s_waitcnt lgkmcnt(0)')
    k.I('s_barrier')
    for o in dma_w_ops('q', 0, 4) + dma_w_ops('q', 1, 5):
        emit(k, o)
    for o in ['v_add_f32 v24, v24, v28', 'v_add_f32 v25, v25, v29', 'v_add_f32 v25, v24, v25'] + xhalf_ops(25, 26) + \
            ['v_accvgpr_read_b32 v24, a8', 'v_accvgpr_read_b32 v27, a9', 'v_cndmask_b32 v24, v24, v27, s[82:83]',
             'v_lshlrev_b32 v26, 1, v0', 'v_add_u32 v26, s73, v26', 'ds_write_b64 v26, v[24:25]', 's_waitcnt lgkmcnt(0)',
             's_barrier'] + stats_finish_ops():
        emit(k, o)
    for o in dma_w_ops('q', 2, 6) + dma_w_ops('q', 3, 7):
        emit(k, o)
    k.need('Wv2', 'Wv3')
    k.I('s_barrier')
    if OPT.get('koff'):
        KA_, MNq, RSq = 48, 64, 80
        for o in ['v_add_u32 v26, s77, v0', 'ds_write_b32 v26, %s' % vr(MEAN), 'ds_write_b32 v26, %s offset:128' % vr(RSTD),
                  'v_lshrrev_b32 v26, 5, v1', 'v_lshlrev_b32 v26, 4, v26', 'v_add_u32 v26, s77, v26',
                  'v_add_u32 v27, s75, v0', 'v_add_u32 v28, s76, v0', 'ds_read_b32 %s, v27' % vr(CK), 'ds_read_b32 v30, v28',
                  's_lshl_b32 s79, s28, 12', 's_add_u32 s79, s79, %d' % E_KV, 'v_add_u32 v27, s79, %s' % vr(LN16)]:
            k.I(o)
        for q in range(4):
            k.I('ds_read_b128 %s, v27 offset:%d' % (vr(KA_ + 4 * q, 4), q * 1024))
        for a in range(4):
            k.I('ds_read_b128 %s, v26 offset:%d' % (vr(MNq + 4 * a, 4), a * 32))
            k.I('ds_read_b128 %s, v26 offset:%d' % (vr(RSq + 4 * a, 4), 128 + a * 32))
        k.I('v_add_f32 %s, %s, v30' % (vr(CK), vr(CK)))
        for i in range(0, 16, 2):
            for o in ln_phi_ops([KA_ + i, KA_ + i + 1], [MNq + i, MNq + i + 1], [CK, CK], [RSq + i, RSq + i + 1], [28, 29]):
                k.I(o)
            k.I('v_cvt_pk_bf16_f32 %s, %s, %s' % (vr(KA_ + i // 2), vr(KA_ + i), vr(KA_ + i + 1)))
        k.I('ds_write_b128 v27, %s' % vr(KA_, 4))
        k.I('ds_write_b128 v27, %s offset:1024' % vr(KA_ + 4, 4))
        k.I('s_lshl_b32 s79, s28, 2')
        k.I('s_add_u32 s79, s79, %d' % (E_FL + 64))
        for o in pair_signal(79, 26, 28):
            k.I(o)
    k.need('Wq0', 'Wq1')
    if OPT.get('oldbar'):
        k.I('s_barrier')
    else:
        q_sync(k, 'L_a_qs0', E_FL + 48)
    if not (OPT.get('qpro') or OPT.get('qg')): stq.stamp()
    for n in range(LA):
        for o in wreads('q', n):
            k.I(o)
    for n in range(32):
        if n % 2 == 0:
            k.touch(vr(WR + 4 * ((n + 1) % 8), 4))
        acc = vr(ACQ, 16)
        k.I('v_mfma_f32_32x32x16_bf16 %s, %s, %s, %s' % (acc, vr(WR + 4 * (n % 8), 4), vr(X + 4 * n, 4), acc if n else '0'))
        if n == 16 - LA - 1:
            k.need('Wq2', 'Wq3')
            if OPT.get('oldbar'):
                k.I('s_barrier')
            else:
                q_sync(k, 'L_a_qs1', E_FL + 52)
        if n + LA < 32:
            for o in wreads('q', n + LA):
                k.I(o)
        if n % 2 == 0:
            k.I('v_mfma_f32_16x16x32_bf16 a[12:15], a[4:7], %s, %s' % (vr(WR + 4 * (n % 8), 4), '0' if n == 0 else 'a[12:15]'))
    if not (OPT.get('qpro') or OPT.get('qg')): stq.stamp()
    CSQ = 64
    for o in ['v_accvgpr_read_b32 %s, a12' % vr(CSQ), 'v_accvgpr_read_b32 %s, a13' % vr(CSQ + 1),
              'v_cndmask_b32 %s, %s, %s, s[82:83]' % (vr(CSQ), vr(CSQ), vr(CSQ + 1)),
              'v_add_u32 %s, s75, v0' % vr(CSQ + 1), 'ds_write_b32 %s, %s offset:1024' % (vr(CSQ + 1), vr(CSQ)),
              's_add_u32 s40, s40, 32', 's_add_u32 s41, s41, 32'] + pair_signal(40, CSQ + 1, CSQ + 2) + \
             ['v_lshrrev_b32 v20, 5, v1', 'v_lshlrev_b32 v20, 4, v20', 'v_add_u32 v21, s76, v20', 'v_add_u32 v20, s75, v20']:
        k.I(o)
    pair_wait(k, 'L_a_pw2', 41, CSQ + 1, CSQ + 2, 79)
    CQ, CQ2 = 24, 64
    for a in range(4):
        k.I('ds_read_b128 %s, v20 offset:%d' % (vr(CQ + 4 * a, 4), 1024 + a * 32))
        k.I('ds_read_b128 %s, v21 offset:%d' % (vr(CQ2 + 4 * a, 4), 1024 + a * 32))
    for i in range(16):
        k.I('v_add_f32 %s, %s, %s' % (vr(CQ + i), vr(CQ + i), vr(CQ2 + i)))
    for i in range(0, 16, 2):
        for o in ln_phi_ops([ACQ + i, ACQ + i + 1], [MEAN, MEAN], [CQ + i, CQ + i + 1], [RSTD, RSTD], [22, 23]):
            k.I(o)
        k.I('v_cvt_pk_bf16_f32 %s, %s, %s' % (vr(ACQ + i // 2), vr(ACQ + i), vr(ACQ + i + 1)))
    for o in ['s_lshl_b32 s79, s32, 1', 's_add_u32 s79, s79, s29', 's_lshl_b32 s79, s79, 5', 's_lshl_b32 s80, s33, 2',
              's_add_u32 s79, s79, s80', 's_lshl_b32 s80, s30, 1', 's_add_u32 s79, s79, s80', 's_lshl_b32 s79, s79, 10',
              's_add_u32 s79, s79, 0x%x' % OFF_PQ]:
        k.I(o)
    k.I('buffer_store_dwordx4 %s, %s, %s, s79 offen%s' % (vr(ACQ, 4), vr(LN16), ws, APOL()))
    k.I('buffer_store_dwordx4 %s, %s, %s, s79 offen offset:1024%s' % (vr(ACQ + 4, 4), vr(LN16), ws, APOL()))
    if gen1.STAMPS:
        k.I('v_lshl_add_u32 v4, s39, 6, v1')
        k.I('v_subrev_u32 v4, 256, v4')
        stq.tid = 'v4'
        stq.stamp(); stq.stamp(True)
        flush_stamps(k, stq, ws, 5)
    if OPT.get('dbgt'):
        dbg_time(k, 24, 90, 8, 28)
    k.I('s_endpgm')
    return Multi([kp, kq_first(kk, kq)[0], kq_first(kk, kq)[1]]), dict(lds=131072 + 8192 + 16384, grid=256, block=512)


def dbg_time(k, DB, s_start, slot, s_wave):
    k.I('s_memrealtime s[92:93]')
    k.I('s_waitcnt lgkmcnt(0)')
    k.I('s_not_b32 s94, s%d' % s_start)
    k.I('s_mov_b64 exec, 1')
    k.I('v_mov_b32 v0, 0')
    k.I('v_mov_b32 v2, s94')
    k.I('v_mov_b32 v3, s%d' % s_start)
    k.I('v_mov_b32 v4, s92')
    k.I('buffer_atomic_umax v2, v0, %s, 0 offen offset:%d' % (sr(DB, 4), slot * 4))
    k.I('buffer_atomic_umax v3, v0, %s, 0 offen offset:%d' % (sr(DB, 4), slot * 4 + 4))
    k.I('buffer_atomic_umax v4, v0, %s, 0 offen offset:%d' % (sr(DB, 4), slot * 4 + 8))


def kq_first(kk, kq):
    return kk, kq


def flush_stamps(k, st, ws, kidx):
    k.I('s_waitcnt lgkmcnt(0)')
    k.I('v_cmp_eq_u32 vcc, 0, %s' % st.tid)
    k.I('s_and_saveexec_b64 s[40:41], vcc')
    k.I('s_lshl_b32 s42, s2, 7')
    k.I('s_add_u32 s42, s42, 0x%x' % (OFF_TS + kidx * 256 * 128))
    k.I('v_mov_b32 v0, 0')
    regs = [84, 86] + [st.base + 2 * i for i in range(st.n)]
    for i, r in enumerate(regs):
        k.I('v_mov_b32 v2, s%d' % r)
        k.I('v_mov_b32 v3, s%d' % (r + 1))
        k.I('buffer_store_dwordx2 v[2:3], v0, %s, s42 offen offset:%d' % (ws, 8 * i))
    k.I('s_mov_b64 exec, s[40:41]')


def prep_decode(k):
    k.I('s_cmp_ge_u32 s38, 448')
    k.I('s_cbranch_scc1 L_a_pstd')
    div_const(k, 37, 38, 28, 48)
    k.I('s_mul_i32 s48, s37, 28')
    k.I('s_sub_u32 s69, s38, s48')
    k.I('s_mov_b32 s16, s44')
    k.I('s_mov_b32 s17, s45')
    k.I('s_mov_b32 s18, 0x%x' % SZ['wg'])
    k.I('s_mov_b32 s20, s46')
    k.I('s_mov_b32 s21, s47')
    k.I('s_mov_b32 s22, 0x%x' % SZ['wu'])
    k.I('s_movk_i32 s50, 3584')
    k.I('s_mul_i32 s48, s37, %d' % (32 * 3584))
    k.I('s_lshl_b32 s49, s69, 7')
    k.I('s_add_u32 s48, s48, s49')
    k.I('s_mov_b32 s49, s48')
    k.I('s_lshl_b32 s59, s69, 7')
    k.I('s_lshl_b32 s51, s37, 1')
    k.I('s_add_u32 s59, s59, s51')
    k.I('s_lshl_b32 s59, s59, 10')
    k.I('s_add_u32 s72, s59, 0x%x' % OFF_WGU)
    k.I('s_mov_b32 s73, %d' % (32 * 1024))
    k.I('s_mov_b32 s74, %d' % (64 * 1024))
    k.I('s_mov_b32 s75, 1024')
    k.I('s_mul_i32 s59, s37, %d' % (112 * 128))
    k.I('s_lshl_b32 s69, s69, 9')
    k.I('s_add_u32 s59, s59, s69')
    k.I('s_add_u32 s59, s59, 0x%x' % OFF_CSG)
    k.I('s_mov_b32 s68, 1')
    k.I('s_branch L_a_pgo')
    k.label('L_a_pstd')
    k.I('s_movk_i32 s50, 1024')
    k.I('s_mov_b32 s68, 0')
    k.I('s_mov_b32 s59, 0x7fff0000')
    k.I('s_cmp_ge_u32 s38, 672')
    k.I('s_cbranch_scc1 L_a_pwo')
    k.I('s_sub_u32 s37, s38, 448')
    k.I('s_and_b32 s69, s37, 7')
    k.I('s_lshr_b32 s37, s37, 3')
    k.I('s_mov_b32 s16, s42')
    k.I('s_mov_b32 s17, s43')
    k.I('s_mov_b32 s18, 0x%x' % SZ['wd'])
    k.I('s_mul_i32 s48, s69, 224')
    k.I('s_lshl_b32 s49, s37, 2')
    k.I('s_add_u32 s48, s48, s49')
    k.I('s_lshl_b32 s48, s48, 10')
    k.I('s_add_u32 s72, s48, 0x%x' % OFF_WD)
    k.I('s_mov_b32 s73, %d' % (112 * 1024))
    k.I('s_mov_b32 s74, 1024')
    k.I('s_mov_b32 s75, 2048')
    k.I('s_branch L_a_pstd2')
    k.label('L_a_pwo')
    k.I('s_sub_u32 s37, s38, 672')
    k.I('s_and_b32 s69, s37, 7')
    k.I('s_lshr_b32 s37, s37, 3')
    k.I('s_mov_b32 s16, s40')
    k.I('s_mov_b32 s17, s41')
    k.I('s_mov_b32 s18, 0x%x' % SZ['wo'])
    k.I('s_lshl_b32 s48, s37, 6')
    k.I('s_lshl_b32 s49, s69, 1')
    k.I('s_add_u32 s48, s48, s49')
    k.I('s_lshl_b32 s48, s48, 10')
    k.I('s_add_u32 s72, s48, 0x%x' % OFF_WO)
    k.I('s_cmp_ge_u32 s38, 736')
    k.I('s_cselect_b32 s72, 0x7fff0000, s72')
    k.I('s_cselect_b32 s18, 0, s18')
    k.I('s_mov_b32 s73, 1024')
    k.I('s_mov_b32 s74, %d' % (16 * 1024))
    k.I('s_mov_b32 s75, %d' % (32 * 1024))
    k.label('L_a_pstd2')
    k.I('s_mov_b32 s20, s16')
    k.I('s_mov_b32 s21, s17')
    k.I('s_mov_b32 s22, s18')
    k.I('s_lshl_b32 s48, s37, 16')
    k.I('s_lshl_b32 s49, s69, 7')
    k.I('s_add_u32 s48, s48, s49')
    k.I('s_add_u32 s49, s48, %d' % (32 * 1024))
    k.label('L_a_pgo')
    k.I('s_mov_b32 s51, s72')
    k.I('s_add_u32 s52, s72, s73')
    k.I('s_add_u32 s53, s72, s74')
    k.I('s_add_u32 s54, s52, s74')
    for f in range(4):
        k.I('s_add_u32 %s, %s, s75' % (sr(55 + f), sr(51 + f)))


if __name__ == '__main__':
    n = int(sys.argv[2]) if len(sys.argv) > 2 else 4
    gen1.STAMPS = len(sys.argv) > 3 and sys.argv[3] == 'stamps'
    for o in sys.argv[4:]:
        if '=' in o:
            kk_, vv_ = o.split('=')
            gen1.OPT[kk_] = tuple(int(x) for x in vv_.split(','))
        else:
            gen1.OPT[o] = True
    gens = [('qkv_kernel', gen_a8), ('attn_kernel', gen_k2), ('gateup_kernel', gen_k3), ('down_kernel', gen_k4)]
    ks = []
    for label, g in gens[:n]:
        kk, cc = g()
        ks.append((label, kk, cc))
        print(label, kk.stats(), kk.maxreg())
    open(sys.argv[1], 'w').write(wrap(ks))
```
